```python
import torch

def _softmax(x, axis=-1):
    return torch.softmax(x, dim=axis)
def _gelu(x):
    return torch.nn.functional.gelu(x, approximate="tanh")
def _silu(x):
    return torch.nn.functional.silu(x)
def _sigmoid(x):
    return torch.sigmoid(x)
def _layernorm(x, axis=-1, eps=1e-5):
    m = x.mean(dim=axis, keepdim=True)
    v = x.var(dim=axis, keepdim=True, unbiased=False)
    return (x - m) / torch.sqrt(v + eps)
def _scatter_add(tgt, idx, src, axis=0):
    return tgt.clone().index_add_(axis, idx, src)
def _segment_sum(src, seg, n):
    out = torch.zeros((n,) + src.shape[1:], dtype=src.dtype)
    return out.index_add_(0, seg, src)
def _pad(x, pw):
    flat = tuple(v for pair in reversed(pw) for v in pair)
    return torch.nn.functional.pad(x, flat)

kernel_name = 'parallel_sum__sliding_block_cached__dense_activation_mish__decode'

def setup_inputs():

    _w = (lambda a: (lambda t: t.to(torch.bfloat16) if t.is_floating_point() else t)(torch.as_tensor(a)))
    def _A_setup():
        B, Sq, D = 2, 1, 512
        Hq, Hkv, Sk, Dh = 32, 8, 8192, 128
        assert Hq % Hkv == 0, (Hq, Hkv)
        return {
            "x": _w((lambda *s: torch.randn(*s, dtype=torch.bfloat16) * 0.05)(B, Sq, D)),
            "k_cache": _w((lambda *s: torch.randn(*s, dtype=torch.bfloat16) * 1.6)(B, Hkv, Sk, Dh)),
            "v_cache": _w((lambda *s: torch.randn(*s, dtype=torch.bfloat16) * 0.4)(B, Hkv, Sk, Dh)),
            "wq": _w((lambda *s: torch.randn(*s, dtype=torch.bfloat16) * 1.6)(D, Hq * Dh) * (D ** -0.5)),
            "wo": _w((lambda *s: torch.randn(*s, dtype=torch.bfloat16) * 0.4)(Hq * Dh, D) * ((Hq * Dh) ** -0.5)),
        }
    _A_in = _A_setup()

    def _B_setup():
        B, S, D, F = 2, 1, 512, 1792
        return {
            "x": _w((lambda *s: torch.randn(*s, dtype=torch.bfloat16) * 0.05)(B, S, D)),
            "w1": _w((lambda *s: torch.randn(*s, dtype=torch.bfloat16) * 0.8)(D, F) * (D ** -0.5)),
            "b1": _w((lambda *s: torch.randn(*s, dtype=torch.bfloat16) * 0.2)(F)),
            "w2": _w((lambda *s: torch.randn(*s, dtype=torch.bfloat16) * 0.1)(F, D) * (F ** -0.5)),
        }
    _B_in = _B_setup()

    return {
        "A_x": _A_in["x"],
        "A_k_cache": _A_in["k_cache"],
        "A_v_cache": _A_in["v_cache"],
        "A_wq": _A_in["wq"],
        "A_wo": _A_in["wo"],
        "B_x": _B_in["x"],
        "B_w1": _B_in["w1"],
        "B_b1": _B_in["b1"],
        "B_w2": _B_in["w2"],
    }

def reference(A_x, A_k_cache, A_v_cache, A_wq, A_wo, B_x, B_w1, B_b1, B_w2):
    def _A_ref(x, k_cache, v_cache, wq, wo):
        B, Sq, D = x.shape
        Hq, Dh = 32, 128
        Hkv, Sk = k_cache.shape[1], k_cache.shape[2]
        W = min(4096, max(256, Sk // 4))
        rep = Hq // Hkv
        q = (lambda x, *d: x.permute(*d))((x @ wq).reshape(B, Sq, Hq, Dh), 0, 2, 1, 3)
        k = (lambda x, n, axis: torch.repeat_interleave(x, n, dim=axis))(k_cache[:, :, Sk - W:, :], rep, axis=1)
        v = (lambda x, n, axis: torch.repeat_interleave(x, n, dim=axis))(v_cache[:, :, Sk - W:, :], rep, axis=1)
        scores = torch.einsum("bhqd,bhkd->bhqk", q, k) * (Dh ** -0.5)
        p = _softmax(scores, axis=-1)
        o = torch.einsum("bhqk,bhkd->bhqd", p, v)
        return (lambda x, *d: x.permute(*d))(o, 0, 2, 1, 3).reshape(B, Sq, Hq * Dh) @ wo

    def _B_ref(x, w1, b1, w2):
        h = torch.einsum("bsd,df->bsf", x, w1) + b1
        sp = torch.log1p(torch.exp(-torch.abs(h))) + torch.where(h > 0, h, torch.zeros_like(h))
        act = h * torch.tanh(sp)
        return torch.einsum("bsf,fd->bsd", act, w2)

    x = A_x
    xn = _layernorm(x, axis=-1)
    return x + _A_ref(xn, A_k_cache, A_v_cache, A_wq, A_wo) + _B_ref(xn, B_w1, B_b1, B_w2)
```

```python
import re

TRANS = ("v_exp_f32", "v_log_f32", "v_rcp_f32", "v_rsq_f32", "v_sqrt_f32", "v_sin_f32", "v_cos_f32")

def regs_of(tok):
    tok = tok.strip()
    tok = tok.lstrip("-")
    m = re.match(r"^abs\((.*)\)$", tok) or re.match(r"^\|(.*)\|$", tok)
    if m: tok = m.group(1)
    m = re.match(r"^([vsa])\[(\d+):(\d+)\]$", tok)
    if m: return {(m.group(1), i) for i in range(int(m.group(2)), int(m.group(3)) + 1)}
    m = re.match(r"^([vsa])(\d+)$", tok)
    if m: return {(m.group(1), int(m.group(2)))}
    if tok == "vcc": return {("s", "vcc_lo"), ("s", "vcc_hi")}
    if tok in ("vcc_lo", "vcc_hi"): return {("s", tok)}
    if tok == "exec": return {("s", "exec_lo"), ("s", "exec_hi")}
    if tok in ("exec_lo", "exec_hi", "m0"): return {("s", tok)}
    return set()

class Ins:
    def __init__(self, text):
        self.text = text
        t = text.split(";")[0].strip()
        parts = t.split(None, 1)
        self.op = parts[0]
        rest = parts[1] if len(parts) > 1 else ""
        ops, cur, depth = [], "", 0
        for ch in rest:
            if ch in "[(": depth += 1
            if ch in "])": depth -= 1
            if ch == "," and depth == 0:
                ops.append(cur.strip()); cur = ""
            else: cur += ch
        if cur.strip(): ops.append(cur.strip())
        self.mods = ""
        if ops:
            sp = ops[-1].split(None, 1)
            if len(sp) > 1:
                ops[-1] = sp[0]; self.mods = sp[1]
        self.ops = ops
        op = self.op
        self.is_mfma = op.startswith("v_mfma")
        self.is_valu = op.startswith("v_") and not self.is_mfma
        self.is_vmem = op.startswith(("buffer_", "global_", "flat_"))
        self.is_ds = op.startswith("ds_")
        self.is_salu = op.startswith("s_")
        self.is_dpp = "_dpp" in op or "row_" in self.mods or "quad_perm" in self.mods
        self.is_perm = op.startswith("v_permlane")
        self.is_trans = any(op.startswith(x) for x in TRANS)
        self.is_rl = op.startswith(("v_readlane", "v_readfirstlane"))
        w, r = set(), set()
        R = [regs_of(o) for o in ops]
        if self.is_mfma:
            w = R[0]; r = R[1] | R[2] | R[3]; self.srcc = R[3]; self.srcab = R[1] | R[2]
        elif self.is_valu:
            if op.startswith("v_cmp"):
                w = R[0]; r = set().union(*R[1:])
                if op.startswith("v_cmpx"): w = w | regs_of("exec")
            elif self.is_perm and "swap" in op:
                w = R[0] | R[1]; r = R[0] | R[1]
            elif op.startswith(("v_add_co", "v_sub_co", "v_addc_co", "v_subb_co")):
                w = R[0] | R[1]; r = set().union(*R[2:])
            else:
                w = R[0]; r = set().union(*R[1:]) if len(R) > 1 else set()
                if op.startswith(("v_fmac", "v_dot2c", "v_writelane", "v_mac")) or self.is_dpp: r = r | R[0]
                if op.startswith("v_cndmask") and len(ops) == 3: r = r | regs_of("vcc")
        elif self.is_vmem:
            lds = " lds" in (" " + self.mods) or "_lds_" in op
            if "load" in op and not lds:
                w = R[0]; r = set().union(*R[1:])
            else:
                r = set().union(*R)
                if lds: r = r | {("s", "m0")}
            self.lds = lds
            self.store_data = set()
            if "store" in op and ("x4" in op or "x3" in op):
                self.store_data = R[0] if op.startswith("buffer_") else R[1]
        elif self.is_ds:
            if op.startswith(("ds_read", "ds_bpermute", "ds_permute", "ds_swizzle")):
                w = R[0]; r = set().union(*R[1:])
            else:
                r = set().union(*R)
        elif self.is_salu:
            if op.startswith(("s_cmp", "s_cbranch", "s_branch", "s_waitcnt", "s_barrier", "s_nop", "s_sleep", "s_setprio", "s_endpgm", "s_bitcmp")):
                r = set().union(*R) if R else set()
            else:
                w = R[0] if R else set(); r = set().union(*R[1:]) if len(R) > 1 else set()
                if "saveexec" in op: w = w | regs_of("exec")
        self.w, self.r = w, r
        self.slots = 1
        if op == "s_nop": self.slots = int(ops[0]) + 1

def V(s): return {x for x in s if x[0] in ("v", "a")}
def S(s): return {x for x in s if x[0] == "s"}

def need(p, c):
    n = 0
    passes = 0
    if p.is_mfma:
        passes = 8 if "32x32" in p.op else 4
        if p.op.endswith("_f32") and "x4_f32" in p.op: passes = 8
        k = {4: 8, 8: 12, 16: 20}[passes]
        if c.is_mfma:
            if p.w & c.srcab: n = max(n, k)
            if p.w & c.srcc and not (p.w == c.srcc and p.op == c.op): n = max(n, {4: 6, 8: 10}[passes])
            if p.w & c.w and not (p.w & c.srcc): n = max(n, k)
        elif c.is_valu or c.is_vmem or c.is_ds:
            if p.w & (c.r | c.w): n = max(n, k)
        if c.is_valu and (p.srcc & c.w): n = max(n, {4: 3, 8: 7}[passes])
    if p.is_valu:
        vw = V(p.w); sw = S(p.w)
        if c.is_mfma and vw & c.r: n = max(n, 2)
        if c.is_mfma and (("s", "exec_lo") in sw): n = max(n, 4)
        if c.is_valu:
            if c.is_dpp and vw & c.r: n = max(n, 2)
            if c.is_dpp and (("s", "exec_lo") in sw): n = max(n, 5)
            if c.is_perm and vw & c.r: n = max(n, 2)
            if c.is_rl and vw & c.r: n = max(n, 1)
            if p.is_trans and not c.is_trans and vw & c.r: n = max(n, 1)
            if p.is_trans and c.is_trans and vw & c.r: n = max(n, 1)
            if sw & c.r: n = max(n, 4 if (c.is_rl or c.op.startswith("v_writelane")) else 2)
            if ("sdwa" in p.op or "op_sel" in p.mods) and vw & (c.r | c.w): n = max(n, 1)
        if c.is_vmem and sw & c.r: n = max(n, 5)
        if c.is_salu and sw & c.r: n = max(n, 1)
    if p.is_salu:
        if ("s", "m0") in p.w and c.is_vmem and getattr(c, "lds", False): n = max(n, 1)
    if p.is_vmem and getattr(p, "store_data", None):
        if (p.store_data & c.w): n = max(n, 2)
    return n

class Asm:
    def __init__(self):
        self.lines = []
        self.hist = []
        self.nops = 0
    def raw(self, s):
        self.lines.append(s)
    def label(self, name):
        self.lines.append(name + ":")
    def __call__(self, text):
        for ln in text.strip().split("\n"):
            ln = ln.strip()
            if not ln or ln.startswith(";"):
                if ln: self.lines.append("    " + ln)
                continue
            if ln.endswith(":"):
                self.label(ln[:-1]); continue
            c = Ins(ln)
            dist = 0; pad = 0
            for p in reversed(self.hist[-24:]):
                k = need(p, c)
                if k > dist: pad = max(pad, k - dist)
                dist += p.slots
            while pad > 0:
                t = min(pad, 16)
                nop = Ins("s_nop %d" % (t - 1))
                self.lines.append("    " + nop.text); self.hist.append(nop); self.nops += 1
                pad -= t
            self.lines.append("    " + ln)
            self.hist.append(c)
    def text(self):
        return "\n".join(self.lines) + "\n"

class Alloc:
    def __init__(self, kind, start, limit):
        self.kind = kind; self.next = start; self.limit = limit; self.names = {}; self.free = []
        self.hw = start
    def get(self, n=1, align=None):
        align = align or (1 if n == 1 else (2 if (n == 2 or self.kind == "v") else 4))
        if self.kind == "v" and n >= 2: align = max(align, 2)
        b = (self.next + align - 1) // align * align
        self.next = b + n
        assert self.next <= self.limit, "out of %s regs" % self.kind
        self.hw = max(self.hw, self.next)
        return Reg(self.kind, b, n)
    def mark(self): return self.next
    def release(self, m): self.next = m

class Reg:
    def __init__(self, kind, base, n):
        self.kind = kind; self.base = base; self.n = n
    def __str__(self):
        return "%s%d" % (self.kind, self.base) if self.n == 1 else "%s[%d:%d]" % (self.kind, self.base, self.base + self.n - 1)
    def __getitem__(self, i):
        if isinstance(i, slice):
            st = i.start or 0; en = i.stop if i.stop is not None else self.n
            assert 0 <= st < en <= self.n
            return Reg(self.kind, self.base + st, en - st)
        assert 0 <= i < self.n
        return Reg(self.kind, self.base + i, 1)
    def __format__(self, spec): return str(self)
```

```python
import sys
from asmlib import *

NAME = "parallel_sum__sliding_block_cached__dense_activation_mish__decode"
PHI = 0x9E3779B9
QBUF = 0x10000; HBUF = 0x50000; SC1D = 0x20000; MLB = 0x90000; PART = 0x100000; FIN = 0x200000; DBG = 0x400000; STAMP = 0x800000
L_XN = 0; L_Q = 4096; L_MX = 5632; L_WQ = 8192; L_WO = 8192; L_W1 = 24576; L_W2 = 32768; L_V = 40960; LDS_BYTES = 73728
QSTR = 320

def gen(opt):
    nt = opt.get("nt", {})
    def pol(k): return nt.get(k, "")
    stamps = opt.get("stamps", False)
    dump = opt.get("dump", False)
    a = Asm()
    v = Alloc("v", 1, 256); s = Alloc("s", 44, 100)
    hdr = open("cdna_kernels/%s.s.ref" % NAME).read().split("\n")
    hdr = [l for l in hdr if l.startswith(";") and "@launch" not in l and "Override" not in l and "grid=ceil" not in l]
    out = list(hdr)
    out.append("; @launch grid=(256,1,1) block=(256,1,1) lds=%d" % LDS_BYTES)
    out.append('.amdgcn_target "amdgcn-amd-amdhsa--gfx950"')
    out.append(".text\n.globl %s_kernel\n.p2align 8\n.type %s_kernel,@function\n%s_kernel:" % (NAME, NAME, NAME))
    SX, SK, SV, SWQ, SWO, SW1, SB1, SW2, SOUT, SWS = [Reg("s", 4 + 4 * i, 4) for i in range(10)]
    vm = []
    def vmem(name, text):
        a(text); vm.append(name)
    def wait_vm(name, extra=""):
        idx = max(i for i, n in enumerate(vm) if n == name)
        n = len(vm) - 1 - idx
        a("s_waitcnt vmcnt(%d)%s" % (n, extra))
    nst = [0]
    sST = None
    if stamps:
        sST = s.get(32, 4)
    def stamp():
        if stamps:
            k = nst[0]; nst[0] += 1
            assert k < 16
            a("s_memrealtime %s" % sST[2 * k:2 * k + 2])
    stamp()
    a(f"""
    s_load_dwordx2 {SX[0:2]}, s[0:1], 0
    s_load_dwordx2 {SWQ[0:2]}, s[0:1], 24
    s_load_dwordx2 {SW1[0:2]}, s[0:1], 48
    s_load_dwordx2 {SK[0:2]}, s[0:1], 8
    s_load_dwordx2 {SWS[0:2]}, s[0:1], 88
    s_load_dwordx2 {SW2[0:2]}, s[0:1], 64
    s_cmp_ge_u32 s2, 256
    s_cbranch_scc1 L_end
    """)
    sW, sG, sJ, sA, sC, sT, sBLK, sTmp, sTmp2 = [s.get() for _ in range(9)]
    oXO, oWQ, oW1, oKV, oK, oW2 = [s.get() for _ in range(6)]
    sM = s.get()
    vL = Reg("v", 0, 1)
    vGQ, vI, vT0, vT1 = [v.get() for _ in range(4)]
    vXS, vXO, vWQe, vWQo, vW1e, vW1o, vK = [v.get() for _ in range(7)]
    a(f"""
    v_readfirstlane_b32 {sW}, v0
    v_and_b32 v0, 63, v0
    s_and_b32 {sG}, s2, 7
    s_lshr_b32 {sJ}, s2, 3
    s_lshr_b32 {sW}, {sW}, 6
    s_lshr_b32 {sA}, {sJ}, 3
    s_and_b32 {sC}, {sJ}, 7
    v_lshrrev_b32 {vGQ}, 4, v0
    v_and_b32 {vI}, 15, v0
    s_mov_b32 {SX[2]}, 2048
    s_mov_b32 {SX[3]}, 0x20000
    s_mov_b32 {SWQ[2]}, {512*4096*2}
    s_mov_b32 {SWQ[3]}, 0x20000
    v_and_b32 {vT0}, 1, v0
    v_lshlrev_b32 {vT0}, 10, {vT0}
    v_lshrrev_b32 {vT1}, 1, v0
    v_lshl_add_u32 {vXS}, {vT1}, 5, {vT0}
    v_lshl_add_u32 {vXO}, {vGQ}, 4, {vT0}
    v_and_b32 {vT0}, 1, {vGQ}
    v_lshlrev_b32 {vT0}, 1, {vT0}
    v_and_b32 {vT1}, 7, v0
    v_xor_b32 {vT0}, {vT0}, {vT1}
    v_lshlrev_b32 {vT0}, 4, {vT0}
    v_lshrrev_b32 {vT1}, 3, v0
    v_lshl_add_u32 {vWQe}, {vT1}, 13, {vT0}
    v_xor_b32 {vWQo}, 64, {vWQe}
    v_mul_u32_u24 {vW1e}, 3584, {vT1}
    v_add_u32 {vW1e}, {vW1e}, {vT0}
    v_xor_b32 {vW1o}, 64, {vW1e}
    v_lshlrev_b32 {vK}, 8, {vI}
    v_lshl_add_u32 {vK}, {vGQ}, 4, {vK}
    ; row0 = 128a + 32*(w ^ 2(c&1))
    s_and_b32 {sTmp}, {sC}, 1
    s_lshl_b32 {sTmp2}, {sTmp}, 1
    s_xor_b32 {sTmp2}, {sTmp2}, {sW}
    s_lshl_b32 {sTmp2}, {sTmp2}, 5
    s_lshl_b32 {oXO}, {sA}, 7
    s_add_u32 {sTmp2}, {sTmp2}, {oXO}
    s_lshl_b32 {oWQ}, {sTmp2}, 13
    s_lshl_b32 {sM}, {sG}, 10
    s_add_u32 {oWQ}, {oWQ}, {sM}
    s_lshl_b32 {sM}, {sC}, 7
    s_add_u32 {oWQ}, {oWQ}, {sM}
    ; w1 row = 128a + 64(c&1) + 16w
    s_lshl_b32 {sTmp}, {sTmp}, 6
    s_add_u32 {oW1}, {oXO}, {sTmp}
    s_lshl_b32 {sTmp}, {sW}, 4
    s_add_u32 {oW1}, {oW1}, {sTmp}
    s_mul_i32 {oW1}, {oW1}, 3584
    s_lshl_b32 {oXO}, {sTmp2}, 1
    s_lshr_b32 {sT}, {sC}, 1
    s_sub_u32 {sT}, {sT}, {sA}
    s_and_b32 {sT}, {sT}, 3
    s_lshl_b32 {sBLK}, {sG}, 2
    s_mul_i32 {sTmp2}, {sG}, 3
    s_add_u32 {sTmp2}, {sTmp2}, 4
    s_min_u32 {sBLK}, {sBLK}, {sTmp2}
    s_add_u32 {sBLK}, {sBLK}, {sT}
    s_lshl_b32 {sTmp2}, {sBLK}, 7
    s_add_u32 {oW1}, {oW1}, {sTmp2}
    s_lshl_b32 {oW2}, {sBLK}, 6
    s_add_u32 {oW2}, {oW2}, {sTmp}
    s_lshl_b32 {oW2}, {oW2}, 10
    s_add_u32 {oW2}, {oW2}, {sM}
    s_lshr_b32 {sTmp2}, {sG}, 2
    s_add_u32 {sTmp2}, {sTmp2}, {sT}
    s_cmp_eq_u32 {sTmp2}, 4
    s_cselect_b32 {oW1}, 0x40000000, {oW1}
    s_cselect_b32 {oW2}, 0x40000000, {oW2}
    s_cselect_b32 {sBLK}, 0x100000, {sBLK}
    s_lshr_b32 {sTmp}, {sJ}, 4
    s_lshl_b32 {sTmp}, {sTmp}, 3
    s_add_u32 {sTmp}, {sTmp}, {sG}
    s_lshl_b32 {oKV}, {sTmp}, 21
    s_and_b32 {sTmp}, {sJ}, 15
    s_lshl_b32 {sTmp}, {sTmp}, 15
    s_add_u32 {oKV}, {oKV}, {sTmp}
    s_add_u32 {oKV}, {oKV}, {6144*256}
    s_lshl_b32 {oK}, {sW}, 13
    s_add_u32 {oK}, {oK}, {oKV}
    s_mov_b32 {SW1[2]}, {512*1792*2}
    s_mov_b32 {SW1[3]}, 0x20000
    s_mov_b32 {SK[2]}, {2*8*8192*256}
    s_mov_b32 {SK[3]}, 0x20000
    s_lshl_b32 {sM}, {sW}, 12
    s_add_u32 {sM}, {sM}, {L_WQ}
    s_mov_b32 m0, {sM}
    s_waitcnt lgkmcnt(0)
    """)
    stamp()
    xs = v.get(8, 2); xo = v.get(4, 2)
    kk = v.get(32, 2)
    sE = s.get(2, 2)
    vmem("xs", f"buffer_load_dwordx4 {xs[0:4]}, {vXS}, {SX}, 0 offen")
    vmem("xs", f"buffer_load_dwordx4 {xs[4:8]}, {vXS}, {SX}, 0 offen offset:16")
    vmem("xo", f"buffer_load_dwordx4 {xo}, {vXO}, {SX}, {oXO} offen")
    for k in range(4):
        vmem("wq", f"buffer_load_dwordx4 {vWQo if k & 1 else vWQe}, {SWQ}, {oWQ} offen {pol('wq')} lds")
        if k < 3:
            a(f"s_add_u32 m0, m0, 1024\ns_add_u32 {oWQ}, {oWQ}, 65536")
    a(f"s_lshl_b32 {sM}, {sW}, 11\ns_add_u32 m0, {sM}, {L_W1}\ns_load_dword {sE[0]}, {SWS[0:2]}, 0")
    vmem("w1", f"buffer_load_dwordx4 {vW1e}, {SW1}, {oW1} offen {pol('w1')} lds")
    a(f"s_add_u32 m0, m0, 1024\ns_add_u32 {oW1}, {oW1}, 28672")
    vmem("w1", f"buffer_load_dwordx4 {vW1o}, {SW1}, {oW1} offen {pol('w1')} lds")
    def kload(idx):
        T, st = idx >> 2, idx & 3
        if idx == 4: a(f"s_add_u32 {oK}, {oK}, 4096")
        vmem("k", f"buffer_load_dwordx4 {kk[4*idx:4*idx+4]}, {vK}, {SK}, {oK} offen offset:{st*64} {pol('k')}")
    NK1 = opt.get("nk1", 6)
    for idx in range(NK1): kload(idx)
    a(f"""
    s_load_dwordx2 {SV[0:2]}, s[0:1], 16
    s_load_dwordx2 {SWO[0:2]}, s[0:1], 32
    s_load_dwordx2 {SB1[0:2]}, s[0:1], 56
    s_load_dwordx2 {SOUT[0:2]}, s[0:1], 72
    s_mov_b32 {SV[2]}, {2*8*8192*256}
    s_mov_b32 {SV[3]}, 0x20000
    s_mov_b32 {SWO[2]}, {4096*512*2}
    s_mov_b32 {SWO[3]}, 0x20000
    s_mov_b32 {SB1[2]}, 3584
    s_mov_b32 {SB1[3]}, 0x20000
    s_mov_b32 {SW2[2]}, {512*1792*2}
    s_mov_b32 {SW2[3]}, 0x20000
    s_mov_b32 {SOUT[2]}, 2048
    s_mov_b32 {SOUT[3]}, 0x20000
    s_mov_b32 {SWS[2]}, 0x10000000
    s_mov_b32 {SWS[3]}, 0x20000
    """)
    stamp()
    vWO, vV, vF, vTQ, vL16 = [v.get() for _ in range(5)]
    vTW = v.get(4)
    vTV = v.get(2)
    vFF = v.get()
    sHi = s.get()
    a(f"""
    s_mov_b32 {sHi}, 0xffff0000
    v_mov_b32 {vFF}, 0xff
    v_lshlrev_b32 {vL16}, 4, v0
    v_lshlrev_b32 {vT0}, 1, {vGQ}
    v_and_b32 {vT1}, 7, v0
    v_xor_b32 {vT0}, {vT0}, {vT1}
    v_lshlrev_b32 {vT0}, 4, {vT0}
    v_lshrrev_b32 {vT1}, 3, v0
    v_lshl_add_u32 {vWO}, {vT1}, 10, {vT0}
    v_and_b32 {vT0}, 1, {vGQ}
    v_lshlrev_b32 {vF}, 1, {vT0}
    v_and_b32 {vT1}, 3, v0
    v_xor_b32 {vV}, {vF}, {vT1}
    v_lshlrev_b32 {vV}, 4, {vV}
    v_lshrrev_b32 {vT0}, 2, v0
    v_lshl_add_u32 {vV}, {vT0}, 8, {vV}
    ; f = ((i>>3)&1) | ((gq&1)<<1)
    v_lshrrev_b32 {vT0}, 3, {vI}
    v_or_b32 {vF}, {vF}, {vT0}
    v_lshlrev_b32 {vT1}, 3, {vT1}
    v_lshrrev_b32 {vT0}, 2, {vI}
    v_lshl_add_u32 {vTQ}, {vGQ}, 3, {vT0}
    v_lshl_add_u32 {vTQ}, {vTQ}, 7, {vT1}
    v_xor_b32 {vTV[0]}, {sW}, {vF}
    v_lshl_add_u32 {vTQ}, {vTV[0]}, 5, {vTQ}
    v_lshl_add_u32 {vT0}, {vGQ}, 2, {vT0}
    v_lshl_add_u32 {vTW[0]}, {vT0}, 7, {vT1}
    v_lshl_add_u32 {vTW[0]}, {vF}, 5, {vTW[0]}
    v_xor_b32 {vTW[1]}, 32, {vTW[0]}
    v_xor_b32 {vTW[2]}, 64, {vTW[0]}
    v_xor_b32 {vTW[3]}, 0x60, {vTW[0]}
    v_lshl_add_u32 {vTV[0]}, {vT0}, 6, {vT1}
    v_and_b32 {vT0}, 1, {vGQ}
    v_lshl_add_u32 {vTV[0]}, {vT0}, 5, {vTV[0]}
    s_lshl_b32 {sTmp}, {sW}, 13
    s_add_u32 {sTmp}, {sTmp}, {L_V}
    v_add_u32 {vTV[0]}, {sTmp}, {vTV[0]}
    v_xor_b32 {vTV[1]}, 32, {vTV[0]}
    """)
    mk = v.mark()
    f = v.get(16, 2); nm = v.get(2, 2); acc = v.get(2, 2); t0 = v.get(); t1 = v.get(); vMean = v.get(2, 2); vR = v.get(2, 2)
    wait_vm("xs")
    for k in range(8):
        a(f"v_lshlrev_b32 {f[2*k]}, 16, {xs[k]}\nv_and_b32 {f[2*k+1]}, {sHi}, {xs[k]}")
    g4 = v.get(8, 2)
    a(f"""
    v_pk_add_f32 {g4[0:2]}, {f[0:2]}, {f[2:4]}
    v_pk_add_f32 {g4[2:4]}, {f[4:6]}, {f[6:8]}
    v_pk_add_f32 {g4[4:6]}, {f[8:10]}, {f[10:12]}
    v_pk_add_f32 {g4[6:8]}, {f[12:14]}, {f[14:16]}
    v_pk_add_f32 {g4[0:2]}, {g4[0:2]}, {g4[2:4]}
    v_pk_add_f32 {g4[4:6]}, {g4[4:6]}, {g4[6:8]}
    v_pk_add_f32 {g4[0:2]}, {g4[0:2]}, {g4[4:6]}
    v_add_f32 {t0}, {g4[0]}, {g4[1]}
    """)
    def red_parity(x, tmp):
        for r in (2, 4, 8):
            a(f"v_add_f32_dpp {x}, {x}, {x} row_ror:{r} row_mask:0xf bank_mask:0xf")
        a(f"v_mov_b32 {tmp}, {x}\nv_permlane16_swap_b32 {x}, {tmp}\nv_add_f32 {x}, {x}, {tmp}")
        a(f"v_mov_b32 {tmp}, {x}\nv_permlane32_swap_b32 {x}, {tmp}\nv_add_f32 {x}, {x}, {tmp}")
    red_parity(t0, t1)
    a(f"""
    v_mul_f32 {nm[0]}, 0xbb000000, {t0}
    v_mul_f32 {nm[1]}, 0xbb000000, {t0}
    """)
    for k in range(8):
        a(f"v_pk_add_f32 {f[2*k:2*k+2]}, {f[2*k:2*k+2]}, {nm}")
    a(f"v_pk_mul_f32 {acc}, {f[0:2]}, {f[0:2]}\nv_pk_mul_f32 {g4[0:2]}, {f[2:4]}, {f[2:4]}")
    for k in range(2, 8):
        d = acc if k % 2 == 0 else g4[0:2]
        a(f"v_pk_fma_f32 {d}, {f[2*k:2*k+2]}, {f[2*k:2*k+2]}, {d}")
    a(f"v_pk_add_f32 {acc}, {acc}, {g4[0:2]}\nv_add_f32 {t0}, {acc[0]}, {acc[1]}")
    red_parity(t0, t1)
    a(f"""
    v_mul_f32 {t0}, 0x3b000000, {t0}
    v_cvt_pk_bf16_f32 {t0}, {t0}, {nm[0]}
    v_and_b32 {vMean[0]}, {sHi}, {t0}
    v_and_b32 {vMean[1]}, {sHi}, {t0}
    v_lshlrev_b32 {t0}, 16, {t0}
    v_add_f32 {t0}, 0x3727c5ac, {t0}
    v_cvt_pk_bf16_f32 {t0}, {t0}, {t0}
    v_lshlrev_b32 {t0}, 16, {t0}
    v_sqrt_f32 {t0}, {t0}
    v_cvt_pk_bf16_f32 {t0}, {t0}, {t0}
    v_lshlrev_b32 {t0}, 16, {t0}
    v_rcp_f32 {vR[0]}, {t0}
    """)
    wait_vm("xo")
    for k in range(4):
        a(f"v_lshlrev_b32 {f[2*k]}, 16, {xo[k]}\nv_and_b32 {f[2*k+1]}, {sHi}, {xo[k]}")
    a(f"v_mov_b32 {vR[1]}, {vR[0]}")
    for k in range(4):
        a(f"v_pk_add_f32 {f[2*k:2*k+2]}, {f[2*k:2*k+2]}, {vMean}")
    for k in range(4):
        a(f"v_cvt_pk_bf16_f32 {xo[k]}, {f[2*k]}, {f[2*k+1]}")
    for k in range(4):
        a(f"v_lshlrev_b32 {f[2*k]}, 16, {xo[k]}\nv_and_b32 {f[2*k+1]}, {sHi}, {xo[k]}")
    for k in range(4):
        a(f"v_pk_mul_f32 {f[2*k:2*k+2]}, {f[2*k:2*k+2]}, {vR}")
    for k in range(4):
        a(f"v_cvt_pk_bf16_f32 {xo[k]}, {f[2*k]}, {f[2*k+1]}")
    a(f"s_lshl_b32 {sTmp}, {sW}, 10\nv_add_u32 {vT0}, {sTmp}, {vL16}\nds_write_b128 {vT0}, {xo} offset:{L_XN}")
    v.release(mk)
    stamp()
    for idx in range(NK1, 8): kload(idx)
    b1r = v.get(2, 2); xf = v.get()
    vB1, vXF = xs[0], xs[1]
    sB, sKH, sBA, sS = [s.get() for _ in range(4)]
    oB1, oXF = s.get(), s.get()
    sTag = s.get(4); sXCC = s.get(); sTP = s.get()
    a(f"""
    s_waitcnt lgkmcnt(0)
    s_lshl_b32 {sM}, {sW}, 11
    s_add_u32 m0, {sM}, {L_W2}
    s_and_b32 {sB}, {sW}, 1
    """)
    vmem("w2", f"buffer_load_dwordx4 {vWO}, {SW2}, {oW2} offen {pol('w2')} lds")
    a(f"s_add_u32 m0, m0, 1024\ns_add_u32 {oW2}, {oW2}, 8192")
    vmem("w2", f"buffer_load_dwordx4 {vWO}, {SW2}, {oW2} offen {pol('w2')} lds")
    a(f"""
    s_lshr_b32 {sKH}, {sW}, 1
    s_lshr_b32 {sBA}, {sJ}, 4
    s_and_b32 {sS}, {sJ}, 15
    v_bfe_u32 {vT0}, v0, 3, 1
    v_lshlrev_b32 {vT0}, 5, {vT0}
    v_lshl_add_u32 {vB1}, {vGQ}, 3, {vT0}
    s_lshl_b32 {oB1}, {sBLK}, 7
    s_lshl_b32 {sTmp}, {sKH}, 6
    s_add_u32 {oB1}, {oB1}, {sTmp}
    s_lshl_b32 {oXF}, {sBA}, 10
    s_lshl_b32 {sTmp}, {sG}, 7
    s_add_u32 {oXF}, {oXF}, {sTmp}
    s_lshl_b32 {sTmp}, {sS}, 3
    s_add_u32 {oXF}, {oXF}, {sTmp}
    v_and_b32 {vT0}, 1, v0
    v_lshlrev_b32 {vT0}, 2, {vT0}
    v_and_b32 {vT1}, 1, {vGQ}
    v_lshl_add_u32 {vXF}, {vT1}, 1, {vT0}
    s_getreg_b32 {sXCC}, hwreg(HW_REG_XCC_ID, 0, 4)
    s_add_u32 {sTag[0]}, {sE[0]}, {hex(PHI)}
    s_lshr_b32 {sTag[1]}, {sTag[0]}, 8
    s_lshr_b32 {sTag[2]}, {sTag[0]}, 16
    s_lshr_b32 {sTag[3]}, {sTag[0]}, 24
    s_xor_b32 {sTP}, {sTag[0]}, {sXCC}
    """)
    vmem("b1", f"buffer_load_dwordx2 {b1r}, {vB1}, {SB1}, {oB1} offen")
    vmem("xf", f"buffer_load_ushort {xf}, {vXF}, {SX}, {oXF} offen")
    oQS, oHS, oQG, oHG, oML, oPS, oV, oWO = [s.get() for _ in range(8)]
    vQS, vHS, vQG, vHG = [v.get() for _ in range(4)]
    a(f"""
    s_lshl_b32 {oQG}, {sG}, 14
    s_add_u32 {oQG}, {oQG}, {QBUF}
    s_lshl_b32 {sTmp}, {sA}, 11
    s_add_u32 {oQS}, {oQG}, {sTmp}
    s_lshl_b32 {sTmp}, {sC}, 8
    s_add_u32 {oQS}, {oQS}, {sTmp}
    s_lshl_b32 {sTmp2}, {sW}, 6
    s_add_u32 {oQS}, {oQS}, {sTmp2}
    s_lshl_b32 {sTmp}, {sBA}, 13
    s_add_u32 {oQG}, {oQG}, {sTmp}
    s_lshl_b32 {sTmp}, {sW}, 9
    s_add_u32 {oQG}, {oQG}, {sTmp}
    s_lshl_b32 {oHG}, {sG}, 2
    s_add_u32 {oHG}, {oHG}, {sT}
    s_lshl_b32 {oHG}, {oHG}, 12
    s_add_u32 {oHG}, {oHG}, {HBUF}
    s_lshl_b32 {sTmp}, {sA}, 1
    s_and_b32 {oHS}, {sC}, 1
    s_add_u32 {sTmp}, {sTmp}, {oHS}
    s_lshl_b32 {sTmp}, {sTmp}, 8
    s_add_u32 {oHS}, {oHG}, {sTmp}
    s_add_u32 {oHS}, {oHS}, {sTmp2}
    s_lshl_b32 {sTmp}, {sB}, 11
    s_add_u32 {oHG}, {oHG}, {sTmp}
    s_lshl_b32 {sTmp}, {sKH}, 7
    s_add_u32 {oHG}, {oHG}, {sTmp}
    v_and_b32 {vT0}, 1, v0
    v_lshlrev_b32 {vT1}, 4, {vGQ}
    v_lshl_add_u32 {vQS}, {vT0}, 13, {vT1}
    v_lshl_add_u32 {vHS}, {vT0}, 11, {vT1}
    v_lshrrev_b32 {vT0}, 5, v0
    v_lshlrev_b32 {vT0}, 12, {vT0}
    v_and_b32 {vQG}, 31, v0
    v_lshl_add_u32 {vQG}, {vQG}, 4, {vT0}
    v_bfe_u32 {vT0}, v0, 3, 1
    v_lshl_add_u32 {vT0}, {vT0}, 6, {vT1}
    v_and_b32 {vHG}, 7, v0
    v_lshl_add_u32 {vHG}, {vHG}, 8, {vT0}
    s_lshl_b32 {sTmp}, {sW}, 6
    s_add_u32 {oV}, {oKV}, {sTmp}
    s_lshl_b32 {oWO}, {sG}, 2
    s_add_u32 {oWO}, {oWO}, {sA}
    s_lshl_b32 {oWO}, {oWO}, 2
    s_add_u32 {oWO}, {oWO}, {sW}
    s_lshl_b32 {oWO}, {oWO}, 15
    s_lshl_b32 {sTmp}, {sC}, 7
    s_add_u32 {oWO}, {oWO}, {sTmp}
    s_lshl_b32 {sTmp}, {sG}, 1
    s_add_u32 {sTmp}, {sTmp}, {sBA}
    s_lshl_b32 {oML}, {sTmp}, 2
    s_add_u32 {oML}, {oML}, {sW}
    s_lshl_b32 {oML}, {oML}, 8
    s_lshl_b32 {sTmp2}, {sS}, 4
    s_add_u32 {oML}, {oML}, {sTmp2}
    s_add_u32 {oML}, {oML}, {MLB}
    s_lshl_b32 {oPS}, {sTmp}, 15
    s_lshl_b32 {sTmp2}, {sS}, 9
    s_add_u32 {oPS}, {oPS}, {sTmp2}
    s_lshl_b32 {sTmp2}, {sW}, 7
    s_add_u32 {oPS}, {oPS}, {sTmp2}
    s_add_u32 {oPS}, {oPS}, {PART}
    """)
    wait_vm("w1")
    a("s_barrier")
    stamp()
    mk = v.mark()
    xn = v.get(16, 2); aq = v.get(16, 2); a1 = v.get(8, 2); dq = v.get(4, 2); dh = v.get(4, 2)
    for t in range(2):
        a(f"ds_read_b128 {xn[4*t:4*t+4]}, {vL16} offset:{L_XN + 1024*t}")
        for hi in range(2):
            a(f"ds_read_b64_tr_b16 {aq[4*t+2*hi:4*t+2*hi+2]}, {vTQ} offset:{L_WQ + 4096*t + 512*hi}")
    for t in range(2, 4):
        a(f"ds_read_b128 {xn[4*t:4*t+4]}, {vL16} offset:{L_XN + 1024*t}")
        for hi in range(2):
            a(f"ds_read_b64_tr_b16 {aq[4*t+2*hi:4*t+2*hi+2]}, {vTQ} offset:{L_WQ + 4096*t + 512*hi}")
    for t in range(2):
        for hi in range(2):
            a(f"ds_read_b64_tr_b16 {a1[4*t+2*hi:4*t+2*hi+2]}, {vTQ} offset:{L_W1 + 4096*t + 512*hi}")
    a("s_mov_b32 exec_lo, 0x00030003\ns_mov_b32 exec_hi, 0x00030003" if False else "")
    for t in range(4):
        a(f"s_waitcnt lgkmcnt({13 - 3*t})")
        a(f"v_mfma_f32_16x16x32_bf16 {dq}, {aq[4*t:4*t+4]}, {xn[4*t:4*t+4]}, {dq if t else 0}")
    for t in range(2):
        a(f"s_waitcnt lgkmcnt({2 - 2*t})")
        a(f"v_mfma_f32_16x16x32_bf16 {dh}, {a1[4*t:4*t+4]}, {xn[4*t:4*t+4]}, {dh if t else 0}")
    a("s_mov_b32 exec_lo, 0x00030003\ns_mov_b32 exec_hi, 0x00030003")
    def pub(d, voff, soff, name):
        a(f"v_bfi_b32 {d[0]}, {vFF}, {sTP}, {d[0]}")
        for k in range(1, 4):
            a(f"v_bfi_b32 {d[k]}, {vFF}, {sTag[k]}, {d[k]}")
        vmem(name, f"buffer_store_dwordx4 {d}, {voff}, {SWS}, {soff} offen")
    pub(dq, vQS, oQS, "qs")
    pub(dh, vHS, oHS, "hs")
    a(f"s_add_u32 {oQS}, {oQS}, {SC1D}\ns_add_u32 {oHS}, {oHS}, {SC1D}")
    a(f"v_xor_b32 {dq[0]}, {sXCC}, {dq[0]}\nv_xor_b32 {dh[0]}, {sXCC}, {dh[0]}")
    vmem("qs", f"buffer_store_dwordx4 {dq}, {vQS}, {SWS}, {oQS} offen sc1")
    vmem("hs", f"buffer_store_dwordx4 {dh}, {vHS}, {SWS}, {oHS} offen sc1")
    a("s_mov_b64 exec, -1")
    a("s_barrier")
    v.release(mk)
    stamp()
    qg = v.get(8, 2); hg = v.get(4, 2)
    def poll1(first):
        t = [f"buffer_load_dwordx4 {qg[0:4]}, {vQG}, {SWS}, {oQG} offen sc1",
             f"buffer_load_dwordx4 {qg[4:8]}, {vQG}, {SWS}, {oQG} offen offset:2048 sc1",
             f"buffer_load_dwordx4 {hg}, {vHG}, {SWS}, {oHG} offen sc1"]
        for x in t:
            if first: vmem("p1", x)
            else: a(x)
    poll1(True)
    a(f"s_lshl_b32 {sM}, {sW}, 13\ns_add_u32 m0, {sM}, {L_V}\ns_nop 0")
    for n in range(8):
        vmem("v%d" % (n // 2), f"buffer_load_dwordx4 {vV}, {SV}, {oV} offen {pol('v')} lds")
        if n < 7: a(f"s_add_u32 m0, m0, 1024\ns_add_u32 {oV}, {oV}, 4096")
    a(f"s_lshl_b32 {sM}, {sW}, 12\ns_add_u32 m0, {sM}, {L_WO}\ns_nop 0")
    for n in range(4):
        vmem("wo", f"buffer_load_dwordx4 {vWO}, {SWO}, {oWO} offen {pol('wo')} lds")
        if n < 3: a(f"s_add_u32 m0, m0, 1024\ns_add_u32 {oWO}, {oWO}, 8192")
    sCnt, sMix = s.get(), s.get()
    a(f"s_mov_b32 {sCnt}, 0\ns_mov_b32 {sMix}, 0")
    wait_vm("p1")
    a("L_chk1:")
    BOP = "bitop3:0xbe"
    a(f"v_xor_b32 {vT0}, {sTP}, {qg[0]}")
    seq = [(qg[1], sTag[1]), (qg[2], sTag[2]), (qg[3], sTag[3]), (qg[4], sTP), (qg[5], sTag[1]), (qg[6], sTag[2]), (qg[7], sTag[3]),
           (hg[0], sTP), (hg[1], sTag[1]), (hg[2], sTag[2]), (hg[3], sTag[3])]
    for r, tg in seq:
        a(f"v_bitop3_b32 {vT0}, {r}, {tg}, {vT0} {BOP}")
    a(f"""
    v_and_b32 {vT0}, {vT0}, {vFF}
    v_cmp_ne_u32 vcc, 0, {vT0}
    s_cbranch_vccnz L_retry1
    L_ok1:
    """)
    stamp()
    mk = v.mark()
    qb = v.get(16, 2)
    sMsk = s.get()
    a(f"s_mov_b32 {sMsk}, 0xffffff00")
    for k in range(8):
        a(f"v_and_b32 {qg[k]}, {sMsk}, {qg[k]}")
    a(f"""
    v_pk_add_f32 {qg[0:2]}, {qg[0:2]}, {qg[4:6]}
    v_pk_add_f32 {qg[2:4]}, {qg[2:4]}, {qg[6:8]}
    v_and_b32 {vT0}, 31, v0
    v_lshlrev_b32 {vT0}, 3, {vT0}
    v_lshrrev_b32 {vT1}, 5, v0
    v_permlane32_swap_b32 {qg[0]}, {qg[2]}
    v_permlane32_swap_b32 {qg[1]}, {qg[3]}
    v_lshl_add_u32 {vT0}, {vT1}, 2, {vT0}
    s_mul_i32 {sTmp}, {sW}, {QSTR}
    v_add_f32 {qg[0]}, {qg[0]}, {qg[2]}
    v_add_f32 {qg[1]}, {qg[1]}, {qg[3]}
    v_add_u32 {vT0}, {sTmp}, {vT0}
    v_cvt_pk_bf16_f32 {qg[0]}, {qg[0]}, {qg[1]}
    ds_write_b32 {vT0}, {qg[0]} offset:{L_Q}
    v_and_b32 {vT1}, 3, v0
    v_mul_u32_u24 {vT0}, {QSTR}, {vT1}
    v_lshl_add_u32 {vT0}, {vGQ}, 4, {vT0}
    s_waitcnt lgkmcnt(0)
    s_barrier
    """)
    for st in range(4):
        a(f"ds_read_b128 {qb[4*st:4*st+4]}, {vT0} offset:{L_Q + 64*st}")
    sc = v.get(8, 2)
    for st in range(4):
        a(f"s_waitcnt lgkmcnt({3 - st})")
        for T in range(2):
            d = sc[4*T:4*T+4]
            a(f"v_mfma_f32_16x16x32_bf16 {d}, {kk[16*T+4*st:16*T+4*st+4]}, {qb[4*st:4*st+4]}, {d if st else 0}")
    vMX = qg[4]; vMR = qg[5]
    a(f"s_lshl_b32 {sTmp}, {sW}, 2\nv_lshlrev_b32 {vMR}, 4, {vT1}\nv_add_u32 {vMX}, {sTmp}, {vMR}")
    pk = qb
    tmp4 = v.get(4, 2)
    sScale, sL2E = s.get(), s.get()
    a(f"s_mov_b32 {sScale}, 0x3db504f3\ns_mov_b32 {sL2E}, 0x3fb8aa3b")
    for k in range(4):
        a(f"v_cvt_pk_bf16_f32 {tmp4[k]}, {sc[2*k]}, {sc[2*k+1]}")
    for k in range(4):
        a(f"v_lshlrev_b32 {sc[2*k]}, 16, {tmp4[k]}\nv_and_b32 {sc[2*k+1]}, {sHi}, {tmp4[k]}")
    for k in range(8):
        a(f"v_mul_f32 {sc[k]}, {sScale}, {sc[k]}")
    for k in range(4):
        a(f"v_cvt_pk_bf16_f32 {tmp4[k]}, {sc[2*k]}, {sc[2*k+1]}")
    for k in range(4):
        a(f"v_lshlrev_b32 {sc[2*k]}, 16, {tmp4[k]}\nv_and_b32 {sc[2*k+1]}, {sHi}, {tmp4[k]}")
    vMax = v.get()
    a(f"""
    v_max3_f32 {vT0}, {sc[0]}, {sc[1]}, {sc[2]}
    v_max3_f32 {vT1}, {sc[3]}, {sc[4]}, {sc[5]}
    v_max3_f32 {vT0}, {vT0}, {sc[6]}, {sc[7]}
    v_max_f32 {vT0}, {vT0}, {vT1}
    v_mov_b32 {vT1}, {vT0}
    v_permlane16_swap_b32 {vT0}, {vT1}
    v_max_f32 {vT0}, {vT0}, {vT1}
    v_mov_b32 {vT1}, {vT0}
    v_permlane32_swap_b32 {vT0}, {vT1}
    v_max_f32 {vT0}, {vT0}, {vT1}
    ds_write_b32 {vMX}, {vT0} offset:{L_MX}
    s_waitcnt lgkmcnt(0)
    s_barrier
    ds_read_b128 {tmp4}, {vMR} offset:{L_MX}
    s_lshl_b32 {sTmp}, {sW}, 10
    v_add_u32 {vMX}, {sTmp}, {vL16}
    s_waitcnt lgkmcnt(0)
    v_max3_f32 {vT0}, {tmp4[0]}, {tmp4[1]}, {tmp4[2]}
    v_max_f32 {vT0}, {vT0}, {tmp4[3]}
    v_mul_f32 {vMax}, {sL2E}, {vT0}
    """)
    for k in range(8):
        a(f"v_fma_f32 {sc[k]}, {sc[k]}, {sL2E}, -{vMax}")
    for k in range(8):
        a(f"v_exp_f32 {sc[k]}, {sc[k]}")
    for k in range(4):
        a(f"v_cvt_pk_bf16_f32 {tmp4[k]}, {sc[2*k]}, {sc[2*k+1]}")
    a(f"""
    ds_write_b128 {vMX}, {tmp4} offset:{L_XN}
    s_waitcnt lgkmcnt(0)
    s_barrier
    """)
    for t in range(4):
        a(f"ds_read_b128 {pk[4*t:4*t+4]}, {vL16} offset:{L_XN + 1024*t}")
    ones = tmp4
    dl = sc[0:4]; mlr = sc[4:8]
    for k in range(4):
        a(f"v_mov_b32 {ones[k]}, 0x3f803f80")
    for t in range(4):
        a(f"s_waitcnt lgkmcnt({3 - t})")
        a(f"v_mfma_f32_16x16x32_bf16 {dl}, {ones}, {pk[4*t:4*t+4]}, {dl if t else 0}")
    a(f"""
    v_mov_b32 {mlr[0]}, {vMax}
    v_mov_b32 {mlr[2]}, {sTag[0]}
    v_mov_b32 {mlr[3]}, {sTag[0]}
    v_mov_b32 {vT0}, 0
    s_lshl_b32 {sTmp}, 1, {sW}
    v_mov_b32 {mlr[1]}, {dl[0]}
    s_mov_b32 exec_lo, {sTmp}
    s_mov_b32 exec_hi, 0
    s_cmp_eq_u32 {sMix}, 0
    s_cbranch_scc0 L_mlmix
    """)
    vmem("ml", f"buffer_store_dwordx4 {mlr}, {vT0}, {SWS}, {oML} offen")
    a("L_mlback:")
    a("s_mov_b64 exec, -1")
    stamp()
    mk2 = v.mark()
    hb = v.get(4, 2); e = v.get(4, 2); u = v.get(4, 2); d4 = v.get(4, 2); af = v.get(4, 2); bw = v.get(16, 2)
    df = v.get(16, 2)
    for ct in range(4):
        pass
    a(f"s_lshl_b32 {sTmp}, {sKH}, 12")
    for ct in range(4):
        a(f"v_add_u32 {vTW[ct]}, {sTmp}, {vTW[ct]}")
    for ct in range(4):
        for hi in range(2):
            a(f"ds_read_b64_tr_b16 {bw[4*ct+2*hi:4*ct+2*hi+2]}, {vTW[ct]} offset:{L_W2 + 2048*hi}")
    for k in range(4):
        a(f"v_and_b32 {hg[k]}, {sMsk}, {hg[k]}")
    for m in ("quad_perm:[1,0,3,2]", "quad_perm:[2,3,0,1]", "row_half_mirror"):
        for k in range(4):
            a(f"v_add_f32_dpp {hg[k]}, {hg[k]}, {hg[k]} {m} row_mask:0xf bank_mask:0xf")
    def rnd(dst, src, tmpv):
        a(f"v_cvt_pk_bf16_f32 {tmpv[0]}, {src[0]}, {src[1]}\nv_cvt_pk_bf16_f32 {tmpv[1]}, {src[2]}, {src[3]}")
        for k in range(2):
            a(f"v_lshlrev_b32 {dst[2*k]}, 16, {tmpv[k]}\nv_and_b32 {dst[2*k+1]}, {sHi}, {tmpv[k]}")
    tp = af[0:2]
    rnd(hb, hg, tp)
    for k in range(2):
        a(f"v_lshlrev_b32 {e[2*k]}, 16, {b1r[k]}\nv_and_b32 {e[2*k+1]}, {sHi}, {b1r[k]}")
    a(f"v_pk_add_f32 {hb[0:2]}, {hb[0:2]}, {e[0:2]}\nv_pk_add_f32 {hb[2:4]}, {hb[2:4]}, {e[2:4]}")
    rnd(hb, hb, tp)
    for k in range(4):
        a(f"v_mul_f32 {e[k]}, -abs({hb[k]}), {sL2E}")
    for k in range(4):
        a(f"v_exp_f32 {e[k]}, {e[k]}")
    rnd(e, e, tp)
    for k in range(4):
        a(f"v_add_f32 {u[k]}, 1.0, {e[k]}")
    for k in range(4):
        a(f"v_add_f32 {d4[k]}, -1.0, {u[k]}\nv_log_f32 {u[k]}, {u[k]}")
    sLn2 = sScale
    a(f"s_mov_b32 {sLn2}, 0x3f317218")
    for k in range(4):
        a(f"v_rcp_f32 {hg[k]}, {d4[k]}\nv_mul_f32 {u[k]}, {sLn2}, {u[k]}")
    for k in range(4):
        a(f"v_mul_f32 {hg[k]}, {hg[k]}, {e[k]}")
    for k in range(4):
        a(f"v_mul_f32 {u[k]}, {u[k]}, {hg[k]}\nv_cmp_eq_f32 vcc, 0, {d4[k]}\nv_cndmask_b32 {u[k]}, {u[k]}, {e[k]}, vcc")
    rnd(u, u, tp)
    for k in range(4):
        a(f"v_max_f32 {e[k]}, 0, {hb[k]}")
    a(f"v_pk_add_f32 {u[0:2]}, {u[0:2]}, {e[0:2]}\nv_pk_add_f32 {u[2:4]}, {u[2:4]}, {e[2:4]}")
    rnd(u, u, tp)
    sM2 = s.get()
    a(f"s_mov_b32 {sM2}, 0xc038aa3b")
    for k in range(4):
        a(f"v_mul_f32 {e[k]}, {sM2}, {u[k]}")
    for k in range(4):
        a(f"v_exp_f32 {e[k]}, {e[k]}")
    for k in range(4):
        a(f"v_add_f32 {d4[k]}, 1.0, {e[k]}\nv_sub_f32 {e[k]}, 1.0, {e[k]}")
    for k in range(4):
        a(f"v_rcp_f32 {d4[k]}, {d4[k]}")
    for k in range(4):
        a(f"v_mul_f32 {e[k]}, {e[k]}, {d4[k]}\nv_cmp_gt_f32 vcc, 0x3a800000, {u[k]}\nv_cndmask_b32 {e[k]}, {e[k]}, {u[k]}, vcc")
    rnd(e, e, tp)
    sLm = s.get(2, 2)
    a(f"""
    v_pk_mul_f32 {e[0:2]}, {e[0:2]}, {hb[0:2]}
    v_pk_mul_f32 {e[2:4]}, {e[2:4]}, {hb[2:4]}
    s_mov_b32 {sLm[0]}, 0x00010001
    s_mov_b32 {sLm[1]}, 0x00010001
    v_cvt_pk_bf16_f32 {u[0]}, {e[0]}, {e[1]}
    v_cvt_pk_bf16_f32 {u[1]}, {e[2]}, {e[3]}
    v_mov_b32_dpp {u[2]}, {u[0]} row_ror:8 row_mask:0xf bank_mask:0xf
    v_mov_b32_dpp {u[3]}, {u[1]} row_ror:8 row_mask:0xf bank_mask:0xf
    """)
    for k in range(4):
        a(f"v_cndmask_b32 {af[k]}, 0, {u[k]}, {sLm}")
    a("s_waitcnt lgkmcnt(0)")
    for ct in range(4):
        a(f"v_mfma_f32_16x16x32_bf16 {df[4*ct:4*ct+4]}, {af}, {bw[4*ct:4*ct+4]}, 0")
    stamp()
    av = v.get(16, 2)
    do = v.get(8, 2); pr = v.get(4, 2)
    vPS = v.get()
    a(f"""
    v_and_b32 {vT0}, 3, v0
    v_lshlrev_b32 {vT0}, 13, {vT0}
    v_lshl_add_u32 {vT0}, {vGQ}, 5, {vT0}
    v_bfe_u32 {vT1}, v0, 2, 1
    v_lshl_add_u32 {vPS}, {vT1}, 4, {vT0}
    """)
    for k in range(4):
        a(f"v_mov_b32 {pr[k]}, {sTag[0]}")
    a(f"s_lshl_b32 {sTmp}, {sKH}, 12")
    for ct in range(4):
        a(f"v_add_u32 {vTW[ct]}, {sTmp}, {vTW[ct]}")
    vPA, vMLG, vFS = v.get(), v.get(), v.get()
    oPA, oMLG, oFS = s.get(), s.get(), s.get()
    a(f"""
    v_lshlrev_b32 {vPA}, 9, {vI}
    v_lshl_add_u32 {vPA}, {vGQ}, 5, {vPA}
    v_lshl_add_u32 {vMLG}, {vGQ}, 2, {vI}
    v_and_b32 {vMLG}, 15, {vMLG}
    v_lshlrev_b32 {vMLG}, 4, {vMLG}
    v_lshlrev_b32 {vFS}, 3, {vI}
    v_lshl_add_u32 {vFS}, {vGQ}, 13, {vFS}
    s_lshl_b32 {sTmp}, {sG}, 1
    s_add_u32 {sTmp}, {sTmp}, {sB}
    s_lshl_b32 {sTmp}, {sTmp}, 2
    s_add_u32 {sTmp}, {sTmp}, {sA}
    s_lshl_b32 {oMLG}, {sTmp}, 8
    s_add_u32 {oMLG}, {oMLG}, {MLB}
    s_lshl_b32 {oPA}, {sTmp}, 13
    s_lshl_b32 {sTmp2}, {sKH}, 8
    s_add_u32 {oPA}, {oPA}, {sTmp2}
    s_add_u32 {oPA}, {oPA}, {PART}
    s_lshl_b32 {oFS}, {sC}, 1
    s_add_u32 {oFS}, {oFS}, {sB}
    s_lshl_b32 {oFS}, {oFS}, 15
    s_lshl_b32 {sTmp}, {sG}, 2
    s_add_u32 {sTmp}, {sTmp}, {sA}
    s_lshl_b32 {sTmp}, {sTmp}, 1
    s_add_u32 {sTmp}, {sTmp}, {sKH}
    s_lshl_b32 {sTmp}, {sTmp}, 7
    s_add_u32 {oFS}, {oFS}, {sTmp}
    s_add_u32 {oFS}, {oFS}, {FIN}
    """)
    for t in range(4):
        buf = av[8*(t&1):8*(t&1)+8]
        wait_vm("v%d" % t)
        for T in range(2):
            for hi in range(2):
                a(f"ds_read_b64_tr_b16 {buf[4*T+2*hi:4*T+2*hi+2]}, {vTV[T]} offset:{2048*t + 1024*hi}")
        for T in range(2):
            a(f"s_waitcnt lgkmcnt({2 - 2*T})")
            d = do[4*T:4*T+4]
            a(f"v_mfma_f32_16x16x32_bf16 {d}, {buf[4*T:4*T+4]}, {pk[4*t:4*t+4]}, {d if t else 0}")
    a(f"""
    s_mov_b32 exec_lo, 0x000f000f
    s_mov_b32 exec_hi, 0x000f000f
    v_cvt_pk_bf16_f32 {pr[2]}, {do[0]}, {do[1]}
    v_cvt_pk_bf16_f32 {pr[3]}, {do[2]}, {do[3]}
    s_mov_b32 exec_lo, 0x00f000f0
    s_mov_b32 exec_hi, 0x00f000f0
    v_cvt_pk_bf16_f32 {pr[0]}, {do[4]}, {do[5]}
    v_cvt_pk_bf16_f32 {pr[1]}, {do[6]}, {do[7]}
    s_mov_b32 exec_lo, 0x00ff00ff
    s_mov_b32 exec_hi, 0x00ff00ff
    s_cmp_eq_u32 {sMix}, 0
    s_cbranch_scc0 L_psmix
    """)
    vmem("ps", f"buffer_store_dwordx4 {pr}, {vPS}, {SWS}, {oPS} offen")
    a("L_psback:")
    a("s_mov_b64 exec, -1")
    stamp()
    pa = kk[0:16]; mlg = kk[16:20]; bo = v.get(32, 2); dd = kk[20:32]
    dd = v.get(16, 2)
    def poll2(first):
        t = []
        for tl in range(2):
            t.append(f"buffer_load_dwordx4 {pa[8*tl:8*tl+4]}, {vPA}, {SWS}, {oPA} offen offset:{128*tl} sc1")
            t.append(f"buffer_load_dwordx4 {pa[8*tl+4:8*tl+8]}, {vPA}, {SWS}, {oPA} offen offset:{128*tl+16} sc1")
        t.append(f"buffer_load_dwordx4 {mlg}, {vMLG}, {SWS}, {oMLG} offen sc1")
        for x in t:
            if first: vmem("p2", x)
            else: a(x)
    poll2(True)
    wait_vm("wo")
    a("s_barrier")
    for tl in range(2):
        for ct in range(4):
            for hi in range(2):
                r = bo[16*tl+4*ct+2*hi:16*tl+4*ct+2*hi+2]
                a(f"ds_read_b64_tr_b16 {r}, {vTW[ct]} offset:{L_WO + 4096*tl + 2048*hi}")
    a(f"s_mov_b32 {sCnt}, 0")
    a("s_waitcnt vmcnt(0)")
    a("L_chk2:")
    a(f"v_xor_b32 {vT0}, {sTag[0]}, {pa[1]}")
    for r in (pa[6], pa[9], pa[14], mlg[2]):
        a(f"v_bitop3_b32 {vT0}, {r}, {sTag[0]}, {vT0} {BOP}")
    a(f"""
    v_cmp_ne_u32 vcc, 0, {vT0}
    s_cbranch_vccnz L_retry2
    L_ok2:
    s_waitcnt lgkmcnt(0)
    """)
    stamp()
    for ct in range(4):
        a(f"v_mfma_f32_16x16x32_bf16 {dd[4*ct:4*ct+4]}, {pa[2:6]}, {bo[4*ct:4*ct+4]}, 0")
    wv = vT1
    a(f"v_mov_b32 {vT0}, {mlg[0]}")
    for r in (1, 2, 4, 8):
        a(f"v_max_f32_dpp {vT0}, {vT0}, {vT0} row_ror:{r} row_mask:0xf bank_mask:0xf")
    for ct in range(4):
        a(f"v_mfma_f32_16x16x32_bf16 {dd[4*ct:4*ct+4]}, {pa[10:14]}, {bo[16+4*ct:16+4*ct+4]}, {dd[4*ct:4*ct+4]}")
    a(f"""
    v_sub_f32 {wv}, {mlg[0]}, {vT0}
    v_exp_f32 {wv}, {wv}
    v_mul_f32 {vT0}, {wv}, {mlg[1]}
    """)
    for r in (1, 2, 4, 8):
        a(f"v_add_f32_dpp {vT0}, {vT0}, {vT0} row_ror:{r} row_mask:0xf bank_mask:0xf")
    a(f"v_rcp_f32 {vT0}, {vT0}\nv_mul_f32 {wv}, {wv}, {vT0}")
    for r in range(4):
        for ct in range(4):
            a(f"v_fmac_f32_dpp {df[4*ct]}, {wv}, {dd[4*ct+r]} row_newbcast:{r} row_mask:0xf bank_mask:0xf")
    fo = pr[0:2]
    a(f"""
    v_mov_b32 {fo[1]}, {sTag[0]}
    v_permlane32_swap_b32 {df[0]}, {df[8]}
    v_permlane32_swap_b32 {df[4]}, {df[12]}
    v_add_f32 {df[0]}, {df[0]}, {df[8]}
    v_add_f32 {df[4]}, {df[4]}, {df[12]}
    v_permlane16_swap_b32 {df[0]}, {df[4]}
    v_add_f32 {fo[0]}, {df[0]}, {df[4]}
    """)
    a(f"buffer_store_dwordx2 {fo}, {vFS}, {SWS}, {oFS} offen sc1")
    stamp()
    a(f"s_cmp_eq_u32 {sW}, 0\ns_cbranch_scc0 L_fin")
    fg = kk[0:8]
    oFG, oFG2 = oPA, oMLG
    a(f"""
    v_lshrrev_b32 {vT0}, 1, v0
    v_lshlrev_b32 {vT0}, 7, {vT0}
    v_and_b32 {vT1}, 1, v0
    v_lshl_add_u32 {vPA}, {vT1}, 4, {vT0}
    ; FIN + (8g + (j>>2))*8192 + (j&3)*32
    s_lshl_b32 {oFG}, {sG}, 3
    s_lshr_b32 {sTmp}, {sJ}, 2
    s_add_u32 {oFG}, {oFG}, {sTmp}
    s_lshl_b32 {oFG}, {oFG}, 13
    s_and_b32 {sTmp}, {sJ}, 3
    s_lshl_b32 {sTmp}, {sTmp}, 5
    s_add_u32 {oFG}, {oFG}, {sTmp}
    s_add_u32 {oFG}, {oFG}, {FIN}
    s_add_u32 {oFG2}, {oFG}, 4096
    s_mov_b32 {sCnt}, 0
    v_lshlrev_b32 {xf}, 16, {xf}
    L_poll3:
    buffer_load_dwordx4 {fg[0:4]}, {vPA}, {SWS}, {oFG} offen sc1
    buffer_load_dwordx4 {fg[4:8]}, {vPA}, {SWS}, {oFG2} offen sc1
    s_add_u32 {sCnt}, {sCnt}, 1
    s_cmp_gt_u32 {sCnt}, 20000
    s_cbranch_scc1 L_ok3
    s_waitcnt vmcnt(0)
    v_xor_b32 {vT0}, {sTag[0]}, {fg[1]}
    v_bitop3_b32 {vT0}, {fg[3]}, {sTag[0]}, {vT0} {BOP}
    v_bitop3_b32 {vT0}, {fg[5]}, {sTag[0]}, {vT0} {BOP}
    v_bitop3_b32 {vT0}, {fg[7]}, {sTag[0]}, {vT0} {BOP}
    v_cmp_ne_u32 vcc, 0, {vT0}
    s_cbranch_vccnz L_poll3
    L_ok3:
    s_waitcnt vmcnt(0)
    v_add_f32 {fg[0]}, {fg[0]}, {fg[4]}
    v_add_f32 {fg[2]}, {fg[2]}, {fg[6]}
    """)
    stamp()
    for r in (2, 4, 8):
        a(f"v_add_f32_dpp {fg[0]}, {fg[0]}, {fg[0]} row_ror:{r} row_mask:0xf bank_mask:0xf")
        a(f"v_add_f32_dpp {fg[2]}, {fg[2]}, {fg[2]} row_ror:{r} row_mask:0xf bank_mask:0xf")
    a(f"""
    v_permlane16_swap_b32 {fg[0]}, {fg[2]}
    v_add_f32 {fg[0]}, {fg[0]}, {fg[2]}
    v_mov_b32 {fg[2]}, {fg[0]}
    v_permlane32_swap_b32 {fg[0]}, {fg[2]}
    v_add_f32 {fg[0]}, {fg[0]}, {fg[2]}
    v_add_f32 {fg[0]}, {fg[0]}, {xf}
    v_cvt_pk_bf16_f32 {fg[0]}, {fg[0]}, {fg[0]}
    s_mov_b32 exec_lo, 0x00030003
    s_mov_b32 exec_hi, 0
    buffer_store_short {fg[0]}, {vXF}, {SOUT}, {oXF} offen
    s_cmp_eq_u32 s2, 0
    s_cbranch_scc0 L_fin
    s_mov_b32 exec_lo, 1
    v_mov_b32 {vT0}, 0
    v_mov_b32 {vT1}, {sTag[0]}
    buffer_store_dword {vT1}, {vT0}, {SWS}, 0 offen
    L_fin:
    """)
    if stamps:
        stamp()
        a(f"s_mov_b64 exec, -1\ns_waitcnt lgkmcnt(0)\nv_mov_b32 {vT0}, 0")
        for k in range(nst[0]):
            a(f"v_writelane_b32 {vT0}, {sST[2*k]}, {k}")
        a(f"""
        v_writelane_b32 {vT0}, {sXCC}, 14
        v_writelane_b32 {vT0}, {sMix}, 15
        s_lshl_b32 {sTmp}, s2, 2
        s_add_u32 {sTmp}, {sTmp}, {sW}
        s_lshl_b32 {sTmp}, {sTmp}, 6
        s_add_u32 {sTmp}, {sTmp}, {STAMP}
        v_lshlrev_b32 {vT1}, 2, v0
        s_mov_b32 exec_lo, 0xffff
        s_mov_b32 exec_hi, 0
        buffer_store_dword {vT0}, {vT1}, {SWS}, {sTmp} offen
        """)
    a("L_end:\ns_endpgm")
    a(f"""
    L_retry1:
    s_add_u32 {sCnt}, {sCnt}, 1
    s_cmp_gt_u32 {sCnt}, 20000
    s_cbranch_scc1 L_ok1
    s_cmp_eq_u32 {sCnt}, {opt.get('nplain', 12)}
    s_cbranch_scc0 L_r1b
    s_mov_b32 {sMix}, 1
    s_mov_b32 {sTP}, {sTag[0]}
    s_add_u32 {oQG}, {oQG}, {SC1D}
    s_add_u32 {oHG}, {oHG}, {SC1D}
    L_r1b:
    """)
    poll1(False)
    a("s_waitcnt vmcnt(0)\ns_branch L_chk1")
    a(f"""
    L_mlmix:
    buffer_store_dwordx4 {mlr}, {vT0}, {SWS}, {oML} offen sc1
    s_branch L_mlback
    L_psmix:
    buffer_store_dwordx4 {pr}, {vPS}, {SWS}, {oPS} offen sc1
    s_branch L_psback
    L_retry2:
    s_add_u32 {sCnt}, {sCnt}, 1
    s_cmp_gt_u32 {sCnt}, 20000
    s_cbranch_scc1 L_ok2
    """)
    poll2(False)
    a("s_waitcnt vmcnt(0)\ns_branch L_chk2")
    nv = (v.hw + 7) // 8 * 8
    out.append(a.text())
    out.append(f""".section .rodata,"a"
.p2align 6
.amdhsa_kernel {NAME}_kernel
  .amdhsa_next_free_vgpr {nv}
  .amdhsa_next_free_sgpr 100
  .amdhsa_accum_offset {nv}
  .amdhsa_group_segment_fixed_size 0
  .amdhsa_kernarg_size 96
  .amdhsa_user_sgpr_count 2
  .amdhsa_user_sgpr_kernarg_segment_ptr 1
  .amdhsa_system_sgpr_workgroup_id_x 1
.end_amdhsa_kernel""")
    sys.stderr.write("vgprs %d sgprs %d nops %d\n" % (v.hw, s.hw, a.nops))
    return "\n".join(out) + "\n"

if __name__ == "__main__":
    import json
    opt = json.loads(sys.argv[2]) if len(sys.argv) > 2 else {}
    open(sys.argv[1], "w").write(gen(opt))
```

```python
import sys
from asmlib import *

NAME = "parallel_sum__sliding_block_cached__dense_activation_mish__decode"
PHI = 0x9E3779B9
QBUF = 0x10000; HBUF = 0x50000; SC1D = 0x20000; MLB = 0x90000; PART = 0x100000; FIN = 0x200000; DBG = 0x400000; STAMP = 0x800000
L_XN = 0; L_Q = 4096; L_MX = 5632; L_WQ = 8192; L_WO = 8192; L_W1 = 24576; L_W2 = 32768; L_V = 40960; LDS_BYTES = 73728
QSTR = 320

def gen(opt):
    nt = opt.get("nt", {})
    def pol(k): return nt.get(k, "")
    stamps = opt.get("stamps", False)
    dump = opt.get("dump", False)
    a = Asm()
    v = Alloc("v", 1, 256); s = Alloc("s", 44, 100)
    hdr = open("cdna_kernels/%s.s.ref" % NAME).read().split("\n")
    hdr = [l for l in hdr if l.startswith(";") and "@launch" not in l and "Override" not in l and "grid=ceil" not in l]
    out = list(hdr)
    out.append("; @launch grid=(256,1,1) block=(256,1,1) lds=%d" % LDS_BYTES)
    out.append('.amdgcn_target "amdgcn-amd-amdhsa--gfx950"')
    out.append(".text\n.globl %s_kernel\n.p2align 8\n.type %s_kernel,@function\n%s_kernel:" % (NAME, NAME, NAME))
    SX, SK, SV, SWQ, SWO, SW1, SB1, SW2, SOUT, SWS = [Reg("s", 4 + 4 * i, 4) for i in range(10)]
    vm = []
    def vmem(name, text):
        a(text); vm.append(name)
    def wait_vm(name, extra=""):
        idx = max(i for i, n in enumerate(vm) if n == name)
        n = len(vm) - 1 - idx
        a("s_waitcnt vmcnt(%d)%s" % (n, extra))
    nst = [0]
    sST = None
    if stamps:
        sST = s.get(2, 2); vST = v.get()
    def stamp(last=False):
        if stamps:
            k = nst[0]; nst[0] += 1
            assert k < 14
            if k > 0:
                a("s_waitcnt lgkmcnt(0)\nv_writelane_b32 %s, %s, %d" % (vST, sST[0], k - 1))
            a("s_memrealtime %s" % sST)
            if last:
                a("s_waitcnt lgkmcnt(0)\nv_writelane_b32 %s, %s, %d" % (vST, sST[0], k))
    stamp()
    a(f"""
    s_load_dwordx2 {SX[0:2]}, s[0:1], 0
    s_load_dwordx2 {SWQ[0:2]}, s[0:1], 24
    s_load_dwordx2 {SW1[0:2]}, s[0:1], 48
    s_load_dwordx2 {SK[0:2]}, s[0:1], 8
    s_load_dwordx2 {SWS[0:2]}, s[0:1], 88
    s_load_dwordx2 {SW2[0:2]}, s[0:1], 64
    s_cmp_ge_u32 s2, 256
    s_cbranch_scc1 L_end
    """)
    sW, sG, sJ, sA, sC, sT, sBLK, sTmp, sTmp2 = [s.get() for _ in range(9)]
    oXO, oWQ, oW1, oKV, oK, oW2 = [s.get() for _ in range(6)]
    sM = s.get()
    vL = Reg("v", 0, 1)
    vGQ, vI, vT0, vT1 = [v.get() for _ in range(4)]
    vXS, vXO, vWQe, vWQo, vW1e, vW1o, vK = [v.get() for _ in range(7)]
    a(f"""
    v_readfirstlane_b32 {sW}, v0
    v_and_b32 v0, 63, v0
    s_and_b32 {sG}, s2, 7
    s_lshr_b32 {sJ}, s2, 3
    s_lshr_b32 {sW}, {sW}, 6
    s_lshr_b32 {sA}, {sJ}, 3
    s_and_b32 {sC}, {sJ}, 7
    v_lshrrev_b32 {vGQ}, 4, v0
    v_and_b32 {vI}, 15, v0
    s_mov_b32 {SX[2]}, 2048
    s_mov_b32 {SX[3]}, 0x20000
    s_mov_b32 {SWQ[2]}, {512*4096*2}
    s_mov_b32 {SWQ[3]}, 0x20000
    v_and_b32 {vT0}, 1, v0
    v_lshlrev_b32 {vT0}, 10, {vT0}
    v_lshrrev_b32 {vT1}, 1, v0
    v_lshl_add_u32 {vXS}, {vT1}, 5, {vT0}
    v_lshl_add_u32 {vXO}, {vGQ}, 4, {vT0}
    v_and_b32 {vT0}, 1, {vGQ}
    v_lshlrev_b32 {vT0}, 1, {vT0}
    v_and_b32 {vT1}, 7, v0
    v_xor_b32 {vT0}, {vT0}, {vT1}
    v_lshlrev_b32 {vT0}, 4, {vT0}
    v_lshrrev_b32 {vT1}, 3, v0
    v_lshl_add_u32 {vWQe}, {vT1}, 13, {vT0}
    v_xor_b32 {vWQo}, 64, {vWQe}
    v_mul_u32_u24 {vW1e}, 3584, {vT1}
    v_add_u32 {vW1e}, {vW1e}, {vT0}
    v_xor_b32 {vW1o}, 64, {vW1e}
    v_lshlrev_b32 {vK}, 8, {vI}
    v_lshl_add_u32 {vK}, {vGQ}, 4, {vK}
    ; row0 = 128a + 32*(w ^ 2(c&1))
    s_and_b32 {sTmp}, {sC}, 1
    s_lshl_b32 {sTmp2}, {sTmp}, 1
    s_xor_b32 {sTmp2}, {sTmp2}, {sW}
    s_lshl_b32 {sTmp2}, {sTmp2}, 5
    s_lshl_b32 {oXO}, {sA}, 7
    s_add_u32 {sTmp2}, {sTmp2}, {oXO}
    s_lshl_b32 {oWQ}, {sTmp2}, 13
    s_lshl_b32 {sM}, {sG}, 10
    s_add_u32 {oWQ}, {oWQ}, {sM}
    s_lshl_b32 {sM}, {sC}, 7
    s_add_u32 {oWQ}, {oWQ}, {sM}
    ; w1 row = 128a + 64(c&1) + 16w
    s_lshl_b32 {sTmp}, {sTmp}, 6
    s_add_u32 {oW1}, {oXO}, {sTmp}
    s_lshl_b32 {sTmp}, {sW}, 4
    s_add_u32 {oW1}, {oW1}, {sTmp}
    s_mul_i32 {oW1}, {oW1}, 3584
    s_lshl_b32 {oXO}, {sTmp2}, 1
    s_lshr_b32 {sT}, {sC}, 1
    s_sub_u32 {sT}, {sT}, {sA}
    s_and_b32 {sT}, {sT}, 3
    s_lshl_b32 {sBLK}, {sG}, 2
    s_mul_i32 {sTmp2}, {sG}, 3
    s_add_u32 {sTmp2}, {sTmp2}, 4
    s_min_u32 {sBLK}, {sBLK}, {sTmp2}
    s_add_u32 {sBLK}, {sBLK}, {sT}
    s_lshl_b32 {sTmp2}, {sBLK}, 7
    s_add_u32 {oW1}, {oW1}, {sTmp2}
    s_lshl_b32 {oW2}, {sBLK}, 6
    s_add_u32 {oW2}, {oW2}, {sTmp}
    s_lshl_b32 {oW2}, {oW2}, 10
    s_add_u32 {oW2}, {oW2}, {sM}
    s_lshr_b32 {sTmp2}, {sG}, 2
    s_add_u32 {sTmp2}, {sTmp2}, {sT}
    s_cmp_eq_u32 {sTmp2}, 4
    s_cselect_b32 {oW1}, 0x40000000, {oW1}
    s_cselect_b32 {oW2}, 0x40000000, {oW2}
    s_cselect_b32 {sBLK}, 0x100000, {sBLK}
    s_lshr_b32 {sTmp}, {sJ}, 4
    s_lshl_b32 {sTmp}, {sTmp}, 3
    s_add_u32 {sTmp}, {sTmp}, {sG}
    s_lshl_b32 {oKV}, {sTmp}, 21
    s_and_b32 {sTmp}, {sJ}, 15
    s_lshl_b32 {sTmp}, {sTmp}, 15
    s_add_u32 {oKV}, {oKV}, {sTmp}
    s_add_u32 {oKV}, {oKV}, {6144*256}
    s_lshl_b32 {oK}, {sW}, 13
    s_add_u32 {oK}, {oK}, {oKV}
    s_mov_b32 {SW1[2]}, {512*1792*2}
    s_mov_b32 {SW1[3]}, 0x20000
    s_mov_b32 {SK[2]}, {2*8*8192*256}
    s_mov_b32 {SK[3]}, 0x20000
    s_lshl_b32 {sM}, {sW}, 12
    s_add_u32 {sM}, {sM}, {L_WQ}
    s_mov_b32 m0, {sM}
    s_waitcnt lgkmcnt(0)
    """)
    stamp()
    xs = v.get(8, 2); xo = v.get(4, 2)
    kk = v.get(32, 2)
    sE = s.get(2, 2)
    vmem("xs", f"buffer_load_dwordx4 {xs[0:4]}, {vXS}, {SX}, 0 offen")
    vmem("xs", f"buffer_load_dwordx4 {xs[4:8]}, {vXS}, {SX}, 0 offen offset:16")
    vmem("xo", f"buffer_load_dwordx4 {xo}, {vXO}, {SX}, {oXO} offen")
    for k in range(4):
        vmem("wq", f"buffer_load_dwordx4 {vWQo if k & 1 else vWQe}, {SWQ}, {oWQ} offen {pol('wq')} lds")
        if k < 3:
            a(f"s_add_u32 m0, m0, 1024\ns_add_u32 {oWQ}, {oWQ}, 65536")
    a(f"s_lshl_b32 {sM}, {sW}, 11\ns_add_u32 m0, {sM}, {L_W1}\ns_load_dword {sE[0]}, {SWS[0:2]}, 0")
    vmem("w1", f"buffer_load_dwordx4 {vW1e}, {SW1}, {oW1} offen {pol('w1')} lds")
    a(f"s_add_u32 m0, m0, 1024\ns_add_u32 {oW1}, {oW1}, 28672")
    vmem("w1", f"buffer_load_dwordx4 {vW1o}, {SW1}, {oW1} offen {pol('w1')} lds")
    def kload(idx):
        T, st = idx >> 2, idx & 3
        if idx == 4: a(f"s_add_u32 {oK}, {oK}, 4096")
        vmem("k", f"buffer_load_dwordx4 {kk[4*idx:4*idx+4]}, {vK}, {SK}, {oK} offen offset:{st*64} {pol('k')}")
    NK1 = opt.get("nk1", 6)
    for idx in range(NK1): kload(idx)
    a(f"""
    s_load_dwordx2 {SV[0:2]}, s[0:1], 16
    s_load_dwordx2 {SWO[0:2]}, s[0:1], 32
    s_load_dwordx2 {SB1[0:2]}, s[0:1], 56
    s_load_dwordx2 {SOUT[0:2]}, s[0:1], 72
    s_mov_b32 {SV[2]}, {2*8*8192*256}
    s_mov_b32 {SV[3]}, 0x20000
    s_mov_b32 {SWO[2]}, {4096*512*2}
    s_mov_b32 {SWO[3]}, 0x20000
    s_mov_b32 {SB1[2]}, 3584
    s_mov_b32 {SB1[3]}, 0x20000
    s_mov_b32 {SW2[2]}, {512*1792*2}
    s_mov_b32 {SW2[3]}, 0x20000
    s_mov_b32 {SOUT[2]}, 2048
    s_mov_b32 {SOUT[3]}, 0x20000
    s_mov_b32 {SWS[2]}, 0x10000000
    s_mov_b32 {SWS[3]}, 0x20000
    """)
    stamp()
    vWO, vV, vF, vTQ, vL16 = [v.get() for _ in range(5)]
    vTW = v.get(4)
    vTV = v.get(2)
    vFF = v.get()
    sHi = s.get()
    a(f"""
    s_mov_b32 {sHi}, 0xffff0000
    v_mov_b32 {vFF}, 0xff
    v_lshlrev_b32 {vL16}, 4, v0
    v_lshlrev_b32 {vT0}, 1, {vGQ}
    v_and_b32 {vT1}, 7, v0
    v_xor_b32 {vT0}, {vT0}, {vT1}
    v_lshlrev_b32 {vT0}, 4, {vT0}
    v_lshrrev_b32 {vT1}, 3, v0
    v_lshl_add_u32 {vWO}, {vT1}, 10, {vT0}
    v_and_b32 {vT0}, 1, {vGQ}
    v_lshlrev_b32 {vF}, 1, {vT0}
    v_and_b32 {vT1}, 3, v0
    v_xor_b32 {vV}, {vF}, {vT1}
    v_lshlrev_b32 {vV}, 4, {vV}
    v_lshrrev_b32 {vT0}, 2, v0
    v_lshl_add_u32 {vV}, {vT0}, 8, {vV}
    ; f = ((i>>3)&1) | ((gq&1)<<1)
    v_lshrrev_b32 {vT0}, 3, {vI}
    v_or_b32 {vF}, {vF}, {vT0}
    v_lshlrev_b32 {vT1}, 3, {vT1}
    v_lshrrev_b32 {vT0}, 2, {vI}
    v_lshl_add_u32 {vTQ}, {vGQ}, 3, {vT0}
    v_lshl_add_u32 {vTQ}, {vTQ}, 7, {vT1}
    v_xor_b32 {vTV[0]}, {sW}, {vF}
    v_lshl_add_u32 {vTQ}, {vTV[0]}, 5, {vTQ}
    v_lshl_add_u32 {vT0}, {vGQ}, 2, {vT0}
    v_lshl_add_u32 {vTW[0]}, {vT0}, 7, {vT1}
    v_lshl_add_u32 {vTW[0]}, {vF}, 5, {vTW[0]}
    v_xor_b32 {vTW[1]}, 32, {vTW[0]}
    v_xor_b32 {vTW[2]}, 64, {vTW[0]}
    v_xor_b32 {vTW[3]}, 0x60, {vTW[0]}
    v_lshl_add_u32 {vTV[0]}, {vT0}, 6, {vT1}
    v_and_b32 {vT0}, 1, {vGQ}
    v_lshl_add_u32 {vTV[0]}, {vT0}, 5, {vTV[0]}
    s_lshl_b32 {sTmp}, {sW}, 13
    s_add_u32 {sTmp}, {sTmp}, {L_V}
    v_add_u32 {vTV[0]}, {sTmp}, {vTV[0]}
    v_xor_b32 {vTV[1]}, 32, {vTV[0]}
    """)
    mk = v.mark()
    f = v.get(16, 2); nm = v.get(2, 2); acc = v.get(2, 2); t0 = v.get(); t1 = v.get(); vMean = v.get(2, 2); vR = v.get(2, 2)
    wait_vm("xs")
    for k in range(8):
        a(f"v_lshlrev_b32 {f[2*k]}, 16, {xs[k]}\nv_and_b32 {f[2*k+1]}, {sHi}, {xs[k]}")
    g4 = v.get(8, 2)
    a(f"""
    v_pk_add_f32 {g4[0:2]}, {f[0:2]}, {f[2:4]}
    v_pk_add_f32 {g4[2:4]}, {f[4:6]}, {f[6:8]}
    v_pk_add_f32 {g4[4:6]}, {f[8:10]}, {f[10:12]}
    v_pk_add_f32 {g4[6:8]}, {f[12:14]}, {f[14:16]}
    v_pk_add_f32 {g4[0:2]}, {g4[0:2]}, {g4[2:4]}
    v_pk_add_f32 {g4[4:6]}, {g4[4:6]}, {g4[6:8]}
    v_pk_add_f32 {g4[0:2]}, {g4[0:2]}, {g4[4:6]}
    v_add_f32 {t0}, {g4[0]}, {g4[1]}
    """)
    def red_parity(x, tmp):
        for r in (2, 4, 8):
            a(f"v_add_f32_dpp {x}, {x}, {x} row_ror:{r} row_mask:0xf bank_mask:0xf")
        a(f"v_mov_b32 {tmp}, {x}\nv_permlane16_swap_b32 {x}, {tmp}\nv_add_f32 {x}, {x}, {tmp}")
        a(f"v_mov_b32 {tmp}, {x}\nv_permlane32_swap_b32 {x}, {tmp}\nv_add_f32 {x}, {x}, {tmp}")
    red_parity(t0, t1)
    a(f"""
    v_mul_f32 {nm[0]}, 0xbb000000, {t0}
    v_mul_f32 {nm[1]}, 0xbb000000, {t0}
    """)
    for k in range(8):
        a(f"v_pk_add_f32 {f[2*k:2*k+2]}, {f[2*k:2*k+2]}, {nm}")
    a(f"v_pk_mul_f32 {acc}, {f[0:2]}, {f[0:2]}\nv_pk_mul_f32 {g4[0:2]}, {f[2:4]}, {f[2:4]}")
    for k in range(2, 8):
        d = acc if k % 2 == 0 else g4[0:2]
        a(f"v_pk_fma_f32 {d}, {f[2*k:2*k+2]}, {f[2*k:2*k+2]}, {d}")
    a(f"v_pk_add_f32 {acc}, {acc}, {g4[0:2]}\nv_add_f32 {t0}, {acc[0]}, {acc[1]}")
    red_parity(t0, t1)
    a(f"""
    v_mul_f32 {t0}, 0x3b000000, {t0}
    v_cvt_pk_bf16_f32 {t0}, {t0}, {nm[0]}
    v_and_b32 {vMean[0]}, {sHi}, {t0}
    v_and_b32 {vMean[1]}, {sHi}, {t0}
    v_lshlrev_b32 {t0}, 16, {t0}
    v_add_f32 {t0}, 0x3727c5ac, {t0}
    v_cvt_pk_bf16_f32 {t0}, {t0}, {t0}
    v_lshlrev_b32 {t0}, 16, {t0}
    v_sqrt_f32 {t0}, {t0}
    v_cvt_pk_bf16_f32 {t0}, {t0}, {t0}
    v_lshlrev_b32 {t0}, 16, {t0}
    v_rcp_f32 {vR[0]}, {t0}
    """)
    wait_vm("xo")
    for k in range(4):
        a(f"v_lshlrev_b32 {f[2*k]}, 16, {xo[k]}\nv_and_b32 {f[2*k+1]}, {sHi}, {xo[k]}")
    a(f"v_mov_b32 {vR[1]}, {vR[0]}")
    for k in range(4):
        a(f"v_pk_add_f32 {f[2*k:2*k+2]}, {f[2*k:2*k+2]}, {vMean}")
    for k in range(4):
        a(f"v_cvt_pk_bf16_f32 {xo[k]}, {f[2*k]}, {f[2*k+1]}")
    for k in range(4):
        a(f"v_lshlrev_b32 {f[2*k]}, 16, {xo[k]}\nv_and_b32 {f[2*k+1]}, {sHi}, {xo[k]}")
    for k in range(4):
        a(f"v_pk_mul_f32 {f[2*k:2*k+2]}, {f[2*k:2*k+2]}, {vR}")
    for k in range(4):
        a(f"v_cvt_pk_bf16_f32 {xo[k]}, {f[2*k]}, {f[2*k+1]}")
    a(f"s_lshl_b32 {sTmp}, {sW}, 10\nv_add_u32 {vT0}, {sTmp}, {vL16}\nds_write_b128 {vT0}, {xo} offset:{L_XN}")
    v.release(mk)
    stamp()
    for idx in range(NK1, 8): kload(idx)
    b1r = v.get(2, 2); xf = v.get()
    vB1, vXF = xs[0], xs[1]
    sB, sKH, sBA, sS = [s.get() for _ in range(4)]
    oB1, oXF = s.get(), s.get()
    sTag = s.get(4); sXCC = s.get(); sTP = s.get()
    a(f"""
    s_waitcnt lgkmcnt(0)
    s_lshl_b32 {sM}, {sW}, 11
    s_add_u32 m0, {sM}, {L_W2}
    s_and_b32 {sB}, {sW}, 1
    """)
    vmem("w2", f"buffer_load_dwordx4 {vWO}, {SW2}, {oW2} offen {pol('w2')} lds")
    a(f"s_add_u32 m0, m0, 1024\ns_add_u32 {oW2}, {oW2}, 8192")
    vmem("w2", f"buffer_load_dwordx4 {vWO}, {SW2}, {oW2} offen {pol('w2')} lds")
    a(f"""
    s_lshr_b32 {sKH}, {sW}, 1
    s_lshr_b32 {sBA}, {sJ}, 4
    s_and_b32 {sS}, {sJ}, 15
    v_bfe_u32 {vT0}, v0, 3, 1
    v_lshlrev_b32 {vT0}, 5, {vT0}
    v_lshl_add_u32 {vB1}, {vGQ}, 3, {vT0}
    s_lshl_b32 {oB1}, {sBLK}, 7
    s_lshl_b32 {sTmp}, {sKH}, 6
    s_add_u32 {oB1}, {oB1}, {sTmp}
    s_lshl_b32 {oXF}, {sBA}, 10
    s_lshl_b32 {sTmp}, {sG}, 7
    s_add_u32 {oXF}, {oXF}, {sTmp}
    s_lshl_b32 {sTmp}, {sS}, 3
    s_add_u32 {oXF}, {oXF}, {sTmp}
    v_and_b32 {vT0}, 1, v0
    v_lshlrev_b32 {vT0}, 2, {vT0}
    v_and_b32 {vT1}, 1, {vGQ}
    v_lshl_add_u32 {vXF}, {vT1}, 1, {vT0}
    s_getreg_b32 {sXCC}, hwreg(HW_REG_XCC_ID, 0, 4)
    s_add_u32 {sTag[0]}, {sE[0]}, {hex(PHI)}
    s_lshr_b32 {sTag[1]}, {sTag[0]}, 8
    s_lshr_b32 {sTag[2]}, {sTag[0]}, 16
    s_lshr_b32 {sTag[3]}, {sTag[0]}, 24
    s_xor_b32 {sTP}, {sTag[0]}, {sXCC}
    """)
    vmem("b1", f"buffer_load_dwordx2 {b1r}, {vB1}, {SB1}, {oB1} offen")
    vmem("xf", f"buffer_load_ushort {xf}, {vXF}, {SX}, {oXF} offen")
    oQS, oHS, oQG, oHG, oML, oPS, oV, oWO = [s.get() for _ in range(8)]
    vQS, vHS, vQG, vHG = [v.get() for _ in range(4)]
    a(f"""
    s_lshl_b32 {oQG}, {sG}, 14
    s_add_u32 {oQG}, {oQG}, {QBUF}
    s_lshl_b32 {sTmp}, {sA}, 11
    s_add_u32 {oQS}, {oQG}, {sTmp}
    s_lshl_b32 {sTmp}, {sC}, 8
    s_add_u32 {oQS}, {oQS}, {sTmp}
    s_lshl_b32 {sTmp2}, {sW}, 6
    s_add_u32 {oQS}, {oQS}, {sTmp2}
    s_lshl_b32 {sTmp}, {sBA}, 13
    s_add_u32 {oQG}, {oQG}, {sTmp}
    s_lshl_b32 {sTmp}, {sW}, 9
    s_add_u32 {oQG}, {oQG}, {sTmp}
    s_lshl_b32 {oHG}, {sG}, 2
    s_add_u32 {oHG}, {oHG}, {sT}
    s_lshl_b32 {oHG}, {oHG}, 12
    s_add_u32 {oHG}, {oHG}, {HBUF}
    s_lshl_b32 {sTmp}, {sA}, 1
    s_and_b32 {oHS}, {sC}, 1
    s_add_u32 {sTmp}, {sTmp}, {oHS}
    s_lshl_b32 {sTmp}, {sTmp}, 8
    s_add_u32 {oHS}, {oHG}, {sTmp}
    s_add_u32 {oHS}, {oHS}, {sTmp2}
    s_lshl_b32 {sTmp}, {sB}, 11
    s_add_u32 {oHG}, {oHG}, {sTmp}
    s_lshl_b32 {sTmp}, {sKH}, 7
    s_add_u32 {oHG}, {oHG}, {sTmp}
    v_and_b32 {vT0}, 1, v0
    v_lshlrev_b32 {vT1}, 4, {vGQ}
    v_lshl_add_u32 {vQS}, {vT0}, 13, {vT1}
    v_lshl_add_u32 {vHS}, {vT0}, 11, {vT1}
    v_lshrrev_b32 {vT0}, 5, v0
    v_lshlrev_b32 {vT0}, 12, {vT0}
    v_and_b32 {vQG}, 31, v0
    v_lshl_add_u32 {vQG}, {vQG}, 4, {vT0}
    v_bfe_u32 {vT0}, v0, 3, 1
    v_lshl_add_u32 {vT0}, {vT0}, 6, {vT1}
    v_and_b32 {vHG}, 7, v0
    v_lshl_add_u32 {vHG}, {vHG}, 8, {vT0}
    s_lshl_b32 {sTmp}, {sW}, 6
    s_add_u32 {oV}, {oKV}, {sTmp}
    s_lshl_b32 {oWO}, {sG}, 2
    s_add_u32 {oWO}, {oWO}, {sA}
    s_lshl_b32 {oWO}, {oWO}, 2
    s_add_u32 {oWO}, {oWO}, {sW}
    s_lshl_b32 {oWO}, {oWO}, 15
    s_lshl_b32 {sTmp}, {sC}, 7
    s_add_u32 {oWO}, {oWO}, {sTmp}
    s_lshl_b32 {sTmp}, {sG}, 1
    s_add_u32 {sTmp}, {sTmp}, {sBA}
    s_lshl_b32 {oML}, {sTmp}, 2
    s_add_u32 {oML}, {oML}, {sW}
    s_lshl_b32 {oML}, {oML}, 8
    s_lshl_b32 {sTmp2}, {sS}, 4
    s_add_u32 {oML}, {oML}, {sTmp2}
    s_add_u32 {oML}, {oML}, {MLB}
    s_lshl_b32 {oPS}, {sTmp}, 15
    s_lshl_b32 {sTmp2}, {sS}, 9
    s_add_u32 {oPS}, {oPS}, {sTmp2}
    s_lshl_b32 {sTmp2}, {sW}, 7
    s_add_u32 {oPS}, {oPS}, {sTmp2}
    s_add_u32 {oPS}, {oPS}, {PART}
    """)
    wait_vm("w1")
    a("s_barrier")
    stamp()
    mk = v.mark()
    xn = v.get(16, 2); aq = v.get(16, 2); a1 = v.get(8, 2); dq = v.get(4, 2); dh = v.get(4, 2)
    for t in range(2):
        a(f"ds_read_b128 {xn[4*t:4*t+4]}, {vL16} offset:{L_XN + 1024*t}")
        for hi in range(2):
            a(f"ds_read_b64_tr_b16 {aq[4*t+2*hi:4*t+2*hi+2]}, {vTQ} offset:{L_WQ + 4096*t + 512*hi}")
    for t in range(2, 4):
        a(f"ds_read_b128 {xn[4*t:4*t+4]}, {vL16} offset:{L_XN + 1024*t}")
        for hi in range(2):
            a(f"ds_read_b64_tr_b16 {aq[4*t+2*hi:4*t+2*hi+2]}, {vTQ} offset:{L_WQ + 4096*t + 512*hi}")
    for t in range(2):
        for hi in range(2):
            a(f"ds_read_b64_tr_b16 {a1[4*t+2*hi:4*t+2*hi+2]}, {vTQ} offset:{L_W1 + 4096*t + 512*hi}")
    a("s_mov_b32 exec_lo, 0x00030003\ns_mov_b32 exec_hi, 0x00030003" if False else "")
    for t in range(4):
        a(f"s_waitcnt lgkmcnt({13 - 3*t})")
        a(f"v_mfma_f32_16x16x32_bf16 {dq}, {aq[4*t:4*t+4]}, {xn[4*t:4*t+4]}, {dq if t else 0}")
    for t in range(2):
        a(f"s_waitcnt lgkmcnt({2 - 2*t})")
        a(f"v_mfma_f32_16x16x32_bf16 {dh}, {a1[4*t:4*t+4]}, {xn[4*t:4*t+4]}, {dh if t else 0}")
    a("s_mov_b32 exec_lo, 0x00030003\ns_mov_b32 exec_hi, 0x00030003")
    def pub(d, voff, soff, name):
        a(f"v_bfi_b32 {d[0]}, {vFF}, {sTP}, {d[0]}")
        for k in range(1, 4):
            a(f"v_bfi_b32 {d[k]}, {vFF}, {sTag[k]}, {d[k]}")
        vmem(name, f"buffer_store_dwordx4 {d}, {voff}, {SWS}, {soff} offen")
    pub(dq, vQS, oQS, "qs")
    pub(dh, vHS, oHS, "hs")
    a(f"s_add_u32 {oQS}, {oQS}, {SC1D}\ns_add_u32 {oHS}, {oHS}, {SC1D}")
    a(f"v_xor_b32 {dq[0]}, {sXCC}, {dq[0]}\nv_xor_b32 {dh[0]}, {sXCC}, {dh[0]}")
    vmem("qs", f"buffer_store_dwordx4 {dq}, {vQS}, {SWS}, {oQS} offen sc1")
    vmem("hs", f"buffer_store_dwordx4 {dh}, {vHS}, {SWS}, {oHS} offen sc1")
    a("s_mov_b64 exec, -1")
    a("s_barrier")
    v.release(mk)
    stamp()
    qg = v.get(8, 2); hg = v.get(4, 2)
    def poll1(first):
        t = [f"buffer_load_dwordx4 {qg[0:4]}, {vQG}, {SWS}, {oQG} offen sc1",
             f"buffer_load_dwordx4 {qg[4:8]}, {vQG}, {SWS}, {oQG} offen offset:2048 sc1",
             f"buffer_load_dwordx4 {hg}, {vHG}, {SWS}, {oHG} offen sc1"]
        for x in t:
            if first: vmem("p1", x)
            else: a(x)
    poll1(True)
    a(f"s_lshl_b32 {sM}, {sW}, 13\ns_add_u32 m0, {sM}, {L_V}\ns_nop 0")
    for n in range(8):
        vmem("v%d" % (n // 2), f"buffer_load_dwordx4 {vV}, {SV}, {oV} offen {pol('v')} lds")
        if n < 7: a(f"s_add_u32 m0, m0, 1024\ns_add_u32 {oV}, {oV}, 4096")
    a(f"s_lshl_b32 {sM}, {sW}, 12\ns_add_u32 m0, {sM}, {L_WO}\ns_nop 0")
    for n in range(4):
        vmem("wo", f"buffer_load_dwordx4 {vWO}, {SWO}, {oWO} offen {pol('wo')} lds")
        if n < 3: a(f"s_add_u32 m0, m0, 1024\ns_add_u32 {oWO}, {oWO}, 8192")
    sCnt, sMix = s.get(), s.get()
    a(f"s_mov_b32 {sCnt}, 0\ns_mov_b32 {sMix}, 0")
    wait_vm("p1")
    a("L_chk1:")
    BOP = "bitop3:0xbe"
    a(f"v_xor_b32 {vT0}, {sTP}, {qg[0]}")
    seq = [(qg[1], sTag[1]), (qg[2], sTag[2]), (qg[3], sTag[3]), (qg[4], sTP), (qg[5], sTag[1]), (qg[6], sTag[2]), (qg[7], sTag[3]),
           (hg[0], sTP), (hg[1], sTag[1]), (hg[2], sTag[2]), (hg[3], sTag[3])]
    for r, tg in seq:
        a(f"v_bitop3_b32 {vT0}, {r}, {tg}, {vT0} {BOP}")
    a(f"""
    v_and_b32 {vT0}, {vT0}, {vFF}
    v_cmp_ne_u32 vcc, 0, {vT0}
    s_cbranch_vccnz L_retry1
    L_ok1:
    """)
    stamp()
    mk = v.mark()
    qb = v.get(16, 2)
    sMsk = s.get()
    a(f"s_mov_b32 {sMsk}, 0xffffff00")
    for k in range(8):
        a(f"v_and_b32 {qg[k]}, {sMsk}, {qg[k]}")
    a(f"""
    v_pk_add_f32 {qg[0:2]}, {qg[0:2]}, {qg[4:6]}
    v_pk_add_f32 {qg[2:4]}, {qg[2:4]}, {qg[6:8]}
    v_and_b32 {vT0}, 31, v0
    v_lshlrev_b32 {vT0}, 3, {vT0}
    v_lshrrev_b32 {vT1}, 5, v0
    v_permlane32_swap_b32 {qg[0]}, {qg[2]}
    v_permlane32_swap_b32 {qg[1]}, {qg[3]}
    v_lshl_add_u32 {vT0}, {vT1}, 2, {vT0}
    s_mul_i32 {sTmp}, {sW}, {QSTR}
    v_add_f32 {qg[0]}, {qg[0]}, {qg[2]}
    v_add_f32 {qg[1]}, {qg[1]}, {qg[3]}
    v_add_u32 {vT0}, {sTmp}, {vT0}
    v_cvt_pk_bf16_f32 {qg[0]}, {qg[0]}, {qg[1]}
    ds_write_b32 {vT0}, {qg[0]} offset:{L_Q}
    v_and_b32 {vT1}, 3, v0
    v_mul_u32_u24 {vT0}, {QSTR}, {vT1}
    v_lshl_add_u32 {vT0}, {vGQ}, 4, {vT0}
    s_waitcnt lgkmcnt(0)
    s_barrier
    """)
    for st in range(4):
        a(f"ds_read_b128 {qb[4*st:4*st+4]}, {vT0} offset:{L_Q + 64*st}")
    sc = v.get(8, 2)
    for st in range(4):
        a(f"s_waitcnt lgkmcnt({3 - st})")
        for T in range(2):
            d = sc[4*T:4*T+4]
            a(f"v_mfma_f32_16x16x32_bf16 {d}, {kk[16*T+4*st:16*T+4*st+4]}, {qb[4*st:4*st+4]}, {d if st else 0}")
    vMX = qg[4]; vMR = qg[5]
    a(f"s_lshl_b32 {sTmp}, {sW}, 2\nv_lshlrev_b32 {vMR}, 4, {vT1}\nv_add_u32 {vMX}, {sTmp}, {vMR}")
    pk = qb
    tmp4 = v.get(4, 2)
    sScale, sL2E = s.get(), s.get()
    a(f"s_mov_b32 {sScale}, 0x3db504f3\ns_mov_b32 {sL2E}, 0x3fb8aa3b")
    for k in range(4):
        a(f"v_cvt_pk_bf16_f32 {tmp4[k]}, {sc[2*k]}, {sc[2*k+1]}")
    for k in range(4):
        a(f"v_lshlrev_b32 {sc[2*k]}, 16, {tmp4[k]}\nv_and_b32 {sc[2*k+1]}, {sHi}, {tmp4[k]}")
    for k in range(8):
        a(f"v_mul_f32 {sc[k]}, {sScale}, {sc[k]}")
    for k in range(4):
        a(f"v_cvt_pk_bf16_f32 {tmp4[k]}, {sc[2*k]}, {sc[2*k+1]}")
    for k in range(4):
        a(f"v_lshlrev_b32 {sc[2*k]}, 16, {tmp4[k]}\nv_and_b32 {sc[2*k+1]}, {sHi}, {tmp4[k]}")
    vMax = v.get()
    a(f"""
    v_max3_f32 {vT0}, {sc[0]}, {sc[1]}, {sc[2]}
    v_max3_f32 {vT1}, {sc[3]}, {sc[4]}, {sc[5]}
    v_max3_f32 {vT0}, {vT0}, {sc[6]}, {sc[7]}
    v_max_f32 {vT0}, {vT0}, {vT1}
    v_mov_b32 {vT1}, {vT0}
    v_permlane16_swap_b32 {vT0}, {vT1}
    v_max_f32 {vT0}, {vT0}, {vT1}
    v_mov_b32 {vT1}, {vT0}
    v_permlane32_swap_b32 {vT0}, {vT1}
    v_max_f32 {vT0}, {vT0}, {vT1}
    ds_write_b32 {vMX}, {vT0} offset:{L_MX}
    s_waitcnt lgkmcnt(0)
    s_barrier
    ds_read_b128 {tmp4}, {vMR} offset:{L_MX}
    s_lshl_b32 {sTmp}, {sW}, 10
    v_add_u32 {vMX}, {sTmp}, {vL16}
    s_waitcnt lgkmcnt(0)
    v_max3_f32 {vT0}, {tmp4[0]}, {tmp4[1]}, {tmp4[2]}
    v_max_f32 {vT0}, {vT0}, {tmp4[3]}
    v_mul_f32 {vMax}, {sL2E}, {vT0}
    """)
    for k in range(8):
        a(f"v_fma_f32 {sc[k]}, {sc[k]}, {sL2E}, -{vMax}")
    for k in range(8):
        a(f"v_exp_f32 {sc[k]}, {sc[k]}")
    for k in range(4):
        a(f"v_cvt_pk_bf16_f32 {tmp4[k]}, {sc[2*k]}, {sc[2*k+1]}")
    a(f"""
    ds_write_b128 {vMX}, {tmp4} offset:{L_XN}
    s_waitcnt lgkmcnt(0)
    s_barrier
    """)
    for t in range(4):
        a(f"ds_read_b128 {pk[4*t:4*t+4]}, {vL16} offset:{L_XN + 1024*t}")
    ones = tmp4
    dl = sc[0:4]; mlr = sc[4:8]
    for k in range(4):
        a(f"v_mov_b32 {ones[k]}, 0x3f803f80")
    for t in range(4):
        a(f"s_waitcnt lgkmcnt({3 - t})")
        a(f"v_mfma_f32_16x16x32_bf16 {dl}, {ones}, {pk[4*t:4*t+4]}, {dl if t else 0}")
    a(f"""
    v_mov_b32 {mlr[0]}, {vMax}
    v_mov_b32 {mlr[2]}, {sTag[0]}
    v_mov_b32 {mlr[3]}, {sTag[0]}
    v_mov_b32 {vT0}, 0
    s_lshl_b32 {sTmp}, 1, {sW}
    v_mov_b32 {mlr[1]}, {dl[0]}
    s_mov_b32 exec_lo, {sTmp}
    s_mov_b32 exec_hi, 0
    s_cmp_eq_u32 {sMix}, 0
    s_cbranch_scc0 L_mlmix
    """)
    vmem("ml", f"buffer_store_dwordx4 {mlr}, {vT0}, {SWS}, {oML} offen")
    a("L_mlback:")
    a("s_mov_b64 exec, -1")
    stamp()
    mk2 = v.mark()
    hb = v.get(4, 2); e = v.get(4, 2); u = v.get(4, 2); d4 = v.get(4, 2); af = v.get(4, 2); bw = v.get(16, 2)
    df = v.get(16, 2)
    for ct in range(4):
        pass
    a(f"s_lshl_b32 {sTmp}, {sKH}, 12")
    for ct in range(4):
        a(f"v_add_u32 {vTW[ct]}, {sTmp}, {vTW[ct]}")
    for ct in range(4):
        for hi in range(2):
            a(f"ds_read_b64_tr_b16 {bw[4*ct+2*hi:4*ct+2*hi+2]}, {vTW[ct]} offset:{L_W2 + 2048*hi}")
    for k in range(4):
        a(f"v_and_b32 {hg[k]}, {sMsk}, {hg[k]}")
    for m in ("quad_perm:[1,0,3,2]", "quad_perm:[2,3,0,1]", "row_half_mirror"):
        for k in range(4):
            a(f"v_add_f32_dpp {hg[k]}, {hg[k]}, {hg[k]} {m} row_mask:0xf bank_mask:0xf")
    def rnd(dst, src, tmpv):
        a(f"v_cvt_pk_bf16_f32 {tmpv[0]}, {src[0]}, {src[1]}\nv_cvt_pk_bf16_f32 {tmpv[1]}, {src[2]}, {src[3]}")
        for k in range(2):
            a(f"v_lshlrev_b32 {dst[2*k]}, 16, {tmpv[k]}\nv_and_b32 {dst[2*k+1]}, {sHi}, {tmpv[k]}")
    tp = af[0:2]
    rnd(hb, hg, tp)
    for k in range(2):
        a(f"v_lshlrev_b32 {e[2*k]}, 16, {b1r[k]}\nv_and_b32 {e[2*k+1]}, {sHi}, {b1r[k]}")
    a(f"v_pk_add_f32 {hb[0:2]}, {hb[0:2]}, {e[0:2]}\nv_pk_add_f32 {hb[2:4]}, {hb[2:4]}, {e[2:4]}")
    rnd(hb, hb, tp)
    for k in range(4):
        a(f"v_mul_f32 {e[k]}, -abs({hb[k]}), {sL2E}")
    for k in range(4):
        a(f"v_exp_f32 {e[k]}, {e[k]}")
    rnd(e, e, tp)
    for k in range(4):
        a(f"v_add_f32 {u[k]}, 1.0, {e[k]}")
    for k in range(4):
        a(f"v_add_f32 {d4[k]}, -1.0, {u[k]}\nv_log_f32 {u[k]}, {u[k]}")
    sLn2 = sScale
    a(f"s_mov_b32 {sLn2}, 0x3f317218")
    for k in range(4):
        a(f"v_rcp_f32 {hg[k]}, {d4[k]}\nv_mul_f32 {u[k]}, {sLn2}, {u[k]}")
    for k in range(4):
        a(f"v_mul_f32 {hg[k]}, {hg[k]}, {e[k]}")
    for k in range(4):
        a(f"v_mul_f32 {u[k]}, {u[k]}, {hg[k]}\nv_cmp_eq_f32 vcc, 0, {d4[k]}\nv_cndmask_b32 {u[k]}, {u[k]}, {e[k]}, vcc")
    rnd(u, u, tp)
    for k in range(4):
        a(f"v_max_f32 {e[k]}, 0, {hb[k]}")
    a(f"v_pk_add_f32 {u[0:2]}, {u[0:2]}, {e[0:2]}\nv_pk_add_f32 {u[2:4]}, {u[2:4]}, {e[2:4]}")
    rnd(u, u, tp)
    sM2 = s.get()
    a(f"s_mov_b32 {sM2}, 0xc038aa3b")
    for k in range(4):
        a(f"v_mul_f32 {e[k]}, {sM2}, {u[k]}")
    for k in range(4):
        a(f"v_exp_f32 {e[k]}, {e[k]}")
    for k in range(4):
        a(f"v_add_f32 {d4[k]}, 1.0, {e[k]}\nv_sub_f32 {e[k]}, 1.0, {e[k]}")
    for k in range(4):
        a(f"v_rcp_f32 {d4[k]}, {d4[k]}")
    for k in range(4):
        a(f"v_mul_f32 {e[k]}, {e[k]}, {d4[k]}\nv_cmp_gt_f32 vcc, 0x3a800000, {u[k]}\nv_cndmask_b32 {e[k]}, {e[k]}, {u[k]}, vcc")
    rnd(e, e, tp)
    sLm = s.get(2, 2)
    a(f"""
    v_pk_mul_f32 {e[0:2]}, {e[0:2]}, {hb[0:2]}
    v_pk_mul_f32 {e[2:4]}, {e[2:4]}, {hb[2:4]}
    s_mov_b32 {sLm[0]}, 0x00010001
    s_mov_b32 {sLm[1]}, 0x00010001
    v_cvt_pk_bf16_f32 {u[0]}, {e[0]}, {e[1]}
    v_cvt_pk_bf16_f32 {u[1]}, {e[2]}, {e[3]}
    v_mov_b32_dpp {u[2]}, {u[0]} row_ror:8 row_mask:0xf bank_mask:0xf
    v_mov_b32_dpp {u[3]}, {u[1]} row_ror:8 row_mask:0xf bank_mask:0xf
    """)
    for k in range(4):
        a(f"v_cndmask_b32 {af[k]}, 0, {u[k]}, {sLm}")
    a("s_waitcnt lgkmcnt(0)")
    for ct in range(4):
        a(f"v_mfma_f32_16x16x32_bf16 {df[4*ct:4*ct+4]}, {af}, {bw[4*ct:4*ct+4]}, 0")
    stamp()
    av = v.get(16, 2)
    do = v.get(8, 2); pr = v.get(4, 2)
    vPS = v.get()
    a(f"""
    v_and_b32 {vT0}, 3, v0
    v_lshlrev_b32 {vT0}, 13, {vT0}
    v_lshl_add_u32 {vT0}, {vGQ}, 5, {vT0}
    v_bfe_u32 {vT1}, v0, 2, 1
    v_lshl_add_u32 {vPS}, {vT1}, 4, {vT0}
    """)
    for k in range(4):
        a(f"v_mov_b32 {pr[k]}, {sTag[0]}")
    a(f"s_lshl_b32 {sTmp}, {sKH}, 12")
    for ct in range(4):
        a(f"v_add_u32 {vTW[ct]}, {sTmp}, {vTW[ct]}")
    vPA, vMLG, vFS = v.get(), v.get(), v.get()
    oPA, oMLG, oFS = s.get(), s.get(), s.get()
    a(f"""
    v_lshlrev_b32 {vPA}, 9, {vI}
    v_lshl_add_u32 {vPA}, {vGQ}, 5, {vPA}
    v_lshl_add_u32 {vMLG}, {vGQ}, 2, {vI}
    v_and_b32 {vMLG}, 15, {vMLG}
    v_lshlrev_b32 {vMLG}, 4, {vMLG}
    v_lshlrev_b32 {vFS}, 3, {vI}
    v_lshl_add_u32 {vFS}, {vGQ}, 13, {vFS}
    s_lshl_b32 {sTmp}, {sG}, 1
    s_add_u32 {sTmp}, {sTmp}, {sB}
    s_lshl_b32 {sTmp}, {sTmp}, 2
    s_add_u32 {sTmp}, {sTmp}, {sA}
    s_lshl_b32 {oMLG}, {sTmp}, 8
    s_add_u32 {oMLG}, {oMLG}, {MLB}
    s_lshl_b32 {oPA}, {sTmp}, 13
    s_lshl_b32 {sTmp2}, {sKH}, 8
    s_add_u32 {oPA}, {oPA}, {sTmp2}
    s_add_u32 {oPA}, {oPA}, {PART}
    s_lshl_b32 {oFS}, {sC}, 1
    s_add_u32 {oFS}, {oFS}, {sB}
    s_lshl_b32 {oFS}, {oFS}, 15
    s_lshl_b32 {sTmp}, {sG}, 2
    s_add_u32 {sTmp}, {sTmp}, {sA}
    s_lshl_b32 {sTmp}, {sTmp}, 1
    s_add_u32 {sTmp}, {sTmp}, {sKH}
    s_lshl_b32 {sTmp}, {sTmp}, 7
    s_add_u32 {oFS}, {oFS}, {sTmp}
    s_add_u32 {oFS}, {oFS}, {FIN}
    """)
    for t in range(4):
        buf = av[8*(t&1):8*(t&1)+8]
        wait_vm("v%d" % t)
        for T in range(2):
            for hi in range(2):
                a(f"ds_read_b64_tr_b16 {buf[4*T+2*hi:4*T+2*hi+2]}, {vTV[T]} offset:{2048*t + 1024*hi}")
        for T in range(2):
            a(f"s_waitcnt lgkmcnt({2 - 2*T})")
            d = do[4*T:4*T+4]
            a(f"v_mfma_f32_16x16x32_bf16 {d}, {buf[4*T:4*T+4]}, {pk[4*t:4*t+4]}, {d if t else 0}")
    a(f"""
    s_mov_b32 exec_lo, 0x000f000f
    s_mov_b32 exec_hi, 0x000f000f
    v_cvt_pk_bf16_f32 {pr[2]}, {do[0]}, {do[1]}
    v_cvt_pk_bf16_f32 {pr[3]}, {do[2]}, {do[3]}
    s_mov_b32 exec_lo, 0x00f000f0
    s_mov_b32 exec_hi, 0x00f000f0
    v_cvt_pk_bf16_f32 {pr[0]}, {do[4]}, {do[5]}
    v_cvt_pk_bf16_f32 {pr[1]}, {do[6]}, {do[7]}
    s_mov_b32 exec_lo, 0x00ff00ff
    s_mov_b32 exec_hi, 0x00ff00ff
    s_cmp_eq_u32 {sMix}, 0
    s_cbranch_scc0 L_psmix
    """)
    vmem("ps", f"buffer_store_dwordx4 {pr}, {vPS}, {SWS}, {oPS} offen")
    a("L_psback:")
    a("s_mov_b64 exec, -1")
    stamp()
    pa = kk[0:16]; mlg = kk[16:20]; bo = v.get(32, 2); dd = kk[20:32]
    dd = v.get(16, 2)
    def poll2(first):
        t = []
        for tl in range(2):
            t.append(f"buffer_load_dwordx4 {pa[8*tl:8*tl+4]}, {vPA}, {SWS}, {oPA} offen offset:{128*tl} sc1")
            t.append(f"buffer_load_dwordx4 {pa[8*tl+4:8*tl+8]}, {vPA}, {SWS}, {oPA} offen offset:{128*tl+16} sc1")
        t.append(f"buffer_load_dwordx4 {mlg}, {vMLG}, {SWS}, {oMLG} offen sc1")
        for x in t:
            if first: vmem("p2", x)
            else: a(x)
    poll2(True)
    wait_vm("wo")
    a("s_barrier")
    for tl in range(2):
        for ct in range(4):
            for hi in range(2):
                r = bo[16*tl+4*ct+2*hi:16*tl+4*ct+2*hi+2]
                a(f"ds_read_b64_tr_b16 {r}, {vTW[ct]} offset:{L_WO + 4096*tl + 2048*hi}")
    a(f"s_mov_b32 {sCnt}, 0")
    a("s_waitcnt vmcnt(0)")
    a("L_chk2:")
    a(f"v_xor_b32 {vT0}, {sTag[0]}, {pa[1]}")
    for r in (pa[6], pa[9], pa[14], mlg[2]):
        a(f"v_bitop3_b32 {vT0}, {r}, {sTag[0]}, {vT0} {BOP}")
    a(f"""
    v_cmp_ne_u32 vcc, 0, {vT0}
    s_cbranch_vccnz L_retry2
    L_ok2:
    s_waitcnt lgkmcnt(0)
    """)
    stamp()
    for ct in range(4):
        a(f"v_mfma_f32_16x16x32_bf16 {dd[4*ct:4*ct+4]}, {pa[2:6]}, {bo[4*ct:4*ct+4]}, 0")
    wv = vT1
    a(f"v_mov_b32 {vT0}, {mlg[0]}")
    for r in (1, 2, 4, 8):
        a(f"v_max_f32_dpp {vT0}, {vT0}, {vT0} row_ror:{r} row_mask:0xf bank_mask:0xf")
    for ct in range(4):
        a(f"v_mfma_f32_16x16x32_bf16 {dd[4*ct:4*ct+4]}, {pa[10:14]}, {bo[16+4*ct:16+4*ct+4]}, {dd[4*ct:4*ct+4]}")
    a(f"""
    v_sub_f32 {wv}, {mlg[0]}, {vT0}
    v_exp_f32 {wv}, {wv}
    v_mul_f32 {vT0}, {wv}, {mlg[1]}
    """)
    for r in (1, 2, 4, 8):
        a(f"v_add_f32_dpp {vT0}, {vT0}, {vT0} row_ror:{r} row_mask:0xf bank_mask:0xf")
    a(f"v_rcp_f32 {vT0}, {vT0}\nv_mul_f32 {wv}, {wv}, {vT0}")
    for r in range(4):
        for ct in range(4):
            a(f"v_fmac_f32_dpp {df[4*ct]}, {wv}, {dd[4*ct+r]} row_newbcast:{r} row_mask:0xf bank_mask:0xf")
    fo = pr[0:2]
    a(f"""
    v_mov_b32 {fo[1]}, {sTag[0]}
    v_permlane32_swap_b32 {df[0]}, {df[8]}
    v_permlane32_swap_b32 {df[4]}, {df[12]}
    v_add_f32 {df[0]}, {df[0]}, {df[8]}
    v_add_f32 {df[4]}, {df[4]}, {df[12]}
    v_permlane16_swap_b32 {df[0]}, {df[4]}
    v_add_f32 {fo[0]}, {df[0]}, {df[4]}
    """)
    a(f"buffer_store_dwordx2 {fo}, {vFS}, {SWS}, {oFS} offen sc1")
    stamp()
    a(f"s_cmp_eq_u32 {sW}, 0\ns_cbranch_scc0 L_fin")
    fg = kk[0:8]
    oFG, oFG2 = oPA, oMLG
    a(f"""
    v_lshrrev_b32 {vT0}, 1, v0
    v_lshlrev_b32 {vT0}, 7, {vT0}
    v_and_b32 {vT1}, 1, v0
    v_lshl_add_u32 {vPA}, {vT1}, 4, {vT0}
    ; FIN + (8g + (j>>2))*8192 + (j&3)*32
    s_lshl_b32 {oFG}, {sG}, 3
    s_lshr_b32 {sTmp}, {sJ}, 2
    s_add_u32 {oFG}, {oFG}, {sTmp}
    s_lshl_b32 {oFG}, {oFG}, 13
    s_and_b32 {sTmp}, {sJ}, 3
    s_lshl_b32 {sTmp}, {sTmp}, 5
    s_add_u32 {oFG}, {oFG}, {sTmp}
    s_add_u32 {oFG}, {oFG}, {FIN}
    s_add_u32 {oFG2}, {oFG}, 4096
    s_mov_b32 {sCnt}, 0
    v_lshlrev_b32 {xf}, 16, {xf}
    L_poll3:
    buffer_load_dwordx4 {fg[0:4]}, {vPA}, {SWS}, {oFG} offen sc1
    buffer_load_dwordx4 {fg[4:8]}, {vPA}, {SWS}, {oFG2} offen sc1
    s_add_u32 {sCnt}, {sCnt}, 1
    s_cmp_gt_u32 {sCnt}, 20000
    s_cbranch_scc1 L_ok3
    s_waitcnt vmcnt(0)
    v_xor_b32 {vT0}, {sTag[0]}, {fg[1]}
    v_bitop3_b32 {vT0}, {fg[3]}, {sTag[0]}, {vT0} {BOP}
    v_bitop3_b32 {vT0}, {fg[5]}, {sTag[0]}, {vT0} {BOP}
    v_bitop3_b32 {vT0}, {fg[7]}, {sTag[0]}, {vT0} {BOP}
    v_cmp_ne_u32 vcc, 0, {vT0}
    s_cbranch_vccnz L_poll3
    L_ok3:
    s_waitcnt vmcnt(0)
    v_add_f32 {fg[0]}, {fg[0]}, {fg[4]}
    v_add_f32 {fg[2]}, {fg[2]}, {fg[6]}
    """)
    stamp()
    for r in (2, 4, 8):
        a(f"v_add_f32_dpp {fg[0]}, {fg[0]}, {fg[0]} row_ror:{r} row_mask:0xf bank_mask:0xf")
        a(f"v_add_f32_dpp {fg[2]}, {fg[2]}, {fg[2]} row_ror:{r} row_mask:0xf bank_mask:0xf")
    a(f"""
    v_permlane16_swap_b32 {fg[0]}, {fg[2]}
    v_add_f32 {fg[0]}, {fg[0]}, {fg[2]}
    v_mov_b32 {fg[2]}, {fg[0]}
    v_permlane32_swap_b32 {fg[0]}, {fg[2]}
    v_add_f32 {fg[0]}, {fg[0]}, {fg[2]}
    v_add_f32 {fg[0]}, {fg[0]}, {xf}
    v_cvt_pk_bf16_f32 {fg[0]}, {fg[0]}, {fg[0]}
    s_mov_b32 exec_lo, 0x00030003
    s_mov_b32 exec_hi, 0
    buffer_store_short {fg[0]}, {vXF}, {SOUT}, {oXF} offen
    s_cmp_eq_u32 s2, 0
    s_cbranch_scc0 L_fin
    s_mov_b32 exec_lo, 1
    v_mov_b32 {vT0}, 0
    v_mov_b32 {vT1}, {sTag[0]}
    buffer_store_dword {vT1}, {vT0}, {SWS}, 0 offen
    L_fin:
    """)
    if stamps:
        stamp(True)
        a(f"s_mov_b64 exec, -1")
        a(f"""
        v_writelane_b32 {vST}, {sXCC}, 14
        v_writelane_b32 {vST}, {sMix}, 15
        s_lshl_b32 {sTmp}, s2, 2
        s_add_u32 {sTmp}, {sTmp}, {sW}
        s_lshl_b32 {sTmp}, {sTmp}, 6
        s_add_u32 {sTmp}, {sTmp}, {STAMP}
        v_lshlrev_b32 {vT1}, 2, v0
        s_mov_b32 exec_lo, 0xffff
        s_mov_b32 exec_hi, 0
        buffer_store_dword {vST}, {vT1}, {SWS}, {sTmp} offen
        """)
    a("L_end:\ns_endpgm")
    a(f"""
    L_retry1:
    s_add_u32 {sCnt}, {sCnt}, 1
    s_cmp_gt_u32 {sCnt}, 20000
    s_cbranch_scc1 L_ok1
    s_cmp_eq_u32 {sCnt}, {opt.get('nplain', 12)}
    s_cbranch_scc0 L_r1b
    s_mov_b32 {sMix}, 1
    s_mov_b32 {sTP}, {sTag[0]}
    s_add_u32 {oQG}, {oQG}, {SC1D}
    s_add_u32 {oHG}, {oHG}, {SC1D}
    L_r1b:
    """)
    poll1(False)
    a("s_waitcnt vmcnt(0)\ns_branch L_chk1")
    a(f"""
    L_mlmix:
    buffer_store_dwordx4 {mlr}, {vT0}, {SWS}, {oML} offen sc1
    s_branch L_mlback
    L_psmix:
    buffer_store_dwordx4 {pr}, {vPS}, {SWS}, {oPS} offen sc1
    s_branch L_psback
    L_retry2:
    s_add_u32 {sCnt}, {sCnt}, 1
    s_cmp_gt_u32 {sCnt}, 20000
    s_cbranch_scc1 L_ok2
    """)
    poll2(False)
    a("s_waitcnt vmcnt(0)\ns_branch L_chk2")
    nv = (v.hw + 7) // 8 * 8
    out.append(a.text())
    out.append(f""".section .rodata,"a"
.p2align 6
.amdhsa_kernel {NAME}_kernel
  .amdhsa_next_free_vgpr {nv}
  .amdhsa_next_free_sgpr 100
  .amdhsa_accum_offset {nv}
  .amdhsa_group_segment_fixed_size 0
  .amdhsa_kernarg_size 96
  .amdhsa_user_sgpr_count 2
  .amdhsa_user_sgpr_kernarg_segment_ptr 1
  .amdhsa_system_sgpr_workgroup_id_x 1
.end_amdhsa_kernel""")
    sys.stderr.write("vgprs %d sgprs %d nops %d\n" % (v.hw, s.hw, a.nops))
    return "\n".join(out) + "\n"

if __name__ == "__main__":
    import json
    opt = json.loads(sys.argv[2]) if len(sys.argv) > 2 else {}
    open(sys.argv[1], "w").write(gen(opt))
```

```python
import sys
from asmlib import *

NAME = "parallel_sum__sliding_block_cached__dense_activation_mish__decode"
PHI = 0x9E3779B9
QBUF = 0x10000; HBUF = 0x50000; SC1D = 0x20000; MLB = 0x90000; PART = 0x100000; FIN = 0x200000; DBG = 0x400000; STAMP = 0x800000
L_XN = 0; L_Q = 4096; L_MX = 5632; L_WQ = 8192; L_WO = 8192; L_W1 = 24576; L_W2 = 32768; L_V = 40960; LDS_BYTES = 73728
QSTR = 320

def gen(opt):
    nt = opt.get("nt", {})
    def pol(k): return nt.get(k, "")
    stamps = opt.get("stamps", False)
    dump = opt.get("dump", False)
    a = Asm()
    v = Alloc("v", 1, 256); s = Alloc("s", 44, 100)
    hdr = open("cdna_kernels/%s.s.ref" % NAME).read().split("\n")
    hdr = [l for l in hdr if l.startswith(";") and "@launch" not in l and "Override" not in l and "grid=ceil" not in l]
    out = list(hdr)
    out.append("; @launch grid=(256,1,1) block=(256,1,1) lds=%d" % LDS_BYTES)
    out.append('.amdgcn_target "amdgcn-amd-amdhsa--gfx950"')
    out.append(".text\n.globl %s_kernel\n.p2align 8\n.type %s_kernel,@function\n%s_kernel:" % (NAME, NAME, NAME))
    SX, SK, SV, SWQ, SWO, SW1, SB1, SW2, SOUT, SWS = [Reg("s", 4 + 4 * i, 4) for i in range(10)]
    vm = []
    def vmem(name, text):
        a(text); vm.append(name)
    def wait_vm(name, extra=""):
        idx = max(i for i, n in enumerate(vm) if n == name)
        n = len(vm) - 1 - idx
        a("s_waitcnt vmcnt(%d)%s" % (n, extra))
    nst = [0]
    sST = None
    if stamps:
        sST = s.get(2, 2); vST = v.get()
    def stamp(last=False):
        if stamps:
            k = nst[0]; nst[0] += 1
            assert k < 14
            if k > 0:
                a("s_waitcnt lgkmcnt(0)\nv_writelane_b32 %s, %s, %d" % (vST, sST[0], k - 1))
            a("s_memrealtime %s" % sST)
            if last:
                a("s_waitcnt lgkmcnt(0)\nv_writelane_b32 %s, %s, %d" % (vST, sST[0], k))
    stamp()
    hold = opt.get("hold", 0)
    if hold:
        a("s_memrealtime s[98:99]")
    a(f"""
    s_load_dwordx2 {SX[0:2]}, s[0:1], 0
    s_load_dwordx2 {SWQ[0:2]}, s[0:1], 24
    s_load_dwordx2 {SW1[0:2]}, s[0:1], 48
    s_load_dwordx2 {SK[0:2]}, s[0:1], 8
    s_load_dwordx2 {SWS[0:2]}, s[0:1], 88
    s_load_dwordx2 {SW2[0:2]}, s[0:1], 64
    s_cmp_ge_u32 s2, 256
    s_cbranch_scc1 L_end
    """)
    sW, sG, sJ, sA, sC, sT, sBLK, sTmp, sTmp2 = [s.get() for _ in range(9)]
    oXO, oWQ, oW1, oKV, oK, oW2 = [s.get() for _ in range(6)]
    sM = s.get()
    vL = Reg("v", 0, 1)
    vGQ, vI, vT0, vT1 = [v.get() for _ in range(4)]
    vXS, vXO, vWQe, vWQo, vW1e, vW1o, vK = [v.get() for _ in range(7)]
    a(f"""
    v_readfirstlane_b32 {sW}, v0
    v_and_b32 v0, 63, v0
    s_and_b32 {sG}, s2, 7
    s_lshr_b32 {sJ}, s2, 3
    s_lshr_b32 {sW}, {sW}, 6
    s_lshr_b32 {sA}, {sJ}, 3
    s_and_b32 {sC}, {sJ}, 7
    v_lshrrev_b32 {vGQ}, 4, v0
    v_and_b32 {vI}, 15, v0
    s_mov_b32 {SX[2]}, 2048
    s_mov_b32 {SX[3]}, 0x20000
    s_mov_b32 {SWQ[2]}, {512*4096*2}
    s_mov_b32 {SWQ[3]}, 0x20000
    v_and_b32 {vT0}, 1, v0
    v_lshlrev_b32 {vT0}, 10, {vT0}
    v_lshrrev_b32 {vT1}, 1, v0
    v_lshl_add_u32 {vXS}, {vT1}, 5, {vT0}
    v_lshl_add_u32 {vXO}, {vGQ}, 4, {vT0}
    v_and_b32 {vT0}, 1, {vGQ}
    v_lshlrev_b32 {vT0}, 1, {vT0}
    v_and_b32 {vT1}, 7, v0
    v_xor_b32 {vT0}, {vT0}, {vT1}
    v_lshlrev_b32 {vT0}, 4, {vT0}
    v_lshrrev_b32 {vT1}, 3, v0
    v_lshl_add_u32 {vWQe}, {vT1}, 13, {vT0}
    v_xor_b32 {vWQo}, 64, {vWQe}
    v_mul_u32_u24 {vW1e}, 3584, {vT1}
    v_add_u32 {vW1e}, {vW1e}, {vT0}
    v_xor_b32 {vW1o}, 64, {vW1e}
    v_lshlrev_b32 {vK}, 8, {vI}
    v_lshl_add_u32 {vK}, {vGQ}, 4, {vK}
    ; row0 = 128a + 32*(w ^ 2(c&1))
    s_and_b32 {sTmp}, {sC}, 1
    s_lshl_b32 {sTmp2}, {sTmp}, 1
    s_xor_b32 {sTmp2}, {sTmp2}, {sW}
    s_lshl_b32 {sTmp2}, {sTmp2}, 5
    s_lshl_b32 {oXO}, {sA}, 7
    s_add_u32 {sTmp2}, {sTmp2}, {oXO}
    s_lshl_b32 {oWQ}, {sTmp2}, 13
    s_lshl_b32 {sM}, {sG}, 10
    s_add_u32 {oWQ}, {oWQ}, {sM}
    s_lshl_b32 {sM}, {sC}, 7
    s_add_u32 {oWQ}, {oWQ}, {sM}
    ; w1 row = 128a + 64(c&1) + 16w
    s_lshl_b32 {sTmp}, {sTmp}, 6
    s_add_u32 {oW1}, {oXO}, {sTmp}
    s_lshl_b32 {sTmp}, {sW}, 4
    s_add_u32 {oW1}, {oW1}, {sTmp}
    s_mul_i32 {oW1}, {oW1}, 3584
    s_lshl_b32 {oXO}, {sTmp2}, 1
    s_lshr_b32 {sT}, {sC}, 1
    s_sub_u32 {sT}, {sT}, {sA}
    s_and_b32 {sT}, {sT}, 3
    s_lshl_b32 {sBLK}, {sG}, 2
    s_mul_i32 {sTmp2}, {sG}, 3
    s_add_u32 {sTmp2}, {sTmp2}, 4
    s_min_u32 {sBLK}, {sBLK}, {sTmp2}
    s_add_u32 {sBLK}, {sBLK}, {sT}
    s_lshl_b32 {sTmp2}, {sBLK}, 7
    s_add_u32 {oW1}, {oW1}, {sTmp2}
    s_lshl_b32 {oW2}, {sBLK}, 6
    s_add_u32 {oW2}, {oW2}, {sTmp}
    s_lshl_b32 {oW2}, {oW2}, 10
    s_add_u32 {oW2}, {oW2}, {sM}
    s_lshr_b32 {sTmp2}, {sG}, 2
    s_add_u32 {sTmp2}, {sTmp2}, {sT}
    s_cmp_eq_u32 {sTmp2}, 4
    s_cselect_b32 {oW1}, 0x40000000, {oW1}
    s_cselect_b32 {oW2}, 0x40000000, {oW2}
    s_cselect_b32 {sBLK}, 0x100000, {sBLK}
    s_lshr_b32 {sTmp}, {sJ}, 4
    s_lshl_b32 {sTmp}, {sTmp}, 3
    s_add_u32 {sTmp}, {sTmp}, {sG}
    s_lshl_b32 {oKV}, {sTmp}, 21
    s_and_b32 {sTmp}, {sJ}, 15
    s_lshl_b32 {sTmp}, {sTmp}, 15
    s_add_u32 {oKV}, {oKV}, {sTmp}
    s_add_u32 {oKV}, {oKV}, {6144*256}
    s_lshl_b32 {oK}, {sW}, 13
    s_add_u32 {oK}, {oK}, {oKV}
    s_mov_b32 {SW1[2]}, {512*1792*2}
    s_mov_b32 {SW1[3]}, 0x20000
    s_mov_b32 {SK[2]}, {2*8*8192*256}
    s_mov_b32 {SK[3]}, 0x20000
    s_lshl_b32 {sM}, {sW}, 12
    s_add_u32 {sM}, {sM}, {L_WQ}
    s_mov_b32 m0, {sM}
    s_waitcnt lgkmcnt(0)
    """)
    stamp()
    xs = v.get(8, 2); xo = v.get(4, 2)
    kk = v.get(32, 2)
    sE = s.get(2, 2)
    vmem("xs", f"buffer_load_dwordx4 {xs[0:4]}, {vXS}, {SX}, 0 offen")
    vmem("xs", f"buffer_load_dwordx4 {xs[4:8]}, {vXS}, {SX}, 0 offen offset:16")
    vmem("xo", f"buffer_load_dwordx4 {xo}, {vXO}, {SX}, {oXO} offen")
    for k in range(4):
        vmem("wq", f"buffer_load_dwordx4 {vWQo if k & 1 else vWQe}, {SWQ}, {oWQ} offen {pol('wq')} lds")
        if k < 3:
            a(f"s_add_u32 m0, m0, 1024\ns_add_u32 {oWQ}, {oWQ}, 65536")
    a(f"s_lshl_b32 {sM}, {sW}, 11\ns_add_u32 m0, {sM}, {L_W1}\ns_load_dword {sE[0]}, {SWS[0:2]}, 0")
    vmem("w1", f"buffer_load_dwordx4 {vW1e}, {SW1}, {oW1} offen {pol('w1')} lds")
    a(f"s_add_u32 m0, m0, 1024\ns_add_u32 {oW1}, {oW1}, 28672")
    vmem("w1", f"buffer_load_dwordx4 {vW1o}, {SW1}, {oW1} offen {pol('w1')} lds")
    def kload(idx):
        T, st = idx >> 2, idx & 3
        if idx == 4: a(f"s_add_u32 {oK}, {oK}, 4096")
        vmem("k", f"buffer_load_dwordx4 {kk[4*idx:4*idx+4]}, {vK}, {SK}, {oK} offen offset:{st*64} {pol('k')}")
    NK1 = opt.get("nk1", 6)
    for idx in range(NK1): kload(idx)
    a(f"""
    s_load_dwordx2 {SV[0:2]}, s[0:1], 16
    s_load_dwordx2 {SWO[0:2]}, s[0:1], 32
    s_load_dwordx2 {SB1[0:2]}, s[0:1], 56
    s_load_dwordx2 {SOUT[0:2]}, s[0:1], 72
    s_mov_b32 {SV[2]}, {2*8*8192*256}
    s_mov_b32 {SV[3]}, 0x20000
    s_mov_b32 {SWO[2]}, {4096*512*2}
    s_mov_b32 {SWO[3]}, 0x20000
    s_mov_b32 {SB1[2]}, 3584
    s_mov_b32 {SB1[3]}, 0x20000
    s_mov_b32 {SW2[2]}, {512*1792*2}
    s_mov_b32 {SW2[3]}, 0x20000
    s_mov_b32 {SOUT[2]}, 2048
    s_mov_b32 {SOUT[3]}, 0x20000
    s_mov_b32 {SWS[2]}, 0x10000000
    s_mov_b32 {SWS[3]}, 0x20000
    """)
    stamp()
    vWO, vV, vF, vTQ, vL16 = [v.get() for _ in range(5)]
    vTW = v.get(4)
    vTV = v.get(2)
    vFF = v.get()
    sHi = s.get()
    a(f"""
    s_mov_b32 {sHi}, 0xffff0000
    v_mov_b32 {vFF}, 0xff
    v_lshlrev_b32 {vL16}, 4, v0
    v_lshlrev_b32 {vT0}, 1, {vGQ}
    v_and_b32 {vT1}, 7, v0
    v_xor_b32 {vT0}, {vT0}, {vT1}
    v_lshlrev_b32 {vT0}, 4, {vT0}
    v_lshrrev_b32 {vT1}, 3, v0
    v_lshl_add_u32 {vWO}, {vT1}, 10, {vT0}
    v_and_b32 {vT0}, 1, {vGQ}
    v_lshlrev_b32 {vF}, 1, {vT0}
    v_and_b32 {vT1}, 3, v0
    v_xor_b32 {vV}, {vF}, {vT1}
    v_lshlrev_b32 {vV}, 4, {vV}
    v_lshrrev_b32 {vT0}, 2, v0
    v_lshl_add_u32 {vV}, {vT0}, 8, {vV}
    ; f = ((i>>3)&1) | ((gq&1)<<1)
    v_lshrrev_b32 {vT0}, 3, {vI}
    v_or_b32 {vF}, {vF}, {vT0}
    v_lshlrev_b32 {vT1}, 3, {vT1}
    v_lshrrev_b32 {vT0}, 2, {vI}
    v_lshl_add_u32 {vTQ}, {vGQ}, 3, {vT0}
    v_lshl_add_u32 {vTQ}, {vTQ}, 7, {vT1}
    v_xor_b32 {vTV[0]}, {sW}, {vF}
    v_lshl_add_u32 {vTQ}, {vTV[0]}, 5, {vTQ}
    v_lshl_add_u32 {vT0}, {vGQ}, 2, {vT0}
    v_lshl_add_u32 {vTW[0]}, {vT0}, 7, {vT1}
    v_lshl_add_u32 {vTW[0]}, {vF}, 5, {vTW[0]}
    v_xor_b32 {vTW[1]}, 32, {vTW[0]}
    v_xor_b32 {vTW[2]}, 64, {vTW[0]}
    v_xor_b32 {vTW[3]}, 0x60, {vTW[0]}
    v_lshl_add_u32 {vTV[0]}, {vT0}, 6, {vT1}
    v_and_b32 {vT0}, 1, {vGQ}
    v_lshl_add_u32 {vTV[0]}, {vT0}, 5, {vTV[0]}
    s_lshl_b32 {sTmp}, {sW}, 13
    s_add_u32 {sTmp}, {sTmp}, {L_V}
    v_add_u32 {vTV[0]}, {sTmp}, {vTV[0]}
    v_xor_b32 {vTV[1]}, 32, {vTV[0]}
    """)
    mk = v.mark()
    f = v.get(16, 2); nm = v.get(2, 2); acc = v.get(2, 2); t0 = v.get(); t1 = v.get(); vMean = v.get(2, 2); vR = v.get(2, 2)
    wait_vm("xs")
    for k in range(8):
        a(f"v_lshlrev_b32 {f[2*k]}, 16, {xs[k]}\nv_and_b32 {f[2*k+1]}, {sHi}, {xs[k]}")
    g4 = v.get(8, 2)
    a(f"""
    v_pk_add_f32 {g4[0:2]}, {f[0:2]}, {f[2:4]}
    v_pk_add_f32 {g4[2:4]}, {f[4:6]}, {f[6:8]}
    v_pk_add_f32 {g4[4:6]}, {f[8:10]}, {f[10:12]}
    v_pk_add_f32 {g4[6:8]}, {f[12:14]}, {f[14:16]}
    v_pk_add_f32 {g4[0:2]}, {g4[0:2]}, {g4[2:4]}
    v_pk_add_f32 {g4[4:6]}, {g4[4:6]}, {g4[6:8]}
    v_pk_add_f32 {g4[0:2]}, {g4[0:2]}, {g4[4:6]}
    v_add_f32 {t0}, {g4[0]}, {g4[1]}
    """)
    def red_parity(x, tmp):
        for r in (2, 4, 8):
            a(f"v_add_f32_dpp {x}, {x}, {x} row_ror:{r} row_mask:0xf bank_mask:0xf")
        a(f"v_mov_b32 {tmp}, {x}\nv_permlane16_swap_b32 {x}, {tmp}\nv_add_f32 {x}, {x}, {tmp}")
        a(f"v_mov_b32 {tmp}, {x}\nv_permlane32_swap_b32 {x}, {tmp}\nv_add_f32 {x}, {x}, {tmp}")
    red_parity(t0, t1)
    a(f"""
    v_mul_f32 {nm[0]}, 0xbb000000, {t0}
    v_mul_f32 {nm[1]}, 0xbb000000, {t0}
    """)
    for k in range(8):
        a(f"v_pk_add_f32 {f[2*k:2*k+2]}, {f[2*k:2*k+2]}, {nm}")
    a(f"v_pk_mul_f32 {acc}, {f[0:2]}, {f[0:2]}\nv_pk_mul_f32 {g4[0:2]}, {f[2:4]}, {f[2:4]}")
    for k in range(2, 8):
        d = acc if k % 2 == 0 else g4[0:2]
        a(f"v_pk_fma_f32 {d}, {f[2*k:2*k+2]}, {f[2*k:2*k+2]}, {d}")
    a(f"v_pk_add_f32 {acc}, {acc}, {g4[0:2]}\nv_add_f32 {t0}, {acc[0]}, {acc[1]}")
    red_parity(t0, t1)
    a(f"""
    v_mul_f32 {t0}, 0x3b000000, {t0}
    v_cvt_pk_bf16_f32 {t0}, {t0}, {nm[0]}
    v_and_b32 {vMean[0]}, {sHi}, {t0}
    v_and_b32 {vMean[1]}, {sHi}, {t0}
    v_lshlrev_b32 {t0}, 16, {t0}
    v_add_f32 {t0}, 0x3727c5ac, {t0}
    v_cvt_pk_bf16_f32 {t0}, {t0}, {t0}
    v_lshlrev_b32 {t0}, 16, {t0}
    v_sqrt_f32 {t0}, {t0}
    v_cvt_pk_bf16_f32 {t0}, {t0}, {t0}
    v_lshlrev_b32 {t0}, 16, {t0}
    v_rcp_f32 {vR[0]}, {t0}
    """)
    wait_vm("xo")
    for k in range(4):
        a(f"v_lshlrev_b32 {f[2*k]}, 16, {xo[k]}\nv_and_b32 {f[2*k+1]}, {sHi}, {xo[k]}")
    a(f"v_mov_b32 {vR[1]}, {vR[0]}")
    for k in range(4):
        a(f"v_pk_add_f32 {f[2*k:2*k+2]}, {f[2*k:2*k+2]}, {vMean}")
    for k in range(4):
        a(f"v_cvt_pk_bf16_f32 {xo[k]}, {f[2*k]}, {f[2*k+1]}")
    for k in range(4):
        a(f"v_lshlrev_b32 {f[2*k]}, 16, {xo[k]}\nv_and_b32 {f[2*k+1]}, {sHi}, {xo[k]}")
    for k in range(4):
        a(f"v_pk_mul_f32 {f[2*k:2*k+2]}, {f[2*k:2*k+2]}, {vR}")
    for k in range(4):
        a(f"v_cvt_pk_bf16_f32 {xo[k]}, {f[2*k]}, {f[2*k+1]}")
    a(f"s_lshl_b32 {sTmp}, {sW}, 10\nv_add_u32 {vT0}, {sTmp}, {vL16}\nds_write_b128 {vT0}, {xo} offset:{L_XN}")
    v.release(mk)
    stamp()
    for idx in range(NK1, 8): kload(idx)
    b1r = v.get(2, 2); xf = v.get()
    vB1, vXF = xs[0], xs[1]
    sB, sKH, sBA, sS = [s.get() for _ in range(4)]
    oB1, oXF = s.get(), s.get()
    sTag = s.get(4); sXCC = s.get(); sTP = s.get()
    a(f"""
    s_waitcnt lgkmcnt(0)
    s_lshl_b32 {sM}, {sW}, 11
    s_add_u32 m0, {sM}, {L_W2}
    s_and_b32 {sB}, {sW}, 1
    """)
    vmem("w2", f"buffer_load_dwordx4 {vWO}, {SW2}, {oW2} offen {pol('w2')} lds")
    a(f"s_add_u32 m0, m0, 1024\ns_add_u32 {oW2}, {oW2}, 8192")
    vmem("w2", f"buffer_load_dwordx4 {vWO}, {SW2}, {oW2} offen {pol('w2')} lds")
    a(f"""
    s_lshr_b32 {sKH}, {sW}, 1
    s_lshr_b32 {sBA}, {sJ}, 4
    s_and_b32 {sS}, {sJ}, 15
    v_bfe_u32 {vT0}, v0, 3, 1
    v_lshlrev_b32 {vT0}, 5, {vT0}
    v_lshl_add_u32 {vB1}, {vGQ}, 3, {vT0}
    s_lshl_b32 {oB1}, {sBLK}, 7
    s_lshl_b32 {sTmp}, {sKH}, 6
    s_add_u32 {oB1}, {oB1}, {sTmp}
    s_lshl_b32 {oXF}, {sBA}, 10
    s_lshl_b32 {sTmp}, {sG}, 7
    s_add_u32 {oXF}, {oXF}, {sTmp}
    s_lshl_b32 {sTmp}, {sS}, 3
    s_add_u32 {oXF}, {oXF}, {sTmp}
    v_and_b32 {vT0}, 1, v0
    v_lshlrev_b32 {vT0}, 2, {vT0}
    v_and_b32 {vT1}, 1, {vGQ}
    v_lshl_add_u32 {vXF}, {vT1}, 1, {vT0}
    s_getreg_b32 {sXCC}, hwreg(HW_REG_XCC_ID, 0, 4)
    s_add_u32 {sTag[0]}, {sE[0]}, {hex(PHI)}
    s_lshr_b32 {sTag[1]}, {sTag[0]}, 8
    s_lshr_b32 {sTag[2]}, {sTag[0]}, 16
    s_lshr_b32 {sTag[3]}, {sTag[0]}, 24
    s_xor_b32 {sTP}, {sTag[0]}, {sXCC}
    """)
    vmem("b1", f"buffer_load_dwordx2 {b1r}, {vB1}, {SB1}, {oB1} offen")
    vmem("xf", f"buffer_load_ushort {xf}, {vXF}, {SX}, {oXF} offen")
    oQS, oHS, oQG, oHG, oML, oPS, oV, oWO = [s.get() for _ in range(8)]
    vQS, vHS, vQG, vHG = [v.get() for _ in range(4)]
    a(f"""
    s_lshl_b32 {oQG}, {sG}, 14
    s_add_u32 {oQG}, {oQG}, {QBUF}
    s_lshl_b32 {sTmp}, {sA}, 11
    s_add_u32 {oQS}, {oQG}, {sTmp}
    s_lshl_b32 {sTmp}, {sC}, 8
    s_add_u32 {oQS}, {oQS}, {sTmp}
    s_lshl_b32 {sTmp2}, {sW}, 6
    s_add_u32 {oQS}, {oQS}, {sTmp2}
    s_lshl_b32 {sTmp}, {sBA}, 13
    s_add_u32 {oQG}, {oQG}, {sTmp}
    s_lshl_b32 {sTmp}, {sW}, 9
    s_add_u32 {oQG}, {oQG}, {sTmp}
    s_lshl_b32 {oHG}, {sG}, 2
    s_add_u32 {oHG}, {oHG}, {sT}
    s_lshl_b32 {oHG}, {oHG}, 12
    s_add_u32 {oHG}, {oHG}, {HBUF}
    s_lshl_b32 {sTmp}, {sA}, 1
    s_and_b32 {oHS}, {sC}, 1
    s_add_u32 {sTmp}, {sTmp}, {oHS}
    s_lshl_b32 {sTmp}, {sTmp}, 8
    s_add_u32 {oHS}, {oHG}, {sTmp}
    s_add_u32 {oHS}, {oHS}, {sTmp2}
    s_lshl_b32 {sTmp}, {sB}, 11
    s_add_u32 {oHG}, {oHG}, {sTmp}
    s_lshl_b32 {sTmp}, {sKH}, 7
    s_add_u32 {oHG}, {oHG}, {sTmp}
    v_and_b32 {vT0}, 1, v0
    v_lshlrev_b32 {vT1}, 4, {vGQ}
    v_lshl_add_u32 {vQS}, {vT0}, 13, {vT1}
    v_lshl_add_u32 {vHS}, {vT0}, 11, {vT1}
    v_lshrrev_b32 {vT0}, 5, v0
    v_lshlrev_b32 {vT0}, 12, {vT0}
    v_and_b32 {vQG}, 31, v0
    v_lshl_add_u32 {vQG}, {vQG}, 4, {vT0}
    v_bfe_u32 {vT0}, v0, 3, 1
    v_lshl_add_u32 {vT0}, {vT0}, 6, {vT1}
    v_and_b32 {vHG}, 7, v0
    v_lshl_add_u32 {vHG}, {vHG}, 8, {vT0}
    s_lshl_b32 {sTmp}, {sW}, 6
    s_add_u32 {oV}, {oKV}, {sTmp}
    s_lshl_b32 {oWO}, {sG}, 2
    s_add_u32 {oWO}, {oWO}, {sA}
    s_lshl_b32 {oWO}, {oWO}, 2
    s_add_u32 {oWO}, {oWO}, {sW}
    s_lshl_b32 {oWO}, {oWO}, 15
    s_lshl_b32 {sTmp}, {sC}, 7
    s_add_u32 {oWO}, {oWO}, {sTmp}
    s_lshl_b32 {sTmp}, {sG}, 1
    s_add_u32 {sTmp}, {sTmp}, {sBA}
    s_lshl_b32 {oML}, {sTmp}, 2
    s_add_u32 {oML}, {oML}, {sW}
    s_lshl_b32 {oML}, {oML}, 8
    s_lshl_b32 {sTmp2}, {sS}, 4
    s_add_u32 {oML}, {oML}, {sTmp2}
    s_add_u32 {oML}, {oML}, {MLB}
    s_lshl_b32 {oPS}, {sTmp}, 15
    s_lshl_b32 {sTmp2}, {sS}, 9
    s_add_u32 {oPS}, {oPS}, {sTmp2}
    s_lshl_b32 {sTmp2}, {sW}, 7
    s_add_u32 {oPS}, {oPS}, {sTmp2}
    s_add_u32 {oPS}, {oPS}, {PART}
    """)
    wait_vm("w1")
    a("s_barrier")
    stamp()
    mk = v.mark()
    xn = v.get(16, 2); aq = v.get(16, 2); a1 = v.get(8, 2); dq = v.get(4, 2); dh = v.get(4, 2)
    for t in range(2):
        a(f"ds_read_b128 {xn[4*t:4*t+4]}, {vL16} offset:{L_XN + 1024*t}")
        for hi in range(2):
            a(f"ds_read_b64_tr_b16 {aq[4*t+2*hi:4*t+2*hi+2]}, {vTQ} offset:{L_WQ + 4096*t + 512*hi}")
    for t in range(2, 4):
        a(f"ds_read_b128 {xn[4*t:4*t+4]}, {vL16} offset:{L_XN + 1024*t}")
        for hi in range(2):
            a(f"ds_read_b64_tr_b16 {aq[4*t+2*hi:4*t+2*hi+2]}, {vTQ} offset:{L_WQ + 4096*t + 512*hi}")
    for t in range(2):
        for hi in range(2):
            a(f"ds_read_b64_tr_b16 {a1[4*t+2*hi:4*t+2*hi+2]}, {vTQ} offset:{L_W1 + 4096*t + 512*hi}")
    a("s_mov_b32 exec_lo, 0x00030003\ns_mov_b32 exec_hi, 0x00030003" if False else "")
    for t in range(4):
        a(f"s_waitcnt lgkmcnt({13 - 3*t})")
        a(f"v_mfma_f32_16x16x32_bf16 {dq}, {aq[4*t:4*t+4]}, {xn[4*t:4*t+4]}, {dq if t else 0}")
    for t in range(2):
        a(f"s_waitcnt lgkmcnt({2 - 2*t})")
        a(f"v_mfma_f32_16x16x32_bf16 {dh}, {a1[4*t:4*t+4]}, {xn[4*t:4*t+4]}, {dh if t else 0}")
    a("s_mov_b32 exec_lo, 0x00030003\ns_mov_b32 exec_hi, 0x00030003")
    def pub(d, voff, soff, name):
        a(f"v_bfi_b32 {d[0]}, {vFF}, {sTP}, {d[0]}")
        for k in range(1, 4):
            a(f"v_bfi_b32 {d[k]}, {vFF}, {sTag[k]}, {d[k]}")
        vmem(name, f"buffer_store_dwordx4 {d}, {voff}, {SWS}, {soff} offen")
    pub(dq, vQS, oQS, "qs")
    pub(dh, vHS, oHS, "hs")
    a(f"s_add_u32 {oQS}, {oQS}, {SC1D}\ns_add_u32 {oHS}, {oHS}, {SC1D}")
    a(f"v_xor_b32 {dq[0]}, {sXCC}, {dq[0]}\nv_xor_b32 {dh[0]}, {sXCC}, {dh[0]}")
    vmem("qs", f"buffer_store_dwordx4 {dq}, {vQS}, {SWS}, {oQS} offen sc1")
    vmem("hs", f"buffer_store_dwordx4 {dh}, {vHS}, {SWS}, {oHS} offen sc1")
    a("s_mov_b64 exec, -1")
    a("s_barrier")
    v.release(mk)
    stamp()
    qg = v.get(8, 2); hg = v.get(4, 2)
    def poll1(first):
        t = [f"buffer_load_dwordx4 {qg[0:4]}, {vQG}, {SWS}, {oQG} offen sc1",
             f"buffer_load_dwordx4 {qg[4:8]}, {vQG}, {SWS}, {oQG} offen offset:2048 sc1",
             f"buffer_load_dwordx4 {hg}, {vHG}, {SWS}, {oHG} offen sc1"]
        for x in t:
            if first: vmem("p1", x)
            else: a(x)
    poll1(True)
    a(f"s_lshl_b32 {sM}, {sW}, 13\ns_add_u32 m0, {sM}, {L_V}\ns_nop 0")
    for n in range(8):
        vmem("v%d" % (n // 2), f"buffer_load_dwordx4 {vV}, {SV}, {oV} offen {pol('v')} lds")
        if n < 7: a(f"s_add_u32 m0, m0, 1024\ns_add_u32 {oV}, {oV}, 4096")
    a(f"s_lshl_b32 {sM}, {sW}, 12\ns_add_u32 m0, {sM}, {L_WO}\ns_nop 0")
    for n in range(4):
        vmem("wo", f"buffer_load_dwordx4 {vWO}, {SWO}, {oWO} offen {pol('wo')} lds")
        if n < 3: a(f"s_add_u32 m0, m0, 1024\ns_add_u32 {oWO}, {oWO}, 8192")
    sCnt, sMix = s.get(), s.get()
    a(f"s_mov_b32 {sCnt}, 0\ns_mov_b32 {sMix}, 0")
    wait_vm("p1")
    a("L_chk1:")
    BOP = "bitop3:0xbe"
    a(f"v_xor_b32 {vT0}, {sTP}, {qg[0]}")
    seq = [(qg[1], sTag[1]), (qg[2], sTag[2]), (qg[3], sTag[3]), (qg[4], sTP), (qg[5], sTag[1]), (qg[6], sTag[2]), (qg[7], sTag[3]),
           (hg[0], sTP), (hg[1], sTag[1]), (hg[2], sTag[2]), (hg[3], sTag[3])]
    for r, tg in seq:
        a(f"v_bitop3_b32 {vT0}, {r}, {tg}, {vT0} {BOP}")
    a(f"""
    v_and_b32 {vT0}, {vT0}, {vFF}
    v_cmp_ne_u32 vcc, 0, {vT0}
    s_cbranch_vccnz L_retry1
    L_ok1:
    """)
    stamp()
    mk = v.mark()
    qb = v.get(16, 2)
    sMsk = s.get()
    a(f"s_mov_b32 {sMsk}, 0xffffff00")
    for k in range(8):
        a(f"v_and_b32 {qg[k]}, {sMsk}, {qg[k]}")
    a(f"""
    v_pk_add_f32 {qg[0:2]}, {qg[0:2]}, {qg[4:6]}
    v_pk_add_f32 {qg[2:4]}, {qg[2:4]}, {qg[6:8]}
    v_and_b32 {vT0}, 31, v0
    v_lshlrev_b32 {vT0}, 3, {vT0}
    v_lshrrev_b32 {vT1}, 5, v0
    v_permlane32_swap_b32 {qg[0]}, {qg[2]}
    v_permlane32_swap_b32 {qg[1]}, {qg[3]}
    v_lshl_add_u32 {vT0}, {vT1}, 2, {vT0}
    s_mul_i32 {sTmp}, {sW}, {QSTR}
    v_add_f32 {qg[0]}, {qg[0]}, {qg[2]}
    v_add_f32 {qg[1]}, {qg[1]}, {qg[3]}
    v_add_u32 {vT0}, {sTmp}, {vT0}
    v_cvt_pk_bf16_f32 {qg[0]}, {qg[0]}, {qg[1]}
    ds_write_b32 {vT0}, {qg[0]} offset:{L_Q}
    v_and_b32 {vT1}, 3, v0
    v_mul_u32_u24 {vT0}, {QSTR}, {vT1}
    v_lshl_add_u32 {vT0}, {vGQ}, 4, {vT0}
    s_waitcnt lgkmcnt(0)
    s_barrier
    """)
    for st in range(4):
        a(f"ds_read_b128 {qb[4*st:4*st+4]}, {vT0} offset:{L_Q + 64*st}")
    sc = v.get(8, 2)
    for st in range(4):
        a(f"s_waitcnt lgkmcnt({3 - st})")
        for T in range(2):
            d = sc[4*T:4*T+4]
            a(f"v_mfma_f32_16x16x32_bf16 {d}, {kk[16*T+4*st:16*T+4*st+4]}, {qb[4*st:4*st+4]}, {d if st else 0}")
    vMX = qg[4]; vMR = qg[5]
    a(f"s_lshl_b32 {sTmp}, {sW}, 2\nv_lshlrev_b32 {vMR}, 4, {vT1}\nv_add_u32 {vMX}, {sTmp}, {vMR}")
    pk = qb
    tmp4 = v.get(4, 2)
    sScale, sL2E = s.get(), s.get()
    a(f"s_mov_b32 {sScale}, 0x3db504f3\ns_mov_b32 {sL2E}, 0x3fb8aa3b")
    for k in range(4):
        a(f"v_cvt_pk_bf16_f32 {tmp4[k]}, {sc[2*k]}, {sc[2*k+1]}")
    for k in range(4):
        a(f"v_lshlrev_b32 {sc[2*k]}, 16, {tmp4[k]}\nv_and_b32 {sc[2*k+1]}, {sHi}, {tmp4[k]}")
    for k in range(8):
        a(f"v_mul_f32 {sc[k]}, {sScale}, {sc[k]}")
    for k in range(4):
        a(f"v_cvt_pk_bf16_f32 {tmp4[k]}, {sc[2*k]}, {sc[2*k+1]}")
    for k in range(4):
        a(f"v_lshlrev_b32 {sc[2*k]}, 16, {tmp4[k]}\nv_and_b32 {sc[2*k+1]}, {sHi}, {tmp4[k]}")
    vMax = v.get()
    a(f"""
    v_max3_f32 {vT0}, {sc[0]}, {sc[1]}, {sc[2]}
    v_max3_f32 {vT1}, {sc[3]}, {sc[4]}, {sc[5]}
    v_max3_f32 {vT0}, {vT0}, {sc[6]}, {sc[7]}
    v_max_f32 {vT0}, {vT0}, {vT1}
    v_mov_b32 {vT1}, {vT0}
    v_permlane16_swap_b32 {vT0}, {vT1}
    v_max_f32 {vT0}, {vT0}, {vT1}
    v_mov_b32 {vT1}, {vT0}
    v_permlane32_swap_b32 {vT0}, {vT1}
    v_max_f32 {vT0}, {vT0}, {vT1}
    ds_write_b32 {vMX}, {vT0} offset:{L_MX}
    s_waitcnt lgkmcnt(0)
    s_barrier
    ds_read_b128 {tmp4}, {vMR} offset:{L_MX}
    s_lshl_b32 {sTmp}, {sW}, 10
    v_add_u32 {vMX}, {sTmp}, {vL16}
    s_waitcnt lgkmcnt(0)
    v_max3_f32 {vT0}, {tmp4[0]}, {tmp4[1]}, {tmp4[2]}
    v_max_f32 {vT0}, {vT0}, {tmp4[3]}
    v_mul_f32 {vMax}, {sL2E}, {vT0}
    """)
    for k in range(8):
        a(f"v_fma_f32 {sc[k]}, {sc[k]}, {sL2E}, -{vMax}")
    for k in range(8):
        a(f"v_exp_f32 {sc[k]}, {sc[k]}")
    for k in range(4):
        a(f"v_cvt_pk_bf16_f32 {tmp4[k]}, {sc[2*k]}, {sc[2*k+1]}")
    a(f"""
    ds_write_b128 {vMX}, {tmp4} offset:{L_XN}
    s_waitcnt lgkmcnt(0)
    s_barrier
    """)
    for t in range(4):
        a(f"ds_read_b128 {pk[4*t:4*t+4]}, {vL16} offset:{L_XN + 1024*t}")
    ones = tmp4
    dl = sc[0:4]; mlr = sc[4:8]
    for k in range(4):
        a(f"v_mov_b32 {ones[k]}, 0x3f803f80")
    for t in range(4):
        a(f"s_waitcnt lgkmcnt({3 - t})")
        a(f"v_mfma_f32_16x16x32_bf16 {dl}, {ones}, {pk[4*t:4*t+4]}, {dl if t else 0}")
    a(f"""
    v_mov_b32 {mlr[0]}, {vMax}
    v_mov_b32 {mlr[2]}, {sTag[0]}
    v_mov_b32 {mlr[3]}, {sTag[0]}
    v_mov_b32 {vT0}, 0
    s_lshl_b32 {sTmp}, 1, {sW}
    v_mov_b32 {mlr[1]}, {dl[0]}
    s_mov_b32 exec_lo, {sTmp}
    s_mov_b32 exec_hi, 0
    s_cmp_eq_u32 {sMix}, 0
    s_cbranch_scc0 L_mlmix
    """)
    vmem("ml", f"buffer_store_dwordx4 {mlr}, {vT0}, {SWS}, {oML} offen")
    a("L_mlback:")
    a("s_mov_b64 exec, -1")
    stamp()
    mk2 = v.mark()
    hb = v.get(4, 2); e = v.get(4, 2); u = v.get(4, 2); d4 = v.get(4, 2); af = v.get(4, 2); bw = v.get(16, 2)
    df = v.get(16, 2)
    for ct in range(4):
        pass
    a(f"s_lshl_b32 {sTmp}, {sKH}, 12")
    for ct in range(4):
        a(f"v_add_u32 {vTW[ct]}, {sTmp}, {vTW[ct]}")
    for ct in range(4):
        for hi in range(2):
            a(f"ds_read_b64_tr_b16 {bw[4*ct+2*hi:4*ct+2*hi+2]}, {vTW[ct]} offset:{L_W2 + 2048*hi}")
    for k in range(4):
        a(f"v_and_b32 {hg[k]}, {sMsk}, {hg[k]}")
    for m in ("quad_perm:[1,0,3,2]", "quad_perm:[2,3,0,1]", "row_half_mirror"):
        for k in range(4):
            a(f"v_add_f32_dpp {hg[k]}, {hg[k]}, {hg[k]} {m} row_mask:0xf bank_mask:0xf")
    def rnd(dst, src, tmpv):
        a(f"v_cvt_pk_bf16_f32 {tmpv[0]}, {src[0]}, {src[1]}\nv_cvt_pk_bf16_f32 {tmpv[1]}, {src[2]}, {src[3]}")
        for k in range(2):
            a(f"v_lshlrev_b32 {dst[2*k]}, 16, {tmpv[k]}\nv_and_b32 {dst[2*k+1]}, {sHi}, {tmpv[k]}")
    tp = af[0:2]
    rnd(hb, hg, tp)
    for k in range(2):
        a(f"v_lshlrev_b32 {e[2*k]}, 16, {b1r[k]}\nv_and_b32 {e[2*k+1]}, {sHi}, {b1r[k]}")
    a(f"v_pk_add_f32 {hb[0:2]}, {hb[0:2]}, {e[0:2]}\nv_pk_add_f32 {hb[2:4]}, {hb[2:4]}, {e[2:4]}")
    rnd(hb, hb, tp)
    for k in range(4):
        a(f"v_mul_f32 {e[k]}, -abs({hb[k]}), {sL2E}")
    for k in range(4):
        a(f"v_exp_f32 {e[k]}, {e[k]}")
    rnd(e, e, tp)
    for k in range(4):
        a(f"v_add_f32 {u[k]}, 1.0, {e[k]}")
    for k in range(4):
        a(f"v_add_f32 {d4[k]}, -1.0, {u[k]}\nv_log_f32 {u[k]}, {u[k]}")
    sLn2 = sScale
    a(f"s_mov_b32 {sLn2}, 0x3f317218")
    for k in range(4):
        a(f"v_rcp_f32 {hg[k]}, {d4[k]}\nv_mul_f32 {u[k]}, {sLn2}, {u[k]}")
    for k in range(4):
        a(f"v_mul_f32 {hg[k]}, {hg[k]}, {e[k]}")
    for k in range(4):
        a(f"v_mul_f32 {u[k]}, {u[k]}, {hg[k]}\nv_cmp_eq_f32 vcc, 0, {d4[k]}\nv_cndmask_b32 {u[k]}, {u[k]}, {e[k]}, vcc")
    rnd(u, u, tp)
    for k in range(4):
        a(f"v_max_f32 {e[k]}, 0, {hb[k]}")
    a(f"v_pk_add_f32 {u[0:2]}, {u[0:2]}, {e[0:2]}\nv_pk_add_f32 {u[2:4]}, {u[2:4]}, {e[2:4]}")
    rnd(u, u, tp)
    sM2 = s.get()
    a(f"s_mov_b32 {sM2}, 0xc038aa3b")
    for k in range(4):
        a(f"v_mul_f32 {e[k]}, {sM2}, {u[k]}")
    for k in range(4):
        a(f"v_exp_f32 {e[k]}, {e[k]}")
    for k in range(4):
        a(f"v_add_f32 {d4[k]}, 1.0, {e[k]}\nv_sub_f32 {e[k]}, 1.0, {e[k]}")
    for k in range(4):
        a(f"v_rcp_f32 {d4[k]}, {d4[k]}")
    for k in range(4):
        a(f"v_mul_f32 {e[k]}, {e[k]}, {d4[k]}\nv_cmp_gt_f32 vcc, 0x3a800000, {u[k]}\nv_cndmask_b32 {e[k]}, {e[k]}, {u[k]}, vcc")
    rnd(e, e, tp)
    sLm = s.get(2, 2)
    a(f"""
    v_pk_mul_f32 {e[0:2]}, {e[0:2]}, {hb[0:2]}
    v_pk_mul_f32 {e[2:4]}, {e[2:4]}, {hb[2:4]}
    s_mov_b32 {sLm[0]}, 0x00010001
    s_mov_b32 {sLm[1]}, 0x00010001
    v_cvt_pk_bf16_f32 {u[0]}, {e[0]}, {e[1]}
    v_cvt_pk_bf16_f32 {u[1]}, {e[2]}, {e[3]}
    v_mov_b32_dpp {u[2]}, {u[0]} row_ror:8 row_mask:0xf bank_mask:0xf
    v_mov_b32_dpp {u[3]}, {u[1]} row_ror:8 row_mask:0xf bank_mask:0xf
    """)
    for k in range(4):
        a(f"v_cndmask_b32 {af[k]}, 0, {u[k]}, {sLm}")
    a("s_waitcnt lgkmcnt(0)")
    for ct in range(4):
        a(f"v_mfma_f32_16x16x32_bf16 {df[4*ct:4*ct+4]}, {af}, {bw[4*ct:4*ct+4]}, 0")
    stamp()
    av = v.get(16, 2)
    do = v.get(8, 2); pr = v.get(4, 2)
    vPS = v.get()
    a(f"""
    v_and_b32 {vT0}, 3, v0
    v_lshlrev_b32 {vT0}, 13, {vT0}
    v_lshl_add_u32 {vT0}, {vGQ}, 5, {vT0}
    v_bfe_u32 {vT1}, v0, 2, 1
    v_lshl_add_u32 {vPS}, {vT1}, 4, {vT0}
    """)
    for k in range(4):
        a(f"v_mov_b32 {pr[k]}, {sTag[0]}")
    a(f"s_lshl_b32 {sTmp}, {sKH}, 12")
    for ct in range(4):
        a(f"v_add_u32 {vTW[ct]}, {sTmp}, {vTW[ct]}")
    vPA, vMLG, vFS = v.get(), v.get(), v.get()
    oPA, oMLG, oFS = s.get(), s.get(), s.get()
    a(f"""
    v_lshlrev_b32 {vPA}, 9, {vI}
    v_lshl_add_u32 {vPA}, {vGQ}, 5, {vPA}
    v_lshl_add_u32 {vMLG}, {vGQ}, 2, {vI}
    v_and_b32 {vMLG}, 15, {vMLG}
    v_lshlrev_b32 {vMLG}, 4, {vMLG}
    v_lshlrev_b32 {vFS}, 3, {vI}
    v_lshl_add_u32 {vFS}, {vGQ}, 13, {vFS}
    s_lshl_b32 {sTmp}, {sG}, 1
    s_add_u32 {sTmp}, {sTmp}, {sB}
    s_lshl_b32 {sTmp}, {sTmp}, 2
    s_add_u32 {sTmp}, {sTmp}, {sA}
    s_lshl_b32 {oMLG}, {sTmp}, 8
    s_add_u32 {oMLG}, {oMLG}, {MLB}
    s_lshl_b32 {oPA}, {sTmp}, 13
    s_lshl_b32 {sTmp2}, {sKH}, 8
    s_add_u32 {oPA}, {oPA}, {sTmp2}
    s_add_u32 {oPA}, {oPA}, {PART}
    s_lshl_b32 {oFS}, {sC}, 1
    s_add_u32 {oFS}, {oFS}, {sB}
    s_lshl_b32 {oFS}, {oFS}, 15
    s_lshl_b32 {sTmp}, {sG}, 2
    s_add_u32 {sTmp}, {sTmp}, {sA}
    s_lshl_b32 {sTmp}, {sTmp}, 1
    s_add_u32 {sTmp}, {sTmp}, {sKH}
    s_lshl_b32 {sTmp}, {sTmp}, 7
    s_add_u32 {oFS}, {oFS}, {sTmp}
    s_add_u32 {oFS}, {oFS}, {FIN}
    """)
    for t in range(4):
        buf = av[8*(t&1):8*(t&1)+8]
        wait_vm("v%d" % t)
        for T in range(2):
            for hi in range(2):
                a(f"ds_read_b64_tr_b16 {buf[4*T+2*hi:4*T+2*hi+2]}, {vTV[T]} offset:{2048*t + 1024*hi}")
        for T in range(2):
            a(f"s_waitcnt lgkmcnt({2 - 2*T})")
            d = do[4*T:4*T+4]
            a(f"v_mfma_f32_16x16x32_bf16 {d}, {buf[4*T:4*T+4]}, {pk[4*t:4*t+4]}, {d if t else 0}")
    a(f"""
    s_mov_b32 exec_lo, 0x000f000f
    s_mov_b32 exec_hi, 0x000f000f
    v_cvt_pk_bf16_f32 {pr[2]}, {do[0]}, {do[1]}
    v_cvt_pk_bf16_f32 {pr[3]}, {do[2]}, {do[3]}
    s_mov_b32 exec_lo, 0x00f000f0
    s_mov_b32 exec_hi, 0x00f000f0
    v_cvt_pk_bf16_f32 {pr[0]}, {do[4]}, {do[5]}
    v_cvt_pk_bf16_f32 {pr[1]}, {do[6]}, {do[7]}
    s_mov_b32 exec_lo, 0x00ff00ff
    s_mov_b32 exec_hi, 0x00ff00ff
    s_cmp_eq_u32 {sMix}, 0
    s_cbranch_scc0 L_psmix
    """)
    vmem("ps", f"buffer_store_dwordx4 {pr}, {vPS}, {SWS}, {oPS} offen")
    a("L_psback:")
    a("s_mov_b64 exec, -1")
    stamp()
    pa = kk[0:16]; mlg = kk[16:20]; bo = v.get(32, 2); dd = kk[20:32]
    dd = v.get(16, 2)
    def poll2(first):
        t = []
        for tl in range(2):
            t.append(f"buffer_load_dwordx4 {pa[8*tl:8*tl+4]}, {vPA}, {SWS}, {oPA} offen offset:{128*tl} sc1")
            t.append(f"buffer_load_dwordx4 {pa[8*tl+4:8*tl+8]}, {vPA}, {SWS}, {oPA} offen offset:{128*tl+16} sc1")
        t.append(f"buffer_load_dwordx4 {mlg}, {vMLG}, {SWS}, {oMLG} offen sc1")
        for x in t:
            if first: vmem("p2", x)
            else: a(x)
    poll2(True)
    wait_vm("wo")
    a("s_barrier")
    for tl in range(2):
        for ct in range(4):
            for hi in range(2):
                r = bo[16*tl+4*ct+2*hi:16*tl+4*ct+2*hi+2]
                a(f"ds_read_b64_tr_b16 {r}, {vTW[ct]} offset:{L_WO + 4096*tl + 2048*hi}")
    a(f"s_mov_b32 {sCnt}, 0")
    a("s_waitcnt vmcnt(0)")
    a("L_chk2:")
    a(f"v_xor_b32 {vT0}, {sTag[0]}, {pa[1]}")
    for r in (pa[6], pa[9], pa[14], mlg[2]):
        a(f"v_bitop3_b32 {vT0}, {r}, {sTag[0]}, {vT0} {BOP}")
    a(f"""
    v_cmp_ne_u32 vcc, 0, {vT0}
    s_cbranch_vccnz L_retry2
    L_ok2:
    s_waitcnt lgkmcnt(0)
    """)
    stamp()
    for ct in range(4):
        a(f"v_mfma_f32_16x16x32_bf16 {dd[4*ct:4*ct+4]}, {pa[2:6]}, {bo[4*ct:4*ct+4]}, 0")
    wv = vT1
    a(f"v_mov_b32 {vT0}, {mlg[0]}")
    for r in (1, 2, 4, 8):
        a(f"v_max_f32_dpp {vT0}, {vT0}, {vT0} row_ror:{r} row_mask:0xf bank_mask:0xf")
    for ct in range(4):
        a(f"v_mfma_f32_16x16x32_bf16 {dd[4*ct:4*ct+4]}, {pa[10:14]}, {bo[16+4*ct:16+4*ct+4]}, {dd[4*ct:4*ct+4]}")
    a(f"""
    v_sub_f32 {wv}, {mlg[0]}, {vT0}
    v_exp_f32 {wv}, {wv}
    v_mul_f32 {vT0}, {wv}, {mlg[1]}
    """)
    for r in (1, 2, 4, 8):
        a(f"v_add_f32_dpp {vT0}, {vT0}, {vT0} row_ror:{r} row_mask:0xf bank_mask:0xf")
    a(f"v_rcp_f32 {vT0}, {vT0}\nv_mul_f32 {wv}, {wv}, {vT0}")
    for r in range(4):
        for ct in range(4):
            a(f"v_fmac_f32_dpp {df[4*ct]}, {wv}, {dd[4*ct+r]} row_newbcast:{r} row_mask:0xf bank_mask:0xf")
    fo = pr[0:2]
    a(f"""
    v_mov_b32 {fo[1]}, {sTag[0]}
    v_permlane32_swap_b32 {df[0]}, {df[8]}
    v_permlane32_swap_b32 {df[4]}, {df[12]}
    v_add_f32 {df[0]}, {df[0]}, {df[8]}
    v_add_f32 {df[4]}, {df[4]}, {df[12]}
    v_permlane16_swap_b32 {df[0]}, {df[4]}
    v_add_f32 {fo[0]}, {df[0]}, {df[4]}
    """)
    a(f"buffer_store_dwordx2 {fo}, {vFS}, {SWS}, {oFS} offen sc1")
    stamp()
    a(f"s_cmp_eq_u32 {sW}, 0\ns_cbranch_scc0 L_fin")
    fg = kk[0:8]
    oFG, oFG2 = oPA, oMLG
    a(f"""
    v_lshrrev_b32 {vT0}, 1, v0
    v_lshlrev_b32 {vT0}, 7, {vT0}
    v_and_b32 {vT1}, 1, v0
    v_lshl_add_u32 {vPA}, {vT1}, 4, {vT0}
    ; FIN + (8g + (j>>2))*8192 + (j&3)*32
    s_lshl_b32 {oFG}, {sG}, 3
    s_lshr_b32 {sTmp}, {sJ}, 2
    s_add_u32 {oFG}, {oFG}, {sTmp}
    s_lshl_b32 {oFG}, {oFG}, 13
    s_and_b32 {sTmp}, {sJ}, 3
    s_lshl_b32 {sTmp}, {sTmp}, 5
    s_add_u32 {oFG}, {oFG}, {sTmp}
    s_add_u32 {oFG}, {oFG}, {FIN}
    s_add_u32 {oFG2}, {oFG}, 4096
    s_mov_b32 {sCnt}, 0
    v_lshlrev_b32 {xf}, 16, {xf}
    L_poll3:
    buffer_load_dwordx4 {fg[0:4]}, {vPA}, {SWS}, {oFG} offen sc1
    buffer_load_dwordx4 {fg[4:8]}, {vPA}, {SWS}, {oFG2} offen sc1
    s_add_u32 {sCnt}, {sCnt}, 1
    s_cmp_gt_u32 {sCnt}, 20000
    s_cbranch_scc1 L_ok3
    s_waitcnt vmcnt(0)
    v_xor_b32 {vT0}, {sTag[0]}, {fg[1]}
    v_bitop3_b32 {vT0}, {fg[3]}, {sTag[0]}, {vT0} {BOP}
    v_bitop3_b32 {vT0}, {fg[5]}, {sTag[0]}, {vT0} {BOP}
    v_bitop3_b32 {vT0}, {fg[7]}, {sTag[0]}, {vT0} {BOP}
    v_cmp_ne_u32 vcc, 0, {vT0}
    s_cbranch_vccnz L_poll3
    L_ok3:
    s_waitcnt vmcnt(0)
    v_add_f32 {fg[0]}, {fg[0]}, {fg[4]}
    v_add_f32 {fg[2]}, {fg[2]}, {fg[6]}
    """)
    stamp()
    for r in (2, 4, 8):
        a(f"v_add_f32_dpp {fg[0]}, {fg[0]}, {fg[0]} row_ror:{r} row_mask:0xf bank_mask:0xf")
        a(f"v_add_f32_dpp {fg[2]}, {fg[2]}, {fg[2]} row_ror:{r} row_mask:0xf bank_mask:0xf")
    a(f"""
    v_permlane16_swap_b32 {fg[0]}, {fg[2]}
    v_add_f32 {fg[0]}, {fg[0]}, {fg[2]}
    v_mov_b32 {fg[2]}, {fg[0]}
    v_permlane32_swap_b32 {fg[0]}, {fg[2]}
    v_add_f32 {fg[0]}, {fg[0]}, {fg[2]}
    v_add_f32 {fg[0]}, {fg[0]}, {xf}
    v_cvt_pk_bf16_f32 {fg[0]}, {fg[0]}, {fg[0]}
    s_mov_b32 exec_lo, 0x00030003
    s_mov_b32 exec_hi, 0
    buffer_store_short {fg[0]}, {vXF}, {SOUT}, {oXF} offen
    s_cmp_eq_u32 s2, 0
    s_cbranch_scc0 L_fin
    s_mov_b32 exec_lo, 1
    v_mov_b32 {vT0}, 0
    v_mov_b32 {vT1}, {sTag[0]}
    buffer_store_dword {vT1}, {vT0}, {SWS}, 0 offen
    L_fin:
    """)
    if stamps:
        stamp(True)
        a(f"s_mov_b64 exec, -1")
        a(f"""
        v_writelane_b32 {vST}, {sXCC}, 14
        v_writelane_b32 {vST}, {sMix}, 15
        s_lshl_b32 {sTmp}, s2, 2
        s_add_u32 {sTmp}, {sTmp}, {sW}
        s_lshl_b32 {sTmp}, {sTmp}, 6
        s_add_u32 {sTmp}, {sTmp}, {STAMP}
        v_lshlrev_b32 {vT1}, 2, v0
        s_mov_b32 exec_lo, 0xffff
        s_mov_b32 exec_hi, 0
        buffer_store_dword {vST}, {vT1}, {SWS}, {sTmp} offen
        """)
    if hold:
        a(f"L_hold:\ns_memrealtime s[4:5]\ns_waitcnt lgkmcnt(0)\ns_sub_u32 s4, s4, s98\ns_cmp_lt_u32 s4, {hold}\ns_cbranch_scc1 L_hold")
    a("L_end:\ns_endpgm")
    a(f"""
    L_retry1:
    s_add_u32 {sCnt}, {sCnt}, 1
    s_cmp_gt_u32 {sCnt}, 20000
    s_cbranch_scc1 L_ok1
    s_cmp_eq_u32 {sCnt}, {opt.get('nplain', 12)}
    s_cbranch_scc0 L_r1b
    s_mov_b32 {sMix}, 1
    s_mov_b32 {sTP}, {sTag[0]}
    s_add_u32 {oQG}, {oQG}, {SC1D}
    s_add_u32 {oHG}, {oHG}, {SC1D}
    L_r1b:
    """)
    poll1(False)
    a("s_waitcnt vmcnt(0)\ns_branch L_chk1")
    a(f"""
    L_mlmix:
    buffer_store_dwordx4 {mlr}, {vT0}, {SWS}, {oML} offen sc1
    s_branch L_mlback
    L_psmix:
    buffer_store_dwordx4 {pr}, {vPS}, {SWS}, {oPS} offen sc1
    s_branch L_psback
    L_retry2:
    s_add_u32 {sCnt}, {sCnt}, 1
    s_cmp_gt_u32 {sCnt}, 20000
    s_cbranch_scc1 L_ok2
    """)
    poll2(False)
    a("s_waitcnt vmcnt(0)\ns_branch L_chk2")
    nv = (v.hw + 7) // 8 * 8
    out.append(a.text())
    out.append(f""".section .rodata,"a"
.p2align 6
.amdhsa_kernel {NAME}_kernel
  .amdhsa_next_free_vgpr {nv}
  .amdhsa_next_free_sgpr 100
  .amdhsa_accum_offset {nv}
  .amdhsa_group_segment_fixed_size 0
  .amdhsa_kernarg_size 96
  .amdhsa_user_sgpr_count 2
  .amdhsa_user_sgpr_kernarg_segment_ptr 1
  .amdhsa_system_sgpr_workgroup_id_x 1
.end_amdhsa_kernel""")
    sys.stderr.write("vgprs %d sgprs %d nops %d\n" % (v.hw, s.hw, a.nops))
    return "\n".join(out) + "\n"

if __name__ == "__main__":
    import json
    opt = json.loads(sys.argv[2]) if len(sys.argv) > 2 else {}
    open(sys.argv[1], "w").write(gen(opt))
```

```python
import sys
from asmlib import *

NAME = "parallel_sum__sliding_block_cached__dense_activation_mish__decode"
PHI = 0x9E3779B9
QBUF = 0x10000; HBUF = 0x50000; SC1D = 0x20000; MLB = 0x90000; PART = 0x100000; FIN = 0x200000; DBG = 0x400000; STAMP = 0x800000
L_XN = 0; L_Q = 4096; L_MX = 5632; L_WQ = 8192; L_WO = 8192; L_W1 = 24576; L_W2 = 32768; L_V = 40960; LDS_BYTES = 73728
QSTR = 320

def gen(opt):
    nt = opt.get("nt", {})
    def pol(k): return nt.get(k, "")
    stamps = opt.get("stamps", False)
    dump = opt.get("dump", False)
    a = Asm()
    v = Alloc("v", 1, 256); s = Alloc("s", 44, 100)
    hdr = open("cdna_kernels/%s.s.ref" % NAME).read().split("\n")
    hdr = [l for l in hdr if l.startswith(";") and "@launch" not in l and "Override" not in l and "grid=ceil" not in l]
    out = list(hdr)
    out.append("; @launch grid=(256,1,1) block=(256,1,1) lds=%d" % LDS_BYTES)
    out.append('.amdgcn_target "amdgcn-amd-amdhsa--gfx950"')
    out.append(".text\n.globl %s_kernel\n.p2align 8\n.type %s_kernel,@function\n%s_kernel:" % (NAME, NAME, NAME))
    SX, SK, SV, SWQ, SWO, SW1, SB1, SW2, SOUT, SWS = [Reg("s", 4 + 4 * i, 4) for i in range(10)]
    vm = []
    def vmem(name, text):
        a(text); vm.append(name)
    def wait_vm(name, extra=""):
        idx = max(i for i, n in enumerate(vm) if n == name)
        n = len(vm) - 1 - idx
        a("s_waitcnt vmcnt(%d)%s" % (n, extra))
    nst = [0]
    sST = None
    if stamps:
        sST = s.get(2, 2); vST = v.get()
    def stamp(last=False):
        if stamps:
            k = nst[0]; nst[0] += 1
            assert k < 14
            if k > 0:
                a("s_waitcnt lgkmcnt(0)\nv_writelane_b32 %s, %s, %d" % (vST, sST[0], k - 1))
            a("s_memrealtime %s" % sST)
            if last:
                a("s_waitcnt lgkmcnt(0)\nv_writelane_b32 %s, %s, %d" % (vST, sST[0], k))
    stamp()
    hold = opt.get("hold", 0)
    if hold:
        a("s_memrealtime s[98:99]")
    a(f"""
    s_load_dwordx2 {SX[0:2]}, s[0:1], 0
    s_load_dwordx2 {SWQ[0:2]}, s[0:1], 24
    s_load_dwordx2 {SW1[0:2]}, s[0:1], 48
    s_load_dwordx2 {SK[0:2]}, s[0:1], 8
    s_load_dwordx2 {SWS[0:2]}, s[0:1], 88
    s_load_dwordx2 {SW2[0:2]}, s[0:1], 64
    s_cmp_ge_u32 s2, 256
    s_cbranch_scc1 L_end
    """)
    sW, sG, sJ, sA, sC, sT, sBLK, sTmp, sTmp2 = [s.get() for _ in range(9)]
    oXO, oWQ, oW1, oKV, oK, oW2 = [s.get() for _ in range(6)]
    sM = s.get()
    vL = Reg("v", 0, 1)
    vGQ, vI, vT0, vT1 = [v.get() for _ in range(4)]
    vXS, vXO, vWQe, vWQo, vW1e, vW1o, vK = [v.get() for _ in range(7)]
    a(f"""
    v_readfirstlane_b32 {sW}, v0
    v_and_b32 v0, 63, v0
    s_and_b32 {sG}, s2, 7
    s_lshr_b32 {sJ}, s2, 3
    s_lshr_b32 {sW}, {sW}, 6
    s_lshr_b32 {sA}, {sJ}, 3
    s_and_b32 {sC}, {sJ}, 7
    v_lshrrev_b32 {vGQ}, 4, v0
    v_and_b32 {vI}, 15, v0
    s_mov_b32 {SX[2]}, 2048
    s_mov_b32 {SX[3]}, 0x20000
    s_mov_b32 {SWQ[2]}, {512*4096*2}
    s_mov_b32 {SWQ[3]}, 0x20000
    v_and_b32 {vT0}, 1, v0
    v_lshlrev_b32 {vT0}, 10, {vT0}
    v_lshrrev_b32 {vT1}, 1, v0
    v_lshl_add_u32 {vXS}, {vT1}, 5, {vT0}
    v_lshl_add_u32 {vXO}, {vGQ}, 4, {vT0}
    v_and_b32 {vT0}, 1, {vGQ}
    v_lshlrev_b32 {vT0}, 1, {vT0}
    v_and_b32 {vT1}, 7, v0
    v_xor_b32 {vT0}, {vT0}, {vT1}
    v_lshlrev_b32 {vT0}, 4, {vT0}
    v_lshrrev_b32 {vT1}, 3, v0
    v_lshl_add_u32 {vWQe}, {vT1}, 13, {vT0}
    v_xor_b32 {vWQo}, 64, {vWQe}
    v_mul_u32_u24 {vW1e}, 3584, {vT1}
    v_add_u32 {vW1e}, {vW1e}, {vT0}
    v_xor_b32 {vW1o}, 64, {vW1e}
    v_lshlrev_b32 {vK}, 8, {vI}
    v_lshl_add_u32 {vK}, {vGQ}, 4, {vK}
    ; row0 = 128a + 32*(w ^ 2(c&1))
    s_and_b32 {sTmp}, {sC}, 1
    s_lshl_b32 {sTmp2}, {sTmp}, 1
    s_xor_b32 {sTmp2}, {sTmp2}, {sW}
    s_lshl_b32 {sTmp2}, {sTmp2}, 5
    s_lshl_b32 {oXO}, {sA}, 7
    s_add_u32 {sTmp2}, {sTmp2}, {oXO}
    s_lshl_b32 {oWQ}, {sTmp2}, 13
    s_lshl_b32 {sM}, {sG}, 10
    s_add_u32 {oWQ}, {oWQ}, {sM}
    s_lshl_b32 {sM}, {sC}, 7
    s_add_u32 {oWQ}, {oWQ}, {sM}
    ; w1 row = 128a + 64(c&1) + 16w
    s_lshl_b32 {sTmp}, {sTmp}, 6
    s_add_u32 {oW1}, {oXO}, {sTmp}
    s_lshl_b32 {sTmp}, {sW}, 4
    s_add_u32 {oW1}, {oW1}, {sTmp}
    s_mul_i32 {oW1}, {oW1}, 3584
    s_lshl_b32 {oXO}, {sTmp2}, 1
    s_lshr_b32 {sT}, {sC}, 1
    s_sub_u32 {sT}, {sT}, {sA}
    s_and_b32 {sT}, {sT}, 3
    s_lshl_b32 {sBLK}, {sG}, 2
    s_mul_i32 {sTmp2}, {sG}, 3
    s_add_u32 {sTmp2}, {sTmp2}, 4
    s_min_u32 {sBLK}, {sBLK}, {sTmp2}
    s_add_u32 {sBLK}, {sBLK}, {sT}
    s_lshl_b32 {sTmp2}, {sBLK}, 7
    s_add_u32 {oW1}, {oW1}, {sTmp2}
    s_lshl_b32 {oW2}, {sBLK}, 6
    s_add_u32 {oW2}, {oW2}, {sTmp}
    s_lshl_b32 {oW2}, {oW2}, 10
    s_add_u32 {oW2}, {oW2}, {sM}
    s_lshr_b32 {sTmp2}, {sG}, 2
    s_add_u32 {sTmp2}, {sTmp2}, {sT}
    s_cmp_eq_u32 {sTmp2}, 4
    s_cselect_b32 {oW1}, 0x40000000, {oW1}
    s_cselect_b32 {oW2}, 0x40000000, {oW2}
    s_cselect_b32 {sBLK}, 0x100000, {sBLK}
    s_lshr_b32 {sTmp}, {sJ}, 4
    s_lshl_b32 {sTmp}, {sTmp}, 3
    s_add_u32 {sTmp}, {sTmp}, {sG}
    s_lshl_b32 {oKV}, {sTmp}, 21
    s_and_b32 {sTmp}, {sJ}, 15
    s_lshl_b32 {sTmp}, {sTmp}, 15
    s_add_u32 {oKV}, {oKV}, {sTmp}
    s_add_u32 {oKV}, {oKV}, {6144*256}
    s_lshl_b32 {oK}, {sW}, 13
    s_add_u32 {oK}, {oK}, {oKV}
    s_mov_b32 {SW1[2]}, {512*1792*2}
    s_mov_b32 {SW1[3]}, 0x20000
    s_mov_b32 {SK[2]}, {2*8*8192*256}
    s_mov_b32 {SK[3]}, 0x20000
    s_lshl_b32 {sM}, {sW}, 12
    s_add_u32 {sM}, {sM}, {L_WQ}
    s_mov_b32 m0, {sM}
    s_waitcnt lgkmcnt(0)
    """)
    stamp()
    xs = v.get(8, 2); xo = v.get(4, 2)
    kk = v.get(32, 2)
    sE = s.get(2, 2)
    vmem("xs", f"buffer_load_dwordx4 {xs[0:4]}, {vXS}, {SX}, 0 offen")
    vmem("xs", f"buffer_load_dwordx4 {xs[4:8]}, {vXS}, {SX}, 0 offen offset:16")
    vmem("xo", f"buffer_load_dwordx4 {xo}, {vXO}, {SX}, {oXO} offen")
    for k in range(4):
        vmem("wq", f"buffer_load_dwordx4 {vWQo if k & 1 else vWQe}, {SWQ}, {oWQ} offen {pol('wq')} lds")
        if k < 3:
            a(f"s_add_u32 m0, m0, 1024\ns_add_u32 {oWQ}, {oWQ}, 65536")
    a(f"s_lshl_b32 {sM}, {sW}, 11\ns_add_u32 m0, {sM}, {L_W1}\ns_load_dword {sE[0]}, {SWS[0:2]}, 0")
    vmem("w1", f"buffer_load_dwordx4 {vW1e}, {SW1}, {oW1} offen {pol('w1')} lds")
    a(f"s_add_u32 m0, m0, 1024\ns_add_u32 {oW1}, {oW1}, 28672")
    vmem("w1", f"buffer_load_dwordx4 {vW1o}, {SW1}, {oW1} offen {pol('w1')} lds")
    def kload(idx):
        T, st = idx >> 2, idx & 3
        if idx == 4: a(f"s_add_u32 {oK}, {oK}, 4096")
        vmem("k", f"buffer_load_dwordx4 {kk[4*idx:4*idx+4]}, {vK}, {SK}, {oK} offen offset:{st*64} {pol('k')}")
    NK1 = opt.get("nk1", 6)
    for idx in range(NK1): kload(idx)
    a(f"""
    s_load_dwordx2 {SV[0:2]}, s[0:1], 16
    s_load_dwordx2 {SWO[0:2]}, s[0:1], 32
    s_load_dwordx2 {SB1[0:2]}, s[0:1], 56
    s_load_dwordx2 {SOUT[0:2]}, s[0:1], 72
    s_mov_b32 {SV[2]}, {2*8*8192*256}
    s_mov_b32 {SV[3]}, 0x20000
    s_mov_b32 {SWO[2]}, {4096*512*2}
    s_mov_b32 {SWO[3]}, 0x20000
    s_mov_b32 {SB1[2]}, 3584
    s_mov_b32 {SB1[3]}, 0x20000
    s_mov_b32 {SW2[2]}, {512*1792*2}
    s_mov_b32 {SW2[3]}, 0x20000
    s_mov_b32 {SOUT[2]}, 2048
    s_mov_b32 {SOUT[3]}, 0x20000
    s_mov_b32 {SWS[2]}, 0x10000000
    s_mov_b32 {SWS[3]}, 0x20000
    """)
    stamp()
    vWO, vV, vF, vTQ, vL16 = [v.get() for _ in range(5)]
    vTW = v.get(4)
    vTV = v.get(2)
    vFF = v.get()
    sHi = s.get()
    a(f"""
    s_mov_b32 {sHi}, 0xffff0000
    v_mov_b32 {vFF}, 0xff
    v_lshlrev_b32 {vL16}, 4, v0
    v_lshlrev_b32 {vT0}, 1, {vGQ}
    v_and_b32 {vT1}, 7, v0
    v_xor_b32 {vT0}, {vT0}, {vT1}
    v_lshlrev_b32 {vT0}, 4, {vT0}
    v_lshrrev_b32 {vT1}, 3, v0
    v_lshl_add_u32 {vWO}, {vT1}, 10, {vT0}
    v_and_b32 {vT0}, 1, {vGQ}
    v_lshlrev_b32 {vF}, 1, {vT0}
    v_and_b32 {vT1}, 3, v0
    v_xor_b32 {vV}, {vF}, {vT1}
    v_lshlrev_b32 {vV}, 4, {vV}
    v_lshrrev_b32 {vT0}, 2, v0
    v_lshl_add_u32 {vV}, {vT0}, 8, {vV}
    ; f = ((i>>3)&1) | ((gq&1)<<1)
    v_lshrrev_b32 {vT0}, 3, {vI}
    v_or_b32 {vF}, {vF}, {vT0}
    v_lshlrev_b32 {vT1}, 3, {vT1}
    v_lshrrev_b32 {vT0}, 2, {vI}
    v_lshl_add_u32 {vTQ}, {vGQ}, 3, {vT0}
    v_lshl_add_u32 {vTQ}, {vTQ}, 7, {vT1}
    v_xor_b32 {vTV[0]}, {sW}, {vF}
    v_lshl_add_u32 {vTQ}, {vTV[0]}, 5, {vTQ}
    v_lshl_add_u32 {vT0}, {vGQ}, 2, {vT0}
    v_lshl_add_u32 {vTW[0]}, {vT0}, 7, {vT1}
    v_lshl_add_u32 {vTW[0]}, {vF}, 5, {vTW[0]}
    v_xor_b32 {vTW[1]}, 32, {vTW[0]}
    v_xor_b32 {vTW[2]}, 64, {vTW[0]}
    v_xor_b32 {vTW[3]}, 0x60, {vTW[0]}
    v_lshl_add_u32 {vTV[0]}, {vT0}, 6, {vT1}
    v_and_b32 {vT0}, 1, {vGQ}
    v_lshl_add_u32 {vTV[0]}, {vT0}, 5, {vTV[0]}
    s_lshl_b32 {sTmp}, {sW}, 13
    s_add_u32 {sTmp}, {sTmp}, {L_V}
    v_add_u32 {vTV[0]}, {sTmp}, {vTV[0]}
    v_xor_b32 {vTV[1]}, 32, {vTV[0]}
    """)
    mk = v.mark()
    f = v.get(16, 2); nm = v.get(2, 2); acc = v.get(2, 2); t0 = v.get(); t1 = v.get(); vMean = v.get(2, 2); vR = v.get(2, 2)
    wait_vm("xs")
    for k in range(8):
        a(f"v_lshlrev_b32 {f[2*k]}, 16, {xs[k]}\nv_and_b32 {f[2*k+1]}, {sHi}, {xs[k]}")
    g4 = v.get(8, 2)
    a(f"""
    v_pk_add_f32 {g4[0:2]}, {f[0:2]}, {f[2:4]}
    v_pk_add_f32 {g4[2:4]}, {f[4:6]}, {f[6:8]}
    v_pk_add_f32 {g4[4:6]}, {f[8:10]}, {f[10:12]}
    v_pk_add_f32 {g4[6:8]}, {f[12:14]}, {f[14:16]}
    v_pk_add_f32 {g4[0:2]}, {g4[0:2]}, {g4[2:4]}
    v_pk_add_f32 {g4[4:6]}, {g4[4:6]}, {g4[6:8]}
    v_pk_add_f32 {g4[0:2]}, {g4[0:2]}, {g4[4:6]}
    v_add_f32 {t0}, {g4[0]}, {g4[1]}
    """)
    def red_parity(x, tmp):
        for r in (2, 4, 8):
            a(f"v_add_f32_dpp {x}, {x}, {x} row_ror:{r} row_mask:0xf bank_mask:0xf")
        a(f"v_mov_b32 {tmp}, {x}\nv_permlane16_swap_b32 {x}, {tmp}\nv_add_f32 {x}, {x}, {tmp}")
        a(f"v_mov_b32 {tmp}, {x}\nv_permlane32_swap_b32 {x}, {tmp}\nv_add_f32 {x}, {x}, {tmp}")
    red_parity(t0, t1)
    a(f"""
    v_mul_f32 {nm[0]}, 0xbb000000, {t0}
    v_mul_f32 {nm[1]}, 0xbb000000, {t0}
    """)
    for k in range(8):
        a(f"v_pk_add_f32 {f[2*k:2*k+2]}, {f[2*k:2*k+2]}, {nm}")
    a(f"v_pk_mul_f32 {acc}, {f[0:2]}, {f[0:2]}\nv_pk_mul_f32 {g4[0:2]}, {f[2:4]}, {f[2:4]}")
    for k in range(2, 8):
        d = acc if k % 2 == 0 else g4[0:2]
        a(f"v_pk_fma_f32 {d}, {f[2*k:2*k+2]}, {f[2*k:2*k+2]}, {d}")
    a(f"v_pk_add_f32 {acc}, {acc}, {g4[0:2]}\nv_add_f32 {t0}, {acc[0]}, {acc[1]}")
    red_parity(t0, t1)
    a(f"""
    v_mul_f32 {t0}, 0x3b000000, {t0}
    v_cvt_pk_bf16_f32 {t0}, {t0}, {nm[0]}
    v_and_b32 {vMean[0]}, {sHi}, {t0}
    v_and_b32 {vMean[1]}, {sHi}, {t0}
    v_lshlrev_b32 {t0}, 16, {t0}
    v_add_f32 {t0}, 0x3727c5ac, {t0}
    v_cvt_pk_bf16_f32 {t0}, {t0}, {t0}
    v_lshlrev_b32 {t0}, 16, {t0}
    v_sqrt_f32 {t0}, {t0}
    v_cvt_pk_bf16_f32 {t0}, {t0}, {t0}
    v_lshlrev_b32 {t0}, 16, {t0}
    v_rcp_f32 {vR[0]}, {t0}
    """)
    wait_vm("xo")
    for k in range(4):
        a(f"v_lshlrev_b32 {f[2*k]}, 16, {xo[k]}\nv_and_b32 {f[2*k+1]}, {sHi}, {xo[k]}")
    a(f"v_mov_b32 {vR[1]}, {vR[0]}")
    for k in range(4):
        a(f"v_pk_add_f32 {f[2*k:2*k+2]}, {f[2*k:2*k+2]}, {vMean}")
    for k in range(4):
        a(f"v_cvt_pk_bf16_f32 {xo[k]}, {f[2*k]}, {f[2*k+1]}")
    for k in range(4):
        a(f"v_lshlrev_b32 {f[2*k]}, 16, {xo[k]}\nv_and_b32 {f[2*k+1]}, {sHi}, {xo[k]}")
    for k in range(4):
        a(f"v_pk_mul_f32 {f[2*k:2*k+2]}, {f[2*k:2*k+2]}, {vR}")
    for k in range(4):
        a(f"v_cvt_pk_bf16_f32 {xo[k]}, {f[2*k]}, {f[2*k+1]}")
    a(f"s_lshl_b32 {sTmp}, {sW}, 10\nv_add_u32 {vT0}, {sTmp}, {vL16}\nds_write_b128 {vT0}, {xo} offset:{L_XN}")
    v.release(mk)
    stamp()
    for idx in range(NK1, 8): kload(idx)
    b1r = v.get(2, 2); xf = v.get()
    vB1, vXF = xs[0], xs[1]
    sB, sKH, sBA, sS = [s.get() for _ in range(4)]
    oB1, oXF = s.get(), s.get()
    sTag = s.get(4); sXCC = s.get(); sTP = s.get()
    a(f"""
    s_waitcnt lgkmcnt(0)
    s_lshl_b32 {sM}, {sW}, 11
    s_add_u32 m0, {sM}, {L_W2}
    s_and_b32 {sB}, {sW}, 1
    """)
    vmem("w2", f"buffer_load_dwordx4 {vWO}, {SW2}, {oW2} offen {pol('w2')} lds")
    a(f"s_add_u32 m0, m0, 1024\ns_add_u32 {oW2}, {oW2}, 8192")
    vmem("w2", f"buffer_load_dwordx4 {vWO}, {SW2}, {oW2} offen {pol('w2')} lds")
    a(f"""
    s_lshr_b32 {sKH}, {sW}, 1
    s_lshr_b32 {sBA}, {sJ}, 4
    s_and_b32 {sS}, {sJ}, 15
    v_bfe_u32 {vT0}, v0, 3, 1
    v_lshlrev_b32 {vT0}, 5, {vT0}
    v_lshl_add_u32 {vB1}, {vGQ}, 3, {vT0}
    s_lshl_b32 {oB1}, {sBLK}, 7
    s_lshl_b32 {sTmp}, {sKH}, 6
    s_add_u32 {oB1}, {oB1}, {sTmp}
    s_lshl_b32 {oXF}, {sBA}, 10
    s_lshl_b32 {sTmp}, {sG}, 7
    s_add_u32 {oXF}, {oXF}, {sTmp}
    s_lshl_b32 {sTmp}, {sS}, 3
    s_add_u32 {oXF}, {oXF}, {sTmp}
    v_and_b32 {vT0}, 1, v0
    v_lshlrev_b32 {vT0}, 2, {vT0}
    v_and_b32 {vT1}, 1, {vGQ}
    v_lshl_add_u32 {vXF}, {vT1}, 1, {vT0}
    s_getreg_b32 {sXCC}, hwreg(HW_REG_XCC_ID, 0, 4)
    s_add_u32 {sTag[0]}, {sE[0]}, {hex(PHI)}
    s_lshr_b32 {sTag[1]}, {sTag[0]}, 8
    s_lshr_b32 {sTag[2]}, {sTag[0]}, 16
    s_lshr_b32 {sTag[3]}, {sTag[0]}, 24
    s_xor_b32 {sTP}, {sTag[0]}, {sXCC}
    """)
    vmem("b1", f"buffer_load_dwordx2 {b1r}, {vB1}, {SB1}, {oB1} offen")
    vmem("xf", f"buffer_load_ushort {xf}, {vXF}, {SX}, {oXF} offen")
    oQS, oHS, oQG, oHG, oML, oPS, oV, oWO = [s.get() for _ in range(8)]
    vQS, vHS, vQG, vHG = [v.get() for _ in range(4)]
    a(f"""
    s_lshl_b32 {oQG}, {sG}, 14
    s_add_u32 {oQG}, {oQG}, {QBUF}
    s_lshl_b32 {sTmp}, {sA}, 11
    s_add_u32 {oQS}, {oQG}, {sTmp}
    s_lshl_b32 {sTmp}, {sC}, 8
    s_add_u32 {oQS}, {oQS}, {sTmp}
    s_lshl_b32 {sTmp2}, {sW}, 6
    s_add_u32 {oQS}, {oQS}, {sTmp2}
    s_lshl_b32 {sTmp}, {sBA}, 13
    s_add_u32 {oQG}, {oQG}, {sTmp}
    s_lshl_b32 {sTmp}, {sW}, 9
    s_add_u32 {oQG}, {oQG}, {sTmp}
    s_lshl_b32 {oHG}, {sG}, 2
    s_add_u32 {oHG}, {oHG}, {sT}
    s_lshl_b32 {oHG}, {oHG}, 12
    s_add_u32 {oHG}, {oHG}, {HBUF}
    s_lshl_b32 {sTmp}, {sA}, 1
    s_and_b32 {oHS}, {sC}, 1
    s_add_u32 {sTmp}, {sTmp}, {oHS}
    s_lshl_b32 {sTmp}, {sTmp}, 8
    s_add_u32 {oHS}, {oHG}, {sTmp}
    s_add_u32 {oHS}, {oHS}, {sTmp2}
    s_lshl_b32 {sTmp}, {sB}, 11
    s_add_u32 {oHG}, {oHG}, {sTmp}
    s_lshl_b32 {sTmp}, {sKH}, 7
    s_add_u32 {oHG}, {oHG}, {sTmp}
    v_and_b32 {vT0}, 1, v0
    v_lshlrev_b32 {vT1}, 4, {vGQ}
    v_lshl_add_u32 {vQS}, {vT0}, 13, {vT1}
    v_lshl_add_u32 {vHS}, {vT0}, 11, {vT1}
    v_lshrrev_b32 {vT0}, 5, v0
    v_lshlrev_b32 {vT0}, 12, {vT0}
    v_and_b32 {vQG}, 31, v0
    v_lshl_add_u32 {vQG}, {vQG}, 4, {vT0}
    v_bfe_u32 {vT0}, v0, 3, 1
    v_lshl_add_u32 {vT0}, {vT0}, 6, {vT1}
    v_and_b32 {vHG}, 7, v0
    v_lshl_add_u32 {vHG}, {vHG}, 8, {vT0}
    s_lshl_b32 {sTmp}, {sW}, 6
    s_add_u32 {oV}, {oKV}, {sTmp}
    s_lshl_b32 {oWO}, {sG}, 2
    s_add_u32 {oWO}, {oWO}, {sA}
    s_lshl_b32 {oWO}, {oWO}, 2
    s_add_u32 {oWO}, {oWO}, {sW}
    s_lshl_b32 {oWO}, {oWO}, 15
    s_lshl_b32 {sTmp}, {sC}, 7
    s_add_u32 {oWO}, {oWO}, {sTmp}
    s_lshl_b32 {sTmp}, {sG}, 1
    s_add_u32 {sTmp}, {sTmp}, {sBA}
    s_lshl_b32 {oML}, {sTmp}, 2
    s_add_u32 {oML}, {oML}, {sW}
    s_lshl_b32 {oML}, {oML}, 8
    s_lshl_b32 {sTmp2}, {sS}, 4
    s_add_u32 {oML}, {oML}, {sTmp2}
    s_add_u32 {oML}, {oML}, {MLB}
    s_lshl_b32 {oPS}, {sTmp}, 15
    s_lshl_b32 {sTmp2}, {sS}, 9
    s_add_u32 {oPS}, {oPS}, {sTmp2}
    s_lshl_b32 {sTmp2}, {sW}, 7
    s_add_u32 {oPS}, {oPS}, {sTmp2}
    s_add_u32 {oPS}, {oPS}, {PART}
    """)
    wait_vm("w1")
    a("s_barrier")
    stamp()
    mk = v.mark()
    xn = v.get(16, 2); aq = v.get(16, 2); a1 = v.get(8, 2); dq = v.get(4, 2); dh = v.get(4, 2)
    for t in range(2):
        a(f"ds_read_b128 {xn[4*t:4*t+4]}, {vL16} offset:{L_XN + 1024*t}")
        for hi in range(2):
            a(f"ds_read_b64_tr_b16 {aq[4*t+2*hi:4*t+2*hi+2]}, {vTQ} offset:{L_WQ + 4096*t + 512*hi}")
    for t in range(2, 4):
        a(f"ds_read_b128 {xn[4*t:4*t+4]}, {vL16} offset:{L_XN + 1024*t}")
        for hi in range(2):
            a(f"ds_read_b64_tr_b16 {aq[4*t+2*hi:4*t+2*hi+2]}, {vTQ} offset:{L_WQ + 4096*t + 512*hi}")
    for t in range(2):
        for hi in range(2):
            a(f"ds_read_b64_tr_b16 {a1[4*t+2*hi:4*t+2*hi+2]}, {vTQ} offset:{L_W1 + 4096*t + 512*hi}")
    a("s_mov_b32 exec_lo, 0x00030003\ns_mov_b32 exec_hi, 0x00030003" if False else "")
    for t in range(4):
        a(f"s_waitcnt lgkmcnt({13 - 3*t})")
        a(f"v_mfma_f32_16x16x32_bf16 {dq}, {aq[4*t:4*t+4]}, {xn[4*t:4*t+4]}, {dq if t else 0}")
    for t in range(2):
        a(f"s_waitcnt lgkmcnt({2 - 2*t})")
        a(f"v_mfma_f32_16x16x32_bf16 {dh}, {a1[4*t:4*t+4]}, {xn[4*t:4*t+4]}, {dh if t else 0}")
    a("s_mov_b32 exec_lo, 0x00030003\ns_mov_b32 exec_hi, 0x00030003")
    def pub(d, voff, soff, name):
        a(f"v_bfi_b32 {d[0]}, {vFF}, {sTP}, {d[0]}")
        for k in range(1, 4):
            a(f"v_bfi_b32 {d[k]}, {vFF}, {sTag[k]}, {d[k]}")
        vmem(name, f"buffer_store_dwordx4 {d}, {voff}, {SWS}, {soff} offen")
    pub(dq, vQS, oQS, "qs")
    pub(dh, vHS, oHS, "hs")
    a(f"s_add_u32 {oQS}, {oQS}, {SC1D}\ns_add_u32 {oHS}, {oHS}, {SC1D}")
    a(f"v_xor_b32 {dq[0]}, {sXCC}, {dq[0]}\nv_xor_b32 {dh[0]}, {sXCC}, {dh[0]}")
    vmem("qs", f"buffer_store_dwordx4 {dq}, {vQS}, {SWS}, {oQS} offen sc1")
    vmem("hs", f"buffer_store_dwordx4 {dh}, {vHS}, {SWS}, {oHS} offen sc1")
    a("s_mov_b64 exec, -1")
    a("s_barrier")
    v.release(mk)
    stamp()
    qg = v.get(8, 2); hg = v.get(4, 2)
    def poll1(first):
        t = [f"buffer_load_dwordx4 {qg[0:4]}, {vQG}, {SWS}, {oQG} offen sc1",
             f"buffer_load_dwordx4 {qg[4:8]}, {vQG}, {SWS}, {oQG} offen offset:2048 sc1",
             f"buffer_load_dwordx4 {hg}, {vHG}, {SWS}, {oHG} offen sc1"]
        for x in t:
            if first: vmem("p1", x)
            else: a(x)
    poll1(True)
    a(f"s_lshl_b32 {sM}, {sW}, 13\ns_add_u32 m0, {sM}, {L_V}\ns_nop 0")
    for n in range(8):
        vmem("v%d" % (n // 2), f"buffer_load_dwordx4 {vV}, {SV}, {oV} offen {pol('v')} lds")
        if n < 7: a(f"s_add_u32 m0, m0, 1024\ns_add_u32 {oV}, {oV}, 4096")
    a(f"s_lshl_b32 {sM}, {sW}, 12\ns_add_u32 m0, {sM}, {L_WO}\ns_nop 0")
    for n in range(4):
        vmem("wo", f"buffer_load_dwordx4 {vWO}, {SWO}, {oWO} offen {pol('wo')} lds")
        if n < 3: a(f"s_add_u32 m0, m0, 1024\ns_add_u32 {oWO}, {oWO}, 8192")
    sCnt, sMix = s.get(), s.get()
    a(f"s_mov_b32 {sCnt}, 0\ns_mov_b32 {sMix}, 0")
    wait_vm("p1")
    a("L_chk1:")
    BOP = "bitop3:0xbe"
    a(f"v_xor_b32 {vT0}, {sTP}, {qg[0]}")
    seq = [(qg[1], sTag[1]), (qg[2], sTag[2]), (qg[3], sTag[3]), (qg[4], sTP), (qg[5], sTag[1]), (qg[6], sTag[2]), (qg[7], sTag[3]),
           (hg[0], sTP), (hg[1], sTag[1]), (hg[2], sTag[2]), (hg[3], sTag[3])]
    for r, tg in seq:
        a(f"v_bitop3_b32 {vT0}, {r}, {tg}, {vT0} {BOP}")
    a(f"""
    v_and_b32 {vT0}, {vT0}, {vFF}
    v_cmp_ne_u32 vcc, 0, {vT0}
    s_cbranch_vccnz L_retry1
    L_ok1:
    """)
    stamp()
    mk = v.mark()
    qb = v.get(16, 2)
    sMsk = s.get()
    a(f"s_mov_b32 {sMsk}, 0xffffff00")
    for k in range(8):
        a(f"v_and_b32 {qg[k]}, {sMsk}, {qg[k]}")
    a(f"""
    v_pk_add_f32 {qg[0:2]}, {qg[0:2]}, {qg[4:6]}
    v_pk_add_f32 {qg[2:4]}, {qg[2:4]}, {qg[6:8]}
    v_and_b32 {vT0}, 31, v0
    v_lshlrev_b32 {vT0}, 3, {vT0}
    v_lshrrev_b32 {vT1}, 5, v0
    v_permlane32_swap_b32 {qg[0]}, {qg[2]}
    v_permlane32_swap_b32 {qg[1]}, {qg[3]}
    v_lshl_add_u32 {vT0}, {vT1}, 2, {vT0}
    s_mul_i32 {sTmp}, {sW}, {QSTR}
    v_add_f32 {qg[0]}, {qg[0]}, {qg[2]}
    v_add_f32 {qg[1]}, {qg[1]}, {qg[3]}
    v_add_u32 {vT0}, {sTmp}, {vT0}
    v_cvt_pk_bf16_f32 {qg[0]}, {qg[0]}, {qg[1]}
    ds_write_b32 {vT0}, {qg[0]} offset:{L_Q}
    v_and_b32 {vT1}, 3, v0
    v_mul_u32_u24 {vT0}, {QSTR}, {vT1}
    v_lshl_add_u32 {vT0}, {vGQ}, 4, {vT0}
    s_waitcnt lgkmcnt(0)
    s_barrier
    """)
    for st in range(4):
        a(f"ds_read_b128 {qb[4*st:4*st+4]}, {vT0} offset:{L_Q + 64*st}")
    sc = v.get(8, 2)
    for st in range(4):
        a(f"s_waitcnt lgkmcnt({3 - st})")
        for T in range(2):
            d = sc[4*T:4*T+4]
            a(f"v_mfma_f32_16x16x32_bf16 {d}, {kk[16*T+4*st:16*T+4*st+4]}, {qb[4*st:4*st+4]}, {d if st else 0}")
    vMX = qg[4]; vMR = qg[5]
    a(f"s_lshl_b32 {sTmp}, {sW}, 2\nv_lshlrev_b32 {vMR}, 4, {vT1}\nv_add_u32 {vMX}, {sTmp}, {vMR}")
    pk = qb
    tmp4 = v.get(4, 2)
    sScale, sL2E = s.get(), s.get()
    a(f"s_mov_b32 {sScale}, 0x3db504f3\ns_mov_b32 {sL2E}, 0x3fb8aa3b")
    for k in range(4):
        a(f"v_cvt_pk_bf16_f32 {tmp4[k]}, {sc[2*k]}, {sc[2*k+1]}")
    for k in range(4):
        a(f"v_lshlrev_b32 {sc[2*k]}, 16, {tmp4[k]}\nv_and_b32 {sc[2*k+1]}, {sHi}, {tmp4[k]}")
    for k in range(8):
        a(f"v_mul_f32 {sc[k]}, {sScale}, {sc[k]}")
    for k in range(4):
        a(f"v_cvt_pk_bf16_f32 {tmp4[k]}, {sc[2*k]}, {sc[2*k+1]}")
    for k in range(4):
        a(f"v_lshlrev_b32 {sc[2*k]}, 16, {tmp4[k]}\nv_and_b32 {sc[2*k+1]}, {sHi}, {tmp4[k]}")
    vMax = v.get()
    a(f"""
    v_max3_f32 {vT0}, {sc[0]}, {sc[1]}, {sc[2]}
    v_max3_f32 {vT1}, {sc[3]}, {sc[4]}, {sc[5]}
    v_max3_f32 {vT0}, {vT0}, {sc[6]}, {sc[7]}
    v_max_f32 {vT0}, {vT0}, {vT1}
    v_mov_b32 {vT1}, {vT0}
    v_permlane16_swap_b32 {vT0}, {vT1}
    v_max_f32 {vT0}, {vT0}, {vT1}
    v_mov_b32 {vT1}, {vT0}
    v_permlane32_swap_b32 {vT0}, {vT1}
    v_max_f32 {vT0}, {vT0}, {vT1}
    ds_write_b32 {vMX}, {vT0} offset:{L_MX}
    s_waitcnt lgkmcnt(0)
    s_barrier
    ds_read_b128 {tmp4}, {vMR} offset:{L_MX}
    s_lshl_b32 {sTmp}, {sW}, 10
    v_add_u32 {vMX}, {sTmp}, {vL16}
    s_waitcnt lgkmcnt(0)
    v_max3_f32 {vT0}, {tmp4[0]}, {tmp4[1]}, {tmp4[2]}
    v_max_f32 {vT0}, {vT0}, {tmp4[3]}
    v_mul_f32 {vMax}, {sL2E}, {vT0}
    """)
    for k in range(8):
        a(f"v_fma_f32 {sc[k]}, {sc[k]}, {sL2E}, -{vMax}")
    for k in range(8):
        a(f"v_exp_f32 {sc[k]}, {sc[k]}")
    for k in range(4):
        a(f"v_cvt_pk_bf16_f32 {tmp4[k]}, {sc[2*k]}, {sc[2*k+1]}")
    a(f"""
    ds_write_b128 {vMX}, {tmp4} offset:{L_XN}
    s_waitcnt lgkmcnt(0)
    s_barrier
    """)
    for t in range(4):
        a(f"ds_read_b128 {pk[4*t:4*t+4]}, {vL16} offset:{L_XN + 1024*t}")
    ones = tmp4
    dl = sc[0:4]; mlr = sc[4:8]
    for k in range(4):
        a(f"v_mov_b32 {ones[k]}, 0x3f803f80")
    for t in range(4):
        a(f"s_waitcnt lgkmcnt({3 - t})")
        a(f"v_mfma_f32_16x16x32_bf16 {dl}, {ones}, {pk[4*t:4*t+4]}, {dl if t else 0}")
    a(f"""
    v_mov_b32 {mlr[0]}, {vMax}
    v_mov_b32 {mlr[2]}, {sTag[0]}
    v_mov_b32 {mlr[3]}, {sTag[0]}
    v_mov_b32 {vT0}, 0
    s_lshl_b32 {sTmp}, 1, {sW}
    v_mov_b32 {mlr[1]}, {dl[0]}
    s_mov_b32 exec_lo, {sTmp}
    s_mov_b32 exec_hi, 0
    s_cmp_eq_u32 {sMix}, 0
    s_cbranch_scc0 L_mlmix
    """)
    vmem("ml", f"buffer_store_dwordx4 {mlr}, {vT0}, {SWS}, {oML} offen")
    a("L_mlback:")
    a("s_mov_b64 exec, -1")
    stamp()
    mk2 = v.mark()
    hb = v.get(4, 2); e = v.get(4, 2); u = v.get(4, 2); d4 = v.get(4, 2); af = v.get(4, 2); bw = v.get(16, 2)
    df = v.get(16, 2)
    for ct in range(4):
        pass
    a(f"s_lshl_b32 {sTmp}, {sKH}, 12")
    for ct in range(4):
        a(f"v_add_u32 {vTW[ct]}, {sTmp}, {vTW[ct]}")
    for ct in range(4):
        for hi in range(2):
            a(f"ds_read_b64_tr_b16 {bw[4*ct+2*hi:4*ct+2*hi+2]}, {vTW[ct]} offset:{L_W2 + 2048*hi}")
    for k in range(4):
        a(f"v_and_b32 {hg[k]}, {sMsk}, {hg[k]}")
    for m in ("quad_perm:[1,0,3,2]", "quad_perm:[2,3,0,1]", "row_half_mirror"):
        for k in range(4):
            a(f"v_add_f32_dpp {hg[k]}, {hg[k]}, {hg[k]} {m} row_mask:0xf bank_mask:0xf")
    def rnd(dst, src, tmpv):
        a(f"v_cvt_pk_bf16_f32 {tmpv[0]}, {src[0]}, {src[1]}\nv_cvt_pk_bf16_f32 {tmpv[1]}, {src[2]}, {src[3]}")
        for k in range(2):
            a(f"v_lshlrev_b32 {dst[2*k]}, 16, {tmpv[k]}\nv_and_b32 {dst[2*k+1]}, {sHi}, {tmpv[k]}")
    tp = af[0:2]
    rnd(hb, hg, tp)
    for k in range(2):
        a(f"v_lshlrev_b32 {e[2*k]}, 16, {b1r[k]}\nv_and_b32 {e[2*k+1]}, {sHi}, {b1r[k]}")
    a(f"v_pk_add_f32 {hb[0:2]}, {hb[0:2]}, {e[0:2]}\nv_pk_add_f32 {hb[2:4]}, {hb[2:4]}, {e[2:4]}")
    rnd(hb, hb, tp)
    for k in range(4):
        a(f"v_mul_f32 {e[k]}, -abs({hb[k]}), {sL2E}")
    for k in range(4):
        a(f"v_exp_f32 {e[k]}, {e[k]}")
    rnd(e, e, tp)
    for k in range(4):
        a(f"v_add_f32 {u[k]}, 1.0, {e[k]}")
    for k in range(4):
        a(f"v_add_f32 {d4[k]}, -1.0, {u[k]}\nv_log_f32 {u[k]}, {u[k]}")
    sLn2 = sScale
    a(f"s_mov_b32 {sLn2}, 0x3f317218")
    for k in range(4):
        a(f"v_rcp_f32 {hg[k]}, {d4[k]}\nv_mul_f32 {u[k]}, {sLn2}, {u[k]}")
    for k in range(4):
        a(f"v_mul_f32 {hg[k]}, {hg[k]}, {e[k]}")
    for k in range(4):
        a(f"v_mul_f32 {u[k]}, {u[k]}, {hg[k]}\nv_cmp_eq_f32 vcc, 0, {d4[k]}\nv_cndmask_b32 {u[k]}, {u[k]}, {e[k]}, vcc")
    rnd(u, u, tp)
    for k in range(4):
        a(f"v_max_f32 {e[k]}, 0, {hb[k]}")
    a(f"v_pk_add_f32 {u[0:2]}, {u[0:2]}, {e[0:2]}\nv_pk_add_f32 {u[2:4]}, {u[2:4]}, {e[2:4]}")
    rnd(u, u, tp)
    sM2 = s.get()
    a(f"s_mov_b32 {sM2}, 0xc038aa3b")
    for k in range(4):
        a(f"v_mul_f32 {e[k]}, {sM2}, {u[k]}")
    for k in range(4):
        a(f"v_exp_f32 {e[k]}, {e[k]}")
    for k in range(4):
        a(f"v_add_f32 {d4[k]}, 1.0, {e[k]}\nv_sub_f32 {e[k]}, 1.0, {e[k]}")
    for k in range(4):
        a(f"v_rcp_f32 {d4[k]}, {d4[k]}")
    for k in range(4):
        a(f"v_mul_f32 {e[k]}, {e[k]}, {d4[k]}\nv_cmp_gt_f32 vcc, 0x3a800000, {u[k]}\nv_cndmask_b32 {e[k]}, {e[k]}, {u[k]}, vcc")
    rnd(e, e, tp)
    sLm = s.get(2, 2)
    a(f"""
    v_pk_mul_f32 {e[0:2]}, {e[0:2]}, {hb[0:2]}
    v_pk_mul_f32 {e[2:4]}, {e[2:4]}, {hb[2:4]}
    s_mov_b32 {sLm[0]}, 0x00010001
    s_mov_b32 {sLm[1]}, 0x00010001
    v_cvt_pk_bf16_f32 {u[0]}, {e[0]}, {e[1]}
    v_cvt_pk_bf16_f32 {u[1]}, {e[2]}, {e[3]}
    v_mov_b32_dpp {u[2]}, {u[0]} row_ror:8 row_mask:0xf bank_mask:0xf
    v_mov_b32_dpp {u[3]}, {u[1]} row_ror:8 row_mask:0xf bank_mask:0xf
    """)
    for k in range(4):
        a(f"v_cndmask_b32 {af[k]}, 0, {u[k]}, {sLm}")
    a("s_waitcnt lgkmcnt(0)")
    for ct in range(4):
        a(f"v_mfma_f32_16x16x32_bf16 {df[4*ct:4*ct+4]}, {af}, {bw[4*ct:4*ct+4]}, 0")
    stamp()
    av = v.get(16, 2)
    do = v.get(8, 2); pr = v.get(4, 2)
    vPS = v.get()
    a(f"""
    v_and_b32 {vT0}, 3, v0
    v_lshlrev_b32 {vT0}, 13, {vT0}
    v_lshl_add_u32 {vT0}, {vGQ}, 5, {vT0}
    v_bfe_u32 {vT1}, v0, 2, 1
    v_lshl_add_u32 {vPS}, {vT1}, 4, {vT0}
    """)
    for k in range(4):
        a(f"v_mov_b32 {pr[k]}, {sTag[0]}")
    a(f"s_lshl_b32 {sTmp}, {sKH}, 12")
    for ct in range(4):
        a(f"v_add_u32 {vTW[ct]}, {sTmp}, {vTW[ct]}")
    vPA, vMLG, vFS = v.get(), v.get(), v.get()
    oPA, oMLG, oFS = s.get(), s.get(), s.get()
    a(f"""
    v_lshlrev_b32 {vPA}, 9, {vI}
    v_lshl_add_u32 {vPA}, {vGQ}, 5, {vPA}
    v_lshl_add_u32 {vMLG}, {vGQ}, 2, {vI}
    v_and_b32 {vMLG}, 15, {vMLG}
    v_lshlrev_b32 {vMLG}, 4, {vMLG}
    v_lshlrev_b32 {vFS}, 3, {vI}
    v_lshl_add_u32 {vFS}, {vGQ}, 13, {vFS}
    s_lshl_b32 {sTmp}, {sG}, 1
    s_add_u32 {sTmp}, {sTmp}, {sB}
    s_lshl_b32 {sTmp}, {sTmp}, 2
    s_add_u32 {sTmp}, {sTmp}, {sA}
    s_lshl_b32 {oMLG}, {sTmp}, 8
    s_add_u32 {oMLG}, {oMLG}, {MLB}
    s_lshl_b32 {oPA}, {sTmp}, 13
    s_lshl_b32 {sTmp2}, {sKH}, 8
    s_add_u32 {oPA}, {oPA}, {sTmp2}
    s_add_u32 {oPA}, {oPA}, {PART}
    s_lshl_b32 {oFS}, {sC}, 1
    s_add_u32 {oFS}, {oFS}, {sB}
    s_lshl_b32 {oFS}, {oFS}, 15
    s_lshl_b32 {sTmp}, {sG}, 2
    s_add_u32 {sTmp}, {sTmp}, {sA}
    s_lshl_b32 {sTmp}, {sTmp}, 1
    s_add_u32 {sTmp}, {sTmp}, {sKH}
    s_lshl_b32 {sTmp}, {sTmp}, 7
    s_add_u32 {oFS}, {oFS}, {sTmp}
    s_add_u32 {oFS}, {oFS}, {FIN}
    """)
    for t in range(4):
        buf = av[8*(t&1):8*(t&1)+8]
        wait_vm("v%d" % t)
        for T in range(2):
            for hi in range(2):
                a(f"ds_read_b64_tr_b16 {buf[4*T+2*hi:4*T+2*hi+2]}, {vTV[T]} offset:{2048*t + 1024*hi}")
        for T in range(2):
            a(f"s_waitcnt lgkmcnt({2 - 2*T})")
            d = do[4*T:4*T+4]
            a(f"v_mfma_f32_16x16x32_bf16 {d}, {buf[4*T:4*T+4]}, {pk[4*t:4*t+4]}, {d if t else 0}")
    a(f"""
    s_mov_b32 exec_lo, 0x000f000f
    s_mov_b32 exec_hi, 0x000f000f
    v_cvt_pk_bf16_f32 {pr[2]}, {do[0]}, {do[1]}
    v_cvt_pk_bf16_f32 {pr[3]}, {do[2]}, {do[3]}
    s_mov_b32 exec_lo, 0x00f000f0
    s_mov_b32 exec_hi, 0x00f000f0
    v_cvt_pk_bf16_f32 {pr[0]}, {do[4]}, {do[5]}
    v_cvt_pk_bf16_f32 {pr[1]}, {do[6]}, {do[7]}
    s_mov_b32 exec_lo, 0x00ff00ff
    s_mov_b32 exec_hi, 0x00ff00ff
    s_cmp_eq_u32 {sMix}, 0
    s_cbranch_scc0 L_psmix
    """)
    vmem("ps", f"buffer_store_dwordx4 {pr}, {vPS}, {SWS}, {oPS} offen")
    a("L_psback:")
    a("s_mov_b64 exec, -1")
    stamp()
    pa = kk[0:16]; mlg = kk[16:20]; bo = v.get(32, 2); dd = kk[20:32]
    dd = v.get(16, 2)
    def poll2(first):
        t = []
        for tl in range(2):
            t.append(f"buffer_load_dwordx4 {pa[8*tl:8*tl+4]}, {vPA}, {SWS}, {oPA} offen offset:{128*tl} sc1")
            t.append(f"buffer_load_dwordx4 {pa[8*tl+4:8*tl+8]}, {vPA}, {SWS}, {oPA} offen offset:{128*tl+16} sc1")
        t.append(f"buffer_load_dwordx4 {mlg}, {vMLG}, {SWS}, {oMLG} offen sc1")
        for x in t:
            if first: vmem("p2", x)
            else: a(x)
    poll2(True)
    wait_vm("wo")
    a("s_barrier")
    for tl in range(2):
        for ct in range(4):
            for hi in range(2):
                r = bo[16*tl+4*ct+2*hi:16*tl+4*ct+2*hi+2]
                a(f"ds_read_b64_tr_b16 {r}, {vTW[ct]} offset:{L_WO + 4096*tl + 2048*hi}")
    a(f"s_mov_b32 {sCnt}, 0")
    a("s_waitcnt vmcnt(0)")
    a("L_chk2:")
    a(f"v_xor_b32 {vT0}, {sTag[0]}, {pa[1]}")
    for r in (pa[6], pa[9], pa[14], mlg[2]):
        a(f"v_bitop3_b32 {vT0}, {r}, {sTag[0]}, {vT0} {BOP}")
    a(f"""
    v_cmp_ne_u32 vcc, 0, {vT0}
    s_cbranch_vccnz L_retry2
    L_ok2:
    s_waitcnt lgkmcnt(0)
    """)
    stamp()
    for ct in range(4):
        a(f"v_mfma_f32_16x16x32_bf16 {dd[4*ct:4*ct+4]}, {pa[2:6]}, {bo[4*ct:4*ct+4]}, 0")
    wv = vT1
    a(f"v_mov_b32 {vT0}, {mlg[0]}")
    for r in (1, 2, 4, 8):
        a(f"v_max_f32_dpp {vT0}, {vT0}, {vT0} row_ror:{r} row_mask:0xf bank_mask:0xf")
    for ct in range(4):
        a(f"v_mfma_f32_16x16x32_bf16 {dd[4*ct:4*ct+4]}, {pa[10:14]}, {bo[16+4*ct:16+4*ct+4]}, {dd[4*ct:4*ct+4]}")
    a(f"""
    v_sub_f32 {wv}, {mlg[0]}, {vT0}
    v_exp_f32 {wv}, {wv}
    v_mul_f32 {vT0}, {wv}, {mlg[1]}
    """)
    for r in (1, 2, 4, 8):
        a(f"v_add_f32_dpp {vT0}, {vT0}, {vT0} row_ror:{r} row_mask:0xf bank_mask:0xf")
    a(f"v_rcp_f32 {vT0}, {vT0}\nv_mul_f32 {wv}, {wv}, {vT0}")
    for r in range(4):
        for ct in range(4):
            a(f"v_fmac_f32_dpp {df[4*ct]}, {wv}, {dd[4*ct+r]} row_newbcast:{r} row_mask:0xf bank_mask:0xf")
    fo = pr[0:2]
    a(f"""
    v_mov_b32 {fo[1]}, {sTag[0]}
    v_permlane32_swap_b32 {df[0]}, {df[8]}
    v_permlane32_swap_b32 {df[4]}, {df[12]}
    v_add_f32 {df[0]}, {df[0]}, {df[8]}
    v_add_f32 {df[4]}, {df[4]}, {df[12]}
    v_permlane16_swap_b32 {df[0]}, {df[4]}
    v_add_f32 {fo[0]}, {df[0]}, {df[4]}
    """)
    a(f"buffer_store_dwordx2 {fo}, {vFS}, {SWS}, {oFS} offen sc1")
    stamp()
    a(f"s_cmp_eq_u32 {sW}, 0\ns_cbranch_scc0 L_fin")
    fg = kk[0:8]
    oFG, oFG2 = oPA, oMLG
    a(f"""
    v_lshrrev_b32 {vT0}, 1, v0
    v_lshlrev_b32 {vT0}, 7, {vT0}
    v_and_b32 {vT1}, 1, v0
    v_lshl_add_u32 {vPA}, {vT1}, 4, {vT0}
    ; FIN + (8g + (j>>2))*8192 + (j&3)*32
    s_lshl_b32 {oFG}, {sG}, 3
    s_lshr_b32 {sTmp}, {sJ}, 2
    s_add_u32 {oFG}, {oFG}, {sTmp}
    s_lshl_b32 {oFG}, {oFG}, 13
    s_and_b32 {sTmp}, {sJ}, 3
    s_lshl_b32 {sTmp}, {sTmp}, 5
    s_add_u32 {oFG}, {oFG}, {sTmp}
    s_add_u32 {oFG}, {oFG}, {FIN}
    s_add_u32 {oFG2}, {oFG}, 4096
    s_mov_b32 {sCnt}, 0
    v_lshlrev_b32 {xf}, 16, {xf}
    L_poll3:
    buffer_load_dwordx4 {fg[0:4]}, {vPA}, {SWS}, {oFG} offen sc1
    buffer_load_dwordx4 {fg[4:8]}, {vPA}, {SWS}, {oFG2} offen sc1
    s_add_u32 {sCnt}, {sCnt}, 1
    s_cmp_gt_u32 {sCnt}, 20000
    s_cbranch_scc1 L_ok3
    s_waitcnt vmcnt(0)
    v_xor_b32 {vT0}, {sTag[0]}, {fg[1]}
    v_bitop3_b32 {vT0}, {fg[3]}, {sTag[0]}, {vT0} {BOP}
    v_bitop3_b32 {vT0}, {fg[5]}, {sTag[0]}, {vT0} {BOP}
    v_bitop3_b32 {vT0}, {fg[7]}, {sTag[0]}, {vT0} {BOP}
    v_cmp_ne_u32 vcc, 0, {vT0}
    s_cbranch_vccnz L_poll3
    L_ok3:
    s_waitcnt vmcnt(0)
    v_add_f32 {fg[0]}, {fg[0]}, {fg[4]}
    v_add_f32 {fg[2]}, {fg[2]}, {fg[6]}
    """)
    stamp()
    for r in (2, 4, 8):
        a(f"v_add_f32_dpp {fg[0]}, {fg[0]}, {fg[0]} row_ror:{r} row_mask:0xf bank_mask:0xf")
        a(f"v_add_f32_dpp {fg[2]}, {fg[2]}, {fg[2]} row_ror:{r} row_mask:0xf bank_mask:0xf")
    a(f"""
    v_permlane16_swap_b32 {fg[0]}, {fg[2]}
    v_add_f32 {fg[0]}, {fg[0]}, {fg[2]}
    v_mov_b32 {fg[2]}, {fg[0]}
    v_permlane32_swap_b32 {fg[0]}, {fg[2]}
    v_add_f32 {fg[0]}, {fg[0]}, {fg[2]}
    v_add_f32 {fg[0]}, {fg[0]}, {xf}
    v_cvt_pk_bf16_f32 {fg[0]}, {fg[0]}, {fg[0]}
    s_mov_b32 exec_lo, 0x00030003
    s_mov_b32 exec_hi, 0
    buffer_store_short {fg[0]}, {vXF}, {SOUT}, {oXF} offen
    s_cmp_eq_u32 s2, 0
    s_cbranch_scc0 L_fin
    s_mov_b32 exec_lo, 1
    v_mov_b32 {vT0}, 0
    v_mov_b32 {vT1}, {sTag[0]}
    buffer_store_dword {vT1}, {vT0}, {SWS}, 0 offen
    L_fin:
    """)
    if stamps:
        stamp(True)
        a(f"s_mov_b64 exec, -1")
        a(f"""
        v_writelane_b32 {vST}, {sXCC}, 14
        v_writelane_b32 {vST}, {sMix}, 15
        s_lshl_b32 {sTmp}, s2, 2
        s_add_u32 {sTmp}, {sTmp}, {sW}
        s_lshl_b32 {sTmp}, {sTmp}, 6
        s_add_u32 {sTmp}, {sTmp}, {STAMP}
        v_lshlrev_b32 {vT1}, 2, v0
        s_mov_b32 exec_lo, 0xffff
        s_mov_b32 exec_hi, 0
        buffer_store_dword {vST}, {vT1}, {SWS}, {sTmp} offen
        """)
    if hold and opt.get("holdfirst"):
        a("""
        s_cmp_eq_u32 %s, 0
        s_cbranch_scc0 L_end
        s_load_dwordx2 s[8:9], s[0:1], 80
        s_mov_b32 s10, 256
        s_mov_b32 s11, 0x20000
        s_mov_b64 exec, 1
        s_waitcnt lgkmcnt(0)
        s_sub_u32 s4, 0, s98
        v_mov_b32 v2, s4
        v_mov_b32 v4, 0
        buffer_atomic_umax v2, v4, s[8:11], 0 offen sc1
        s_waitcnt vmcnt(0)
        L_hold0:
        s_memrealtime s[4:5]
        s_waitcnt lgkmcnt(0)
        s_sub_u32 s4, s4, s98
        s_cmp_lt_u32 s4, %d
        s_cbranch_scc1 L_hold0
        buffer_load_dword v2, v4, s[8:11], 0 offen sc1
        s_waitcnt vmcnt(0)
        v_readfirstlane_b32 s98, v2
        s_sub_u32 s98, 0, s98
        L_hold1:
        s_memrealtime s[4:5]
        s_waitcnt lgkmcnt(0)
        s_sub_u32 s4, s4, s98
        s_cmp_lt_u32 s4, %d
        s_cbranch_scc1 L_hold1
        """ % (sW, hold - 900, hold))
    elif hold:
        a(f"L_hold:\ns_memrealtime s[4:5]\ns_waitcnt lgkmcnt(0)\ns_sub_u32 s4, s4, s98\ns_cmp_lt_u32 s4, {hold}\ns_cbranch_scc1 L_hold")
    a("L_end:\ns_endpgm")
    a(f"""
    L_retry1:
    s_add_u32 {sCnt}, {sCnt}, 1
    s_cmp_gt_u32 {sCnt}, 20000
    s_cbranch_scc1 L_ok1
    s_cmp_eq_u32 {sCnt}, {opt.get('nplain', 12)}
    s_cbranch_scc0 L_r1b
    s_mov_b32 {sMix}, 1
    s_mov_b32 {sTP}, {sTag[0]}
    s_add_u32 {oQG}, {oQG}, {SC1D}
    s_add_u32 {oHG}, {oHG}, {SC1D}
    L_r1b:
    """)
    poll1(False)
    a("s_waitcnt vmcnt(0)\ns_branch L_chk1")
    a(f"""
    L_mlmix:
    buffer_store_dwordx4 {mlr}, {vT0}, {SWS}, {oML} offen sc1
    s_branch L_mlback
    L_psmix:
    buffer_store_dwordx4 {pr}, {vPS}, {SWS}, {oPS} offen sc1
    s_branch L_psback
    L_retry2:
    s_add_u32 {sCnt}, {sCnt}, 1
    s_cmp_gt_u32 {sCnt}, 20000
    s_cbranch_scc1 L_ok2
    """)
    poll2(False)
    a("s_waitcnt vmcnt(0)\ns_branch L_chk2")
    nv = (v.hw + 7) // 8 * 8
    out.append(a.text())
    out.append(f""".section .rodata,"a"
.p2align 6
.amdhsa_kernel {NAME}_kernel
  .amdhsa_next_free_vgpr {nv}
  .amdhsa_next_free_sgpr 100
  .amdhsa_accum_offset {nv}
  .amdhsa_group_segment_fixed_size 0
  .amdhsa_kernarg_size 96
  .amdhsa_user_sgpr_count 2
  .amdhsa_user_sgpr_kernarg_segment_ptr 1
  .amdhsa_system_sgpr_workgroup_id_x 1
.end_amdhsa_kernel""")
    sys.stderr.write("vgprs %d sgprs %d nops %d\n" % (v.hw, s.hw, a.nops))
    return "\n".join(out) + "\n"

if __name__ == "__main__":
    import json
    opt = json.loads(sys.argv[2]) if len(sys.argv) > 2 else {}
    open(sys.argv[1], "w").write(gen(opt))
```

```python
import sys
from asmlib import *

NAME = "parallel_sum__sliding_block_cached__dense_activation_mish__decode"
PHI = 0x9E3779B9
QBUF = 0x10000; HBUF = 0x50000; SC1D = 0x20000; MLB = 0x90000; PART = 0x100000; FIN = 0x180000; STAMP = 0x800000
L_XN = 0; L_Q = 4096; L_MX = 5632; L_WQ = 8192; L_WO = 8192; L_W1 = 24576; L_W2 = 32768; L_V = 40960; L_K = 73728; LDS_BYTES = 106496
QSTR = 320
DPPM = "row_mask:0xf bank_mask:0xf"
BOP = "bitop3:0xbe"

def lines(text):
    return [l.strip() for l in text.strip().split("\n") if l.strip() and not l.strip().startswith(";")]

def gen(opt):
    nt = opt.get("nt", {})
    def pol(k): return nt.get(k, "")
    stamps = opt.get("stamps", False)
    a = Asm()
    v = Alloc("v", 1, 256); s = Alloc("s", 44, 102)
    hdr = open("cdna_kernels/%s.s.ref" % NAME).read().split("\n")
    hdr = [l for l in hdr if l.startswith(";") and "@launch" not in l and "Override" not in l and "grid=ceil" not in l]
    out = list(hdr)
    out.append("; @launch grid=(256,1,1) block=(256,1,1) lds=%d" % LDS_BYTES)
    out.append('.amdgcn_target "amdgcn-amd-amdhsa--gfx950"')
    out.append(".text\n.globl %s_kernel\n.p2align 8\n.type %s_kernel,@function\n%s_kernel:" % (NAME, NAME, NAME))
    SX, SK, SV, SWQ, SWO, SW1, SB1, SW2, SOUT, SWS = [Reg("s", 4 + 4 * i, 4) for i in range(10)]
    vm = []
    def vmem(name, text):
        a(text); vm.append(name)
    def wait_vm(name, allow=0):
        idx = max(i for i, n in enumerate(vm) if n == name) - allow
        n = len(vm) - 1 - idx
        a("s_waitcnt vmcnt(%d)" % n)
    def weave(fill, jobs, every, start=0):
        k = -start
        for ins in fill:
            a(ins); k += 1
            if jobs and k >= every:
                jobs.pop(0)(); k = 0
    nst = [0, 0]
    names = []
    NR = 4
    if stamps:
        sST = [s.get(2, 2) for _ in range(NR)]; vST = v.get()
    def stamp(name, last=False, flush=False):
        if stamps:
            k = nst[0]; nst[0] += 1; names.append(name)
            assert k < 29
            done = nst[1]
            if k - done >= NR:
                a("v_writelane_b32 %s, %s, %d" % (vST, sST[done % NR][0], done)); done += 1
            a("s_memrealtime %s" % sST[k % NR])
            if last or flush:
                a("s_waitcnt lgkmcnt(0)")
                while done <= k:
                    a("v_writelane_b32 %s, %s, %d" % (vST, sST[done % NR][0], done)); done += 1
            nst[1] = done
    stamp("start")
    a(f"""
    s_load_dwordx2 {SX[0:2]}, s[0:1], 0
    s_load_dwordx2 {SWQ[0:2]}, s[0:1], 24
    s_load_dwordx2 {SW1[0:2]}, s[0:1], 48
    s_load_dwordx2 {SK[0:2]}, s[0:1], 8
    s_load_dwordx2 {SWS[0:2]}, s[0:1], 88
    s_load_dwordx2 {SW2[0:2]}, s[0:1], 64
    s_cmp_ge_u32 s2, 256
    s_cbranch_scc1 L_end
    """)
    sW, sG, sJ, sA, sC, sT, sBLK, sTmp, sTmp2 = [s.get() for _ in range(9)]
    oXO, oWQ, oW1, oKV, oK, oW2 = [s.get() for _ in range(6)]
    sM = s.get()
    vGQ, vI, vT0, vT1 = [v.get() for _ in range(4)]
    vL16, vB3, vXO, vWQe, vWQo, vW1e, vW1o = [v.get() for _ in range(7)]
    vK = v.get(4)
    a(f"""
    v_readfirstlane_b32 {sW}, v0
    v_and_b32 v0, 63, v0
    s_and_b32 {sG}, s2, 7
    s_lshr_b32 {sJ}, s2, 3
    s_lshr_b32 {sW}, {sW}, 6
    s_lshr_b32 {sA}, {sJ}, 3
    s_and_b32 {sC}, {sJ}, 7
    v_lshrrev_b32 {vGQ}, 4, v0
    v_and_b32 {vI}, 15, v0
    s_mov_b32 {SX[2]}, 2048
    s_mov_b32 {SX[3]}, 0x20000
    s_mov_b32 {SWQ[2]}, {512*4096*2}
    s_mov_b32 {SWQ[3]}, 0x20000
    v_lshlrev_b32 {vL16}, 4, v0
    v_bfe_u32 {vB3}, v0, 3, 1
    v_lshlrev_b32 {vT0}, 10, {vB3}
    v_lshl_add_u32 {vXO}, {vGQ}, 4, {vT0}
    v_and_b32 {vT0}, 1, {vGQ}
    v_lshlrev_b32 {vT0}, 1, {vT0}
    v_and_b32 {vT1}, 7, v0
    v_xor_b32 {vT0}, {vT0}, {vT1}
    v_lshlrev_b32 {vT0}, 4, {vT0}
    v_lshrrev_b32 {vT1}, 3, v0
    v_lshl_add_u32 {vWQe}, {vT1}, 13, {vT0}
    v_xor_b32 {vWQo}, 64, {vWQe}
    v_mul_u32_u24 {vW1e}, 3584, {vT1}
    v_add_u32 {vW1e}, {vW1e}, {vT0}
    v_xor_b32 {vW1o}, 64, {vW1e}
    s_and_b32 {sTmp}, {sC}, 1
    s_lshl_b32 {sTmp2}, {sTmp}, 1
    s_xor_b32 {sTmp2}, {sTmp2}, {sW}
    s_lshl_b32 {sTmp2}, {sTmp2}, 5
    s_lshl_b32 {oXO}, {sA}, 7
    s_add_u32 {sTmp2}, {sTmp2}, {oXO}
    s_lshl_b32 {oWQ}, {sTmp2}, 13
    s_lshl_b32 {sM}, {sG}, 10
    s_add_u32 {oWQ}, {oWQ}, {sM}
    s_lshl_b32 {sM}, {sC}, 7
    s_add_u32 {oWQ}, {oWQ}, {sM}
    s_lshl_b32 {sTmp}, {sTmp}, 6
    s_add_u32 {oW1}, {oXO}, {sTmp}
    s_lshl_b32 {sTmp}, {sW}, 4
    s_add_u32 {oW1}, {oW1}, {sTmp}
    s_mul_i32 {oW1}, {oW1}, 3584
    s_lshl_b32 {oXO}, {sTmp2}, 1
    s_lshr_b32 {sT}, {sC}, 1
    s_sub_u32 {sT}, {sT}, {sA}
    s_and_b32 {sT}, {sT}, 3
    s_lshl_b32 {sBLK}, {sG}, 2
    s_mul_i32 {sTmp2}, {sG}, 3
    s_add_u32 {sTmp2}, {sTmp2}, 4
    s_min_u32 {sBLK}, {sBLK}, {sTmp2}
    s_add_u32 {sBLK}, {sBLK}, {sT}
    s_lshr_b32 {sTmp2}, {sG}, 2
    s_add_u32 {sTmp2}, {sTmp2}, {sT}
    s_cmp_eq_u32 {sTmp2}, 4
    s_cselect_b32 {sBLK}, 0x4000, {sBLK}
    s_lshl_b32 {sTmp2}, {sBLK}, 7
    s_add_u32 {oW1}, {oW1}, {sTmp2}
    s_mov_b32 {SW1[2]}, {512*1792*2}
    s_mov_b32 {SW1[3]}, 0x20000
    s_lshl_b32 {sM}, {sW}, 12
    s_add_u32 m0, {sM}, {L_WQ}
    s_lshl_b32 {sM}, {sW}, 11
    s_waitcnt lgkmcnt(0)
    """)
    stamp("karg")
    xs = v.get(8, 2); xo = v.get(4, 2)
    kk = v.get(32, 2)
    sE = s.get(2, 2)
    vmem("xs", f"buffer_load_dwordx4 {xs[0:4]}, {vL16}, {SX}, 0 offen")
    vmem("xs", f"buffer_load_dwordx4 {xs[4:8]}, {vL16}, {SX}, 0 offen offset:1024")
    vmem("xo", f"buffer_load_dwordx4 {xo}, {vXO}, {SX}, {oXO} offen")
    for k in range(4):
        vmem("wq", f"buffer_load_dwordx4 {vWQo if k & 1 else vWQe}, {SWQ}, {oWQ} offen {pol('wq')} lds")
        if k < 3:
            a(f"s_add_u32 m0, m0, 1024\ns_add_u32 {oWQ}, {oWQ}, 65536")
    a(f"s_add_u32 m0, {sM}, {L_W1}\ns_load_dword {sE[0]}, {SWS[0:2]}, 0")
    vmem("w1", f"buffer_load_dwordx4 {vW1e}, {SW1}, {oW1} offen {pol('w1')} lds")
    a(f"s_add_u32 m0, m0, 1024\ns_add_u32 {oW1}, {oW1}, 28672")
    vmem("w1", f"buffer_load_dwordx4 {vW1o}, {SW1}, {oW1} offen {pol('w1')} lds")
    stamp("iss1")
    if opt.get("codepf"):
        sPC = s.get(2, 2)
        a(f"""
        s_getpc_b64 {sPC}
        s_lshl_b32 {sTmp}, {sJ}, 2
        s_add_u32 {sTmp}, {sTmp}, {sW}
        s_min_u32 {sTmp}, {sTmp}, {opt['codepf']}
        s_lshl_b32 {sTmp}, {sTmp}, 7
        s_load_dword {sE[1]}, {sPC}, {sTmp}
        """)
    vWO, vV, vTQ = [v.get() for _ in range(3)]
    vKR = v.get(4); vTW = v.get(4); vTV = v.get(2); vFF = v.get()
    sHi = s.get()
    sB, sKH, sBA, sS, sC2 = [s.get() for _ in range(5)]
    oB1, oXF = oXO, oWQ
    vB1, vXF, vPRE, vF = vWQo, vW1e, vW1o, vWQe
    oQS, oHS, oQG, oHG, oML, oPS, oV, oWO = [s.get() for _ in range(8)]
    vQS, vHS, vQG, vHG = [v.get() for _ in range(4)]
    vQW, vQR, vMX, vMR, vPW = [v.get() for _ in range(5)]
    vPS, vMLG, vFS, vFG = [v.get() for _ in range(4)]
    vPA = vL16
    oPA, oMLG, oFS, oFG, oFG2 = oW1, s.get(), s.get(), s.get(), s.get()
    sB3 = s.get(2, 2)
    A = lines(f"""
    s_load_dwordx2 {SV[0:2]}, s[0:1], 16
    s_load_dwordx2 {SWO[0:2]}, s[0:1], 32
    s_load_dwordx2 {SB1[0:2]}, s[0:1], 56
    s_load_dwordx2 {SOUT[0:2]}, s[0:1], 72
    s_mov_b32 {SK[2]}, {2*8*8192*256}
    s_mov_b32 {SK[3]}, 0x20000
    s_lshr_b32 {sBA}, {sJ}, 4
    s_and_b32 {sS}, {sJ}, 15
    s_lshl_b32 {sTmp}, {sBA}, 3
    s_add_u32 {sTmp}, {sTmp}, {sG}
    s_lshl_b32 {oKV}, {sTmp}, 21
    s_lshl_b32 {sTmp}, {sS}, 15
    s_add_u32 {oKV}, {oKV}, {sTmp}
    s_add_u32 {oKV}, {oKV}, {6144*256}
    s_lshl_b32 {sTmp}, {sW}, 13
    s_add_u32 {oK}, {sTmp}, {oKV}
    s_add_u32 m0, {sTmp}, {L_K}
    v_xor_b32 {vT0}, {vI}, {vGQ}
    v_lshlrev_b32 {vT0}, 4, {vT0}
    v_lshl_add_u32 {vK[0]}, {vGQ}, 8, {vT0}
    v_xor_b32 {vK[1]}, 64, {vK[0]}
    v_xor_b32 {vK[2]}, 0x80, {vK[0]}
    v_xor_b32 {vK[3]}, 0xc0, {vK[0]}
    v_lshl_add_u32 {vT0}, {vI}, 8, {vT0}
    s_add_u32 {sTmp}, {sTmp}, {L_K}
    v_add_u32 {vKR[0]}, {sTmp}, {vT0}
    s_mov_b32 {SWS[2]}, 0x10000000
    s_mov_b32 {SWS[3]}, 0x20000
    s_mov_b32 {sHi}, 0xffff0000
    s_mov_b32 {sB3[0]}, 0xff00ff00
    s_mov_b32 {sB3[1]}, 0xff00ff00
    v_mov_b32 {vFF}, 0xff
    s_lshl_b32 {sTmp}, {sW}, 10
    v_add_u32 {vPW}, {sTmp}, {vL16}
    s_and_b32 {sB}, {sW}, 1
    s_lshr_b32 {sKH}, {sW}, 1
    v_and_b32 {vT0}, 1, {vGQ}
    v_lshlrev_b32 {vF}, 1, {vT0}
    v_or_b32 {vF}, {vF}, {vB3}
    v_and_b32 {vT1}, 3, v0
    v_lshlrev_b32 {vT1}, 3, {vT1}
    v_lshrrev_b32 {vT0}, 2, {vI}
    v_lshl_add_u32 {vTQ}, {vGQ}, 3, {vT0}
    v_lshl_add_u32 {vTQ}, {vTQ}, 7, {vT1}
    v_xor_b32 {vTV[0]}, {sW}, {vF}
    v_lshl_add_u32 {vTQ}, {vTV[0]}, 5, {vTQ}
    v_lshl_add_u32 {vT0}, {vGQ}, 2, {vT0}
    v_lshl_add_u32 {vTW[0]}, {vT0}, 7, {vT1}
    v_lshl_add_u32 {vTW[0]}, {vF}, 5, {vTW[0]}
    v_lshl_add_u32 {vTV[0]}, {vT0}, 6, {vT1}
    v_lshlrev_b32 {vT0}, 4, {vGQ}
    v_lshl_add_u32 {vQS}, {vB3}, 13, {vT0}
    v_lshlrev_b32 {vHS}, 7, {vGQ}
    v_lshl_add_u32 {vHS}, {vB3}, 11, {vHS}
    s_lshl_b32 {oQG}, {sG}, 14
    s_add_u32 {oQG}, {oQG}, {QBUF}
    s_lshl_b32 {sTmp}, {sA}, 11
    s_add_u32 {oQS}, {oQG}, {sTmp}
    s_lshl_b32 {sTmp}, {sC}, 8
    s_add_u32 {oQS}, {oQS}, {sTmp}
    s_lshl_b32 {sTmp2}, {sW}, 6
    s_add_u32 {oQS}, {oQS}, {sTmp2}
    s_add_u32 {oV}, {oKV}, {sTmp2}
    s_lshl_b32 {oHG}, {sG}, 2
    s_add_u32 {oWO}, {oHG}, {sA}
    s_add_u32 {oHG}, {oHG}, {sT}
    s_lshl_b32 {oHG}, {oHG}, 12
    s_add_u32 {oHG}, {oHG}, {HBUF}
    s_lshl_b32 {sTmp}, {sA}, 1
    s_and_b32 {oHS}, {sC}, 1
    s_add_u32 {sTmp}, {sTmp}, {oHS}
    s_lshl_b32 {sTmp}, {sTmp}, 4
    s_add_u32 {oHS}, {oHG}, {sTmp}
    s_lshl_b32 {sTmp}, {sW}, 9
    s_add_u32 {oHS}, {oHS}, {sTmp}
    s_add_u32 {oQG}, {oQG}, {sTmp}
    """)
    B = lines(f"""
    s_mov_b32 {SW2[2]}, {512*1792*2}
    s_mov_b32 {SW2[3]}, 0x20000
    s_mov_b32 {SV[2]}, {2*8*8192*256}
    s_mov_b32 {SV[3]}, 0x20000
    s_mov_b32 {SB1[2]}, 3584
    s_mov_b32 {SB1[3]}, 0x20000
    s_lshl_b32 {sC2}, {sKH}, {2 if opt.get('crot', 1) else 8}
    s_xor_b32 {sC2}, {sC2}, {sC}
    s_and_b32 {sC2}, {sC2}, 7
    s_lshl_b32 {oW2}, {sBLK}, 2
    s_add_u32 {oW2}, {oW2}, {sW}
    s_lshl_b32 {oW2}, {oW2}, 14
    s_lshl_b32 {sTmp}, {sC2}, 7
    s_add_u32 {oW2}, {oW2}, {sTmp}
    v_lshlrev_b32 {vT0}, 1, {vGQ}
    v_and_b32 {vT1}, 7, v0
    v_xor_b32 {vT0}, {vT0}, {vT1}
    v_lshlrev_b32 {vT0}, 4, {vT0}
    v_lshrrev_b32 {vWO}, 3, v0
    v_lshl_add_u32 {vWO}, {vWO}, 10, {vT0}
    v_lshlrev_b32 {vT0}, 4, {vGQ}
    v_lshl_add_u32 {vT0}, {vB3}, 6, {vT0}
    v_lshlrev_b32 {vHG}, 4, {vT1}
    v_lshl_add_u32 {vHG}, {vT0}, 3, {vHG}
    v_lshrrev_b32 {vB1}, 1, {vT0}
    v_and_b32 {vT1}, 1, v0
    v_lshl_add_u32 {vB1}, {vT1}, 2, {vB1}
    v_and_b32 {vT0}, 2, v0
    v_add_u32 {vB1}, {vB1}, {vT0}
    v_and_b32 {vT0}, 1, {vGQ}
    v_lshlrev_b32 {vXF}, 1, {vT0}
    v_and_b32 {vV}, 3, v0
    v_xor_b32 {vV}, {vXF}, {vV}
    v_lshlrev_b32 {vV}, 4, {vV}
    v_lshl_add_u32 {vXF}, {vT1}, 2, {vXF}
    v_lshl_add_u32 {vTV[0]}, {vT0}, 5, {vTV[0]}
    v_lshrrev_b32 {vT0}, 2, v0
    v_lshl_add_u32 {vV}, {vT0}, 8, {vV}
    v_lshrrev_b32 {vFG}, 1, v0
    v_lshlrev_b32 {vFG}, 7, {vFG}
    v_lshl_add_u32 {vFG}, {vT1}, 4, {vFG}
    v_lshrrev_b32 {vT0}, 5, v0
    v_and_b32 {vT1}, 31, v0
    v_lshlrev_b32 {vQG}, 12, {vT0}
    v_lshl_add_u32 {vQG}, {vT1}, 4, {vQG}
    v_lshlrev_b32 {vQW}, 2, {vT0}
    v_lshl_add_u32 {vQW}, {vT1}, 3, {vQW}
    s_lshl_b32 {oB1}, {sBLK}, 7
    s_lshl_b32 {sTmp}, {sKH}, 6
    s_add_u32 {oB1}, {oB1}, {sTmp}
    s_lshl_b32 {oXF}, {sBA}, 10
    s_lshl_b32 {sTmp}, {sG}, 7
    s_add_u32 {oXF}, {oXF}, {sTmp}
    s_lshl_b32 {sTmp}, {sS}, 3
    s_add_u32 {oXF}, {oXF}, {sTmp}
    s_lshl_b32 {sTmp}, {sBA}, 13
    s_add_u32 {oQG}, {oQG}, {sTmp}
    s_lshl_b32 {sTmp}, {sB}, 11
    s_add_u32 {oHG}, {oHG}, {sTmp}
    s_lshl_b32 {sTmp}, {sKH}, 10
    s_add_u32 {oHG}, {oHG}, {sTmp}
    """)
    prewarm = opt.get("prewarm", 1)
    if prewarm:
        B += lines(f"""
        s_lshl_b32 {sTmp}, {sJ}, 2
        s_add_u32 {sTmp}, {sTmp}, {sW}
        s_lshl_b32 {sTmp2}, {sG}, 7
        s_add_u32 {sTmp2}, {sTmp2}, {sTmp}
        s_lshl_b32 {sTmp2}, {sTmp2}, 9
        s_add_u32 {sTmp2}, {sTmp2}, {PART}
        v_lshlrev_b32 {vPRE}, 7, v0
        v_add_u32 {vPRE}, {sTmp2}, {vPRE}
        s_and_b32 {sTmp}, {sTmp}, 15
        s_lshl_b32 {sTmp2}, {sG}, 4
        s_add_u32 {sTmp}, {sTmp}, {sTmp2}
        s_lshl_b32 {sTmp}, {sTmp}, 7
        s_add_u32 {sTmp}, {sTmp}, {MLB}
        v_writelane_b32 {vPRE}, {sTmp}, 4
        """)
    sU = sTmp2
    C = lines(f"""
    s_mov_b32 {SWO[2]}, {4096*512*2}
    s_mov_b32 {SWO[3]}, 0x20000
    s_mov_b32 {SOUT[2]}, 2048
    s_mov_b32 {SOUT[3]}, 0x20000
    v_xor_b32 {vKR[1]}, 64, {vKR[0]}
    v_xor_b32 {vKR[2]}, 0x80, {vKR[0]}
    v_xor_b32 {vKR[3]}, 0xc0, {vKR[0]}
    v_and_b32 {vT1}, 3, v0
    v_mul_u32_u24 {vQR}, {QSTR}, {vT1}
    v_lshl_add_u32 {vQR}, {vGQ}, 4, {vQR}
    v_lshlrev_b32 {vMR}, 4, {vT1}
    v_lshlrev_b32 {vPS}, 13, {vT1}
    v_lshl_add_u32 {vPS}, {vGQ}, 8, {vPS}
    v_bfe_u32 {vT0}, v0, 2, 1
    v_lshl_add_u32 {vPS}, {vT0}, 10, {vPS}
    s_lshl_b32 {sU}, {sW}, 2
    v_add_u32 {vMX}, {sU}, {vMR}
    s_lshl_b32 {sU}, {sKH}, 12
    v_add_u32 {vTW[0]}, {sU}, {vTW[0]}
    v_xor_b32 {vTW[1]}, 32, {vTW[0]}
    v_xor_b32 {vTW[2]}, 64, {vTW[0]}
    v_xor_b32 {vTW[3]}, 0x60, {vTW[0]}
    s_lshl_b32 {sU}, {sW}, 13
    s_add_u32 {sU}, {sU}, {L_V}
    v_add_u32 {vTV[0]}, {sU}, {vTV[0]}
    v_xor_b32 {vTV[1]}, 32, {vTV[0]}
    s_mul_i32 {sU}, {sW}, {QSTR}
    v_add_u32 {vQW}, {sU}, {vQW}
    v_lshl_add_u32 {vMLG}, {vGQ}, 2, {vI}
    v_and_b32 {vMLG}, 15, {vMLG}
    v_lshlrev_b32 {vMLG}, 4, {vMLG}
    v_lshlrev_b32 {vFS}, 3, {vI}
    v_lshl_add_u32 {vFS}, {vGQ}, 13, {vFS}
    s_lshl_b32 {oFS}, {oWO}, 1
    s_add_u32 {oFS}, {oFS}, {sKH}
    s_lshl_b32 {oFS}, {oFS}, 7
    s_lshl_b32 {sU}, {sC2}, 1
    s_add_u32 {sU}, {sU}, {sB}
    s_lshl_b32 {sU}, {sU}, 15
    s_add_u32 {oFS}, {oFS}, {sU}
    s_add_u32 {oFS}, {oFS}, {FIN}
    s_lshl_b32 {oWO}, {oWO}, 2
    s_add_u32 {oWO}, {oWO}, {sW}
    s_lshl_b32 {oWO}, {oWO}, 15
    s_lshl_b32 {sU}, {sC2}, 7
    s_add_u32 {oWO}, {oWO}, {sU}
    s_lshl_b32 {oPS}, {sG}, 1
    s_add_u32 {oPS}, {oPS}, {sBA}
    s_lshl_b32 {oML}, {oPS}, 2
    s_add_u32 {oML}, {oML}, {sW}
    s_lshl_b32 {oML}, {oML}, 8
    s_lshl_b32 {sU}, {sS}, 4
    s_add_u32 {oML}, {oML}, {sU}
    s_add_u32 {oML}, {oML}, {MLB}
    s_lshl_b32 {oPS}, {oPS}, 15
    s_add_u32 {oPS}, {oPS}, {sU}
    s_lshl_b32 {sU}, {sW}, 11
    s_add_u32 {oPS}, {oPS}, {sU}
    s_add_u32 {oPS}, {oPS}, {PART}
    s_lshl_b32 {oPA}, {sG}, 1
    s_add_u32 {oPA}, {oPA}, {sB}
    s_lshl_b32 {oPA}, {oPA}, 2
    s_add_u32 {oPA}, {oPA}, {sA}
    s_lshl_b32 {oMLG}, {oPA}, 8
    s_add_u32 {oMLG}, {oMLG}, {MLB}
    s_lshl_b32 {oPA}, {oPA}, 13
    s_lshl_b32 {sU}, {sKH}, 12
    s_add_u32 {oPA}, {oPA}, {sU}
    s_add_u32 {oPA}, {oPA}, {PART}
    s_lshl_b32 {oFG}, {sG}, 3
    s_lshr_b32 {sU}, {sJ}, 2
    s_add_u32 {oFG}, {oFG}, {sU}
    s_lshl_b32 {oFG}, {oFG}, 13
    s_and_b32 {sU}, {sJ}, 3
    s_lshl_b32 {sU}, {sU}, 5
    s_add_u32 {oFG}, {oFG}, {sU}
    s_add_u32 {oFG}, {oFG}, {FIN}
    s_add_u32 {oFG2}, {oFG}, 4096
    """)
    def kjob(idx):
        def f():
            if idx == 4: a(f"s_add_u32 m0, m0, 4096\ns_add_u32 {oK}, {oK}, 4096")
            vmem("k", f"buffer_load_dwordx4 {vK[idx & 3]}, {SK}, {oK} offen offset:{(idx & 3)*1024} {pol('k')} lds")
        return f
    NKA = opt.get("nka", 0)
    NKP = opt.get("nkp", 7)
    kj = [kjob(i) for i in range(NKP)]
    for x in A: a(x)
    ja = [kj.pop(0) for _ in range(NKA)]
    weave(B, ja, max(len(B) // (NKA + 1), 1))
    for f in ja: f()
    mk = v.mark()
    f = v.get(16, 2); nm = v.get(2, 2); acc = v.get(2, 2); t0 = v.get(); t1 = v.get(); vMean = v.get(2, 2); vR = v.get(2, 2)
    g4 = v.get(8, 2)
    stamp("addr")
    wait_vm("xs")
    stamp("x")
    LN = []
    for k in range(8):
        LN += [f"v_lshlrev_b32 {f[2*k]}, 16, {xs[k]}", f"v_and_b32 {f[2*k+1]}, {sHi}, {xs[k]}"]
    LN += lines(f"""
    v_pk_add_f32 {g4[0:2]}, {f[0:2]}, {f[2:4]}
    v_pk_add_f32 {g4[2:4]}, {f[4:6]}, {f[6:8]}
    v_pk_add_f32 {g4[4:6]}, {f[8:10]}, {f[10:12]}
    v_pk_add_f32 {g4[6:8]}, {f[12:14]}, {f[14:16]}
    v_pk_add_f32 {g4[0:2]}, {g4[0:2]}, {g4[2:4]}
    v_pk_add_f32 {g4[4:6]}, {g4[4:6]}, {g4[6:8]}
    v_add_f32 {acc[0]}, {g4[0]}, {g4[1]}
    v_add_f32 {acc[1]}, {g4[4]}, {g4[5]}
    """)
    xu = g4
    def red(x, tmp, fill):
        o = []
        def F(n=2):
            for _ in range(n):
                if fill: o.append(fill.pop(0))
        o += [f"v_cndmask_b32 {tmp}, {acc[1]}, {acc[0]}, {sB3}", f"v_cndmask_b32 {x}, {acc[0]}, {acc[1]}, {sB3}"]
        F(2); o.append(f"v_add_f32_dpp {x}, {tmp}, {x} row_ror:8 {DPPM}")
        for m in ("quad_perm:[1,0,3,2]", "quad_perm:[2,3,0,1]", "row_half_mirror"):
            F(); o.append(f"v_add_f32_dpp {x}, {x}, {x} {m} {DPPM}")
        o.append(f"v_mov_b32 {tmp}, {x}"); F(); o += [f"v_permlane16_swap_b32 {x}, {tmp}", f"v_add_f32 {x}, {x}, {tmp}"]
        o.append(f"v_mov_b32 {tmp}, {x}"); F(); o += [f"v_permlane32_swap_b32 {x}, {tmp}", f"v_add_f32 {x}, {x}, {tmp}"]
        return o + fill
    XOW = "@waitxo"
    fill = [XOW]
    for k in range(4):
        fill += [f"v_lshlrev_b32 {xu[2*k]}, 16, {xo[k]}", f"v_and_b32 {xu[2*k+1]}, {sHi}, {xo[k]}"]
    LN += red(t0, t1, fill)
    nm2 = vR
    LN += lines(f"""
    v_mul_f32 {t0}, 0xbb000000, {t0}
    v_cvt_pk_bf16_f32 {vMean[0]}, {t0}, {t0}
    v_and_b32 {vMean[0]}, {sHi}, {vMean[0]}
    v_mov_b32_dpp {nm[0]}, {t0} row_newbcast:0 {DPPM}
    v_mov_b32_dpp {nm2[0]}, {t0} row_newbcast:8 {DPPM}
    v_mov_b32_dpp {nm[1]}, {t0} row_newbcast:0 {DPPM}
    v_mov_b32_dpp {nm2[1]}, {t0} row_newbcast:8 {DPPM}
    """)
    for k in range(8):
        LN.append(f"v_pk_add_f32 {f[2*k:2*k+2]}, {f[2*k:2*k+2]}, {nm if k < 4 else nm2}")
    LN += [f"v_pk_mul_f32 {nm}, {f[0:2]}, {f[0:2]}", f"v_pk_mul_f32 {nm2}, {f[8:10]}, {f[8:10]}"]
    for k in range(1, 4):
        LN += [f"v_pk_fma_f32 {nm}, {f[2*k:2*k+2]}, {f[2*k:2*k+2]}, {nm}", f"v_pk_fma_f32 {nm2}, {f[8+2*k:8+2*k+2]}, {f[8+2*k:8+2*k+2]}, {nm2}"]
    LN += [f"v_add_f32 {acc[0]}, {nm[0]}, {nm[1]}", f"v_add_f32 {acc[1]}, {nm2[0]}, {nm2[1]}"]
    fill = [f"v_mov_b32 {vMean[1]}, {vMean[0]}"]
    for k in range(4):
        fill.append(f"v_pk_add_f32 {xu[2*k:2*k+2]}, {xu[2*k:2*k+2]}, {vMean}")
    for k in range(4):
        fill.append(f"v_cvt_pk_bf16_f32 {xo[k]}, {xu[2*k]}, {xu[2*k+1]}")
    for k in range(2):
        fill += [f"v_lshlrev_b32 {xu[2*k]}, 16, {xo[k]}", f"v_and_b32 {xu[2*k+1]}, {sHi}, {xo[k]}"]
    LN += red(t0, t1, fill)
    LN += lines(f"""
    v_mul_f32 {t0}, 0x3b000000, {t0}
    v_cvt_pk_bf16_f32 {t0}, {t0}, {t0}
    v_lshlrev_b32 {t0}, 16, {t0}
    v_add_f32 {t0}, 0x3727c5ac, {t0}
    v_cvt_pk_bf16_f32 {t0}, {t0}, {t0}
    v_lshlrev_b32 {t0}, 16, {t0}
    v_sqrt_f32 {t0}, {t0}
    v_lshlrev_b32 {xu[4]}, 16, {xo[2]}
    v_cvt_pk_bf16_f32 {t0}, {t0}, {t0}
    v_lshlrev_b32 {t0}, 16, {t0}
    v_rcp_f32 {vR[0]}, {t0}
    v_and_b32 {xu[5]}, {sHi}, {xo[2]}
    v_lshlrev_b32 {xu[6]}, 16, {xo[3]}
    v_and_b32 {xu[7]}, {sHi}, {xo[3]}
    v_mov_b32 {vR[1]}, {vR[0]}
    """)
    for k in range(4):
        LN.append(f"v_pk_mul_f32 {xu[2*k:2*k+2]}, {xu[2*k:2*k+2]}, {vR}")
    for k in range(4):
        LN.append(f"v_cvt_pk_bf16_f32 {xo[k]}, {xu[2*k]}, {xu[2*k+1]}")
    LN.append(f"ds_write_b128 {vPW}, {xo} offset:{L_XN}")
    every = opt.get("kevery", 12)
    k = every - opt.get("kfirst", 1)
    for ins in LN:
        if ins == XOW: wait_vm("xo"); continue
        a(ins); k += 1
        if kj and k >= every:
            kj.pop(0)(); k = 0
    for fj in kj: fj()
    v.release(mk)
    b1r = v.get(); xf = v.get()
    sTag = s.get(4); sXCC = s.get(); sTP = s.get()
    sCnt, sMix = s.get(), s.get()
    stamp("ln")
    a(f"""
    s_getreg_b32 {sXCC}, hwreg(HW_REG_XCC_ID, 0, 4)
    s_waitcnt lgkmcnt(0)
    s_add_u32 {sTag[0]}, {sE[0]}, {hex(PHI)}
    s_lshr_b32 {sTag[1]}, {sTag[0]}, 8
    s_lshr_b32 {sTag[2]}, {sTag[0]}, 16
    s_lshr_b32 {sTag[3]}, {sTag[0]}, 24
    s_xor_b32 {sTP}, {sTag[0]}, {sXCC}
    """)
    wait_vm("w1")
    stamp("wq")
    a("s_barrier")
    mk = v.mark()
    xn = v.get(16, 2); aq = v.get(16, 2); a1 = v.get(8, 2); dq = v.get(4, 2); dh = v.get(4, 2)
    for t in range(4):
        a(f"ds_read_b128 {xn[4*t:4*t+4]}, {vL16} offset:{L_XN + 1024*t}")
        for hi in range(2):
            a(f"ds_read_b64_tr_b16 {aq[4*t+2*hi:4*t+2*hi+2]}, {vTQ} offset:{L_WQ + 4096*t + 512*hi}")
    for t in range(2):
        for hi in range(2):
            a(f"ds_read_b64_tr_b16 {a1[4*t+2*hi:4*t+2*hi+2]}, {vTQ} offset:{L_W1 + 4096*t + 512*hi}")
    for t in range(4):
        a(f"s_waitcnt lgkmcnt({13 - 3*t})")
        a(f"v_mfma_f32_16x16x32_bf16 {dq}, {aq[4*t:4*t+4]}, {xn[4*t:4*t+4]}, {dq if t else 0}")
    for t in range(2):
        a(f"s_waitcnt lgkmcnt({2 - 2*t})")
        a(f"v_mfma_f32_16x16x32_bf16 {dh}, {a1[4*t:4*t+4]}, {xn[4*t:4*t+4]}, {dh if t else 0}")
    a("s_mov_b32 exec_lo, 0x01010101\ns_mov_b32 exec_hi, 0x01010101")
    def pub(d, voff, soff, name):
        a(f"v_bfi_b32 {d[0]}, {vFF}, {sTP}, {d[0]}")
        for k in range(1, 4):
            a(f"v_bfi_b32 {d[k]}, {vFF}, {sTag[k]}, {d[k]}")
        vmem(name, f"buffer_store_dwordx4 {d}, {voff}, {SWS}, {soff} offen")
    pub(dq, vQS, oQS, "qs")
    pub(dh, vHS, oHS, "hs")
    a(f"s_add_u32 {oQS}, {oQS}, {SC1D}\ns_add_u32 {oHS}, {oHS}, {SC1D}")
    a(f"v_xor_b32 {dq[0]}, {sXCC}, {dq[0]}\nv_xor_b32 {dh[0]}, {sXCC}, {dh[0]}")
    vmem("qs", f"buffer_store_dwordx4 {dq}, {vQS}, {SWS}, {oQS} offen sc1")
    vmem("hs", f"buffer_store_dwordx4 {dh}, {vHS}, {SWS}, {oHS} offen sc1")
    a("s_mov_b64 exec, -1")
    v.release(mk)
    stamp("pub1")
    for i in range(NKP, 8): kjob(i)()
    a(f"s_add_u32 m0, {sM}, {L_W2}\ns_mov_b32 {sCnt}, 0")
    vmem("w2", f"buffer_load_dwordx4 {vWO}, {SW2}, {oW2} offen {pol('w2')} lds")
    a(f"s_add_u32 m0, m0, 1024\ns_add_u32 {oW2}, {oW2}, 8192")
    vmem("w2", f"buffer_load_dwordx4 {vWO}, {SW2}, {oW2} offen {pol('w2')} lds")
    vmem("b1", f"buffer_load_ushort {b1r}, {vB1}, {SB1}, {oB1} offen")
    vmem("xf", f"buffer_load_ushort {xf}, {vXF}, {SX}, {oXF} offen")
    if prewarm:
        a("s_mov_b32 exec_lo, 31\ns_mov_b32 exec_hi, 0")
        vmem("pre", f"buffer_load_dword {vPRE}, {vPRE}, {SWS}, 0 offen sc1")
        a("s_mov_b64 exec, -1")
    qg = v.get(8, 2); hg = v.get(4, 2)
    def poll1(first):
        t = [f"buffer_load_dwordx4 {qg[0:4]}, {vQG}, {SWS}, {oQG} offen sc1",
             f"buffer_load_dwordx4 {qg[4:8]}, {vQG}, {SWS}, {oQG} offen offset:2048 sc1",
             f"buffer_load_dwordx4 {hg}, {vHG}, {SWS}, {oHG} offen sc1"]
        for x in t:
            if first: vmem("p1", x)
            else: a(x)
    NVB = opt.get("nvb", 0)
    a(f"s_lshl_b32 {sTmp}, {sW}, 13\ns_add_u32 m0, {sTmp}, {L_V}\ns_mov_b32 {sMix}, 0")
    def vjob(n):
        def f():
            if n == NVB: poll1(True)
            vmem("v%d" % (n // 2), f"buffer_load_dwordx4 {vV}, {SV}, {oV} offen {pol('v')} lds")
            if n < 7: a(f"s_add_u32 m0, m0, 1024\ns_add_u32 {oV}, {oV}, 4096")
        return f
    sMsk, sScale, sL2E, sLn2, sM2 = oQS, oHS, oW2, oK, oKV
    qb = v.get(16, 2); sc = v.get(8, 2); tmp4 = v.get(4, 2); ones = v.get(4, 2); pr = v.get(4, 2); af = v.get(4, 2); mlr = v.get(4, 2)
    sEv = sB3; sEv2 = sE
    C += lines(f"""
    s_mov_b32 {sMsk}, 0xffffff00
    s_mov_b32 {sScale}, 0x3db504f3
    s_mov_b32 {sL2E}, 0x3fb8aa3b
    s_mov_b32 {sLn2}, 0x3f317218
    s_mov_b32 {sM2}, 0xc038aa3b
    s_mov_b32 {sEv[0]}, 0x55555555
    s_mov_b32 {sEv[1]}, 0x55555555
    s_mov_b32 {sEv2[0]}, 0x33333333
    s_mov_b32 {sEv2[1]}, 0x33333333
    v_mov_b32 {mlr[2]}, {sTag[0]}
    v_mov_b32 {mlr[3]}, {sTag[0]}
    """)
    for k in range(4):
        C += [f"v_mov_b32 {ones[k]}, 0x3f803f80", f"v_mov_b32 {pr[k]}, {sTag[0]}", f"v_mov_b32 {af[k]}, 0"]
    vj = [vjob(n) for n in range(8)]
    vj.pop(0)()
    weave(C, vj, len(C) // 8)
    for fj in vj: fj()
    stamp("issV")
    wait_vm("k")
    for T in range(2):
        for st in range(4):
            a(f"ds_read_b128 {kk[16*T+4*st:16*T+4*st+4]}, {vKR[st]} offset:{4096*T}")
    wait_vm("p1")
    stamp("p1")
    a("L_chk1:")
    a(f"v_xor_b32 {vT0}, {sTP}, {qg[0]}\nv_xor_b32 {vT1}, {sTP}, {qg[4]}")
    seq = [(qg[1], sTag[1], vT0), (qg[5], sTag[1], vT1), (qg[2], sTag[2], vT0), (qg[6], sTag[2], vT1), (qg[3], sTag[3], vT0), (qg[7], sTag[3], vT1),
           (hg[0], sTP, vT0), (hg[1], sTag[1], vT1), (hg[2], sTag[2], vT0), (hg[3], sTag[3], vT1)]
    for r, tg, d in seq:
        a(f"v_bitop3_b32 {d}, {r}, {tg}, {d} {BOP}")
    a(f"""
    v_bitop3_b32 {vT0}, {vT0}, {vT1}, {vFF} bitop3:0xa8
    v_cmp_ne_u32 vcc, 0, {vT0}
    s_cbranch_vccnz L_retry1
    L_ok1:
    """)
    stamp("ok1")
    def wojob(n):
        def f():
            if n == 0: a(f"s_lshl_b32 {sTmp}, {sW}, 12\ns_add_u32 m0, {sTmp}, {L_WO}\ns_nop 0")
            vmem("wo", f"buffer_load_dwordx4 {vWO}, {SWO}, {oWO} offen {pol('wo')} lds")
            if n < 3: a(f"s_add_u32 m0, m0, 1024\ns_add_u32 {oWO}, {oWO}, 8192")
        return f
    wj = [wojob(n) for n in range(4)]
    wopos = list(opt.get("wopos", [1, 2, 3, 4]))
    def WO(p):
        while wj and wopos and wopos[0] <= p:
            wopos.pop(0); wj.pop(0)()
    for k in range(8):
        a(f"v_and_b32 {qg[k]}, {sMsk}, {qg[k]}")
    a(f"""
    v_pk_add_f32 {qg[0:2]}, {qg[0:2]}, {qg[4:6]}
    v_pk_add_f32 {qg[2:4]}, {qg[2:4]}, {qg[6:8]}
    v_and_b32 {hg[0]}, {sMsk}, {hg[0]}
    v_and_b32 {hg[1]}, {sMsk}, {hg[1]}
    v_permlane32_swap_b32 {qg[0]}, {qg[2]}
    v_permlane32_swap_b32 {qg[1]}, {qg[3]}
    v_add_f32 {qg[0]}, {qg[0]}, {qg[2]}
    v_add_f32 {qg[1]}, {qg[1]}, {qg[3]}
    v_cvt_pk_bf16_f32 {qg[0]}, {qg[0]}, {qg[1]}
    ds_write_b32 {vQW}, {qg[0]} offset:{L_Q}
    v_and_b32 {hg[2]}, {sMsk}, {hg[2]}
    v_and_b32 {hg[3]}, {sMsk}, {hg[3]}
    v_cndmask_b32 {qg[4]}, {hg[0]}, {hg[2]}, {sEv}
    v_cndmask_b32 {qg[5]}, {hg[1]}, {hg[3]}, {sEv}
    v_cndmask_b32 {qg[6]}, {hg[2]}, {hg[0]}, {sEv}
    v_cndmask_b32 {qg[7]}, {hg[3]}, {hg[1]}, {sEv}
    s_waitcnt lgkmcnt(0)
    s_barrier
    """)
    for st in range(4):
        a(f"ds_read_b128 {qb[4*st:4*st+4]}, {vQR} offset:{L_Q + 64*st}")
    WO(0)
    h = hg[0]; e = hg[1]; u = hg[2]; d1 = hg[3]; r1 = qg[5]
    a(f"""
    v_add_f32_dpp {qg[6]}, {qg[4]}, {qg[6]} quad_perm:[1,0,3,2] {DPPM}
    v_add_f32_dpp {qg[7]}, {qg[5]}, {qg[7]} quad_perm:[1,0,3,2] {DPPM}
    v_cndmask_b32 {qg[4]}, {qg[6]}, {qg[7]}, {sEv2}
    v_cndmask_b32 {h}, {qg[7]}, {qg[6]}, {sEv2}
    v_lshlrev_b32 {b1r}, 16, {b1r}
    """)
    def rnd1(x): return [f"v_cvt_pk_bf16_f32 {x}, {x}, {x}", f"v_lshlrev_b32 {x}, 16, {x}"]
    ff = [f"v_add_f32_dpp {h}, {qg[4]}, {h} quad_perm:[2,3,0,1] {DPPM}", f"v_add_f32_dpp {h}, {h}, {h} row_shl:4 {DPPM}"]
    ff += rnd1(h) + [f"v_add_f32 {h}, {h}, {b1r}"] + rnd1(h)
    ff += [f"v_mul_f32 {e}, -abs({h}), {sL2E}", f"v_exp_f32 {e}, {e}"] + rnd1(e)
    ff += [f"v_add_f32 {u}, 1.0, {e}", f"v_add_f32 {d1}, -1.0, {u}", f"v_log_f32 {u}, {u}", f"v_rcp_f32 {r1}, {d1}",
           f"v_cmp_eq_f32 vcc, 0, {d1}", f"v_mul_f32 {u}, {sLn2}, {u}", f"v_mul_f32 {r1}, {r1}, {e}", f"v_mul_f32 {u}, {u}, {r1}",
           f"v_cndmask_b32 {u}, {u}, {e}, vcc"] + rnd1(u)
    ff += [f"v_max_f32 {e}, 0, {h}", f"v_add_f32 {u}, {u}, {e}"] + rnd1(u)
    ff += [f"v_mul_f32 {e}, {sM2}, {u}", f"v_exp_f32 {e}, {e}", f"v_cmp_gt_f32 vcc, 0x3a800000, {u}", f"v_add_f32 {d1}, 1.0, {e}", f"v_rcp_f32 {d1}, {d1}",
           f"v_sub_f32 {e}, 1.0, {e}", f"v_mul_f32 {e}, {e}, {d1}", f"v_cndmask_b32 {e}, {e}, {u}, vcc"] + rnd1(e)
    ff += [f"v_mul_f32 {e}, {e}, {h}"]
    def F(n):
        for _ in range(n):
            if ff: a(ff.pop(0))
    for st in range(4):
        a(f"s_waitcnt lgkmcnt({3 - st})")
        for T in range(2):
            d = sc[4*T:4*T+4]
            a(f"v_mfma_f32_16x16x32_bf16 {d}, {kk[16*T+4*st:16*T+4*st+4]}, {qb[4*st:4*st+4]}, {d if st else 0}")
            F(1)
    F(5)
    pk = qb
    for k in range(4):
        a(f"v_cvt_pk_bf16_f32 {tmp4[k]}, {sc[2*k]}, {sc[2*k+1]}")
    for k in range(4):
        a(f"v_lshlrev_b32 {sc[2*k]}, 16, {tmp4[k]}\nv_and_b32 {sc[2*k+1]}, {sHi}, {tmp4[k]}")
    WO(1)
    for k in range(8):
        a(f"v_mul_f32 {sc[k]}, {sScale}, {sc[k]}")
    for k in range(4):
        a(f"v_cvt_pk_bf16_f32 {tmp4[k]}, {sc[2*k]}, {sc[2*k+1]}")
    for k in range(4):
        a(f"v_lshlrev_b32 {sc[2*k]}, 16, {tmp4[k]}\nv_and_b32 {sc[2*k+1]}, {sHi}, {tmp4[k]}")
    vMax = mlr[0]
    WO(2)
    a(f"""
    v_max3_f32 {vT0}, {sc[0]}, {sc[1]}, {sc[2]}
    v_max3_f32 {vT1}, {sc[3]}, {sc[4]}, {sc[5]}
    v_max3_f32 {vT0}, {vT0}, {sc[6]}, {sc[7]}
    v_max_f32 {vT0}, {vT0}, {vT1}
    v_mov_b32 {vT1}, {vT0}
    """)
    F(2)
    a(f"v_permlane16_swap_b32 {vT0}, {vT1}\nv_max_f32 {vT0}, {vT0}, {vT1}\nv_mov_b32 {vT1}, {vT0}")
    F(2)
    a(f"v_permlane32_swap_b32 {vT0}, {vT1}\nv_max_f32 {vT0}, {vT0}, {vT1}\nds_write_b32 {vMX}, {vT0} offset:{L_MX}")
    WO(3)
    F(10)
    a(f"s_waitcnt lgkmcnt(0)\ns_barrier\nds_read_b128 {tmp4}, {vMR} offset:{L_MX}")
    bw = v.get(16, 2); df = v.get(16, 2)
    for ct in range(4):
        for hi in range(2):
            a(f"ds_read_b64_tr_b16 {bw[4*ct+2*hi:4*ct+2*hi+2]}, {vTW[ct]} offset:{L_W2 + 2048*hi}")
    F(4)
    a(f"""
    s_waitcnt lgkmcnt(8)
    v_max3_f32 {vT0}, {tmp4[0]}, {tmp4[1]}, {tmp4[2]}
    v_max_f32 {vT0}, {vT0}, {tmp4[3]}
    v_mul_f32 {vMax}, {sL2E}, {vT0}
    """)
    for k in range(8):
        a(f"v_fma_f32 {sc[k]}, {sc[k]}, {sL2E}, -{vMax}")
    WO(4)
    for k in range(8):
        a(f"v_exp_f32 {sc[k]}, {sc[k]}")
    for k in range(4):
        a(f"v_cvt_pk_bf16_f32 {tmp4[k]}, {sc[2*k]}, {sc[2*k+1]}")
    a(f"ds_write_b128 {vPW}, {tmp4} offset:{L_XN}")
    WO(5)
    F(100)
    a(f"""
    v_mov_b32_dpp {u}, {e} quad_perm:[2,3,0,1] {DPPM}
    s_lshl_b32 {sTmp}, {sKH}, 12
    v_cvt_pk_bf16_f32 {u}, {e}, {u}
    s_waitcnt lgkmcnt(0)
    s_barrier
    """)
    for t in range(4):
        a(f"ds_read_b128 {pk[4*t:4*t+4]}, {vL16} offset:{L_XN + 1024*t}")
    dl = sc[0:4]
    a(f"""
    v_mov_b32_dpp {af[0]}, {u} quad_perm:[0,1,2,3] row_mask:0xf bank_mask:0x1
    v_mov_b32_dpp {af[1]}, {u} row_shl:1 row_mask:0xf bank_mask:0x1
    v_mov_b32_dpp {af[2]}, {u} row_shl:8 row_mask:0xf bank_mask:0x1
    v_mov_b32_dpp {af[3]}, {u} row_shl:9 row_mask:0xf bank_mask:0x1
    v_mov_b32 {vT0}, 0
    v_add_u32 {vTW[0]}, {sTmp}, {vTW[0]}
    """)
    for ct in range(4):
        a(f"v_mfma_f32_16x16x32_bf16 {df[4*ct:4*ct+4]}, {af}, {bw[4*ct:4*ct+4]}, 0")
        if ct: a(f"v_add_u32 {vTW[ct]}, {sTmp}, {vTW[ct]}")
    WO(6)
    for t in range(4):
        a(f"s_waitcnt lgkmcnt({3 - t})")
        a(f"v_mfma_f32_16x16x32_bf16 {dl}, {ones}, {pk[4*t:4*t+4]}, {dl if t else 0}")
    WO(99)
    stamp("soft")
    av = v.get(16, 2); do = v.get(8, 2)
    for t in range(4):
        buf = av[8*(t&1):8*(t&1)+8]
        wait_vm("v%d" % t)
        if t == 3: stamp("V")
        for T in range(2):
            for hi in range(2):
                a(f"ds_read_b64_tr_b16 {buf[4*T+2*hi:4*T+2*hi+2]}, {vTV[T]} offset:{2048*t + 1024*hi}")
        if t == 0:
            a(f"""
            s_lshl_b32 {sTmp}, 1, {sW}
            s_cmp_eq_u32 {sMix}, 0
            v_mov_b32 {mlr[1]}, {dl[0]}
            s_mov_b32 exec_lo, {sTmp}
            s_mov_b32 exec_hi, 0
            s_cbranch_scc0 L_mlmix
            """)
            vmem("ml", f"buffer_store_dwordx4 {mlr}, {vT0}, {SWS}, {oML} offen")
            a("L_mlback:")
            a("s_mov_b64 exec, -1")
        for T in range(2):
            a(f"s_waitcnt lgkmcnt({2 - 2*T})")
            d = do[4*T:4*T+4]
            a(f"v_mfma_f32_16x16x32_bf16 {d}, {buf[4*T:4*T+4]}, {pk[4*t:4*t+4]}, {d if t else 0}")
    a(f"""
    s_mov_b32 exec_lo, 0x000f000f
    s_mov_b32 exec_hi, 0x000f000f
    s_cmp_eq_u32 {sMix}, 0
    v_cvt_pk_bf16_f32 {pr[2]}, {do[0]}, {do[1]}
    v_cvt_pk_bf16_f32 {pr[3]}, {do[2]}, {do[3]}
    s_mov_b32 exec_lo, 0x00f000f0
    s_mov_b32 exec_hi, 0x00f000f0
    v_cvt_pk_bf16_f32 {pr[0]}, {do[4]}, {do[5]}
    v_cvt_pk_bf16_f32 {pr[1]}, {do[6]}, {do[7]}
    s_mov_b32 exec_lo, 0x00ff00ff
    s_mov_b32 exec_hi, 0x00ff00ff
    s_cbranch_scc0 L_psmix
    """)
    vmem("ps", f"buffer_store_dwordx4 {pr}, {vPS}, {SWS}, {oPS} offen")
    a("L_psback:")
    a("s_mov_b64 exec, -1")
    stamp("pub2")
    pa = kk[0:16]; mlg = kk[16:20]; bo = v.get(32, 2); dd = v.get(16, 2)
    def poll2(first):
        t = []
        for tl in range(2):
            t.append(f"buffer_load_dwordx4 {pa[8*tl:8*tl+4]}, {vPA}, {SWS}, {oPA} offen offset:{2048*tl} sc1")
            t.append(f"buffer_load_dwordx4 {pa[8*tl+4:8*tl+8]}, {vPA}, {SWS}, {oPA} offen offset:{2048*tl+1024} sc1")
        t.append(f"buffer_load_dwordx4 {mlg}, {vMLG}, {SWS}, {oMLG} offen sc1")
        for x in t:
            if first: vmem("p2", x)
            else: a(x)
    allow = opt.get("p2allow", 1)
    if allow < 4: wait_vm("wo", allow)
    poll2(True)
    wait_vm("wo")
    stamp("wo")
    a("s_barrier")
    for tl in range(2):
        for ct in range(4):
            for hi in range(2):
                r = bo[16*tl+4*ct+2*hi:16*tl+4*ct+2*hi+2]
                a(f"ds_read_b64_tr_b16 {r}, {vTW[ct]} offset:{L_WO + 4096*tl + 2048*hi}")
    fo = pr[0:2]
    a(f"s_mov_b32 {sCnt}, 0\nv_mov_b32 {fo[1]}, {sTag[0]}\nv_lshlrev_b32 {xf}, 16, {xf}")
    a("s_waitcnt vmcnt(0)")
    a("L_chk2:")
    a(f"v_xor_b32 {vT0}, {sTag[0]}, {pa[1]}")
    for r in (pa[6], pa[9], pa[14], mlg[2]):
        a(f"v_bitop3_b32 {vT0}, {r}, {sTag[0]}, {vT0} {BOP}")
    a(f"""
    v_cmp_ne_u32 vcc, 0, {vT0}
    s_cbranch_vccnz L_retry2
    L_ok2:
    s_mov_b64 exec, -1
    """)
    stamp("ok2")
    wv = vT1
    a(f"v_max_f32_dpp {vT0}, {mlg[0]}, {mlg[0]} row_ror:1 {DPPM}\ns_waitcnt lgkmcnt(8)")
    wchain = [f"v_max_f32_dpp {vT0}, {vT0}, {vT0} row_ror:{r} {DPPM}" for r in (2, 4, 8)]
    wchain += [f"v_sub_f32 {wv}, {mlg[0]}, {vT0}", f"v_exp_f32 {wv}, {wv}", f"v_mul_f32 {vT0}, {wv}, {mlg[1]}"]
    wchain += [f"v_add_f32_dpp {vT0}, {vT0}, {vT0} row_ror:{r} {DPPM}" for r in (1, 2, 4, 8)]
    wchain += [f"v_rcp_f32 {vT0}, {vT0}", f"v_mul_f32 {wv}, {wv}, {vT0}"]
    for tl in range(2):
        if tl: a("s_waitcnt lgkmcnt(0)")
        for ct in range(4):
            a(f"v_mfma_f32_16x16x32_bf16 {dd[4*ct:4*ct+4]}, {pa[8*tl+2:8*tl+6]}, {bo[16*tl+4*ct:16*tl+4*ct+4]}, {dd[4*ct:4*ct+4] if tl else 0}")
            a(wchain.pop(0))
    for x in wchain: a(x)
    for ct in range(4):
        for r in range(4):
            a(f"v_fmac_f32_dpp {df[4*ct]}, {wv}, {dd[4*ct+r]} row_newbcast:{r} {DPPM}")
    a(f"""
    v_permlane32_swap_b32 {df[0]}, {df[8]}
    v_permlane32_swap_b32 {df[4]}, {df[12]}
    v_add_f32 {df[0]}, {df[0]}, {df[8]}
    v_add_f32 {df[4]}, {df[4]}, {df[12]}
    s_cmp_eq_u32 {sW}, 0
    v_permlane16_swap_b32 {df[0]}, {df[4]}
    v_add_f32 {fo[0]}, {df[0]}, {df[4]}
    buffer_store_dwordx2 {fo}, {vFS}, {SWS}, {oFS} offen sc1
    """)
    if stamps:
        stamp("pub3", flush=True)
        a(f"s_cmp_eq_u32 {sW}, 0")
    a("s_cbranch_scc0 L_fin")
    fg = bo[0:8]
    a(f"s_mov_b32 {sCnt}, 0")
    if opt.get("p3delay"):
        a("s_waitcnt vmcnt(0)")
    a(f"""
    L_poll3:
    buffer_load_dwordx4 {fg[0:4]}, {vFG}, {SWS}, {oFG} offen sc1
    buffer_load_dwordx4 {fg[4:8]}, {vFG}, {SWS}, {oFG2} offen sc1
    s_add_u32 {sCnt}, {sCnt}, 1
    s_cmp_gt_u32 {sCnt}, 20000
    s_cbranch_scc1 L_ok3
    s_waitcnt vmcnt(0)
    v_xor_b32 {vT0}, {sTag[0]}, {fg[1]}
    v_bitop3_b32 {vT0}, {fg[3]}, {sTag[0]}, {vT0} {BOP}
    v_bitop3_b32 {vT0}, {fg[5]}, {sTag[0]}, {vT0} {BOP}
    v_bitop3_b32 {vT0}, {fg[7]}, {sTag[0]}, {vT0} {BOP}
    v_cmp_ne_u32 vcc, 0, {vT0}
    s_cbranch_vccz L_ok3
    {'s_mov_b64 exec, vcc' if opt.get('sticky', 1) else ''}
    s_branch L_poll3
    L_ok3:
    s_mov_b64 exec, -1
    s_waitcnt vmcnt(0)
    v_add_f32 {dd[0]}, {fg[0]}, {fg[4]}
    v_add_f32 {dd[1]}, {fg[2]}, {fg[6]}
    """)
    stamp("ok3", flush=True)
    for r in (2, 4, 8):
        a(f"v_add_f32_dpp {dd[0]}, {dd[0]}, {dd[0]} row_ror:{r} {DPPM}")
        a(f"v_add_f32_dpp {dd[1]}, {dd[1]}, {dd[1]} row_ror:{r} {DPPM}")
    a(f"""
    s_cmp_eq_u32 s2, 0
    v_permlane16_swap_b32 {dd[0]}, {dd[1]}
    v_add_f32 {dd[0]}, {dd[0]}, {dd[1]}
    v_mov_b32 {dd[1]}, {dd[0]}
    v_permlane32_swap_b32 {dd[0]}, {dd[1]}
    v_add_f32 {dd[0]}, {dd[0]}, {dd[1]}
    v_add_f32 {dd[0]}, {dd[0]}, {xf}
    v_cvt_pk_bf16_f32 {dd[0]}, {dd[0]}, {dd[0]}
    s_mov_b32 exec_lo, 0x00030003
    s_mov_b32 exec_hi, 0
    buffer_store_short {dd[0]}, {vXF}, {SOUT}, {oXF} offen
    s_cbranch_scc0 L_fin
    s_mov_b32 exec_lo, 1
    v_mov_b32 {vT0}, 0
    buffer_store_dword {fo[1]}, {vT0}, {SWS}, 0 offen
    L_fin:
    """)
    if stamps:
        stamp("end", True)
        a("s_mov_b64 exec, -1")
        a(f"""
        s_getreg_b32 {sTmp}, hwreg(HW_REG_HW_ID)
        v_writelane_b32 {vST}, {sTmp}, 29
        v_writelane_b32 {vST}, {sXCC}, 30
        v_writelane_b32 {vST}, {sMix}, 31
        s_lshl_b32 {sTmp}, s2, 2
        s_add_u32 {sTmp}, {sTmp}, {sW}
        s_lshl_b32 {sTmp}, {sTmp}, 7
        s_add_u32 {sTmp}, {sTmp}, {STAMP}
        v_lshlrev_b32 {vT1}, 2, v0
        s_mov_b32 exec_lo, -1
        s_mov_b32 exec_hi, 0
        buffer_store_dword {vST}, {vT1}, {SWS}, {sTmp} offen
        """)
        out.insert(len(hdr), "; stamps: " + ",".join(names))
    a("L_end:\ns_endpgm")
    a(f"""
    L_retry1:
    s_add_u32 {sCnt}, {sCnt}, 1
    s_cmp_gt_u32 {sCnt}, 20000
    s_cbranch_scc1 L_ok1
    s_cmp_eq_u32 {sCnt}, {opt.get('nplain', 12)}
    s_cbranch_scc0 L_r1b
    s_mov_b32 {sMix}, 1
    s_mov_b32 {sTP}, {sTag[0]}
    s_add_u32 {oQG}, {oQG}, {SC1D}
    s_add_u32 {oHG}, {oHG}, {SC1D}
    L_r1b:
    """)
    poll1(False)
    a("s_waitcnt vmcnt(0)\ns_branch L_chk1")
    a(f"""
    L_mlmix:
    buffer_store_dwordx4 {mlr}, {vT0}, {SWS}, {oML} offen sc1
    s_branch L_mlback
    L_psmix:
    buffer_store_dwordx4 {pr}, {vPS}, {SWS}, {oPS} offen sc1
    s_branch L_psback
    L_retry2:
    s_add_u32 {sCnt}, {sCnt}, 1
    s_cmp_gt_u32 {sCnt}, 20000
    s_cbranch_scc1 L_ok2
    {'s_mov_b64 exec, vcc' if opt.get('sticky', 1) else ''}
    """)
    poll2(False)
    a("s_waitcnt vmcnt(0)\ns_branch L_chk2")
    nv = (v.hw + 7) // 8 * 8
    out.append(a.text())
    out.append(f""".section .rodata,"a"
.p2align 6
.amdhsa_kernel {NAME}_kernel
  .amdhsa_next_free_vgpr {nv}
  .amdhsa_next_free_sgpr 102
  .amdhsa_accum_offset {nv}
  .amdhsa_group_segment_fixed_size 0
  .amdhsa_kernarg_size 96
  .amdhsa_user_sgpr_count 2
  .amdhsa_user_sgpr_kernarg_segment_ptr 1
  .amdhsa_system_sgpr_workgroup_id_x 1
.end_amdhsa_kernel""")
    sys.stderr.write("vgprs %d sgprs %d nops %d\n" % (v.hw, s.hw, a.nops))
    return "\n".join(out) + "\n"

if __name__ == "__main__":
    import json
    opt = json.loads(sys.argv[2]) if len(sys.argv) > 2 else {}
    open(sys.argv[1], "w").write(gen(opt))
```

```python
import sys
from asmlib import *

NAME = "parallel_sum__sliding_block_cached__dense_activation_mish__decode"
PHI = 0x9E3779B9
QBUF = 0x10000; HBUF = 0x50000; SC1D = 0x20000; MLB = 0x90000; PART = 0x100000; FIN = 0x180000; STAMP = 0x800000
L_XN = 0; L_Q = 4096; L_MX = 5632; L_WQ = 8192; L_WO = 8192; L_W1 = 24576; L_W2 = 32768; L_V = 40960; L_K = 73728; LDS_BYTES = 106496
QSTR = 320
DPPM = "row_mask:0xf bank_mask:0xf"
BOP = "bitop3:0xbe"

def lines(text):
    return [l.strip() for l in text.strip().split("\n") if l.strip() and not l.strip().startswith(";")]

def gen(opt):
    nt = opt.get("nt", {})
    def pol(k): return nt.get(k, "")
    stamps = opt.get("stamps", False)
    a = Asm()
    v = Alloc("v", 1, 256); s = Alloc("s", 44, 102)
    hdr = open("cdna_kernels/%s.s.ref" % NAME).read().split("\n")
    hdr = [l for l in hdr if l.startswith(";") and "@launch" not in l and "Override" not in l and "grid=ceil" not in l]
    out = list(hdr)
    out.append("; @launch grid=(256,1,1) block=(256,1,1) lds=%d" % LDS_BYTES)
    out.append('.amdgcn_target "amdgcn-amd-amdhsa--gfx950"')
    out.append(".text\n.globl %s_kernel\n.p2align 8\n.type %s_kernel,@function\n%s_kernel:" % (NAME, NAME, NAME))
    SX, SK, SV, SWQ, SWO, SW1, SB1, SW2, SOUT, SWS = [Reg("s", 4 + 4 * i, 4) for i in range(10)]
    vm = []
    def vmem(name, text):
        a(text); vm.append(name)
    def wait_vm(name, allow=0):
        idx = max(i for i, n in enumerate(vm) if n == name) - allow
        n = len(vm) - 1 - idx
        a("s_waitcnt vmcnt(%d)" % n)
    def weave(fill, jobs, every, start=0):
        k = -start
        for ins in fill:
            a(ins); k += 1
            if jobs and k >= every:
                jobs.pop(0)(); k = 0
    nst = [0, 0]
    names = []
    NR = 4
    if stamps:
        sST = [s.get(2, 2) for _ in range(NR)]; vST = v.get()
    probe = opt.get("probe")
    def stamp(name, last=False, flush=False):
        if probe and name == "start": a("s_memrealtime s[100:101]")
        if probe and name == probe: a("s_memrealtime s[98:99]")
        if stamps:
            k = nst[0]; nst[0] += 1; names.append(name)
            assert k < 29
            done = nst[1]
            if k - done >= NR:
                a("v_writelane_b32 %s, %s, %d" % (vST, sST[done % NR][0], done)); done += 1
            a("s_memrealtime %s" % sST[k % NR])
            if last or flush:
                a("s_waitcnt lgkmcnt(0)")
                while done <= k:
                    a("v_writelane_b32 %s, %s, %d" % (vST, sST[done % NR][0], done)); done += 1
            nst[1] = done
    stamp("start")
    a(f"""
    s_load_dwordx2 {SX[0:2]}, s[0:1], 0
    s_load_dwordx2 {SWQ[0:2]}, s[0:1], 24
    s_load_dwordx2 {SW1[0:2]}, s[0:1], 48
    s_load_dwordx2 {SK[0:2]}, s[0:1], 8
    s_load_dwordx2 {SWS[0:2]}, s[0:1], 88
    s_load_dwordx2 {SW2[0:2]}, s[0:1], 64
    s_cmp_ge_u32 s2, 256
    s_cbranch_scc1 L_end
    """)
    sW, sG, sJ, sA, sC, sT, sBLK, sTmp, sTmp2 = [s.get() for _ in range(9)]
    oXO, oWQ, oW1, oKV, oK, oW2 = [s.get() for _ in range(6)]
    sM = s.get()
    vGQ, vI, vT0, vT1 = [v.get() for _ in range(4)]
    vL16, vB3, vXO, vWQe, vWQo, vW1e, vW1o = [v.get() for _ in range(7)]
    vK = v.get(4)
    a(f"""
    v_readfirstlane_b32 {sW}, v0
    v_and_b32 v0, 63, v0
    s_and_b32 {sG}, s2, 7
    s_lshr_b32 {sJ}, s2, 3
    s_lshr_b32 {sW}, {sW}, 6
    s_lshr_b32 {sA}, {sJ}, 3
    s_and_b32 {sC}, {sJ}, 7
    v_lshrrev_b32 {vGQ}, 4, v0
    v_and_b32 {vI}, 15, v0
    s_mov_b32 {SX[2]}, 2048
    s_mov_b32 {SX[3]}, 0x20000
    s_mov_b32 {SWQ[2]}, {512*4096*2}
    s_mov_b32 {SWQ[3]}, 0x20000
    v_lshlrev_b32 {vL16}, 4, v0
    v_bfe_u32 {vB3}, v0, 3, 1
    v_lshlrev_b32 {vT0}, 10, {vB3}
    v_lshl_add_u32 {vXO}, {vGQ}, 4, {vT0}
    v_and_b32 {vT0}, 1, {vGQ}
    v_lshlrev_b32 {vT0}, 1, {vT0}
    v_and_b32 {vT1}, 7, v0
    v_xor_b32 {vT0}, {vT0}, {vT1}
    v_lshlrev_b32 {vT0}, 4, {vT0}
    v_lshrrev_b32 {vT1}, 3, v0
    v_lshl_add_u32 {vWQe}, {vT1}, 13, {vT0}
    v_xor_b32 {vWQo}, 64, {vWQe}
    v_mul_u32_u24 {vW1e}, 3584, {vT1}
    v_add_u32 {vW1e}, {vW1e}, {vT0}
    v_xor_b32 {vW1o}, 64, {vW1e}
    s_and_b32 {sTmp}, {sC}, 1
    s_lshl_b32 {sTmp2}, {sTmp}, 1
    s_xor_b32 {sTmp2}, {sTmp2}, {sW}
    s_lshl_b32 {sTmp2}, {sTmp2}, 5
    s_lshl_b32 {oXO}, {sA}, 7
    s_add_u32 {sTmp2}, {sTmp2}, {oXO}
    s_lshl_b32 {oWQ}, {sTmp2}, 13
    s_lshl_b32 {sM}, {sG}, 10
    s_add_u32 {oWQ}, {oWQ}, {sM}
    s_lshl_b32 {sM}, {sC}, 7
    s_add_u32 {oWQ}, {oWQ}, {sM}
    s_lshl_b32 {sTmp}, {sTmp}, 6
    s_add_u32 {oW1}, {oXO}, {sTmp}
    s_lshl_b32 {sTmp}, {sW}, 4
    s_add_u32 {oW1}, {oW1}, {sTmp}
    s_mul_i32 {oW1}, {oW1}, 3584
    s_lshl_b32 {oXO}, {sTmp2}, 1
    s_lshr_b32 {sT}, {sC}, 1
    s_sub_u32 {sT}, {sT}, {sA}
    s_and_b32 {sT}, {sT}, 3
    s_lshl_b32 {sBLK}, {sG}, 2
    s_mul_i32 {sTmp2}, {sG}, 3
    s_add_u32 {sTmp2}, {sTmp2}, 4
    s_min_u32 {sBLK}, {sBLK}, {sTmp2}
    s_add_u32 {sBLK}, {sBLK}, {sT}
    s_lshr_b32 {sTmp2}, {sG}, 2
    s_add_u32 {sTmp2}, {sTmp2}, {sT}
    s_cmp_eq_u32 {sTmp2}, 4
    s_cselect_b32 {sBLK}, 0x4000, {sBLK}
    s_lshl_b32 {sTmp2}, {sBLK}, 7
    s_add_u32 {oW1}, {oW1}, {sTmp2}
    s_mov_b32 {SW1[2]}, {512*1792*2}
    s_mov_b32 {SW1[3]}, 0x20000
    s_lshl_b32 {sM}, {sW}, 12
    s_add_u32 m0, {sM}, {L_WQ}
    s_lshl_b32 {sM}, {sW}, 11
    s_waitcnt lgkmcnt(0)
    """)
    stamp("karg")
    xs = v.get(8, 2); xo = v.get(4, 2)
    kk = v.get(32, 2)
    sE = s.get(2, 2)
    vmem("xs", f"buffer_load_dwordx4 {xs[0:4]}, {vL16}, {SX}, 0 offen")
    vmem("xs", f"buffer_load_dwordx4 {xs[4:8]}, {vL16}, {SX}, 0 offen offset:1024")
    vmem("xo", f"buffer_load_dwordx4 {xo}, {vXO}, {SX}, {oXO} offen")
    for k in range(4):
        vmem("wq", f"buffer_load_dwordx4 {vWQo if k & 1 else vWQe}, {SWQ}, {oWQ} offen {pol('wq')} lds")
        if k < 3:
            a(f"s_add_u32 m0, m0, 1024\ns_add_u32 {oWQ}, {oWQ}, 65536")
    a(f"s_add_u32 m0, {sM}, {L_W1}\ns_load_dword {sE[0]}, {SWS[0:2]}, 0")
    vmem("w1", f"buffer_load_dwordx4 {vW1e}, {SW1}, {oW1} offen {pol('w1')} lds")
    a(f"s_add_u32 m0, m0, 1024\ns_add_u32 {oW1}, {oW1}, 28672")
    vmem("w1", f"buffer_load_dwordx4 {vW1o}, {SW1}, {oW1} offen {pol('w1')} lds")
    stamp("iss1")
    if opt.get("codepf"):
        sPC = s.get(2, 2)
        a(f"""
        s_getpc_b64 {sPC}
        s_lshl_b32 {sTmp}, {sJ}, 2
        s_add_u32 {sTmp}, {sTmp}, {sW}
        s_min_u32 {sTmp}, {sTmp}, {opt['codepf']}
        s_lshl_b32 {sTmp}, {sTmp}, 7
        s_load_dword {sE[1]}, {sPC}, {sTmp}
        """)
    vWO, vV, vTQ = [v.get() for _ in range(3)]
    vKR = v.get(4); vTW = v.get(4); vTV = v.get(2); vFF = v.get()
    sHi = s.get()
    sB, sKH, sBA, sS, sC2 = [s.get() for _ in range(5)]
    oB1, oXF = oXO, oWQ
    vB1, vXF, vPRE, vF = vWQo, vW1e, vW1o, vWQe
    oQS, oHS, oQG, oHG, oML, oPS, oV, oWO = [s.get() for _ in range(8)]
    vQS, vHS, vQG, vHG = [v.get() for _ in range(4)]
    vQW, vQR, vMX, vMR, vPW = [v.get() for _ in range(5)]
    vPS, vMLG, vFS, vFG = [v.get() for _ in range(4)]
    vPA = vL16
    oPA, oMLG, oFS, oFG, oFG2 = oW1, s.get(), s.get(), s.get(), s.get()
    sB3 = s.get(2, 2)
    A = lines(f"""
    s_load_dwordx2 {SV[0:2]}, s[0:1], 16
    s_load_dwordx2 {SWO[0:2]}, s[0:1], 32
    s_load_dwordx2 {SB1[0:2]}, s[0:1], 56
    s_load_dwordx2 {SOUT[0:2]}, s[0:1], 72
    s_mov_b32 {SK[2]}, {2*8*8192*256}
    s_mov_b32 {SK[3]}, 0x20000
    s_lshr_b32 {sBA}, {sJ}, 4
    s_and_b32 {sS}, {sJ}, 15
    s_lshl_b32 {sTmp}, {sBA}, 3
    s_add_u32 {sTmp}, {sTmp}, {sG}
    s_lshl_b32 {oKV}, {sTmp}, 21
    s_lshl_b32 {sTmp}, {sS}, 15
    s_add_u32 {oKV}, {oKV}, {sTmp}
    s_add_u32 {oKV}, {oKV}, {6144*256}
    s_lshl_b32 {sTmp}, {sW}, 13
    s_add_u32 {oK}, {sTmp}, {oKV}
    s_add_u32 m0, {sTmp}, {L_K}
    v_xor_b32 {vT0}, {vI}, {vGQ}
    v_lshlrev_b32 {vT0}, 4, {vT0}
    v_lshl_add_u32 {vK[0]}, {vGQ}, 8, {vT0}
    v_xor_b32 {vK[1]}, 64, {vK[0]}
    v_xor_b32 {vK[2]}, 0x80, {vK[0]}
    v_xor_b32 {vK[3]}, 0xc0, {vK[0]}
    v_lshl_add_u32 {vT0}, {vI}, 8, {vT0}
    s_add_u32 {sTmp}, {sTmp}, {L_K}
    v_add_u32 {vKR[0]}, {sTmp}, {vT0}
    s_mov_b32 {SWS[2]}, 0x10000000
    s_mov_b32 {SWS[3]}, 0x20000
    s_mov_b32 {sHi}, 0xffff0000
    s_mov_b32 {sB3[0]}, 0xff00ff00
    s_mov_b32 {sB3[1]}, 0xff00ff00
    v_mov_b32 {vFF}, 0xff
    s_lshl_b32 {sTmp}, {sW}, 10
    v_add_u32 {vPW}, {sTmp}, {vL16}
    s_and_b32 {sB}, {sW}, 1
    s_lshr_b32 {sKH}, {sW}, 1
    v_and_b32 {vT0}, 1, {vGQ}
    v_lshlrev_b32 {vF}, 1, {vT0}
    v_or_b32 {vF}, {vF}, {vB3}
    v_and_b32 {vT1}, 3, v0
    v_lshlrev_b32 {vT1}, 3, {vT1}
    v_lshrrev_b32 {vT0}, 2, {vI}
    v_lshl_add_u32 {vTQ}, {vGQ}, 3, {vT0}
    v_lshl_add_u32 {vTQ}, {vTQ}, 7, {vT1}
    v_xor_b32 {vTV[0]}, {sW}, {vF}
    v_lshl_add_u32 {vTQ}, {vTV[0]}, 5, {vTQ}
    v_lshl_add_u32 {vT0}, {vGQ}, 2, {vT0}
    v_lshl_add_u32 {vTW[0]}, {vT0}, 7, {vT1}
    v_lshl_add_u32 {vTW[0]}, {vF}, 5, {vTW[0]}
    v_lshl_add_u32 {vTV[0]}, {vT0}, 6, {vT1}
    v_lshlrev_b32 {vT0}, 4, {vGQ}
    v_lshl_add_u32 {vQS}, {vB3}, 13, {vT0}
    v_lshlrev_b32 {vHS}, 7, {vGQ}
    v_lshl_add_u32 {vHS}, {vB3}, 11, {vHS}
    s_lshl_b32 {oQG}, {sG}, 14
    s_add_u32 {oQG}, {oQG}, {QBUF}
    s_lshl_b32 {sTmp}, {sA}, 11
    s_add_u32 {oQS}, {oQG}, {sTmp}
    s_lshl_b32 {sTmp}, {sC}, 8
    s_add_u32 {oQS}, {oQS}, {sTmp}
    s_lshl_b32 {sTmp2}, {sW}, 6
    s_add_u32 {oQS}, {oQS}, {sTmp2}
    s_add_u32 {oV}, {oKV}, {sTmp2}
    s_lshl_b32 {oHG}, {sG}, 2
    s_add_u32 {oWO}, {oHG}, {sA}
    s_add_u32 {oHG}, {oHG}, {sT}
    s_lshl_b32 {oHG}, {oHG}, 12
    s_add_u32 {oHG}, {oHG}, {HBUF}
    s_lshl_b32 {sTmp}, {sA}, 1
    s_and_b32 {oHS}, {sC}, 1
    s_add_u32 {sTmp}, {sTmp}, {oHS}
    s_lshl_b32 {sTmp}, {sTmp}, 4
    s_add_u32 {oHS}, {oHG}, {sTmp}
    s_lshl_b32 {sTmp}, {sW}, 9
    s_add_u32 {oHS}, {oHS}, {sTmp}
    s_add_u32 {oQG}, {oQG}, {sTmp}
    """)
    B = lines(f"""
    s_mov_b32 {SW2[2]}, {512*1792*2}
    s_mov_b32 {SW2[3]}, 0x20000
    s_mov_b32 {SV[2]}, {2*8*8192*256}
    s_mov_b32 {SV[3]}, 0x20000
    s_mov_b32 {SB1[2]}, 3584
    s_mov_b32 {SB1[3]}, 0x20000
    s_lshl_b32 {sC2}, {sKH}, {2 if opt.get('crot', 1) else 8}
    s_xor_b32 {sC2}, {sC2}, {sC}
    s_and_b32 {sC2}, {sC2}, 7
    s_lshl_b32 {oW2}, {sBLK}, 2
    s_add_u32 {oW2}, {oW2}, {sW}
    s_lshl_b32 {oW2}, {oW2}, 14
    s_lshl_b32 {sTmp}, {sC2}, 7
    s_add_u32 {oW2}, {oW2}, {sTmp}
    v_lshlrev_b32 {vT0}, 1, {vGQ}
    v_and_b32 {vT1}, 7, v0
    v_xor_b32 {vT0}, {vT0}, {vT1}
    v_lshlrev_b32 {vT0}, 4, {vT0}
    v_lshrrev_b32 {vWO}, 3, v0
    v_lshl_add_u32 {vWO}, {vWO}, 10, {vT0}
    v_lshlrev_b32 {vT0}, 4, {vGQ}
    v_lshl_add_u32 {vT0}, {vB3}, 6, {vT0}
    v_lshlrev_b32 {vHG}, 4, {vT1}
    v_lshl_add_u32 {vHG}, {vT0}, 3, {vHG}
    v_lshrrev_b32 {vB1}, 1, {vT0}
    v_and_b32 {vT1}, 1, v0
    v_lshl_add_u32 {vB1}, {vT1}, 2, {vB1}
    v_and_b32 {vT0}, 2, v0
    v_add_u32 {vB1}, {vB1}, {vT0}
    v_and_b32 {vT0}, 1, {vGQ}
    v_lshlrev_b32 {vXF}, 1, {vT0}
    v_and_b32 {vV}, 3, v0
    v_xor_b32 {vV}, {vXF}, {vV}
    v_lshlrev_b32 {vV}, 4, {vV}
    v_lshl_add_u32 {vXF}, {vT1}, 2, {vXF}
    v_lshl_add_u32 {vTV[0]}, {vT0}, 5, {vTV[0]}
    v_lshrrev_b32 {vT0}, 2, v0
    v_lshl_add_u32 {vV}, {vT0}, 8, {vV}
    v_lshrrev_b32 {vFG}, 1, v0
    v_lshlrev_b32 {vFG}, 7, {vFG}
    v_lshl_add_u32 {vFG}, {vT1}, 4, {vFG}
    v_lshrrev_b32 {vT0}, 5, v0
    v_and_b32 {vT1}, 31, v0
    v_lshlrev_b32 {vQG}, 12, {vT0}
    v_lshl_add_u32 {vQG}, {vT1}, 4, {vQG}
    v_lshlrev_b32 {vQW}, 2, {vT0}
    v_lshl_add_u32 {vQW}, {vT1}, 3, {vQW}
    s_lshl_b32 {oB1}, {sBLK}, 7
    s_lshl_b32 {sTmp}, {sKH}, 6
    s_add_u32 {oB1}, {oB1}, {sTmp}
    s_lshl_b32 {oXF}, {sBA}, 10
    s_lshl_b32 {sTmp}, {sG}, 7
    s_add_u32 {oXF}, {oXF}, {sTmp}
    s_lshl_b32 {sTmp}, {sS}, 3
    s_add_u32 {oXF}, {oXF}, {sTmp}
    s_lshl_b32 {sTmp}, {sBA}, 13
    s_add_u32 {oQG}, {oQG}, {sTmp}
    s_lshl_b32 {sTmp}, {sB}, 11
    s_add_u32 {oHG}, {oHG}, {sTmp}
    s_lshl_b32 {sTmp}, {sKH}, 10
    s_add_u32 {oHG}, {oHG}, {sTmp}
    """)
    prewarm = opt.get("prewarm", 1)
    if prewarm:
        B += lines(f"""
        s_lshl_b32 {sTmp}, {sJ}, 2
        s_add_u32 {sTmp}, {sTmp}, {sW}
        s_lshl_b32 {sTmp2}, {sG}, 7
        s_add_u32 {sTmp2}, {sTmp2}, {sTmp}
        s_lshl_b32 {sTmp2}, {sTmp2}, 9
        s_add_u32 {sTmp2}, {sTmp2}, {PART}
        v_lshlrev_b32 {vPRE}, 7, v0
        v_add_u32 {vPRE}, {sTmp2}, {vPRE}
        s_and_b32 {sTmp}, {sTmp}, 15
        s_lshl_b32 {sTmp2}, {sG}, 4
        s_add_u32 {sTmp}, {sTmp}, {sTmp2}
        s_lshl_b32 {sTmp}, {sTmp}, 7
        s_add_u32 {sTmp}, {sTmp}, {MLB}
        v_writelane_b32 {vPRE}, {sTmp}, 4
        """)
    sU = sTmp2
    C = lines(f"""
    s_mov_b32 {SWO[2]}, {4096*512*2}
    s_mov_b32 {SWO[3]}, 0x20000
    s_mov_b32 {SOUT[2]}, 2048
    s_mov_b32 {SOUT[3]}, 0x20000
    v_xor_b32 {vKR[1]}, 64, {vKR[0]}
    v_xor_b32 {vKR[2]}, 0x80, {vKR[0]}
    v_xor_b32 {vKR[3]}, 0xc0, {vKR[0]}
    v_and_b32 {vT1}, 3, v0
    v_mul_u32_u24 {vQR}, {QSTR}, {vT1}
    v_lshl_add_u32 {vQR}, {vGQ}, 4, {vQR}
    v_lshlrev_b32 {vMR}, 4, {vT1}
    v_lshlrev_b32 {vPS}, 13, {vT1}
    v_lshl_add_u32 {vPS}, {vGQ}, 8, {vPS}
    v_bfe_u32 {vT0}, v0, 2, 1
    v_lshl_add_u32 {vPS}, {vT0}, 10, {vPS}
    s_lshl_b32 {sU}, {sW}, 2
    v_add_u32 {vMX}, {sU}, {vMR}
    s_lshl_b32 {sU}, {sKH}, 12
    v_add_u32 {vTW[0]}, {sU}, {vTW[0]}
    v_xor_b32 {vTW[1]}, 32, {vTW[0]}
    v_xor_b32 {vTW[2]}, 64, {vTW[0]}
    v_xor_b32 {vTW[3]}, 0x60, {vTW[0]}
    s_lshl_b32 {sU}, {sW}, 13
    s_add_u32 {sU}, {sU}, {L_V}
    v_add_u32 {vTV[0]}, {sU}, {vTV[0]}
    v_xor_b32 {vTV[1]}, 32, {vTV[0]}
    s_mul_i32 {sU}, {sW}, {QSTR}
    v_add_u32 {vQW}, {sU}, {vQW}
    v_lshl_add_u32 {vMLG}, {vGQ}, 2, {vI}
    v_and_b32 {vMLG}, 15, {vMLG}
    v_lshlrev_b32 {vMLG}, 4, {vMLG}
    v_lshlrev_b32 {vFS}, 3, {vI}
    v_lshl_add_u32 {vFS}, {vGQ}, 13, {vFS}
    s_lshl_b32 {oFS}, {oWO}, 1
    s_add_u32 {oFS}, {oFS}, {sKH}
    s_lshl_b32 {oFS}, {oFS}, 7
    s_lshl_b32 {sU}, {sC2}, 1
    s_add_u32 {sU}, {sU}, {sB}
    s_lshl_b32 {sU}, {sU}, 15
    s_add_u32 {oFS}, {oFS}, {sU}
    s_add_u32 {oFS}, {oFS}, {FIN}
    s_lshl_b32 {oWO}, {oWO}, 2
    s_add_u32 {oWO}, {oWO}, {sW}
    s_lshl_b32 {oWO}, {oWO}, 15
    s_lshl_b32 {sU}, {sC2}, 7
    s_add_u32 {oWO}, {oWO}, {sU}
    s_lshl_b32 {oPS}, {sG}, 1
    s_add_u32 {oPS}, {oPS}, {sBA}
    s_lshl_b32 {oML}, {oPS}, 2
    s_add_u32 {oML}, {oML}, {sW}
    s_lshl_b32 {oML}, {oML}, 8
    s_lshl_b32 {sU}, {sS}, 4
    s_add_u32 {oML}, {oML}, {sU}
    s_add_u32 {oML}, {oML}, {MLB}
    s_lshl_b32 {oPS}, {oPS}, 15
    s_add_u32 {oPS}, {oPS}, {sU}
    s_lshl_b32 {sU}, {sW}, 11
    s_add_u32 {oPS}, {oPS}, {sU}
    s_add_u32 {oPS}, {oPS}, {PART}
    s_lshl_b32 {oPA}, {sG}, 1
    s_add_u32 {oPA}, {oPA}, {sB}
    s_lshl_b32 {oPA}, {oPA}, 2
    s_add_u32 {oPA}, {oPA}, {sA}
    s_lshl_b32 {oMLG}, {oPA}, 8
    s_add_u32 {oMLG}, {oMLG}, {MLB}
    s_lshl_b32 {oPA}, {oPA}, 13
    s_lshl_b32 {sU}, {sKH}, 12
    s_add_u32 {oPA}, {oPA}, {sU}
    s_add_u32 {oPA}, {oPA}, {PART}
    s_lshl_b32 {oFG}, {sG}, 3
    s_lshr_b32 {sU}, {sJ}, 2
    s_add_u32 {oFG}, {oFG}, {sU}
    s_lshl_b32 {oFG}, {oFG}, 13
    s_and_b32 {sU}, {sJ}, 3
    s_lshl_b32 {sU}, {sU}, 5
    s_add_u32 {oFG}, {oFG}, {sU}
    s_add_u32 {oFG}, {oFG}, {FIN}
    s_add_u32 {oFG2}, {oFG}, 4096
    """)
    def kjob(idx):
        def f():
            if idx == 4: a(f"s_add_u32 m0, m0, 4096\ns_add_u32 {oK}, {oK}, 4096")
            vmem("k", f"buffer_load_dwordx4 {vK[idx & 3]}, {SK}, {oK} offen offset:{(idx & 3)*1024} {pol('k')} lds")
        return f
    NKA = opt.get("nka", 0)
    NKP = opt.get("nkp", 7)
    kj = [kjob(i) for i in range(NKP)]
    for x in A: a(x)
    ja = [kj.pop(0) for _ in range(NKA)]
    weave(B, ja, max(len(B) // (NKA + 1), 1))
    for f in ja: f()
    mk = v.mark()
    f = v.get(16, 2); nm = v.get(2, 2); acc = v.get(2, 2); t0 = v.get(); t1 = v.get(); vMean = v.get(2, 2); vR = v.get(2, 2)
    g4 = v.get(8, 2)
    stamp("addr")
    wait_vm("xs")
    stamp("x")
    LN = []
    for k in range(8):
        LN += [f"v_lshlrev_b32 {f[2*k]}, 16, {xs[k]}", f"v_and_b32 {f[2*k+1]}, {sHi}, {xs[k]}"]
    LN += lines(f"""
    v_pk_add_f32 {g4[0:2]}, {f[0:2]}, {f[2:4]}
    v_pk_add_f32 {g4[2:4]}, {f[4:6]}, {f[6:8]}
    v_pk_add_f32 {g4[4:6]}, {f[8:10]}, {f[10:12]}
    v_pk_add_f32 {g4[6:8]}, {f[12:14]}, {f[14:16]}
    v_pk_add_f32 {g4[0:2]}, {g4[0:2]}, {g4[2:4]}
    v_pk_add_f32 {g4[4:6]}, {g4[4:6]}, {g4[6:8]}
    v_add_f32 {acc[0]}, {g4[0]}, {g4[1]}
    v_add_f32 {acc[1]}, {g4[4]}, {g4[5]}
    """)
    xu = g4
    def red(x, tmp, fill):
        o = []
        def F(n=2):
            for _ in range(n):
                if fill: o.append(fill.pop(0))
        o += [f"v_cndmask_b32 {tmp}, {acc[1]}, {acc[0]}, {sB3}", f"v_cndmask_b32 {x}, {acc[0]}, {acc[1]}, {sB3}"]
        F(2); o.append(f"v_add_f32_dpp {x}, {tmp}, {x} row_ror:8 {DPPM}")
        for m in ("quad_perm:[1,0,3,2]", "quad_perm:[2,3,0,1]", "row_half_mirror"):
            F(); o.append(f"v_add_f32_dpp {x}, {x}, {x} {m} {DPPM}")
        o.append(f"v_mov_b32 {tmp}, {x}"); F(); o += [f"v_permlane16_swap_b32 {x}, {tmp}", f"v_add_f32 {x}, {x}, {tmp}"]
        o.append(f"v_mov_b32 {tmp}, {x}"); F(); o += [f"v_permlane32_swap_b32 {x}, {tmp}", f"v_add_f32 {x}, {x}, {tmp}"]
        return o + fill
    XOW = "@waitxo"
    fill = [XOW]
    for k in range(4):
        fill += [f"v_lshlrev_b32 {xu[2*k]}, 16, {xo[k]}", f"v_and_b32 {xu[2*k+1]}, {sHi}, {xo[k]}"]
    LN += red(t0, t1, fill)
    nm2 = vR
    LN += lines(f"""
    v_mul_f32 {t0}, 0xbb000000, {t0}
    v_cvt_pk_bf16_f32 {vMean[0]}, {t0}, {t0}
    v_and_b32 {vMean[0]}, {sHi}, {vMean[0]}
    v_mov_b32_dpp {nm[0]}, {t0} row_newbcast:0 {DPPM}
    v_mov_b32_dpp {nm2[0]}, {t0} row_newbcast:8 {DPPM}
    v_mov_b32_dpp {nm[1]}, {t0} row_newbcast:0 {DPPM}
    v_mov_b32_dpp {nm2[1]}, {t0} row_newbcast:8 {DPPM}
    """)
    for k in range(8):
        LN.append(f"v_pk_add_f32 {f[2*k:2*k+2]}, {f[2*k:2*k+2]}, {nm if k < 4 else nm2}")
    LN += [f"v_pk_mul_f32 {nm}, {f[0:2]}, {f[0:2]}", f"v_pk_mul_f32 {nm2}, {f[8:10]}, {f[8:10]}"]
    for k in range(1, 4):
        LN += [f"v_pk_fma_f32 {nm}, {f[2*k:2*k+2]}, {f[2*k:2*k+2]}, {nm}", f"v_pk_fma_f32 {nm2}, {f[8+2*k:8+2*k+2]}, {f[8+2*k:8+2*k+2]}, {nm2}"]
    LN += [f"v_add_f32 {acc[0]}, {nm[0]}, {nm[1]}", f"v_add_f32 {acc[1]}, {nm2[0]}, {nm2[1]}"]
    fill = [f"v_mov_b32 {vMean[1]}, {vMean[0]}"]
    for k in range(4):
        fill.append(f"v_pk_add_f32 {xu[2*k:2*k+2]}, {xu[2*k:2*k+2]}, {vMean}")
    for k in range(4):
        fill.append(f"v_cvt_pk_bf16_f32 {xo[k]}, {xu[2*k]}, {xu[2*k+1]}")
    for k in range(2):
        fill += [f"v_lshlrev_b32 {xu[2*k]}, 16, {xo[k]}", f"v_and_b32 {xu[2*k+1]}, {sHi}, {xo[k]}"]
    LN += red(t0, t1, fill)
    LN += lines(f"""
    v_mul_f32 {t0}, 0x3b000000, {t0}
    v_cvt_pk_bf16_f32 {t0}, {t0}, {t0}
    v_lshlrev_b32 {t0}, 16, {t0}
    v_add_f32 {t0}, 0x3727c5ac, {t0}
    v_cvt_pk_bf16_f32 {t0}, {t0}, {t0}
    v_lshlrev_b32 {t0}, 16, {t0}
    v_sqrt_f32 {t0}, {t0}
    v_lshlrev_b32 {xu[4]}, 16, {xo[2]}
    v_cvt_pk_bf16_f32 {t0}, {t0}, {t0}
    v_lshlrev_b32 {t0}, 16, {t0}
    v_rcp_f32 {vR[0]}, {t0}
    v_and_b32 {xu[5]}, {sHi}, {xo[2]}
    v_lshlrev_b32 {xu[6]}, 16, {xo[3]}
    v_and_b32 {xu[7]}, {sHi}, {xo[3]}
    v_mov_b32 {vR[1]}, {vR[0]}
    """)
    for k in range(4):
        LN.append(f"v_pk_mul_f32 {xu[2*k:2*k+2]}, {xu[2*k:2*k+2]}, {vR}")
    for k in range(4):
        LN.append(f"v_cvt_pk_bf16_f32 {xo[k]}, {xu[2*k]}, {xu[2*k+1]}")
    LN.append(f"ds_write_b128 {vPW}, {xo} offset:{L_XN}")
    every = opt.get("kevery", 12)
    k = every - opt.get("kfirst", 1)
    for ins in LN:
        if ins == XOW: wait_vm("xo"); continue
        a(ins); k += 1
        if kj and k >= every:
            kj.pop(0)(); k = 0
    for fj in kj: fj()
    v.release(mk)
    b1r = v.get(); xf = v.get()
    sTag = s.get(4); sXCC = s.get(); sTP = s.get()
    sCnt, sMix = s.get(), s.get()
    stamp("ln")
    a(f"""
    s_getreg_b32 {sXCC}, hwreg(HW_REG_XCC_ID, 0, 4)
    s_waitcnt lgkmcnt(0)
    s_add_u32 {sTag[0]}, {sE[0]}, {hex(PHI)}
    s_lshr_b32 {sTag[1]}, {sTag[0]}, 8
    s_lshr_b32 {sTag[2]}, {sTag[0]}, 16
    s_lshr_b32 {sTag[3]}, {sTag[0]}, 24
    s_xor_b32 {sTP}, {sTag[0]}, {sXCC}
    """)
    wait_vm("w1")
    stamp("wq")
    a("s_barrier")
    mk = v.mark()
    xn = v.get(16, 2); aq = v.get(16, 2); a1 = v.get(8, 2); dq = v.get(4, 2); dh = v.get(4, 2)
    for t in range(4):
        a(f"ds_read_b128 {xn[4*t:4*t+4]}, {vL16} offset:{L_XN + 1024*t}")
        for hi in range(2):
            a(f"ds_read_b64_tr_b16 {aq[4*t+2*hi:4*t+2*hi+2]}, {vTQ} offset:{L_WQ + 4096*t + 512*hi}")
    for t in range(2):
        for hi in range(2):
            a(f"ds_read_b64_tr_b16 {a1[4*t+2*hi:4*t+2*hi+2]}, {vTQ} offset:{L_W1 + 4096*t + 512*hi}")
    for t in range(4):
        a(f"s_waitcnt lgkmcnt({13 - 3*t})")
        a(f"v_mfma_f32_16x16x32_bf16 {dq}, {aq[4*t:4*t+4]}, {xn[4*t:4*t+4]}, {dq if t else 0}")
    for t in range(2):
        a(f"s_waitcnt lgkmcnt({2 - 2*t})")
        a(f"v_mfma_f32_16x16x32_bf16 {dh}, {a1[4*t:4*t+4]}, {xn[4*t:4*t+4]}, {dh if t else 0}")
    a("s_mov_b32 exec_lo, 0x01010101\ns_mov_b32 exec_hi, 0x01010101")
    def pub(d, voff, soff, name):
        a(f"v_bfi_b32 {d[0]}, {vFF}, {sTP}, {d[0]}")
        for k in range(1, 4):
            a(f"v_bfi_b32 {d[k]}, {vFF}, {sTag[k]}, {d[k]}")
        vmem(name, f"buffer_store_dwordx4 {d}, {voff}, {SWS}, {soff} offen")
    pub(dq, vQS, oQS, "qs")
    pub(dh, vHS, oHS, "hs")
    a(f"s_add_u32 {oQS}, {oQS}, {SC1D}\ns_add_u32 {oHS}, {oHS}, {SC1D}")
    a(f"v_xor_b32 {dq[0]}, {sXCC}, {dq[0]}\nv_xor_b32 {dh[0]}, {sXCC}, {dh[0]}")
    vmem("qs", f"buffer_store_dwordx4 {dq}, {vQS}, {SWS}, {oQS} offen sc1")
    vmem("hs", f"buffer_store_dwordx4 {dh}, {vHS}, {SWS}, {oHS} offen sc1")
    a("s_mov_b64 exec, -1")
    v.release(mk)
    stamp("pub1")
    for i in range(NKP, 8): kjob(i)()
    a(f"s_add_u32 m0, {sM}, {L_W2}\ns_mov_b32 {sCnt}, 0")
    vmem("w2", f"buffer_load_dwordx4 {vWO}, {SW2}, {oW2} offen {pol('w2')} lds")
    a(f"s_add_u32 m0, m0, 1024\ns_add_u32 {oW2}, {oW2}, 8192")
    vmem("w2", f"buffer_load_dwordx4 {vWO}, {SW2}, {oW2} offen {pol('w2')} lds")
    vmem("b1", f"buffer_load_ushort {b1r}, {vB1}, {SB1}, {oB1} offen")
    vmem("xf", f"buffer_load_ushort {xf}, {vXF}, {SX}, {oXF} offen")
    if prewarm:
        a("s_mov_b32 exec_lo, 31\ns_mov_b32 exec_hi, 0")
        vmem("pre", f"buffer_load_dword {vPRE}, {vPRE}, {SWS}, 0 offen sc1")
        a("s_mov_b64 exec, -1")
    qg = v.get(8, 2); hg = v.get(4, 2)
    def poll1(first):
        t = [f"buffer_load_dwordx4 {qg[0:4]}, {vQG}, {SWS}, {oQG} offen sc1",
             f"buffer_load_dwordx4 {qg[4:8]}, {vQG}, {SWS}, {oQG} offen offset:2048 sc1",
             f"buffer_load_dwordx4 {hg}, {vHG}, {SWS}, {oHG} offen sc1"]
        for x in t:
            if first: vmem("p1", x)
            else: a(x)
    NVB = opt.get("nvb", 0)
    a(f"s_lshl_b32 {sTmp}, {sW}, 13\ns_add_u32 m0, {sTmp}, {L_V}\ns_mov_b32 {sMix}, 0")
    def vjob(n):
        def f():
            if n == NVB: poll1(True)
            vmem("v%d" % (n // 2), f"buffer_load_dwordx4 {vV}, {SV}, {oV} offen {pol('v')} lds")
            if n < 7: a(f"s_add_u32 m0, m0, 1024\ns_add_u32 {oV}, {oV}, 4096")
        return f
    sMsk, sScale, sL2E, sLn2, sM2 = oQS, oHS, oW2, oK, oKV
    qb = v.get(16, 2); sc = v.get(8, 2); tmp4 = v.get(4, 2); ones = v.get(4, 2); pr = v.get(4, 2); af = v.get(4, 2); mlr = v.get(4, 2)
    sEv = sB3; sEv2 = sE
    C += lines(f"""
    s_mov_b32 {sMsk}, 0xffffff00
    s_mov_b32 {sScale}, 0x3db504f3
    s_mov_b32 {sL2E}, 0x3fb8aa3b
    s_mov_b32 {sLn2}, 0x3f317218
    s_mov_b32 {sM2}, 0xc038aa3b
    s_mov_b32 {sEv[0]}, 0x55555555
    s_mov_b32 {sEv[1]}, 0x55555555
    s_mov_b32 {sEv2[0]}, 0x33333333
    s_mov_b32 {sEv2[1]}, 0x33333333
    v_mov_b32 {mlr[2]}, {sTag[0]}
    v_mov_b32 {mlr[3]}, {sTag[0]}
    """)
    for k in range(4):
        C += [f"v_mov_b32 {ones[k]}, 0x3f803f80", f"v_mov_b32 {pr[k]}, {sTag[0]}", f"v_mov_b32 {af[k]}, 0"]
    vj = [vjob(n) for n in range(8)]
    vj.pop(0)()
    weave(C, vj, len(C) // 8)
    for fj in vj: fj()
    stamp("issV")
    wait_vm("k")
    for T in range(2):
        for st in range(4):
            a(f"ds_read_b128 {kk[16*T+4*st:16*T+4*st+4]}, {vKR[st]} offset:{4096*T}")
    wait_vm("p1")
    stamp("p1")
    a("L_chk1:")
    a(f"v_xor_b32 {vT0}, {sTP}, {qg[0]}\nv_xor_b32 {vT1}, {sTP}, {qg[4]}")
    seq = [(qg[1], sTag[1], vT0), (qg[5], sTag[1], vT1), (qg[2], sTag[2], vT0), (qg[6], sTag[2], vT1), (qg[3], sTag[3], vT0), (qg[7], sTag[3], vT1),
           (hg[0], sTP, vT0), (hg[1], sTag[1], vT1), (hg[2], sTag[2], vT0), (hg[3], sTag[3], vT1)]
    for r, tg, d in seq:
        a(f"v_bitop3_b32 {d}, {r}, {tg}, {d} {BOP}")
    a(f"""
    v_bitop3_b32 {vT0}, {vT0}, {vT1}, {vFF} bitop3:0xa8
    v_cmp_ne_u32 vcc, 0, {vT0}
    s_cbranch_vccnz L_retry1
    L_ok1:
    """)
    stamp("ok1")
    def wojob(n):
        def f():
            if n == 0: a(f"s_lshl_b32 {sTmp}, {sW}, 12\ns_add_u32 m0, {sTmp}, {L_WO}\ns_nop 0")
            vmem("wo", f"buffer_load_dwordx4 {vWO}, {SWO}, {oWO} offen {pol('wo')} lds")
            if n < 3: a(f"s_add_u32 m0, m0, 1024\ns_add_u32 {oWO}, {oWO}, 8192")
        return f
    wj = [wojob(n) for n in range(4)]
    wopos = list(opt.get("wopos", [1, 2, 3, 4]))
    def WO(p):
        while wj and wopos and wopos[0] <= p:
            wopos.pop(0); wj.pop(0)()
    for k in range(8):
        a(f"v_and_b32 {qg[k]}, {sMsk}, {qg[k]}")
    a(f"""
    v_pk_add_f32 {qg[0:2]}, {qg[0:2]}, {qg[4:6]}
    v_pk_add_f32 {qg[2:4]}, {qg[2:4]}, {qg[6:8]}
    v_and_b32 {hg[0]}, {sMsk}, {hg[0]}
    v_and_b32 {hg[1]}, {sMsk}, {hg[1]}
    v_permlane32_swap_b32 {qg[0]}, {qg[2]}
    v_permlane32_swap_b32 {qg[1]}, {qg[3]}
    v_add_f32 {qg[0]}, {qg[0]}, {qg[2]}
    v_add_f32 {qg[1]}, {qg[1]}, {qg[3]}
    v_cvt_pk_bf16_f32 {qg[0]}, {qg[0]}, {qg[1]}
    ds_write_b32 {vQW}, {qg[0]} offset:{L_Q}
    v_and_b32 {hg[2]}, {sMsk}, {hg[2]}
    v_and_b32 {hg[3]}, {sMsk}, {hg[3]}
    v_cndmask_b32 {qg[4]}, {hg[0]}, {hg[2]}, {sEv}
    v_cndmask_b32 {qg[5]}, {hg[1]}, {hg[3]}, {sEv}
    v_cndmask_b32 {qg[6]}, {hg[2]}, {hg[0]}, {sEv}
    v_cndmask_b32 {qg[7]}, {hg[3]}, {hg[1]}, {sEv}
    s_waitcnt lgkmcnt(0)
    s_barrier
    """)
    for st in range(4):
        a(f"ds_read_b128 {qb[4*st:4*st+4]}, {vQR} offset:{L_Q + 64*st}")
    WO(0)
    h = hg[0]; e = hg[1]; u = hg[2]; d1 = hg[3]; r1 = qg[5]
    a(f"""
    v_add_f32_dpp {qg[6]}, {qg[4]}, {qg[6]} quad_perm:[1,0,3,2] {DPPM}
    v_add_f32_dpp {qg[7]}, {qg[5]}, {qg[7]} quad_perm:[1,0,3,2] {DPPM}
    v_cndmask_b32 {qg[4]}, {qg[6]}, {qg[7]}, {sEv2}
    v_cndmask_b32 {h}, {qg[7]}, {qg[6]}, {sEv2}
    v_lshlrev_b32 {b1r}, 16, {b1r}
    """)
    def rnd1(x): return [f"v_cvt_pk_bf16_f32 {x}, {x}, {x}", f"v_lshlrev_b32 {x}, 16, {x}"]
    ff = [f"v_add_f32_dpp {h}, {qg[4]}, {h} quad_perm:[2,3,0,1] {DPPM}", f"v_add_f32_dpp {h}, {h}, {h} row_shl:4 {DPPM}"]
    ff += rnd1(h) + [f"v_add_f32 {h}, {h}, {b1r}"] + rnd1(h)
    ff += [f"v_mul_f32 {e}, -abs({h}), {sL2E}", f"v_exp_f32 {e}, {e}"] + rnd1(e)
    ff += [f"v_add_f32 {u}, 1.0, {e}", f"v_add_f32 {d1}, -1.0, {u}", f"v_log_f32 {u}, {u}", f"v_rcp_f32 {r1}, {d1}",
           f"v_cmp_eq_f32 vcc, 0, {d1}", f"v_mul_f32 {u}, {sLn2}, {u}", f"v_mul_f32 {r1}, {r1}, {e}", f"v_mul_f32 {u}, {u}, {r1}",
           f"v_cndmask_b32 {u}, {u}, {e}, vcc"] + rnd1(u)
    ff += [f"v_max_f32 {e}, 0, {h}", f"v_add_f32 {u}, {u}, {e}"] + rnd1(u)
    ff += [f"v_mul_f32 {e}, {sM2}, {u}", f"v_exp_f32 {e}, {e}", f"v_cmp_gt_f32 vcc, 0x3a800000, {u}", f"v_add_f32 {d1}, 1.0, {e}", f"v_rcp_f32 {d1}, {d1}",
           f"v_sub_f32 {e}, 1.0, {e}", f"v_mul_f32 {e}, {e}, {d1}", f"v_cndmask_b32 {e}, {e}, {u}, vcc"] + rnd1(e)
    ff += [f"v_mul_f32 {e}, {e}, {h}"]
    def F(n):
        for _ in range(n):
            if ff: a(ff.pop(0))
    for st in range(4):
        a(f"s_waitcnt lgkmcnt({3 - st})")
        for T in range(2):
            d = sc[4*T:4*T+4]
            a(f"v_mfma_f32_16x16x32_bf16 {d}, {kk[16*T+4*st:16*T+4*st+4]}, {qb[4*st:4*st+4]}, {d if st else 0}")
            F(1)
    F(5)
    pk = qb
    for k in range(4):
        a(f"v_cvt_pk_bf16_f32 {tmp4[k]}, {sc[2*k]}, {sc[2*k+1]}")
    for k in range(4):
        a(f"v_lshlrev_b32 {sc[2*k]}, 16, {tmp4[k]}\nv_and_b32 {sc[2*k+1]}, {sHi}, {tmp4[k]}")
    WO(1)
    for k in range(8):
        a(f"v_mul_f32 {sc[k]}, {sScale}, {sc[k]}")
    for k in range(4):
        a(f"v_cvt_pk_bf16_f32 {tmp4[k]}, {sc[2*k]}, {sc[2*k+1]}")
    for k in range(4):
        a(f"v_lshlrev_b32 {sc[2*k]}, 16, {tmp4[k]}\nv_and_b32 {sc[2*k+1]}, {sHi}, {tmp4[k]}")
    vMax = mlr[0]
    WO(2)
    a(f"""
    v_max3_f32 {vT0}, {sc[0]}, {sc[1]}, {sc[2]}
    v_max3_f32 {vT1}, {sc[3]}, {sc[4]}, {sc[5]}
    v_max3_f32 {vT0}, {vT0}, {sc[6]}, {sc[7]}
    v_max_f32 {vT0}, {vT0}, {vT1}
    v_mov_b32 {vT1}, {vT0}
    """)
    F(2)
    a(f"v_permlane16_swap_b32 {vT0}, {vT1}\nv_max_f32 {vT0}, {vT0}, {vT1}\nv_mov_b32 {vT1}, {vT0}")
    F(2)
    a(f"v_permlane32_swap_b32 {vT0}, {vT1}\nv_max_f32 {vT0}, {vT0}, {vT1}\nds_write_b32 {vMX}, {vT0} offset:{L_MX}")
    WO(3)
    F(10)
    a(f"s_waitcnt lgkmcnt(0)\ns_barrier\nds_read_b128 {tmp4}, {vMR} offset:{L_MX}")
    bw = v.get(16, 2); df = v.get(16, 2)
    for ct in range(4):
        for hi in range(2):
            a(f"ds_read_b64_tr_b16 {bw[4*ct+2*hi:4*ct+2*hi+2]}, {vTW[ct]} offset:{L_W2 + 2048*hi}")
    F(4)
    a(f"""
    s_waitcnt lgkmcnt(8)
    v_max3_f32 {vT0}, {tmp4[0]}, {tmp4[1]}, {tmp4[2]}
    v_max_f32 {vT0}, {vT0}, {tmp4[3]}
    v_mul_f32 {vMax}, {sL2E}, {vT0}
    """)
    for k in range(8):
        a(f"v_fma_f32 {sc[k]}, {sc[k]}, {sL2E}, -{vMax}")
    WO(4)
    for k in range(8):
        a(f"v_exp_f32 {sc[k]}, {sc[k]}")
    for k in range(4):
        a(f"v_cvt_pk_bf16_f32 {tmp4[k]}, {sc[2*k]}, {sc[2*k+1]}")
    a(f"ds_write_b128 {vPW}, {tmp4} offset:{L_XN}")
    WO(5)
    F(100)
    a(f"""
    v_mov_b32_dpp {u}, {e} quad_perm:[2,3,0,1] {DPPM}
    s_lshl_b32 {sTmp}, {sKH}, 12
    v_cvt_pk_bf16_f32 {u}, {e}, {u}
    s_waitcnt lgkmcnt(0)
    s_barrier
    """)
    for t in range(4):
        a(f"ds_read_b128 {pk[4*t:4*t+4]}, {vL16} offset:{L_XN + 1024*t}")
    dl = sc[0:4]
    a(f"""
    v_mov_b32_dpp {af[0]}, {u} quad_perm:[0,1,2,3] row_mask:0xf bank_mask:0x1
    v_mov_b32_dpp {af[1]}, {u} row_shl:1 row_mask:0xf bank_mask:0x1
    v_mov_b32_dpp {af[2]}, {u} row_shl:8 row_mask:0xf bank_mask:0x1
    v_mov_b32_dpp {af[3]}, {u} row_shl:9 row_mask:0xf bank_mask:0x1
    v_mov_b32 {vT0}, 0
    v_add_u32 {vTW[0]}, {sTmp}, {vTW[0]}
    """)
    for ct in range(4):
        a(f"v_mfma_f32_16x16x32_bf16 {df[4*ct:4*ct+4]}, {af}, {bw[4*ct:4*ct+4]}, 0")
        if ct: a(f"v_add_u32 {vTW[ct]}, {sTmp}, {vTW[ct]}")
    WO(6)
    for t in range(4):
        a(f"s_waitcnt lgkmcnt({3 - t})")
        a(f"v_mfma_f32_16x16x32_bf16 {dl}, {ones}, {pk[4*t:4*t+4]}, {dl if t else 0}")
    WO(99)
    stamp("soft")
    av = v.get(16, 2); do = v.get(8, 2)
    for t in range(4):
        buf = av[8*(t&1):8*(t&1)+8]
        wait_vm("v%d" % t)
        if t == 3: stamp("V")
        for T in range(2):
            for hi in range(2):
                a(f"ds_read_b64_tr_b16 {buf[4*T+2*hi:4*T+2*hi+2]}, {vTV[T]} offset:{2048*t + 1024*hi}")
        if t == 0:
            a(f"""
            s_lshl_b32 {sTmp}, 1, {sW}
            s_cmp_eq_u32 {sMix}, 0
            v_mov_b32 {mlr[1]}, {dl[0]}
            s_mov_b32 exec_lo, {sTmp}
            s_mov_b32 exec_hi, 0
            s_cbranch_scc0 L_mlmix
            """)
            vmem("ml", f"buffer_store_dwordx4 {mlr}, {vT0}, {SWS}, {oML} offen")
            a("L_mlback:")
            a("s_mov_b64 exec, -1")
        for T in range(2):
            a(f"s_waitcnt lgkmcnt({2 - 2*T})")
            d = do[4*T:4*T+4]
            a(f"v_mfma_f32_16x16x32_bf16 {d}, {buf[4*T:4*T+4]}, {pk[4*t:4*t+4]}, {d if t else 0}")
    a(f"""
    s_mov_b32 exec_lo, 0x000f000f
    s_mov_b32 exec_hi, 0x000f000f
    s_cmp_eq_u32 {sMix}, 0
    v_cvt_pk_bf16_f32 {pr[2]}, {do[0]}, {do[1]}
    v_cvt_pk_bf16_f32 {pr[3]}, {do[2]}, {do[3]}
    s_mov_b32 exec_lo, 0x00f000f0
    s_mov_b32 exec_hi, 0x00f000f0
    v_cvt_pk_bf16_f32 {pr[0]}, {do[4]}, {do[5]}
    v_cvt_pk_bf16_f32 {pr[1]}, {do[6]}, {do[7]}
    s_mov_b32 exec_lo, 0x00ff00ff
    s_mov_b32 exec_hi, 0x00ff00ff
    s_cbranch_scc0 L_psmix
    """)
    vmem("ps", f"buffer_store_dwordx4 {pr}, {vPS}, {SWS}, {oPS} offen")
    a("L_psback:")
    a("s_mov_b64 exec, -1")
    stamp("pub2")
    pa = kk[0:16]; mlg = kk[16:20]; bo = v.get(32, 2); dd = v.get(16, 2)
    def poll2(first):
        t = []
        for tl in range(2):
            t.append(f"buffer_load_dwordx4 {pa[8*tl:8*tl+4]}, {vPA}, {SWS}, {oPA} offen offset:{2048*tl} sc1")
            t.append(f"buffer_load_dwordx4 {pa[8*tl+4:8*tl+8]}, {vPA}, {SWS}, {oPA} offen offset:{2048*tl+1024} sc1")
        t.append(f"buffer_load_dwordx4 {mlg}, {vMLG}, {SWS}, {oMLG} offen sc1")
        for x in t:
            if first: vmem("p2", x)
            else: a(x)
    allow = opt.get("p2allow", 1)
    if allow < 4: wait_vm("wo", allow)
    poll2(True)
    wait_vm("wo")
    stamp("wo")
    a("s_barrier")
    for tl in range(2):
        for ct in range(4):
            for hi in range(2):
                r = bo[16*tl+4*ct+2*hi:16*tl+4*ct+2*hi+2]
                a(f"ds_read_b64_tr_b16 {r}, {vTW[ct]} offset:{L_WO + 4096*tl + 2048*hi}")
    fo = pr[0:2]
    a(f"s_mov_b32 {sCnt}, 0\nv_mov_b32 {fo[1]}, {sTag[0]}\nv_lshlrev_b32 {xf}, 16, {xf}")
    a("s_waitcnt vmcnt(0)")
    a("L_chk2:")
    a(f"v_xor_b32 {vT0}, {sTag[0]}, {pa[1]}")
    for r in (pa[6], pa[9], pa[14], mlg[2]):
        a(f"v_bitop3_b32 {vT0}, {r}, {sTag[0]}, {vT0} {BOP}")
    a(f"""
    v_cmp_ne_u32 vcc, 0, {vT0}
    s_cbranch_vccnz L_retry2
    L_ok2:
    s_mov_b64 exec, -1
    """)
    stamp("ok2")
    wv = vT1
    a(f"v_max_f32_dpp {vT0}, {mlg[0]}, {mlg[0]} row_ror:1 {DPPM}\ns_waitcnt lgkmcnt(8)")
    wchain = [f"v_max_f32_dpp {vT0}, {vT0}, {vT0} row_ror:{r} {DPPM}" for r in (2, 4, 8)]
    wchain += [f"v_sub_f32 {wv}, {mlg[0]}, {vT0}", f"v_exp_f32 {wv}, {wv}", f"v_mul_f32 {vT0}, {wv}, {mlg[1]}"]
    wchain += [f"v_add_f32_dpp {vT0}, {vT0}, {vT0} row_ror:{r} {DPPM}" for r in (1, 2, 4, 8)]
    wchain += [f"v_rcp_f32 {vT0}, {vT0}", f"v_mul_f32 {wv}, {wv}, {vT0}"]
    for tl in range(2):
        if tl: a("s_waitcnt lgkmcnt(0)")
        for ct in range(4):
            a(f"v_mfma_f32_16x16x32_bf16 {dd[4*ct:4*ct+4]}, {pa[8*tl+2:8*tl+6]}, {bo[16*tl+4*ct:16*tl+4*ct+4]}, {dd[4*ct:4*ct+4] if tl else 0}")
            a(wchain.pop(0))
    for x in wchain: a(x)
    for ct in range(4):
        for r in range(4):
            a(f"v_fmac_f32_dpp {df[4*ct]}, {wv}, {dd[4*ct+r]} row_newbcast:{r} {DPPM}")
    a(f"""
    v_permlane32_swap_b32 {df[0]}, {df[8]}
    v_permlane32_swap_b32 {df[4]}, {df[12]}
    v_add_f32 {df[0]}, {df[0]}, {df[8]}
    v_add_f32 {df[4]}, {df[4]}, {df[12]}
    s_cmp_eq_u32 {sW}, 0
    v_permlane16_swap_b32 {df[0]}, {df[4]}
    v_add_f32 {fo[0]}, {df[0]}, {df[4]}
    buffer_store_dwordx2 {fo}, {vFS}, {SWS}, {oFS} offen sc1
    """)
    if stamps or probe:
        stamp("pub3", flush=True)
        a(f"s_cmp_eq_u32 {sW}, 0")
    a("s_cbranch_scc0 L_fin")
    fg = bo[0:8]
    a(f"s_mov_b32 {sCnt}, 0")
    if opt.get("p3delay"):
        a("s_waitcnt vmcnt(0)")
    a(f"""
    L_poll3:
    buffer_load_dwordx4 {fg[0:4]}, {vFG}, {SWS}, {oFG} offen sc1
    buffer_load_dwordx4 {fg[4:8]}, {vFG}, {SWS}, {oFG2} offen sc1
    s_add_u32 {sCnt}, {sCnt}, 1
    s_cmp_gt_u32 {sCnt}, 20000
    s_cbranch_scc1 L_ok3
    s_waitcnt vmcnt(0)
    v_xor_b32 {vT0}, {sTag[0]}, {fg[1]}
    v_bitop3_b32 {vT0}, {fg[3]}, {sTag[0]}, {vT0} {BOP}
    v_bitop3_b32 {vT0}, {fg[5]}, {sTag[0]}, {vT0} {BOP}
    v_bitop3_b32 {vT0}, {fg[7]}, {sTag[0]}, {vT0} {BOP}
    v_cmp_ne_u32 vcc, 0, {vT0}
    s_cbranch_vccz L_ok3
    {'s_mov_b64 exec, vcc' if opt.get('sticky', 1) else ''}
    s_branch L_poll3
    L_ok3:
    s_mov_b64 exec, -1
    s_waitcnt vmcnt(0)
    v_add_f32 {dd[0]}, {fg[0]}, {fg[4]}
    v_add_f32 {dd[1]}, {fg[2]}, {fg[6]}
    """)
    stamp("ok3", flush=True)
    for r in (2, 4, 8):
        a(f"v_add_f32_dpp {dd[0]}, {dd[0]}, {dd[0]} row_ror:{r} {DPPM}")
        a(f"v_add_f32_dpp {dd[1]}, {dd[1]}, {dd[1]} row_ror:{r} {DPPM}")
    a(f"""
    s_cmp_eq_u32 s2, 0
    v_permlane16_swap_b32 {dd[0]}, {dd[1]}
    v_add_f32 {dd[0]}, {dd[0]}, {dd[1]}
    v_mov_b32 {dd[1]}, {dd[0]}
    v_permlane32_swap_b32 {dd[0]}, {dd[1]}
    v_add_f32 {dd[0]}, {dd[0]}, {dd[1]}
    v_add_f32 {dd[0]}, {dd[0]}, {xf}
    v_cvt_pk_bf16_f32 {dd[0]}, {dd[0]}, {dd[0]}
    s_mov_b32 exec_lo, 0x00030003
    s_mov_b32 exec_hi, 0
    buffer_store_short {dd[0]}, {vXF}, {SOUT}, {oXF} offen
    s_cbranch_scc0 L_fin
    s_mov_b32 exec_lo, 1
    v_mov_b32 {vT0}, 0
    buffer_store_dword {fo[1]}, {vT0}, {SWS}, 0 offen
    L_fin:
    """)
    if stamps:
        stamp("end", True)
        a("s_mov_b64 exec, -1")
        a(f"""
        s_getreg_b32 {sTmp}, hwreg(HW_REG_HW_ID)
        v_writelane_b32 {vST}, {sTmp}, 29
        v_writelane_b32 {vST}, {sXCC}, 30
        v_writelane_b32 {vST}, {sMix}, 31
        s_lshl_b32 {sTmp}, s2, 2
        s_add_u32 {sTmp}, {sTmp}, {sW}
        s_lshl_b32 {sTmp}, {sTmp}, 7
        s_add_u32 {sTmp}, {sTmp}, {STAMP}
        v_lshlrev_b32 {vT1}, 2, v0
        s_mov_b32 exec_lo, -1
        s_mov_b32 exec_hi, 0
        buffer_store_dword {vST}, {vT1}, {SWS}, {sTmp} offen
        """)
        out.insert(len(hdr), "; stamps: " + ",".join(names))
    if probe:
        stamp("end")
        a(f"""
        s_cmp_eq_u32 {sW}, {opt.get('pwave', 0)}
        s_cbranch_scc0 L_end
        s_load_dwordx2 s[8:9], s[0:1], 80
        s_mov_b32 s10, 256
        s_mov_b32 s11, 0x20000
        s_mov_b64 exec, 1
        s_waitcnt lgkmcnt(0)
        s_sub_u32 s4, 0, s100
        v_mov_b32 v2, s4
        v_mov_b32 v3, s98
        v_mov_b32 v4, 0
        buffer_atomic_umax v2, v4, s[8:11], 0 offen sc1
        buffer_atomic_umax v3, v4, s[8:11], 0 offen offset:128 sc1
        s_waitcnt vmcnt(0)
        L_hold0:
        s_memrealtime s[4:5]
        s_waitcnt lgkmcnt(0)
        s_sub_u32 s4, s4, s100
        s_cmp_lt_u32 s4, 2000
        s_cbranch_scc1 L_hold0
        buffer_load_dword v2, v4, s[8:11], 0 offen sc1
        buffer_load_dword v3, v4, s[8:11], 0 offen offset:128 sc1
        s_waitcnt vmcnt(0)
        v_readfirstlane_b32 s100, v2
        v_readfirstlane_b32 s98, v3
        s_sub_u32 s100, 0, s100
        s_sub_u32 s98, s98, s100
        s_min_u32 s98, s98, 2000
        s_mul_i32 s98, s98, {opt.get('mult', 4)}
        s_add_u32 s98, s98, 2500
        L_hold1:
        s_memrealtime s[4:5]
        s_waitcnt lgkmcnt(0)
        s_sub_u32 s4, s4, s100
        s_cmp_lt_u32 s4, s98
        s_cbranch_scc1 L_hold1
        """)
    a("L_end:\ns_endpgm")
    a(f"""
    L_retry1:
    s_add_u32 {sCnt}, {sCnt}, 1
    s_cmp_gt_u32 {sCnt}, 20000
    s_cbranch_scc1 L_ok1
    s_cmp_eq_u32 {sCnt}, {opt.get('nplain', 12)}
    s_cbranch_scc0 L_r1b
    s_mov_b32 {sMix}, 1
    s_mov_b32 {sTP}, {sTag[0]}
    s_add_u32 {oQG}, {oQG}, {SC1D}
    s_add_u32 {oHG}, {oHG}, {SC1D}
    L_r1b:
    """)
    poll1(False)
    a("s_waitcnt vmcnt(0)\ns_branch L_chk1")
    a(f"""
    L_mlmix:
    buffer_store_dwordx4 {mlr}, {vT0}, {SWS}, {oML} offen sc1
    s_branch L_mlback
    L_psmix:
    buffer_store_dwordx4 {pr}, {vPS}, {SWS}, {oPS} offen sc1
    s_branch L_psback
    L_retry2:
    s_add_u32 {sCnt}, {sCnt}, 1
    s_cmp_gt_u32 {sCnt}, 20000
    s_cbranch_scc1 L_ok2
    {'s_mov_b64 exec, vcc' if opt.get('sticky', 1) else ''}
    """)
    poll2(False)
    a("s_waitcnt vmcnt(0)\ns_branch L_chk2")
    nv = (v.hw + 7) // 8 * 8
    out.append(a.text())
    out.append(f""".section .rodata,"a"
.p2align 6
.amdhsa_kernel {NAME}_kernel
  .amdhsa_next_free_vgpr {nv}
  .amdhsa_next_free_sgpr 102
  .amdhsa_accum_offset {nv}
  .amdhsa_group_segment_fixed_size 0
  .amdhsa_kernarg_size 96
  .amdhsa_user_sgpr_count 2
  .amdhsa_user_sgpr_kernarg_segment_ptr 1
  .amdhsa_system_sgpr_workgroup_id_x 1
.end_amdhsa_kernel""")
    sys.stderr.write("vgprs %d sgprs %d nops %d\n" % (v.hw, s.hw, a.nops))
    return "\n".join(out) + "\n"

if __name__ == "__main__":
    import json
    opt = json.loads(sys.argv[2]) if len(sys.argv) > 2 else {}
    open(sys.argv[1], "w").write(gen(opt))
```

```python
import sys
from asmlib import *

NAME = "parallel_sum__sliding_block_cached__dense_activation_mish__decode"
PHI = 0x9E3779B9
QBUF = 0x10000; HBUF = 0x50000; SC1D = 0x20000; MLB = 0x90000; PART = 0x100000; FIN = 0x180000; STAMP = 0x800000
L_XN = 0; L_Q = 4096; L_MX = 5632; L_WQ = 8192; L_WO = 8192; L_W1 = 24576; L_W2 = 32768; L_V = 40960; L_K = 73728; LDS_BYTES = 106496
QSTR = 320
DPPM = "row_mask:0xf bank_mask:0xf"
BOP = "bitop3:0xbe"

def lines(text):
    return [l.strip() for l in text.strip().split("\n") if l.strip() and not l.strip().startswith(";")]

def gen(opt):
    nt = opt.get("nt", {})
    def pol(k): return nt.get(k, "")
    stamps = opt.get("stamps", False)
    a = Asm()
    v = Alloc("v", 1, 256); s = Alloc("s", 44, 102)
    hdr = open("cdna_kernels/%s.s.ref" % NAME).read().split("\n")
    hdr = [l for l in hdr if l.startswith(";") and "@launch" not in l and "Override" not in l and "grid=ceil" not in l]
    out = list(hdr)
    out.append("; @launch grid=(256,1,1) block=(256,1,1) lds=%d" % LDS_BYTES)
    out.append('.amdgcn_target "amdgcn-amd-amdhsa--gfx950"')
    out.append(".text\n.globl %s_kernel\n.p2align 8\n.type %s_kernel,@function\n%s_kernel:" % (NAME, NAME, NAME))
    SX, SK, SV, SWQ, SWO, SW1, SB1, SW2, SOUT, SWS = [Reg("s", 4 + 4 * i, 4) for i in range(10)]
    vm = []
    def vmem(name, text):
        a(text); vm.append(name)
    def wait_vm(name, allow=0):
        idx = max(i for i, n in enumerate(vm) if n == name) - allow
        n = len(vm) - 1 - idx
        a("s_waitcnt vmcnt(%d)" % n)
    def weave(fill, jobs, every, start=0):
        k = -start
        for ins in fill:
            a(ins); k += 1
            if jobs and k >= every:
                jobs.pop(0)(); k = 0
    nst = [0, 0]
    names = []
    NR = 4
    if stamps:
        sST = [s.get(2, 2) for _ in range(NR)]; vST = v.get()
    probe = opt.get("probe")
    def stamp(name, last=False, flush=False):
        if probe and name == "start": a("s_memrealtime s[100:101]")
        if probe and name == probe: a("s_memrealtime s[98:99]")
        if stamps:
            k = nst[0]; nst[0] += 1; names.append(name)
            assert k < 29
            done = nst[1]
            if k - done >= NR:
                a("v_writelane_b32 %s, %s, %d" % (vST, sST[done % NR][0], done)); done += 1
            a("s_memrealtime %s" % sST[k % NR])
            if last or flush:
                a("s_waitcnt lgkmcnt(0)")
                while done <= k:
                    a("v_writelane_b32 %s, %s, %d" % (vST, sST[done % NR][0], done)); done += 1
            nst[1] = done
    stamp("start")
    a(f"""
    s_load_dwordx2 {SX[0:2]}, s[0:1], 0
    s_load_dwordx2 {SWQ[0:2]}, s[0:1], 24
    s_load_dwordx2 {SW1[0:2]}, s[0:1], 48
    s_load_dwordx2 {SK[0:2]}, s[0:1], 8
    s_load_dwordx2 {SWS[0:2]}, s[0:1], 88
    s_load_dwordx2 {SW2[0:2]}, s[0:1], 64
    s_cmp_ge_u32 s2, 256
    s_cbranch_scc1 L_end
    """)
    sW, sG, sJ, sA, sC, sT, sBLK, sTmp, sTmp2 = [s.get() for _ in range(9)]
    oXO, oWQ, oW1, oKV, oK, oW2 = [s.get() for _ in range(6)]
    sM = s.get()
    vGQ, vI, vT0, vT1 = [v.get() for _ in range(4)]
    vL16, vB3, vXO, vWQe, vWQo, vW1e, vW1o = [v.get() for _ in range(7)]
    vK = v.get(4)
    a(f"""
    v_readfirstlane_b32 {sW}, v0
    v_and_b32 v0, 63, v0
    s_and_b32 {sG}, s2, 7
    s_lshr_b32 {sJ}, s2, 3
    s_lshr_b32 {sW}, {sW}, 6
    s_lshr_b32 {sA}, {sJ}, 3
    s_and_b32 {sC}, {sJ}, 7
    v_lshrrev_b32 {vGQ}, 4, v0
    v_and_b32 {vI}, 15, v0
    s_mov_b32 {SX[2]}, 2048
    s_mov_b32 {SX[3]}, 0x20000
    s_mov_b32 {SWQ[2]}, {512*4096*2}
    s_mov_b32 {SWQ[3]}, 0x20000
    v_lshlrev_b32 {vL16}, 4, v0
    v_bfe_u32 {vB3}, v0, 3, 1
    v_lshlrev_b32 {vT0}, 10, {vB3}
    v_lshl_add_u32 {vXO}, {vGQ}, 4, {vT0}
    v_and_b32 {vT0}, 1, {vGQ}
    v_lshlrev_b32 {vT0}, 1, {vT0}
    v_and_b32 {vT1}, 7, v0
    v_xor_b32 {vT0}, {vT0}, {vT1}
    v_lshlrev_b32 {vT0}, 4, {vT0}
    v_lshrrev_b32 {vT1}, 3, v0
    v_lshl_add_u32 {vWQe}, {vT1}, 13, {vT0}
    v_xor_b32 {vWQo}, 64, {vWQe}
    v_mul_u32_u24 {vW1e}, 3584, {vT1}
    v_add_u32 {vW1e}, {vW1e}, {vT0}
    v_xor_b32 {vW1o}, 64, {vW1e}
    s_and_b32 {sTmp}, {sC}, 1
    s_lshl_b32 {sTmp2}, {sTmp}, 1
    s_xor_b32 {sTmp2}, {sTmp2}, {sW}
    s_lshl_b32 {sTmp2}, {sTmp2}, 5
    s_lshl_b32 {oXO}, {sA}, 7
    s_add_u32 {sTmp2}, {sTmp2}, {oXO}
    s_lshl_b32 {oWQ}, {sTmp2}, 13
    s_lshl_b32 {sM}, {sG}, 10
    s_add_u32 {oWQ}, {oWQ}, {sM}
    s_lshl_b32 {sM}, {sC}, 7
    s_add_u32 {oWQ}, {oWQ}, {sM}
    s_lshl_b32 {sTmp}, {sTmp}, 6
    s_add_u32 {oW1}, {oXO}, {sTmp}
    s_lshl_b32 {sTmp}, {sW}, 4
    s_add_u32 {oW1}, {oW1}, {sTmp}
    s_mul_i32 {oW1}, {oW1}, 3584
    s_lshl_b32 {oXO}, {sTmp2}, 1
    s_lshr_b32 {sT}, {sC}, 1
    s_sub_u32 {sT}, {sT}, {sA}
    s_and_b32 {sT}, {sT}, 3
    s_lshl_b32 {sBLK}, {sG}, 2
    s_mul_i32 {sTmp2}, {sG}, 3
    s_add_u32 {sTmp2}, {sTmp2}, 4
    s_min_u32 {sBLK}, {sBLK}, {sTmp2}
    s_add_u32 {sBLK}, {sBLK}, {sT}
    s_lshr_b32 {sTmp2}, {sG}, 2
    s_add_u32 {sTmp2}, {sTmp2}, {sT}
    s_cmp_eq_u32 {sTmp2}, 4
    s_cselect_b32 {sBLK}, 0x4000, {sBLK}
    s_lshl_b32 {sTmp2}, {sBLK}, 7
    s_add_u32 {oW1}, {oW1}, {sTmp2}
    s_mov_b32 {SW1[2]}, {512*1792*2}
    s_mov_b32 {SW1[3]}, 0x20000
    s_lshl_b32 {sM}, {sW}, 12
    s_add_u32 m0, {sM}, {L_WQ}
    s_lshl_b32 {sM}, {sW}, 11
    s_waitcnt lgkmcnt(0)
    """)
    stamp("karg")
    xs = v.get(8, 2); xo = v.get(4, 2)
    kk = v.get(32, 2)
    sE = s.get(2, 2)
    vmem("xs", f"buffer_load_dwordx4 {xs[0:4]}, {vL16}, {SX}, 0 offen")
    vmem("xs", f"buffer_load_dwordx4 {xs[4:8]}, {vL16}, {SX}, 0 offen offset:1024")
    vmem("xo", f"buffer_load_dwordx4 {xo}, {vXO}, {SX}, {oXO} offen")
    for k in range(4):
        vmem("wq", f"buffer_load_dwordx4 {vWQo if k & 1 else vWQe}, {SWQ}, {oWQ} offen {pol('wq')} lds")
        if k < 3:
            a(f"s_add_u32 m0, m0, 1024\ns_add_u32 {oWQ}, {oWQ}, 65536")
    a(f"s_add_u32 m0, {sM}, {L_W1}\ns_load_dword {sE[0]}, {SWS[0:2]}, 0")
    vmem("w1", f"buffer_load_dwordx4 {vW1e}, {SW1}, {oW1} offen {pol('w1')} lds")
    a(f"s_add_u32 m0, m0, 1024\ns_add_u32 {oW1}, {oW1}, 28672")
    vmem("w1", f"buffer_load_dwordx4 {vW1o}, {SW1}, {oW1} offen {pol('w1')} lds")
    stamp("iss1")
    if opt.get("codepf"):
        sPC = s.get(2, 2)
        a(f"""
        s_getpc_b64 {sPC}
        s_lshl_b32 {sTmp}, {sJ}, 2
        s_add_u32 {sTmp}, {sTmp}, {sW}
        s_min_u32 {sTmp}, {sTmp}, {opt['codepf']}
        s_lshl_b32 {sTmp}, {sTmp}, 7
        s_load_dword {sE[1]}, {sPC}, {sTmp}
        """)
    vWO, vV, vTQ = [v.get() for _ in range(3)]
    vKR = v.get(4); vTW = v.get(4); vTV = v.get(2); vFF = v.get()
    sHi = s.get()
    sB, sKH, sBA, sS, sC2 = [s.get() for _ in range(5)]
    oB1, oXF = oXO, oWQ
    vB1, vXF, vPRE, vF = vWQo, vW1e, vW1o, vWQe
    oQS, oHS, oQG, oHG, oML, oPS, oV, oWO = [s.get() for _ in range(8)]
    vQS, vHS, vQG, vHG = [v.get() for _ in range(4)]
    vQW, vQR, vMX, vMR, vPW = [v.get() for _ in range(5)]
    vPS, vMLG, vFS, vFG = [v.get() for _ in range(4)]
    vPA = vL16
    oPA, oMLG, oFS, oFG, oFG2 = oW1, s.get(), s.get(), s.get(), s.get()
    sB3 = s.get(2, 2)
    A = lines(f"""
    s_load_dwordx2 {SV[0:2]}, s[0:1], 16
    s_load_dwordx2 {SWO[0:2]}, s[0:1], 32
    s_load_dwordx2 {SB1[0:2]}, s[0:1], 56
    s_load_dwordx2 {SOUT[0:2]}, s[0:1], 72
    s_mov_b32 {SK[2]}, {2*8*8192*256}
    s_mov_b32 {SK[3]}, 0x20000
    s_lshr_b32 {sBA}, {sJ}, 4
    s_and_b32 {sS}, {sJ}, 15
    s_lshl_b32 {sTmp}, {sBA}, 3
    s_add_u32 {sTmp}, {sTmp}, {sG}
    s_lshl_b32 {oKV}, {sTmp}, 21
    s_lshl_b32 {sTmp}, {sS}, 15
    s_add_u32 {oKV}, {oKV}, {sTmp}
    s_add_u32 {oKV}, {oKV}, {6144*256}
    s_lshl_b32 {sTmp}, {sW}, 13
    s_add_u32 {oK}, {sTmp}, {oKV}
    s_add_u32 m0, {sTmp}, {L_K}
    v_xor_b32 {vT0}, {vI}, {vGQ}
    v_lshlrev_b32 {vT0}, 4, {vT0}
    v_lshl_add_u32 {vK[0]}, {vGQ}, 8, {vT0}
    v_xor_b32 {vK[1]}, 64, {vK[0]}
    v_xor_b32 {vK[2]}, 0x80, {vK[0]}
    v_xor_b32 {vK[3]}, 0xc0, {vK[0]}
    v_lshl_add_u32 {vT0}, {vI}, 8, {vT0}
    s_add_u32 {sTmp}, {sTmp}, {L_K}
    v_add_u32 {vKR[0]}, {sTmp}, {vT0}
    s_mov_b32 {SWS[2]}, 0x10000000
    s_mov_b32 {SWS[3]}, 0x20000
    s_mov_b32 {sHi}, 0xffff0000
    s_mov_b32 {sB3[0]}, 0xff00ff00
    s_mov_b32 {sB3[1]}, 0xff00ff00
    v_mov_b32 {vFF}, 0xff
    s_lshl_b32 {sTmp}, {sW}, 10
    v_add_u32 {vPW}, {sTmp}, {vL16}
    s_and_b32 {sB}, {sW}, 1
    s_lshr_b32 {sKH}, {sW}, 1
    v_and_b32 {vT0}, 1, {vGQ}
    v_lshlrev_b32 {vF}, 1, {vT0}
    v_or_b32 {vF}, {vF}, {vB3}
    v_and_b32 {vT1}, 3, v0
    v_lshlrev_b32 {vT1}, 3, {vT1}
    v_lshrrev_b32 {vT0}, 2, {vI}
    v_lshl_add_u32 {vTQ}, {vGQ}, 3, {vT0}
    v_lshl_add_u32 {vTQ}, {vTQ}, 7, {vT1}
    v_xor_b32 {vTV[0]}, {sW}, {vF}
    v_lshl_add_u32 {vTQ}, {vTV[0]}, 5, {vTQ}
    v_lshl_add_u32 {vT0}, {vGQ}, 2, {vT0}
    v_lshl_add_u32 {vTW[0]}, {vT0}, 7, {vT1}
    v_lshl_add_u32 {vTW[0]}, {vF}, 5, {vTW[0]}
    v_lshl_add_u32 {vTV[0]}, {vT0}, 6, {vT1}
    v_lshlrev_b32 {vT0}, 4, {vGQ}
    v_lshl_add_u32 {vQS}, {vB3}, 13, {vT0}
    v_lshlrev_b32 {vHS}, 7, {vGQ}
    v_lshl_add_u32 {vHS}, {vB3}, 11, {vHS}
    s_lshl_b32 {oQG}, {sG}, 14
    s_add_u32 {oQG}, {oQG}, {QBUF}
    s_lshl_b32 {sTmp}, {sA}, 11
    s_add_u32 {oQS}, {oQG}, {sTmp}
    s_lshl_b32 {sTmp}, {sC}, 8
    s_add_u32 {oQS}, {oQS}, {sTmp}
    s_lshl_b32 {sTmp2}, {sW}, 6
    s_add_u32 {oQS}, {oQS}, {sTmp2}
    s_add_u32 {oV}, {oKV}, {sTmp2}
    s_lshl_b32 {oHG}, {sG}, 2
    s_add_u32 {oWO}, {oHG}, {sA}
    s_add_u32 {oHG}, {oHG}, {sT}
    s_lshl_b32 {oHG}, {oHG}, 12
    s_add_u32 {oHG}, {oHG}, {HBUF}
    s_lshl_b32 {sTmp}, {sA}, 1
    s_and_b32 {oHS}, {sC}, 1
    s_add_u32 {sTmp}, {sTmp}, {oHS}
    s_lshl_b32 {sTmp}, {sTmp}, 4
    s_add_u32 {oHS}, {oHG}, {sTmp}
    s_lshl_b32 {sTmp}, {sW}, 9
    s_add_u32 {oHS}, {oHS}, {sTmp}
    s_add_u32 {oQG}, {oQG}, {sTmp}
    """)
    B = lines(f"""
    s_mov_b32 {SW2[2]}, {512*1792*2}
    s_mov_b32 {SW2[3]}, 0x20000
    s_mov_b32 {SV[2]}, {2*8*8192*256}
    s_mov_b32 {SV[3]}, 0x20000
    s_mov_b32 {SB1[2]}, 3584
    s_mov_b32 {SB1[3]}, 0x20000
    s_lshl_b32 {sC2}, {sKH}, {2 if opt.get('crot', 1) else 8}
    s_xor_b32 {sC2}, {sC2}, {sC}
    s_and_b32 {sC2}, {sC2}, 7
    s_lshl_b32 {oW2}, {sBLK}, 2
    s_add_u32 {oW2}, {oW2}, {sW}
    s_lshl_b32 {oW2}, {oW2}, 14
    s_lshl_b32 {sTmp}, {sC2}, 7
    s_add_u32 {oW2}, {oW2}, {sTmp}
    v_lshlrev_b32 {vT0}, 1, {vGQ}
    v_and_b32 {vT1}, 7, v0
    v_xor_b32 {vT0}, {vT0}, {vT1}
    v_lshlrev_b32 {vT0}, 4, {vT0}
    v_lshrrev_b32 {vWO}, 3, v0
    v_lshl_add_u32 {vWO}, {vWO}, 10, {vT0}
    v_lshlrev_b32 {vT0}, 4, {vGQ}
    v_lshl_add_u32 {vT0}, {vB3}, 6, {vT0}
    v_lshlrev_b32 {vHG}, 4, {vT1}
    v_lshl_add_u32 {vHG}, {vT0}, 3, {vHG}
    v_lshrrev_b32 {vB1}, 1, {vT0}
    v_and_b32 {vT1}, 1, v0
    v_lshl_add_u32 {vB1}, {vT1}, 2, {vB1}
    v_and_b32 {vT0}, 2, v0
    v_add_u32 {vB1}, {vB1}, {vT0}
    v_and_b32 {vT0}, 1, {vGQ}
    v_lshlrev_b32 {vXF}, 1, {vT0}
    v_and_b32 {vV}, 3, v0
    v_xor_b32 {vV}, {vXF}, {vV}
    v_lshlrev_b32 {vV}, 4, {vV}
    v_lshl_add_u32 {vXF}, {vT1}, 2, {vXF}
    v_lshl_add_u32 {vTV[0]}, {vT0}, 5, {vTV[0]}
    v_lshrrev_b32 {vT0}, 2, v0
    v_lshl_add_u32 {vV}, {vT0}, 8, {vV}
    v_lshrrev_b32 {vFG}, 1, v0
    v_lshlrev_b32 {vFG}, 7, {vFG}
    v_lshl_add_u32 {vFG}, {vT1}, 4, {vFG}
    v_lshrrev_b32 {vT0}, 5, v0
    v_and_b32 {vT1}, 31, v0
    v_lshlrev_b32 {vQG}, 12, {vT0}
    v_lshl_add_u32 {vQG}, {vT1}, 4, {vQG}
    v_lshlrev_b32 {vQW}, 2, {vT0}
    v_lshl_add_u32 {vQW}, {vT1}, 3, {vQW}
    s_lshl_b32 {oB1}, {sBLK}, 7
    s_lshl_b32 {sTmp}, {sKH}, 6
    s_add_u32 {oB1}, {oB1}, {sTmp}
    s_lshl_b32 {oXF}, {sBA}, 10
    s_lshl_b32 {sTmp}, {sG}, 7
    s_add_u32 {oXF}, {oXF}, {sTmp}
    s_lshl_b32 {sTmp}, {sS}, 3
    s_add_u32 {oXF}, {oXF}, {sTmp}
    s_lshl_b32 {sTmp}, {sBA}, 13
    s_add_u32 {oQG}, {oQG}, {sTmp}
    s_lshl_b32 {sTmp}, {sB}, 11
    s_add_u32 {oHG}, {oHG}, {sTmp}
    s_lshl_b32 {sTmp}, {sKH}, 10
    s_add_u32 {oHG}, {oHG}, {sTmp}
    """)
    prewarm = opt.get("prewarm", 1)
    if prewarm:
        B += lines(f"""
        s_lshl_b32 {sTmp}, {sJ}, 2
        s_add_u32 {sTmp}, {sTmp}, {sW}
        s_lshl_b32 {sTmp2}, {sG}, 7
        s_add_u32 {sTmp2}, {sTmp2}, {sTmp}
        s_lshl_b32 {sTmp2}, {sTmp2}, 9
        s_add_u32 {sTmp2}, {sTmp2}, {PART}
        v_lshlrev_b32 {vPRE}, 7, v0
        v_add_u32 {vPRE}, {sTmp2}, {vPRE}
        s_and_b32 {sTmp}, {sTmp}, 15
        s_lshl_b32 {sTmp2}, {sG}, 4
        s_add_u32 {sTmp}, {sTmp}, {sTmp2}
        s_lshl_b32 {sTmp}, {sTmp}, 7
        s_add_u32 {sTmp}, {sTmp}, {MLB}
        v_writelane_b32 {vPRE}, {sTmp}, 4
        """)
    sU = sTmp2
    C = lines(f"""
    s_mov_b32 {SWO[2]}, {4096*512*2}
    s_mov_b32 {SWO[3]}, 0x20000
    s_mov_b32 {SOUT[2]}, 2048
    s_mov_b32 {SOUT[3]}, 0x20000
    v_xor_b32 {vKR[1]}, 64, {vKR[0]}
    v_xor_b32 {vKR[2]}, 0x80, {vKR[0]}
    v_xor_b32 {vKR[3]}, 0xc0, {vKR[0]}
    v_and_b32 {vT1}, 3, v0
    v_mul_u32_u24 {vQR}, {QSTR}, {vT1}
    v_lshl_add_u32 {vQR}, {vGQ}, 4, {vQR}
    v_lshlrev_b32 {vMR}, 4, {vT1}
    v_lshlrev_b32 {vPS}, 13, {vT1}
    v_lshl_add_u32 {vPS}, {vGQ}, 8, {vPS}
    v_bfe_u32 {vT0}, v0, 2, 1
    v_lshl_add_u32 {vPS}, {vT0}, 10, {vPS}
    s_lshl_b32 {sU}, {sW}, 2
    v_add_u32 {vMX}, {sU}, {vMR}
    s_lshl_b32 {sU}, {sKH}, 12
    v_add_u32 {vTW[0]}, {sU}, {vTW[0]}
    v_xor_b32 {vTW[1]}, 32, {vTW[0]}
    v_xor_b32 {vTW[2]}, 64, {vTW[0]}
    v_xor_b32 {vTW[3]}, 0x60, {vTW[0]}
    s_lshl_b32 {sU}, {sW}, 13
    s_add_u32 {sU}, {sU}, {L_V}
    v_add_u32 {vTV[0]}, {sU}, {vTV[0]}
    v_xor_b32 {vTV[1]}, 32, {vTV[0]}
    s_mul_i32 {sU}, {sW}, {QSTR}
    v_add_u32 {vQW}, {sU}, {vQW}
    v_lshl_add_u32 {vMLG}, {vGQ}, 2, {vI}
    v_and_b32 {vMLG}, 15, {vMLG}
    v_lshlrev_b32 {vMLG}, 4, {vMLG}
    v_lshlrev_b32 {vFS}, 3, {vI}
    v_lshl_add_u32 {vFS}, {vGQ}, 13, {vFS}
    s_lshl_b32 {oFS}, {oWO}, 1
    s_add_u32 {oFS}, {oFS}, {sKH}
    s_lshl_b32 {oFS}, {oFS}, 7
    s_lshl_b32 {sU}, {sC2}, 1
    s_add_u32 {sU}, {sU}, {sB}
    s_lshl_b32 {sU}, {sU}, 15
    s_add_u32 {oFS}, {oFS}, {sU}
    s_add_u32 {oFS}, {oFS}, {FIN}
    s_lshl_b32 {oWO}, {oWO}, 2
    s_add_u32 {oWO}, {oWO}, {sW}
    s_lshl_b32 {oWO}, {oWO}, 15
    s_lshl_b32 {sU}, {sC2}, 7
    s_add_u32 {oWO}, {oWO}, {sU}
    s_lshl_b32 {oPS}, {sG}, 1
    s_add_u32 {oPS}, {oPS}, {sBA}
    s_lshl_b32 {oML}, {oPS}, 2
    s_add_u32 {oML}, {oML}, {sW}
    s_lshl_b32 {oML}, {oML}, 8
    s_lshl_b32 {sU}, {sS}, 4
    s_add_u32 {oML}, {oML}, {sU}
    s_add_u32 {oML}, {oML}, {MLB}
    s_lshl_b32 {oPS}, {oPS}, 15
    s_add_u32 {oPS}, {oPS}, {sU}
    s_lshl_b32 {sU}, {sW}, 11
    s_add_u32 {oPS}, {oPS}, {sU}
    s_add_u32 {oPS}, {oPS}, {PART}
    s_lshl_b32 {oPA}, {sG}, 1
    s_add_u32 {oPA}, {oPA}, {sB}
    s_lshl_b32 {oPA}, {oPA}, 2
    s_add_u32 {oPA}, {oPA}, {sA}
    s_lshl_b32 {oMLG}, {oPA}, 8
    s_add_u32 {oMLG}, {oMLG}, {MLB}
    s_lshl_b32 {oPA}, {oPA}, 13
    s_lshl_b32 {sU}, {sKH}, 12
    s_add_u32 {oPA}, {oPA}, {sU}
    s_add_u32 {oPA}, {oPA}, {PART}
    s_lshl_b32 {oFG}, {sG}, 3
    s_lshr_b32 {sU}, {sJ}, 2
    s_add_u32 {oFG}, {oFG}, {sU}
    s_lshl_b32 {oFG}, {oFG}, 13
    s_and_b32 {sU}, {sJ}, 3
    s_lshl_b32 {sU}, {sU}, 5
    s_add_u32 {oFG}, {oFG}, {sU}
    s_add_u32 {oFG}, {oFG}, {FIN}
    s_add_u32 {oFG2}, {oFG}, 4096
    """)
    def kjob(idx):
        def f():
            if idx == 4: a(f"s_add_u32 m0, m0, 4096\ns_add_u32 {oK}, {oK}, 4096")
            vmem("k", f"buffer_load_dwordx4 {vK[idx & 3]}, {SK}, {oK} offen offset:{(idx & 3)*1024} {pol('k')} lds")
        return f
    NKA = opt.get("nka", 0)
    NKP = opt.get("nkp", 7)
    kj = [kjob(i) for i in range(NKP)]
    for x in A: a(x)
    ja = [kj.pop(0) for _ in range(NKA)]
    weave(B, ja, max(len(B) // (NKA + 1), 1))
    for f in ja: f()
    mk = v.mark()
    f = v.get(16, 2); nm = v.get(2, 2); acc = v.get(2, 2); t0 = v.get(); t1 = v.get(); vMean = v.get(2, 2); vR = v.get(2, 2)
    g4 = v.get(8, 2)
    stamp("addr")
    wait_vm("xs")
    stamp("x")
    LN = []
    for k in range(8):
        LN += [f"v_lshlrev_b32 {f[2*k]}, 16, {xs[k]}", f"v_and_b32 {f[2*k+1]}, {sHi}, {xs[k]}"]
    LN += lines(f"""
    v_pk_add_f32 {g4[0:2]}, {f[0:2]}, {f[2:4]}
    v_pk_add_f32 {g4[2:4]}, {f[4:6]}, {f[6:8]}
    v_pk_add_f32 {g4[4:6]}, {f[8:10]}, {f[10:12]}
    v_pk_add_f32 {g4[6:8]}, {f[12:14]}, {f[14:16]}
    v_pk_add_f32 {g4[0:2]}, {g4[0:2]}, {g4[2:4]}
    v_pk_add_f32 {g4[4:6]}, {g4[4:6]}, {g4[6:8]}
    v_add_f32 {acc[0]}, {g4[0]}, {g4[1]}
    v_add_f32 {acc[1]}, {g4[4]}, {g4[5]}
    """)
    xu = g4
    def red(x, tmp, fill):
        o = []
        def F(n=2):
            for _ in range(n):
                if fill: o.append(fill.pop(0))
        o += [f"v_cndmask_b32 {tmp}, {acc[1]}, {acc[0]}, {sB3}", f"v_cndmask_b32 {x}, {acc[0]}, {acc[1]}, {sB3}"]
        F(2); o.append(f"v_add_f32_dpp {x}, {tmp}, {x} row_ror:8 {DPPM}")
        for m in ("quad_perm:[1,0,3,2]", "quad_perm:[2,3,0,1]", "row_half_mirror"):
            F(); o.append(f"v_add_f32_dpp {x}, {x}, {x} {m} {DPPM}")
        o.append(f"v_mov_b32 {tmp}, {x}"); F(); o += [f"v_permlane16_swap_b32 {x}, {tmp}", f"v_add_f32 {x}, {x}, {tmp}"]
        o.append(f"v_mov_b32 {tmp}, {x}"); F(); o += [f"v_permlane32_swap_b32 {x}, {tmp}", f"v_add_f32 {x}, {x}, {tmp}"]
        return o + fill
    XOW = "@waitxo"
    fill = [XOW]
    for k in range(4):
        fill += [f"v_lshlrev_b32 {xu[2*k]}, 16, {xo[k]}", f"v_and_b32 {xu[2*k+1]}, {sHi}, {xo[k]}"]
    LN += red(t0, t1, fill)
    nm2 = vR
    LN += lines(f"""
    v_mul_f32 {t0}, 0xbb000000, {t0}
    v_cvt_pk_bf16_f32 {vMean[0]}, {t0}, {t0}
    v_and_b32 {vMean[0]}, {sHi}, {vMean[0]}
    v_mov_b32_dpp {nm[0]}, {t0} row_newbcast:0 {DPPM}
    v_mov_b32_dpp {nm2[0]}, {t0} row_newbcast:8 {DPPM}
    v_mov_b32_dpp {nm[1]}, {t0} row_newbcast:0 {DPPM}
    v_mov_b32_dpp {nm2[1]}, {t0} row_newbcast:8 {DPPM}
    """)
    for k in range(8):
        LN.append(f"v_pk_add_f32 {f[2*k:2*k+2]}, {f[2*k:2*k+2]}, {nm if k < 4 else nm2}")
    LN += [f"v_pk_mul_f32 {nm}, {f[0:2]}, {f[0:2]}", f"v_pk_mul_f32 {nm2}, {f[8:10]}, {f[8:10]}"]
    for k in range(1, 4):
        LN += [f"v_pk_fma_f32 {nm}, {f[2*k:2*k+2]}, {f[2*k:2*k+2]}, {nm}", f"v_pk_fma_f32 {nm2}, {f[8+2*k:8+2*k+2]}, {f[8+2*k:8+2*k+2]}, {nm2}"]
    LN += [f"v_add_f32 {acc[0]}, {nm[0]}, {nm[1]}", f"v_add_f32 {acc[1]}, {nm2[0]}, {nm2[1]}"]
    fill = [f"v_mov_b32 {vMean[1]}, {vMean[0]}"]
    for k in range(4):
        fill.append(f"v_pk_add_f32 {xu[2*k:2*k+2]}, {xu[2*k:2*k+2]}, {vMean}")
    for k in range(4):
        fill.append(f"v_cvt_pk_bf16_f32 {xo[k]}, {xu[2*k]}, {xu[2*k+1]}")
    for k in range(2):
        fill += [f"v_lshlrev_b32 {xu[2*k]}, 16, {xo[k]}", f"v_and_b32 {xu[2*k+1]}, {sHi}, {xo[k]}"]
    LN += red(t0, t1, fill)
    LN += lines(f"""
    v_mul_f32 {t0}, 0x3b000000, {t0}
    v_cvt_pk_bf16_f32 {t0}, {t0}, {t0}
    v_lshlrev_b32 {t0}, 16, {t0}
    v_add_f32 {t0}, 0x3727c5ac, {t0}
    v_cvt_pk_bf16_f32 {t0}, {t0}, {t0}
    v_lshlrev_b32 {t0}, 16, {t0}
    v_sqrt_f32 {t0}, {t0}
    v_lshlrev_b32 {xu[4]}, 16, {xo[2]}
    v_cvt_pk_bf16_f32 {t0}, {t0}, {t0}
    v_lshlrev_b32 {t0}, 16, {t0}
    v_rcp_f32 {vR[0]}, {t0}
    v_and_b32 {xu[5]}, {sHi}, {xo[2]}
    v_lshlrev_b32 {xu[6]}, 16, {xo[3]}
    v_and_b32 {xu[7]}, {sHi}, {xo[3]}
    v_mov_b32 {vR[1]}, {vR[0]}
    """)
    for k in range(4):
        LN.append(f"v_pk_mul_f32 {xu[2*k:2*k+2]}, {xu[2*k:2*k+2]}, {vR}")
    for k in range(4):
        LN.append(f"v_cvt_pk_bf16_f32 {xo[k]}, {xu[2*k]}, {xu[2*k+1]}")
    LN.append(f"ds_write_b128 {vPW}, {xo} offset:{L_XN}")
    every = opt.get("kevery", 12)
    k = every - opt.get("kfirst", 1)
    for ins in LN:
        if ins == XOW: wait_vm("xo"); continue
        a(ins); k += 1
        if kj and k >= every:
            kj.pop(0)(); k = 0
    for fj in kj: fj()
    v.release(mk)
    b1r = v.get(); xf = v.get()
    sTag = s.get(4); sXCC = s.get(); sTP = s.get()
    sCnt, sMix = s.get(), s.get()
    stamp("ln")
    a(f"""
    s_getreg_b32 {sXCC}, hwreg(HW_REG_XCC_ID, 0, 4)
    s_waitcnt lgkmcnt(0)
    s_add_u32 {sTag[0]}, {sE[0]}, {hex(PHI)}
    s_lshr_b32 {sTag[1]}, {sTag[0]}, 8
    s_lshr_b32 {sTag[2]}, {sTag[0]}, 16
    s_lshr_b32 {sTag[3]}, {sTag[0]}, 24
    s_xor_b32 {sTP}, {sTag[0]}, {sXCC}
    """)
    wait_vm("w1")
    stamp("wq")
    a("s_barrier")
    mk = v.mark()
    xn = v.get(16, 2); aq = v.get(16, 2); a1 = v.get(8, 2); dq = v.get(4, 2); dh = v.get(4, 2)
    for t in range(4):
        a(f"ds_read_b128 {xn[4*t:4*t+4]}, {vL16} offset:{L_XN + 1024*t}")
        for hi in range(2):
            a(f"ds_read_b64_tr_b16 {aq[4*t+2*hi:4*t+2*hi+2]}, {vTQ} offset:{L_WQ + 4096*t + 512*hi}")
    for t in range(2):
        for hi in range(2):
            a(f"ds_read_b64_tr_b16 {a1[4*t+2*hi:4*t+2*hi+2]}, {vTQ} offset:{L_W1 + 4096*t + 512*hi}")
    for t in range(4):
        a(f"s_waitcnt lgkmcnt({13 - 3*t})")
        a(f"v_mfma_f32_16x16x32_bf16 {dq}, {aq[4*t:4*t+4]}, {xn[4*t:4*t+4]}, {dq if t else 0}")
    for t in range(2):
        a(f"s_waitcnt lgkmcnt({2 - 2*t})")
        a(f"v_mfma_f32_16x16x32_bf16 {dh}, {a1[4*t:4*t+4]}, {xn[4*t:4*t+4]}, {dh if t else 0}")
    a("s_mov_b32 exec_lo, 0x01010101\ns_mov_b32 exec_hi, 0x01010101")
    def pub(d, voff, soff, name):
        a(f"v_bfi_b32 {d[0]}, {vFF}, {sTP}, {d[0]}")
        for k in range(1, 4):
            a(f"v_bfi_b32 {d[k]}, {vFF}, {sTag[k]}, {d[k]}")
        vmem(name, f"buffer_store_dwordx4 {d}, {voff}, {SWS}, {soff} offen")
    pub(dq, vQS, oQS, "qs")
    pub(dh, vHS, oHS, "hs")
    a(f"s_add_u32 {oQS}, {oQS}, {SC1D}\ns_add_u32 {oHS}, {oHS}, {SC1D}")
    a(f"v_xor_b32 {dq[0]}, {sXCC}, {dq[0]}\nv_xor_b32 {dh[0]}, {sXCC}, {dh[0]}")
    vmem("qs", f"buffer_store_dwordx4 {dq}, {vQS}, {SWS}, {oQS} offen sc1")
    vmem("hs", f"buffer_store_dwordx4 {dh}, {vHS}, {SWS}, {oHS} offen sc1")
    a("s_mov_b64 exec, -1")
    v.release(mk)
    stamp("pub1")
    for i in range(NKP, 8): kjob(i)()
    a(f"s_add_u32 m0, {sM}, {L_W2}\ns_mov_b32 {sCnt}, 0")
    vmem("w2", f"buffer_load_dwordx4 {vWO}, {SW2}, {oW2} offen {pol('w2')} lds")
    a(f"s_add_u32 m0, m0, 1024\ns_add_u32 {oW2}, {oW2}, 8192")
    vmem("w2", f"buffer_load_dwordx4 {vWO}, {SW2}, {oW2} offen {pol('w2')} lds")
    vmem("b1", f"buffer_load_ushort {b1r}, {vB1}, {SB1}, {oB1} offen")
    vmem("xf", f"buffer_load_ushort {xf}, {vXF}, {SX}, {oXF} offen")
    if prewarm:
        a("s_mov_b32 exec_lo, 31\ns_mov_b32 exec_hi, 0")
        vmem("pre", f"buffer_load_dword {vPRE}, {vPRE}, {SWS}, 0 offen sc1")
        a("s_mov_b64 exec, -1")
    qg = v.get(8, 2); hg = v.get(4, 2)
    def poll1(first):
        t = [f"buffer_load_dwordx4 {qg[0:4]}, {vQG}, {SWS}, {oQG} offen sc1",
             f"buffer_load_dwordx4 {qg[4:8]}, {vQG}, {SWS}, {oQG} offen offset:2048 sc1",
             f"buffer_load_dwordx4 {hg}, {vHG}, {SWS}, {oHG} offen sc1"]
        for x in t:
            if first: vmem("p1", x)
            else: a(x)
    NVB = opt.get("nvb", 0)
    a(f"s_lshl_b32 {sTmp}, {sW}, 13\ns_add_u32 m0, {sTmp}, {L_V}\ns_mov_b32 {sMix}, 0")
    def vjob(n):
        def f():
            if n == NVB: poll1(True)
            vmem("v%d" % (n // 2), f"buffer_load_dwordx4 {vV}, {SV}, {oV} offen {pol('v')} lds")
            if n < 7: a(f"s_add_u32 m0, m0, 1024\ns_add_u32 {oV}, {oV}, 4096")
        return f
    sMsk, sScale, sL2E, sLn2, sM2 = oQS, oHS, oW2, oK, oKV
    qb = v.get(16, 2); sc = v.get(8, 2); tmp4 = v.get(4, 2); ones = v.get(4, 2); pr = v.get(4, 2); af = v.get(4, 2); mlr = v.get(4, 2)
    sEv = sB3; sEv2 = sE
    C += lines(f"""
    s_mov_b32 {sMsk}, 0xffffff00
    s_mov_b32 {sScale}, 0x3db504f3
    s_mov_b32 {sL2E}, 0x3fb8aa3b
    s_mov_b32 {sLn2}, 0x3f317218
    s_mov_b32 {sM2}, 0xc038aa3b
    s_mov_b32 {sEv[0]}, 0x55555555
    s_mov_b32 {sEv[1]}, 0x55555555
    s_mov_b32 {sEv2[0]}, 0x33333333
    s_mov_b32 {sEv2[1]}, 0x33333333
    v_mov_b32 {mlr[2]}, {sTag[0]}
    v_mov_b32 {mlr[3]}, {sTag[0]}
    """)
    for k in range(4):
        C += [f"v_mov_b32 {ones[k]}, 0x3f803f80", f"v_mov_b32 {pr[k]}, {sTag[0]}", f"v_mov_b32 {af[k]}, 0"]
    vj = [vjob(n) for n in range(8)]
    vj.pop(0)()
    weave(C, vj, len(C) // 8)
    for fj in vj: fj()
    stamp("issV")
    wait_vm("k")
    for T in range(2):
        for st in range(4):
            a(f"ds_read_b128 {kk[16*T+4*st:16*T+4*st+4]}, {vKR[st]} offset:{4096*T}")
    wait_vm("p1")
    stamp("p1")
    a("L_chk1:")
    a(f"v_xor_b32 {vT0}, {sTP}, {qg[0]}\nv_xor_b32 {vT1}, {sTP}, {qg[4]}")
    seq = [(qg[1], sTag[1], vT0), (qg[5], sTag[1], vT1), (qg[2], sTag[2], vT0), (qg[6], sTag[2], vT1), (qg[3], sTag[3], vT0), (qg[7], sTag[3], vT1),
           (hg[0], sTP, vT0), (hg[1], sTag[1], vT1), (hg[2], sTag[2], vT0), (hg[3], sTag[3], vT1)]
    for r, tg, d in seq:
        a(f"v_bitop3_b32 {d}, {r}, {tg}, {d} {BOP}")
    a(f"""
    v_bitop3_b32 {vT0}, {vT0}, {vT1}, {vFF} bitop3:0xa8
    v_cmp_ne_u32 vcc, 0, {vT0}
    s_cbranch_vccnz L_retry1
    L_ok1:
    """)
    stamp("ok1")
    def wojob(n):
        def f():
            if n == 0: a(f"s_lshl_b32 {sTmp}, {sW}, 12\ns_add_u32 m0, {sTmp}, {L_WO}\ns_nop 0")
            vmem("wo", f"buffer_load_dwordx4 {vWO}, {SWO}, {oWO} offen {pol('wo')} lds")
            if n < 3: a(f"s_add_u32 m0, m0, 1024\ns_add_u32 {oWO}, {oWO}, 8192")
        return f
    wj = [wojob(n) for n in range(4)]
    wopos = list(opt.get("wopos", [1, 2, 3, 4]))
    def WO(p):
        while wj and wopos and wopos[0] <= p:
            wopos.pop(0); wj.pop(0)()
    for k in range(8):
        a(f"v_and_b32 {qg[k]}, {sMsk}, {qg[k]}")
    a(f"""
    v_pk_add_f32 {qg[0:2]}, {qg[0:2]}, {qg[4:6]}
    v_pk_add_f32 {qg[2:4]}, {qg[2:4]}, {qg[6:8]}
    v_and_b32 {hg[0]}, {sMsk}, {hg[0]}
    v_and_b32 {hg[1]}, {sMsk}, {hg[1]}
    v_permlane32_swap_b32 {qg[0]}, {qg[2]}
    v_permlane32_swap_b32 {qg[1]}, {qg[3]}
    v_add_f32 {qg[0]}, {qg[0]}, {qg[2]}
    v_add_f32 {qg[1]}, {qg[1]}, {qg[3]}
    v_cvt_pk_bf16_f32 {qg[0]}, {qg[0]}, {qg[1]}
    ds_write_b32 {vQW}, {qg[0]} offset:{L_Q}
    v_and_b32 {hg[2]}, {sMsk}, {hg[2]}
    v_and_b32 {hg[3]}, {sMsk}, {hg[3]}
    v_cndmask_b32 {qg[4]}, {hg[0]}, {hg[2]}, {sEv}
    v_cndmask_b32 {qg[5]}, {hg[1]}, {hg[3]}, {sEv}
    v_cndmask_b32 {qg[6]}, {hg[2]}, {hg[0]}, {sEv}
    v_cndmask_b32 {qg[7]}, {hg[3]}, {hg[1]}, {sEv}
    s_waitcnt lgkmcnt(0)
    s_barrier
    """)
    for st in range(4):
        a(f"ds_read_b128 {qb[4*st:4*st+4]}, {vQR} offset:{L_Q + 64*st}")
    WO(0)
    h = hg[0]; e = hg[1]; u = hg[2]; d1 = hg[3]; r1 = qg[5]
    a(f"""
    v_add_f32_dpp {qg[6]}, {qg[4]}, {qg[6]} quad_perm:[1,0,3,2] {DPPM}
    v_add_f32_dpp {qg[7]}, {qg[5]}, {qg[7]} quad_perm:[1,0,3,2] {DPPM}
    v_cndmask_b32 {qg[4]}, {qg[6]}, {qg[7]}, {sEv2}
    v_cndmask_b32 {h}, {qg[7]}, {qg[6]}, {sEv2}
    v_lshlrev_b32 {b1r}, 16, {b1r}
    """)
    def rnd1(x): return [f"v_cvt_pk_bf16_f32 {x}, {x}, {x}", f"v_lshlrev_b32 {x}, 16, {x}"]
    ff = [f"v_add_f32_dpp {h}, {qg[4]}, {h} quad_perm:[2,3,0,1] {DPPM}", f"v_add_f32_dpp {h}, {h}, {h} row_shl:4 {DPPM}"]
    ff += rnd1(h) + [f"v_add_f32 {h}, {h}, {b1r}"] + rnd1(h)
    ff += [f"v_mul_f32 {e}, -abs({h}), {sL2E}", f"v_exp_f32 {e}, {e}"] + rnd1(e)
    ff += [f"v_add_f32 {u}, 1.0, {e}", f"v_add_f32 {d1}, -1.0, {u}", f"v_log_f32 {u}, {u}", f"v_rcp_f32 {r1}, {d1}",
           f"v_cmp_eq_f32 vcc, 0, {d1}", f"v_mul_f32 {u}, {sLn2}, {u}", f"v_mul_f32 {r1}, {r1}, {e}", f"v_mul_f32 {u}, {u}, {r1}",
           f"v_cndmask_b32 {u}, {u}, {e}, vcc"] + rnd1(u)
    ff += [f"v_max_f32 {e}, 0, {h}", f"v_add_f32 {u}, {u}, {e}"] + rnd1(u)
    ff += [f"v_mul_f32 {e}, {sM2}, {u}", f"v_exp_f32 {e}, {e}", f"v_cmp_gt_f32 vcc, 0x3a800000, {u}", f"v_add_f32 {d1}, 1.0, {e}", f"v_rcp_f32 {d1}, {d1}",
           f"v_sub_f32 {e}, 1.0, {e}", f"v_mul_f32 {e}, {e}, {d1}", f"v_cndmask_b32 {e}, {e}, {u}, vcc"] + rnd1(e)
    ff += [f"v_mul_f32 {e}, {e}, {h}"]
    def F(n):
        for _ in range(n):
            if ff: a(ff.pop(0))
    for st in range(4):
        a(f"s_waitcnt lgkmcnt({3 - st})")
        for T in range(2):
            d = sc[4*T:4*T+4]
            a(f"v_mfma_f32_16x16x32_bf16 {d}, {kk[16*T+4*st:16*T+4*st+4]}, {qb[4*st:4*st+4]}, {d if st else 0}")
            F(1)
    F(5)
    pk = qb
    for k in range(4):
        a(f"v_cvt_pk_bf16_f32 {tmp4[k]}, {sc[2*k]}, {sc[2*k+1]}")
    for k in range(4):
        a(f"v_lshlrev_b32 {sc[2*k]}, 16, {tmp4[k]}\nv_and_b32 {sc[2*k+1]}, {sHi}, {tmp4[k]}")
    WO(1)
    for k in range(8):
        a(f"v_mul_f32 {sc[k]}, {sScale}, {sc[k]}")
    for k in range(4):
        a(f"v_cvt_pk_bf16_f32 {tmp4[k]}, {sc[2*k]}, {sc[2*k+1]}")
    for k in range(4):
        a(f"v_lshlrev_b32 {sc[2*k]}, 16, {tmp4[k]}\nv_and_b32 {sc[2*k+1]}, {sHi}, {tmp4[k]}")
    vMax = mlr[0]
    WO(2)
    a(f"""
    v_max3_f32 {vT0}, {sc[0]}, {sc[1]}, {sc[2]}
    v_max3_f32 {vT1}, {sc[3]}, {sc[4]}, {sc[5]}
    v_max3_f32 {vT0}, {vT0}, {sc[6]}, {sc[7]}
    v_max_f32 {vT0}, {vT0}, {vT1}
    v_mov_b32 {vT1}, {vT0}
    """)
    F(2)
    a(f"v_permlane16_swap_b32 {vT0}, {vT1}\nv_max_f32 {vT0}, {vT0}, {vT1}\nv_mov_b32 {vT1}, {vT0}")
    F(2)
    a(f"v_permlane32_swap_b32 {vT0}, {vT1}\nv_max_f32 {vT0}, {vT0}, {vT1}\nds_write_b32 {vMX}, {vT0} offset:{L_MX}")
    WO(3)
    F(10)
    a(f"s_waitcnt lgkmcnt(0)\ns_barrier\nds_read_b128 {tmp4}, {vMR} offset:{L_MX}")
    bw = v.get(16, 2); df = v.get(16, 2)
    for ct in range(4):
        for hi in range(2):
            a(f"ds_read_b64_tr_b16 {bw[4*ct+2*hi:4*ct+2*hi+2]}, {vTW[ct]} offset:{L_W2 + 2048*hi}")
    F(4)
    a(f"""
    s_waitcnt lgkmcnt(8)
    v_max3_f32 {vT0}, {tmp4[0]}, {tmp4[1]}, {tmp4[2]}
    v_max_f32 {vT0}, {vT0}, {tmp4[3]}
    v_mul_f32 {vMax}, {sL2E}, {vT0}
    """)
    for k in range(8):
        a(f"v_fma_f32 {sc[k]}, {sc[k]}, {sL2E}, -{vMax}")
    WO(4)
    for k in range(8):
        a(f"v_exp_f32 {sc[k]}, {sc[k]}")
    for k in range(4):
        a(f"v_cvt_pk_bf16_f32 {tmp4[k]}, {sc[2*k]}, {sc[2*k+1]}")
    a(f"ds_write_b128 {vPW}, {tmp4} offset:{L_XN}")
    WO(5)
    F(100)
    a(f"""
    v_mov_b32_dpp {u}, {e} quad_perm:[2,3,0,1] {DPPM}
    s_lshl_b32 {sTmp}, {sKH}, 12
    v_cvt_pk_bf16_f32 {u}, {e}, {u}
    s_waitcnt lgkmcnt(0)
    s_barrier
    """)
    for t in range(4):
        a(f"ds_read_b128 {pk[4*t:4*t+4]}, {vL16} offset:{L_XN + 1024*t}")
    dl = sc[0:4]
    a(f"""
    v_mov_b32_dpp {af[0]}, {u} quad_perm:[0,1,2,3] row_mask:0xf bank_mask:0x1
    v_mov_b32_dpp {af[1]}, {u} row_shl:1 row_mask:0xf bank_mask:0x1
    v_mov_b32_dpp {af[2]}, {u} row_shl:8 row_mask:0xf bank_mask:0x1
    v_mov_b32_dpp {af[3]}, {u} row_shl:9 row_mask:0xf bank_mask:0x1
    v_mov_b32 {vT0}, 0
    v_add_u32 {vTW[0]}, {sTmp}, {vTW[0]}
    """)
    for ct in range(4):
        a(f"v_mfma_f32_16x16x32_bf16 {df[4*ct:4*ct+4]}, {af}, {bw[4*ct:4*ct+4]}, 0")
        if ct: a(f"v_add_u32 {vTW[ct]}, {sTmp}, {vTW[ct]}")
    WO(6)
    for t in range(4):
        a(f"s_waitcnt lgkmcnt({3 - t})")
        a(f"v_mfma_f32_16x16x32_bf16 {dl}, {ones}, {pk[4*t:4*t+4]}, {dl if t else 0}")
    WO(99)
    stamp("soft")
    av = v.get(16, 2); do = v.get(8, 2)
    for t in range(4):
        buf = av[8*(t&1):8*(t&1)+8]
        wait_vm("v%d" % t)
        if t == 3: stamp("V")
        for T in range(2):
            for hi in range(2):
                a(f"ds_read_b64_tr_b16 {buf[4*T+2*hi:4*T+2*hi+2]}, {vTV[T]} offset:{2048*t + 1024*hi}")
        if t == 0:
            a(f"""
            s_lshl_b32 {sTmp}, 1, {sW}
            s_cmp_eq_u32 {sMix}, 0
            v_mov_b32 {mlr[1]}, {dl[0]}
            s_mov_b32 exec_lo, {sTmp}
            s_mov_b32 exec_hi, 0
            s_cbranch_scc0 L_mlmix
            """)
            vmem("ml", f"buffer_store_dwordx4 {mlr}, {vT0}, {SWS}, {oML} offen")
            a("L_mlback:")
            a("s_mov_b64 exec, -1")
        for T in range(2):
            a(f"s_waitcnt lgkmcnt({2 - 2*T})")
            d = do[4*T:4*T+4]
            a(f"v_mfma_f32_16x16x32_bf16 {d}, {buf[4*T:4*T+4]}, {pk[4*t:4*t+4]}, {d if t else 0}")
    a(f"""
    s_mov_b32 exec_lo, 0x000f000f
    s_mov_b32 exec_hi, 0x000f000f
    s_cmp_eq_u32 {sMix}, 0
    v_cvt_pk_bf16_f32 {pr[2]}, {do[0]}, {do[1]}
    v_cvt_pk_bf16_f32 {pr[3]}, {do[2]}, {do[3]}
    s_mov_b32 exec_lo, 0x00f000f0
    s_mov_b32 exec_hi, 0x00f000f0
    v_cvt_pk_bf16_f32 {pr[0]}, {do[4]}, {do[5]}
    v_cvt_pk_bf16_f32 {pr[1]}, {do[6]}, {do[7]}
    s_mov_b32 exec_lo, 0x00ff00ff
    s_mov_b32 exec_hi, 0x00ff00ff
    s_cbranch_scc0 L_psmix
    """)
    vmem("ps", f"buffer_store_dwordx4 {pr}, {vPS}, {SWS}, {oPS} offen")
    a("L_psback:")
    a("s_mov_b64 exec, -1")
    stamp("pub2")
    pa = kk[0:16]; mlg = kk[16:20]; bo = v.get(32, 2); dd = v.get(16, 2)
    def poll2(first):
        t = []
        for tl in range(2):
            t.append(f"buffer_load_dwordx4 {pa[8*tl:8*tl+4]}, {vPA}, {SWS}, {oPA} offen offset:{2048*tl} sc1")
            t.append(f"buffer_load_dwordx4 {pa[8*tl+4:8*tl+8]}, {vPA}, {SWS}, {oPA} offen offset:{2048*tl+1024} sc1")
        t.append(f"buffer_load_dwordx4 {mlg}, {vMLG}, {SWS}, {oMLG} offen sc1")
        for x in t:
            if first: vmem("p2", x)
            else: a(x)
    allow = opt.get("p2allow", 1)
    if allow < 4: wait_vm("wo", allow)
    poll2(True)
    wait_vm("wo")
    stamp("wo")
    a("s_barrier")
    for tl in range(2):
        for ct in range(4):
            for hi in range(2):
                r = bo[16*tl+4*ct+2*hi:16*tl+4*ct+2*hi+2]
                a(f"ds_read_b64_tr_b16 {r}, {vTW[ct]} offset:{L_WO + 4096*tl + 2048*hi}")
    fo = pr[0:2]
    a(f"s_mov_b32 {sCnt}, 0\nv_mov_b32 {fo[1]}, {sTag[0]}\nv_lshlrev_b32 {xf}, 16, {xf}")
    a("s_waitcnt vmcnt(0)")
    a("L_chk2:")
    a(f"v_xor_b32 {vT0}, {sTag[0]}, {pa[1]}")
    for r in (pa[6], pa[9], pa[14], mlg[2]):
        a(f"v_bitop3_b32 {vT0}, {r}, {sTag[0]}, {vT0} {BOP}")
    a(f"""
    v_cmp_ne_u32 vcc, 0, {vT0}
    s_cbranch_vccnz L_retry2
    L_ok2:
    s_mov_b64 exec, -1
    """)
    stamp("ok2")
    wv = vT1
    a(f"v_max_f32_dpp {vT0}, {mlg[0]}, {mlg[0]} row_ror:1 {DPPM}\ns_waitcnt lgkmcnt(8)")
    wchain = [f"v_max_f32_dpp {vT0}, {vT0}, {vT0} row_ror:{r} {DPPM}" for r in (2, 4, 8)]
    wchain += [f"v_sub_f32 {wv}, {mlg[0]}, {vT0}", f"v_exp_f32 {wv}, {wv}", f"v_mul_f32 {vT0}, {wv}, {mlg[1]}"]
    wchain += [f"v_add_f32_dpp {vT0}, {vT0}, {vT0} row_ror:{r} {DPPM}" for r in (1, 2, 4, 8)]
    wchain += [f"v_rcp_f32 {vT0}, {vT0}", f"v_mul_f32 {wv}, {wv}, {vT0}"]
    for tl in range(2):
        if tl: a("s_waitcnt lgkmcnt(0)")
        for ct in range(4):
            a(f"v_mfma_f32_16x16x32_bf16 {dd[4*ct:4*ct+4]}, {pa[8*tl+2:8*tl+6]}, {bo[16*tl+4*ct:16*tl+4*ct+4]}, {dd[4*ct:4*ct+4] if tl else 0}")
            a(wchain.pop(0))
    for x in wchain: a(x)
    for ct in range(4):
        for r in range(4):
            a(f"v_fmac_f32_dpp {df[4*ct]}, {wv}, {dd[4*ct+r]} row_newbcast:{r} {DPPM}")
    a(f"""
    v_permlane32_swap_b32 {df[0]}, {df[8]}
    v_permlane32_swap_b32 {df[4]}, {df[12]}
    v_add_f32 {df[0]}, {df[0]}, {df[8]}
    v_add_f32 {df[4]}, {df[4]}, {df[12]}
    s_cmp_eq_u32 {sW}, 0
    v_permlane16_swap_b32 {df[0]}, {df[4]}
    v_add_f32 {fo[0]}, {df[0]}, {df[4]}
    buffer_store_dwordx2 {fo}, {vFS}, {SWS}, {oFS} offen sc1
    """)
    if stamps or probe:
        stamp("pub3", flush=True)
        a(f"s_cmp_eq_u32 {sW}, 0")
    a("s_cbranch_scc0 L_fin")
    fg = bo[0:8]
    a(f"s_mov_b32 {sCnt}, 0")
    if opt.get("p3delay"):
        a("s_waitcnt vmcnt(0)")
    a(f"""
    L_poll3:
    buffer_load_dwordx4 {fg[0:4]}, {vFG}, {SWS}, {oFG} offen sc1
    buffer_load_dwordx4 {fg[4:8]}, {vFG}, {SWS}, {oFG2} offen sc1
    s_add_u32 {sCnt}, {sCnt}, 1
    s_cmp_gt_u32 {sCnt}, 20000
    s_cbranch_scc1 L_ok3
    s_waitcnt vmcnt(0)
    v_xor_b32 {vT0}, {sTag[0]}, {fg[1]}
    v_bitop3_b32 {vT0}, {fg[3]}, {sTag[0]}, {vT0} {BOP}
    v_bitop3_b32 {vT0}, {fg[5]}, {sTag[0]}, {vT0} {BOP}
    v_bitop3_b32 {vT0}, {fg[7]}, {sTag[0]}, {vT0} {BOP}
    v_cmp_ne_u32 vcc, 0, {vT0}
    s_cbranch_vccz L_ok3
    {'s_mov_b64 exec, vcc' if opt.get('sticky', 1) else ''}
    s_branch L_poll3
    L_ok3:
    s_mov_b64 exec, -1
    s_waitcnt vmcnt(0)
    v_add_f32 {dd[0]}, {fg[0]}, {fg[4]}
    v_add_f32 {dd[1]}, {fg[2]}, {fg[6]}
    """)
    stamp("ok3", flush=True)
    for r in (2, 4, 8):
        a(f"v_add_f32_dpp {dd[0]}, {dd[0]}, {dd[0]} row_ror:{r} {DPPM}")
        a(f"v_add_f32_dpp {dd[1]}, {dd[1]}, {dd[1]} row_ror:{r} {DPPM}")
    a(f"""
    s_cmp_eq_u32 s2, 0
    v_permlane16_swap_b32 {dd[0]}, {dd[1]}
    v_add_f32 {dd[0]}, {dd[0]}, {dd[1]}
    v_mov_b32 {dd[1]}, {dd[0]}
    v_permlane32_swap_b32 {dd[0]}, {dd[1]}
    v_add_f32 {dd[0]}, {dd[0]}, {dd[1]}
    v_add_f32 {dd[0]}, {dd[0]}, {xf}
    v_cvt_pk_bf16_f32 {dd[0]}, {dd[0]}, {dd[0]}
    s_mov_b32 exec_lo, 0x00030003
    s_mov_b32 exec_hi, 0
    buffer_store_short {dd[0]}, {vXF}, {SOUT}, {oXF} offen
    s_cbranch_scc0 L_fin
    s_mov_b32 exec_lo, 1
    v_mov_b32 {vT0}, 0
    buffer_store_dword {fo[1]}, {vT0}, {SWS}, 0 offen
    L_fin:
    """)
    if stamps:
        stamp("end", True)
        a("s_mov_b64 exec, -1")
        a(f"""
        s_getreg_b32 {sTmp}, hwreg(HW_REG_HW_ID)
        v_writelane_b32 {vST}, {sTmp}, 29
        v_writelane_b32 {vST}, {sXCC}, 30
        v_writelane_b32 {vST}, {sMix}, 31
        s_lshl_b32 {sTmp}, s2, 2
        s_add_u32 {sTmp}, {sTmp}, {sW}
        s_lshl_b32 {sTmp}, {sTmp}, 7
        s_add_u32 {sTmp}, {sTmp}, {STAMP}
        v_lshlrev_b32 {vT1}, 2, v0
        s_mov_b32 exec_lo, -1
        s_mov_b32 exec_hi, 0
        buffer_store_dword {vST}, {vT1}, {SWS}, {sTmp} offen
        """)
        out.insert(len(hdr), "; stamps: " + ",".join(names))
    if probe:
        stamp("end")
        a(f"""
        s_cmp_eq_u32 {sW}, {opt.get('pwave', 0)}
        s_cbranch_scc0 L_end
        s_load_dwordx2 s[8:9], s[0:1], 80
        s_mov_b32 s10, 256
        s_mov_b32 s11, 0x20000
        s_mov_b64 exec, 1
        s_waitcnt lgkmcnt(0)
        s_sub_u32 s4, 0, s100
        v_mov_b32 v2, s4
        v_mov_b32 v3, s98
        v_mov_b32 v4, 0
        buffer_atomic_umax v2, v4, s[8:11], 0 offen sc1
        buffer_atomic_umax v3, v4, s[8:11], 0 offen offset:128 sc1
        s_waitcnt vmcnt(0)
        L_hold0:
        s_memrealtime s[4:5]
        s_waitcnt lgkmcnt(0)
        s_sub_u32 s4, s4, s100
        s_cmp_lt_u32 s4, 2000
        s_cbranch_scc1 L_hold0
        buffer_load_dword v2, v4, s[8:11], 0 offen sc1
        buffer_load_dword v3, v4, s[8:11], 0 offen offset:128 sc1
        s_waitcnt vmcnt(0)
        v_readfirstlane_b32 s6, v2
        v_readfirstlane_b32 s98, v3
        s_add_u32 s98, s98, s6
        s_min_u32 s98, s98, 2000
        s_mul_i32 s98, s98, {opt.get('mult', 8)}
        s_add_u32 s98, s98, 2500
        L_hold1:
        s_memrealtime s[4:5]
        s_waitcnt lgkmcnt(0)
        s_sub_u32 s4, s4, s100
        s_cmp_lt_u32 s4, s98
        s_cbranch_scc1 L_hold1
        """)
    a("L_end:\ns_endpgm")
    a(f"""
    L_retry1:
    s_add_u32 {sCnt}, {sCnt}, 1
    s_cmp_gt_u32 {sCnt}, 20000
    s_cbranch_scc1 L_ok1
    s_cmp_eq_u32 {sCnt}, {opt.get('nplain', 12)}
    s_cbranch_scc0 L_r1b
    s_mov_b32 {sMix}, 1
    s_mov_b32 {sTP}, {sTag[0]}
    s_add_u32 {oQG}, {oQG}, {SC1D}
    s_add_u32 {oHG}, {oHG}, {SC1D}
    L_r1b:
    """)
    poll1(False)
    a("s_waitcnt vmcnt(0)\ns_branch L_chk1")
    a(f"""
    L_mlmix:
    buffer_store_dwordx4 {mlr}, {vT0}, {SWS}, {oML} offen sc1
    s_branch L_mlback
    L_psmix:
    buffer_store_dwordx4 {pr}, {vPS}, {SWS}, {oPS} offen sc1
    s_branch L_psback
    L_retry2:
    s_add_u32 {sCnt}, {sCnt}, 1
    s_cmp_gt_u32 {sCnt}, 20000
    s_cbranch_scc1 L_ok2
    {'s_mov_b64 exec, vcc' if opt.get('sticky', 1) else ''}
    """)
    poll2(False)
    a("s_waitcnt vmcnt(0)\ns_branch L_chk2")
    nv = (v.hw + 7) // 8 * 8
    out.append(a.text())
    out.append(f""".section .rodata,"a"
.p2align 6
.amdhsa_kernel {NAME}_kernel
  .amdhsa_next_free_vgpr {nv}
  .amdhsa_next_free_sgpr 102
  .amdhsa_accum_offset {nv}
  .amdhsa_group_segment_fixed_size 0
  .amdhsa_kernarg_size 96
  .amdhsa_user_sgpr_count 2
  .amdhsa_user_sgpr_kernarg_segment_ptr 1
  .amdhsa_system_sgpr_workgroup_id_x 1
.end_amdhsa_kernel""")
    sys.stderr.write("vgprs %d sgprs %d nops %d\n" % (v.hw, s.hw, a.nops))
    return "\n".join(out) + "\n"

if __name__ == "__main__":
    import json
    opt = json.loads(sys.argv[2]) if len(sys.argv) > 2 else {}
    open(sys.argv[1], "w").write(gen(opt))
```

```python
import sys
from asmlib import *

NAME = "parallel_sum__sliding_block_cached__dense_activation_mish__decode"
PHI = 0x9E3779B9
QBUF = 0x10000; HBUF = 0x50000; SC1D = 0x20000; MLB = 0x90000; DBB = 0x98000; PART = 0x100000; FIN = 0x180000; STAMP = 0x800000
L_XN = 0; L_Q = 4096; L_MX = 5632; L_MIX = 5760; L_QSV = 5888; L_WQ = 8192; L_W1 = 24576; L_W2 = 32768; L_WO = 40960; L_V = 57344; L_K = 90112; LDS_BYTES = 122880
QSTR = 320
DPPM = "row_mask:0xf bank_mask:0xf"
BOP = "bitop3:0xbe"

def lines(text):
    return [l.strip() for l in text.strip().split("\n") if l.strip() and not l.strip().startswith(";")]

def gen(opt):
    nt = opt.get("nt", {k: "nt" for k in ("wq", "w1", "k", "v", "wo", "w2")})
    def pol(k): return nt.get(k, "")
    stamps = opt.get("stamps", False)
    a = Asm()
    v = Alloc("v", 1, 256); s = Alloc("s", 44, 102)
    hdr = open("cdna_kernels/%s.s.ref" % NAME).read().split("\n")
    hdr = [l for l in hdr if l.startswith(";") and "@launch" not in l and "Override" not in l and "grid=ceil" not in l]
    out = list(hdr)
    out.append("; @launch grid=(256,1,1) block=(256,1,1) lds=%d" % LDS_BYTES)
    out.append('.amdgcn_target "amdgcn-amd-amdhsa--gfx950"')
    out.append(".text\n.globl %s_kernel\n.p2align 8\n.type %s_kernel,@function\n%s_kernel:" % (NAME, NAME, NAME))
    SX, SK, SV, SWQ, SWO, SW1, SB1, SW2, SOUT, SWS = [Reg("s", 4 + 4 * i, 4) for i in range(10)]
    vm = []
    def vmem(name, text):
        a(text); vm.append(name)
    def wait_vm(name, allow=0):
        idx = max(i for i, n in enumerate(vm) if n == name) - allow
        n = len(vm) - 1 - idx
        a("s_waitcnt vmcnt(%d)" % n)
    def weave(fill, jobs, every, start=0):
        k = -start
        for ins in fill:
            a(ins); k += 1
            if jobs and k >= every:
                jobs.pop(0)(); k = 0
    nst = [0, 0]
    names = []
    NR = 4
    if stamps:
        sST = [s.get(2, 2) for _ in range(NR)]; vST = v.get()
    probe = opt.get("probe")
    def stamp(name, last=False, flush=False):
        if probe and name == "start": a("s_memrealtime s[100:101]")
        if probe and name == probe: a("s_memrealtime s[98:99]")
        if stamps:
            k = nst[0]; nst[0] += 1; names.append(name)
            assert k < 29
            done = nst[1]
            if k - done >= NR:
                a("v_writelane_b32 %s, %s, %d" % (vST, sST[done % NR][0], done)); done += 1
            a("s_memrealtime %s" % sST[k % NR])
            if last or flush:
                a("s_waitcnt lgkmcnt(0)")
                while done <= k:
                    a("v_writelane_b32 %s, %s, %d" % (vST, sST[done % NR][0], done)); done += 1
            nst[1] = done
    stamp("start")
    a(f"""
    s_load_dwordx2 {SX[0:2]}, s[0:1], 0
    s_load_dwordx2 {SWQ[0:2]}, s[0:1], 24
    s_load_dwordx2 {SW1[0:2]}, s[0:1], 48
    s_load_dwordx2 {SK[0:2]}, s[0:1], 8
    s_load_dwordx2 {SWS[0:2]}, s[0:1], 88
    s_load_dwordx2 {SV[0:2]}, s[0:1], 16
    s_cmp_ge_u32 s2, 256
    s_cbranch_scc1 L_end
    """)
    if opt.get("vpf", 1):
        vP = v.get(2, 2); sPF = s.get(2, 2)
        a(f"""
        s_getpc_b64 {sPF}
        L_pc:
        s_lshr_b32 s3, s2, 1
        s_and_b32 s3, s3, 0x7c
        v_lshrrev_b32 {vP[0]}, 6, v0
        v_add_u32 {vP[0]}, s3, {vP[0]}
        v_lshlrev_b32 {vP[0]}, 6, {vP[0]}
        v_min_u32 {vP[0]}, L_codeend-L_pc-4, {vP[0]}
        """)
        vmem("pf", f"global_load_dword {vP[1]}, {vP[0]}, {sPF}")
    sW, sG, sJ, sA, sC, sT, sBLK, sTmp, sTmp2 = [s.get() for _ in range(9)]
    oXO, oWQ, oW1, oKV, oK, oW2 = [s.get() for _ in range(6)]
    sM = s.get()
    DBPRE = ""
    if opt.get("ndb", 0):
        oDB0 = s.get()
        DBPRE = f"""s_mov_b32 {SWS[2]}, 0x10000000
        s_mov_b32 {SWS[3]}, 0x20000
        s_lshl_b32 {sTmp}, {sJ}, 2
        s_add_u32 {sTmp}, {sTmp}, {sW}
        s_and_b32 {sTmp}, {sTmp}, 7
        s_lshl_b32 {sTmp2}, {sG}, 3
        s_add_u32 {sTmp}, {sTmp}, {sTmp2}
        s_lshl_b32 {sTmp}, {sTmp}, 7
        s_add_u32 {oDB0}, {sTmp}, {DBB}"""
    vGQ, vI, vT0, vT1 = [v.get() for _ in range(4)]
    vL16, vB3, vXO, vWQe, vWQo, vW1e, vW1o = [v.get() for _ in range(7)]
    vK = v.get(4)
    a(f"""
    v_readfirstlane_b32 {sW}, v0
    v_and_b32 v0, 63, v0
    s_and_b32 {sG}, s2, 7
    {'s_xor_b32 %s, %s, %d' % (sG, sG, opt['gxor']) if opt.get('gxor') else ''}
    s_lshr_b32 {sJ}, s2, 3
    s_lshr_b32 {sW}, {sW}, 6
    s_lshr_b32 {sA}, {sJ}, 3
    s_and_b32 {sC}, {sJ}, 7
    v_lshrrev_b32 {vGQ}, 4, v0
    v_and_b32 {vI}, 15, v0
    s_mov_b32 {SX[2]}, 2048
    s_mov_b32 {SX[3]}, 0x20000
    s_mov_b32 {SWQ[2]}, {512*4096*2}
    s_mov_b32 {SWQ[3]}, 0x20000
    v_lshlrev_b32 {vL16}, 4, v0
    v_bfe_u32 {vB3}, v0, 3, 1
    v_lshlrev_b32 {vT0}, 10, {vB3}
    v_lshl_add_u32 {vXO}, {vGQ}, 4, {vT0}
    v_and_b32 {vT0}, 1, {vGQ}
    v_lshlrev_b32 {vT0}, 1, {vT0}
    v_and_b32 {vT1}, 7, v0
    v_xor_b32 {vT0}, {vT0}, {vT1}
    v_lshlrev_b32 {vT0}, 4, {vT0}
    v_lshrrev_b32 {vT1}, 3, v0
    v_lshl_add_u32 {vWQe}, {vT1}, 13, {vT0}
    v_xor_b32 {vWQo}, 64, {vWQe}
    s_and_b32 {sTmp}, {sC}, 1
    s_lshl_b32 {sTmp2}, {sTmp}, 1
    s_xor_b32 {sTmp2}, {sTmp2}, {sW}
    s_lshl_b32 {sTmp2}, {sTmp2}, 5
    s_lshl_b32 {oXO}, {sA}, 7
    s_add_u32 {sTmp2}, {sTmp2}, {oXO}
    s_lshl_b32 {oWQ}, {sTmp2}, 13
    s_lshl_b32 {sM}, {sG}, 10
    s_add_u32 {oWQ}, {oWQ}, {sM}
    s_xor_b32 {sM}, {sC}, {opt.get('cqx', 1)}
    s_lshl_b32 {sM}, {sM}, 7
    s_add_u32 {oWQ}, {oWQ}, {sM}
    s_lshl_b32 {oXO}, {sTmp2}, 1
    s_lshl_b32 {sM}, {sW}, 12
    s_add_u32 m0, {sM}, {L_WQ}
    {DBPRE}
    s_waitcnt lgkmcnt(0)
    """)
    stamp("karg")
    xs = v.get(8, 2); xo = v.get(4, 2)
    kk = v.get(32, 2)
    sE = sPF if opt.get('vpf', 1) else s.get(2, 2)
    vmem("xs", f"buffer_load_dwordx4 {xs[0:4]}, {vL16}, {SX}, 0 offen")
    vmem("xs", f"buffer_load_dwordx4 {xs[4:8]}, {vL16}, {SX}, 0 offen offset:1024")
    vmem("xo", f"buffer_load_dwordx4 {xo}, {vXO}, {SX}, {oXO} offen")
    for k in range(4):
        vmem("wq", f"buffer_load_dwordx4 {vWQo if k & 1 else vWQe}, {SWQ}, {oWQ} offen {pol('wq')} lds")
        if k < 3:
            a(f"s_add_u32 m0, m0, 1024\ns_add_u32 {oWQ}, {oWQ}, 65536")
    NDB = opt.get("ndb", 0)
    if NDB:
        vDB = v.get(); oDB = oDB0
        vDum = v.get()
        vmem("dbpw", f"buffer_load_dword {vDum}, off, {SWS}, {oDB} sc1")
    stamp("iss1")
    if opt.get("codepf"):
        sPC = s.get(2, 2)
        a(f"""
        s_getpc_b64 {sPC}
        s_lshl_b32 {sTmp}, {sJ}, 2
        s_add_u32 {sTmp}, {sTmp}, {sW}
        s_min_u32 {sTmp}, {sTmp}, {opt['codepf']}
        s_lshl_b32 {sTmp}, {sTmp}, 7
        s_load_dword {sE[1]}, {sPC}, {sTmp}
        """)
    vWO, vTQ = [v.get() for _ in range(2)]
    vV = v.get(2)
    vKR = v.get(4); vTW = v.get(4); vTV = v.get(2); vFF = v.get(); vZ = v.get(); vSV = v.get()
    sHi = s.get()
    sB, sKH, sBA, sS, sC2 = [s.get() for _ in range(5)]
    oB1, oXF = oXO, oWQ
    vB1, vXF, vPRE, vF = v.get(), v.get(), v.get(), vXO
    oQS, oHS, oQG, oHG, oML, oPS, oV, oWO = [s.get() for _ in range(8)]
    vQS, vHS, vQG, vHG = [v.get() for _ in range(4)]
    vQW, vQR, vMX, vMR, vPW = [v.get() for _ in range(5)]
    vPS, vMLG, vFS, vFG = [v.get() for _ in range(4)]
    vPA = vL16
    oPA, oMLG, oFS, oFG, oFG2 = [s.get() for _ in range(5)]
    sB3 = s.get(2, 2)
    A = lines(f"""
    s_load_dwordx2 {SW2[0:2]}, s[0:1], 64
    s_load_dwordx2 {SWO[0:2]}, s[0:1], 32
    s_load_dwordx2 {SB1[0:2]}, s[0:1], 56
    s_load_dwordx2 {SOUT[0:2]}, s[0:1], 72
    s_mov_b32 {SK[2]}, {2*8*8192*256}
    s_mov_b32 {SK[3]}, 0x20000
    s_lshr_b32 {sBA}, {sJ}, 4
    s_and_b32 {sS}, {sJ}, 15
    s_lshl_b32 {sTmp}, {sBA}, 3
    s_add_u32 {sTmp}, {sTmp}, {sG}
    s_lshl_b32 {oKV}, {sTmp}, 21
    s_lshl_b32 {sTmp}, {sS}, 12
    s_add_u32 {oKV}, {oKV}, {sTmp}
    s_add_u32 {oKV}, {oKV}, {6144*256}
    s_lshl_b32 {oK}, {sW}, 17
    s_add_u32 {oK}, {oK}, {oKV}
    s_lshl_b32 {sTmp}, {sW}, 13
    s_lshl_b32 {sM}, {sW}, 11
    v_xor_b32 {vT0}, {vI}, {vGQ}
    v_lshlrev_b32 {vT0}, 4, {vT0}
    v_lshl_add_u32 {vK[0]}, {vGQ}, 8, {vT0}
    v_xor_b32 {vK[1]}, 64, {vK[0]}
    v_xor_b32 {vK[2]}, 0x80, {vK[0]}
    v_xor_b32 {vK[3]}, 0xc0, {vK[0]}
    v_lshl_add_u32 {vT0}, {vI}, 8, {vT0}
    s_add_u32 {sTmp}, {sTmp}, {L_K}
    v_add_u32 {vKR[0]}, {sTmp}, {vT0}
    s_mov_b32 {SWS[2]}, 0x10000000
    s_mov_b32 {SWS[3]}, 0x20000
    s_mov_b32 {sHi}, 0xffff0000
    s_mov_b32 {sB3[0]}, 0xff00ff00
    s_mov_b32 {sB3[1]}, 0xff00ff00
    v_mov_b32 {vFF}, 0xff
    v_mov_b32 {vZ}, 0
    v_lshlrev_b32 {vSV}, 1, v0
    s_lshl_b32 {sTmp}, {sW}, 7
    v_add_u32 {vSV}, {sTmp}, {vSV}
    s_lshl_b32 {sTmp}, {sW}, 10
    v_add_u32 {vPW}, {sTmp}, {vL16}
    s_and_b32 {sB}, {sW}, 1
    s_lshr_b32 {sKH}, {sW}, 1
    v_and_b32 {vT0}, 1, {vGQ}
    v_lshlrev_b32 {vF}, 1, {vT0}
    v_or_b32 {vF}, {vF}, {vB3}
    v_and_b32 {vT1}, 3, v0
    v_lshlrev_b32 {vT1}, 3, {vT1}
    v_lshrrev_b32 {vT0}, 2, {vI}
    v_lshl_add_u32 {vTQ}, {vGQ}, 3, {vT0}
    v_lshl_add_u32 {vTQ}, {vTQ}, 7, {vT1}
    v_xor_b32 {vTV[0]}, {sW}, {vF}
    v_lshl_add_u32 {vTQ}, {vTV[0]}, 5, {vTQ}
    v_lshl_add_u32 {vT0}, {vGQ}, 2, {vT0}
    v_lshl_add_u32 {vTW[0]}, {vT0}, 7, {vT1}
    v_lshl_add_u32 {vTW[0]}, {vF}, 5, {vTW[0]}
    v_lshl_add_u32 {vTV[1]}, {vT0}, 8, {vT1}
    v_and_b32 {vTV[0]}, 7, {vT0}
    v_lshlrev_b32 {vT0}, 4, {vGQ}
    v_lshl_add_u32 {vQS}, {vB3}, 13, {vT0}
    v_lshlrev_b32 {vHS}, 7, {vGQ}
    v_lshl_add_u32 {vHS}, {vB3}, 11, {vHS}
    s_lshl_b32 {oQG}, {sG}, 14
    s_add_u32 {oQG}, {oQG}, {QBUF}
    s_lshl_b32 {sTmp}, {sA}, 11
    s_add_u32 {oQS}, {oQG}, {sTmp}
    s_xor_b32 {sTmp}, {sC}, {opt.get('cqx', 1)}
    s_lshl_b32 {sTmp}, {sTmp}, 8
    s_add_u32 {oQS}, {oQS}, {sTmp}
    s_lshl_b32 {sTmp2}, {sW}, 6
    s_add_u32 {oQS}, {oQS}, {sTmp2}
    s_lshl_b32 {sTmp}, {sW}, 9
    s_add_u32 {oQG}, {oQG}, {sTmp}
    """)
    B = lines(f"""
    s_lshr_b32 {sT}, {sC}, 1
    s_sub_u32 {sT}, {sT}, {sA}
    s_and_b32 {sT}, {sT}, 3
    s_mul_i32 {sBLK}, {sG}, 7
    s_add_u32 {sBLK}, {sBLK}, 1
    s_lshr_b32 {sBLK}, {sBLK}, 1
    s_add_u32 {sBLK}, {sBLK}, {sT}
    s_and_b32 {sTmp2}, {sG}, 1
    s_add_u32 {sTmp2}, {sTmp2}, {sT}
    s_cmp_eq_u32 {sTmp2}, 4
    s_cselect_b32 {sBLK}, 0x4000, {sBLK}
    s_lshl_b32 {sTmp}, {sA}, 1
    s_and_b32 {sTmp2}, {sC}, 1
    s_add_u32 {sTmp}, {sTmp}, {sTmp2}
    s_lshl_b32 {oW1}, {sTmp}, 2
    s_add_u32 {oW1}, {oW1}, {sW}
    s_mul_i32 {oW1}, {oW1}, {16*3584}
    s_lshl_b32 {sTmp2}, {sBLK}, 7
    s_add_u32 {oW1}, {oW1}, {sTmp2}
    s_mov_b32 {SW1[2]}, {512*1792*2}
    s_mov_b32 {SW1[3]}, 0x20000
    v_lshrrev_b32 {vT1}, 3, v0
    v_mul_u32_u24 {vW1e}, 3584, {vT1}
    v_and_b32 {vT0}, 0x7f, {vWQe}
    v_add_u32 {vW1e}, {vW1e}, {vT0}
    v_xor_b32 {vW1o}, 64, {vW1e}
    s_lshl_b32 {oHG}, {sG}, 2
    s_add_u32 {oWO}, {oHG}, {sA}
    s_add_u32 {oHG}, {oHG}, {sT}
    s_lshl_b32 {oHG}, {oHG}, 12
    s_add_u32 {oHG}, {oHG}, {HBUF}
    s_lshl_b32 {sTmp}, {sTmp}, 4
    s_add_u32 {oHS}, {oHG}, {sTmp}
    s_lshl_b32 {sTmp}, {sW}, 9
    s_add_u32 {oHS}, {oHS}, {sTmp}
    s_mov_b32 {SW2[2]}, {512*1792*2}
    s_mov_b32 {SW2[3]}, 0x20000
    s_mov_b32 {SV[2]}, {2*8*8192*256}
    s_mov_b32 {SV[3]}, 0x20000
    s_mov_b32 {SB1[2]}, 3584
    s_mov_b32 {SB1[3]}, 0x20000
    s_lshl_b32 {sC2}, {sKH}, {2 if opt.get('crot', 1) else 8}
    s_xor_b32 {sC2}, {sC2}, {sC}
    s_and_b32 {sC2}, {sC2}, 7
    s_lshl_b32 {oW2}, {sBLK}, 2
    s_add_u32 {oW2}, {oW2}, {sW}
    s_lshl_b32 {oW2}, {oW2}, 14
    s_lshl_b32 {sTmp}, {sC2}, 7
    s_add_u32 {oW2}, {oW2}, {sTmp}
    v_lshlrev_b32 {vT0}, 1, {vGQ}
    v_and_b32 {vT1}, 7, v0
    v_xor_b32 {vT0}, {vT0}, {vT1}
    v_lshlrev_b32 {vT0}, 4, {vT0}
    v_lshrrev_b32 {vWO}, 3, v0
    v_lshl_add_u32 {vWO}, {vWO}, 10, {vT0}
    v_lshlrev_b32 {vT0}, 4, {vGQ}
    v_lshl_add_u32 {vT0}, {vB3}, 6, {vT0}
    v_lshlrev_b32 {vHG}, 4, {vT1}
    v_lshl_add_u32 {vHG}, {vT0}, 3, {vHG}
    v_lshrrev_b32 {vB1}, 1, {vT0}
    v_and_b32 {vT1}, 1, v0
    v_lshl_add_u32 {vB1}, {vT1}, 2, {vB1}
    v_and_b32 {vT0}, 2, v0
    v_add_u32 {vB1}, {vB1}, {vT0}
    v_and_b32 {vT0}, 1, {vGQ}
    v_lshlrev_b32 {vXF}, 1, {vT0}
    v_lshl_add_u32 {vXF}, {vT1}, 2, {vXF}
    v_lshlrev_b32 {vT0}, 1, {vGQ}
    v_xor_b32 {vT0}, {vT0}, {vI}
    v_lshlrev_b32 {vT0}, 4, {vT0}
    v_lshl_add_u32 {vV[0]}, {vGQ}, 8, {vT0}
    v_xor_b32 {vV[1]}, 0x80, {vV[0]}
    s_lshl_b32 {oV}, {sKH}, 16
    s_add_u32 {oV}, {oV}, {oKV}
    s_lshl_b32 {sTmp}, {sB}, 11
    s_add_u32 {oV}, {oV}, {sTmp}
    v_lshrrev_b32 {vFG}, 1, v0
    v_lshlrev_b32 {vFG}, 7, {vFG}
    v_lshl_add_u32 {vFG}, {vT1}, 4, {vFG}
    v_lshrrev_b32 {vT0}, 5, v0
    v_and_b32 {vT1}, 31, v0
    v_lshlrev_b32 {vQG}, 12, {vT0}
    v_lshl_add_u32 {vQG}, {vT1}, 4, {vQG}
    v_lshlrev_b32 {vQW}, 2, {vT0}
    v_lshl_add_u32 {vQW}, {vT1}, 3, {vQW}
    s_lshl_b32 {oB1}, {sBLK}, 7
    s_lshl_b32 {sTmp}, {sKH}, 6
    s_add_u32 {oB1}, {oB1}, {sTmp}
    s_lshl_b32 {oXF}, {sBA}, 10
    s_lshl_b32 {sTmp}, {sG}, 7
    s_add_u32 {oXF}, {oXF}, {sTmp}
    s_lshl_b32 {sTmp}, {sS}, 3
    s_add_u32 {oXF}, {oXF}, {sTmp}
    s_lshl_b32 {sTmp}, {sBA}, 13
    s_add_u32 {oQG}, {oQG}, {sTmp}
    s_lshl_b32 {sTmp}, {sB}, 11
    s_add_u32 {oHG}, {oHG}, {sTmp}
    s_lshl_b32 {sTmp}, {sKH}, 10
    s_add_u32 {oHG}, {oHG}, {sTmp}
    """)
    prewarm = opt.get("prewarm", 1)
    if prewarm:
        B += lines(f"""
        s_lshl_b32 {sTmp}, {sJ}, 2
        s_add_u32 {sTmp}, {sTmp}, {sW}
        s_lshl_b32 {sTmp2}, {sG}, 7
        s_add_u32 {sTmp2}, {sTmp2}, {sTmp}
        s_lshl_b32 {sTmp2}, {sTmp2}, 9
        s_add_u32 {sTmp2}, {sTmp2}, {PART}
        v_lshlrev_b32 {vPRE}, 7, v0
        v_add_u32 {vPRE}, {sTmp2}, {vPRE}
        s_and_b32 {sTmp}, {sTmp}, 15
        s_lshl_b32 {sTmp2}, {sG}, 4
        s_add_u32 {sTmp}, {sTmp}, {sTmp2}
        s_lshl_b32 {sTmp}, {sTmp}, 7
        s_add_u32 {sTmp}, {sTmp}, {MLB}
        v_writelane_b32 {vPRE}, {sTmp}, 4
        s_and_b32 {sTmp}, {oHS}, 0xfffff000
        s_lshl_b32 {sTmp2}, {sC}, 2
        s_add_u32 {sTmp2}, {sTmp2}, {sW}
        s_lshl_b32 {sTmp2}, {sTmp2}, 7
        s_add_u32 {sTmp}, {sTmp}, {sTmp2}
        v_writelane_b32 {vPRE}, {sTmp}, 5
        """)
    sU = sTmp2
    C = lines(f"""
    s_mov_b32 {SWO[2]}, {4096*512*2}
    s_mov_b32 {SWO[3]}, 0x20000
    s_mov_b32 {SOUT[2]}, 2048
    s_mov_b32 {SOUT[3]}, 0x20000
    v_xor_b32 {vKR[1]}, 64, {vKR[0]}
    v_xor_b32 {vKR[2]}, 0x80, {vKR[0]}
    v_xor_b32 {vKR[3]}, 0xc0, {vKR[0]}
    v_and_b32 {vT1}, 3, v0
    v_mul_u32_u24 {vQR}, {QSTR}, {vT1}
    v_lshl_add_u32 {vQR}, {vGQ}, 4, {vQR}
    v_lshlrev_b32 {vMR}, 4, {vT1}
    v_lshlrev_b32 {vPS}, 13, {vT1}
    v_lshl_add_u32 {vPS}, {vGQ}, 8, {vPS}
    v_bfe_u32 {vT0}, v0, 2, 1
    v_lshl_add_u32 {vPS}, {vT0}, 10, {vPS}
    s_lshl_b32 {sU}, {sW}, 2
    v_add_u32 {vMX}, {sU}, {vMR}
    s_lshl_b32 {sU}, {sKH}, 12
    v_add_u32 {vTW[0]}, {sU}, {vTW[0]}
    v_xor_b32 {vTW[1]}, 32, {vTW[0]}
    v_xor_b32 {vTW[2]}, 64, {vTW[0]}
    v_xor_b32 {vTW[3]}, 0x60, {vTW[0]}
    s_lshl_b32 {sU}, {sW}, 1
    v_xor_b32 {vTV[0]}, {sU}, {vTV[0]}
    v_lshl_add_u32 {vTV[0]}, {vTV[0]}, 5, {vTV[1]}
    v_add_u32 {vTV[0]}, {L_V}, {vTV[0]}
    v_xor_b32 {vTV[1]}, 32, {vTV[0]}
    s_mul_i32 {sU}, {sW}, {QSTR}
    v_add_u32 {vQW}, {sU}, {vQW}
    v_lshl_add_u32 {vMLG}, {vGQ}, 2, {vI}
    v_and_b32 {vMLG}, 15, {vMLG}
    v_lshlrev_b32 {vMLG}, 4, {vMLG}
    v_lshlrev_b32 {vFS}, 3, {vI}
    v_lshl_add_u32 {vFS}, {vGQ}, 13, {vFS}
    s_lshl_b32 {oFS}, {oWO}, 1
    s_add_u32 {oFS}, {oFS}, {sKH}
    s_lshl_b32 {oFS}, {oFS}, 7
    s_lshl_b32 {sU}, {sC2}, 1
    s_add_u32 {sU}, {sU}, {sB}
    s_lshl_b32 {sU}, {sU}, 15
    s_add_u32 {oFS}, {oFS}, {sU}
    s_add_u32 {oFS}, {oFS}, {FIN}
    s_lshl_b32 {oWO}, {oWO}, 2
    s_add_u32 {oWO}, {oWO}, {sW}
    s_lshl_b32 {oWO}, {oWO}, 15
    s_lshl_b32 {sU}, {sC2}, 7
    s_add_u32 {oWO}, {oWO}, {sU}
    s_lshl_b32 {oPS}, {sG}, 1
    s_add_u32 {oPS}, {oPS}, {sBA}
    s_lshl_b32 {oML}, {oPS}, 2
    s_add_u32 {oML}, {oML}, {sW}
    s_lshl_b32 {oML}, {oML}, 8
    s_lshl_b32 {sU}, {sS}, 4
    s_add_u32 {oML}, {oML}, {sU}
    s_add_u32 {oML}, {oML}, {MLB}
    s_lshl_b32 {oPS}, {oPS}, 15
    s_add_u32 {oPS}, {oPS}, {sU}
    s_lshl_b32 {sU}, {sW}, 11
    s_add_u32 {oPS}, {oPS}, {sU}
    s_add_u32 {oPS}, {oPS}, {PART}
    s_lshl_b32 {oPA}, {sG}, 1
    s_add_u32 {oPA}, {oPA}, {sB}
    s_lshl_b32 {oPA}, {oPA}, 2
    s_add_u32 {oPA}, {oPA}, {sA}
    s_lshl_b32 {oMLG}, {oPA}, 8
    s_add_u32 {oMLG}, {oMLG}, {MLB}
    s_lshl_b32 {oPA}, {oPA}, 13
    s_lshl_b32 {sU}, {sKH}, 12
    s_add_u32 {oPA}, {oPA}, {sU}
    s_add_u32 {oPA}, {oPA}, {PART}
    s_lshl_b32 {oFG}, {sG}, 3
    s_lshr_b32 {sU}, {sJ}, 2
    s_add_u32 {oFG}, {oFG}, {sU}
    s_lshl_b32 {oFG}, {oFG}, 13
    s_and_b32 {sU}, {sJ}, 3
    s_lshl_b32 {sU}, {sU}, 5
    s_add_u32 {oFG}, {oFG}, {sU}
    s_add_u32 {oFG}, {oFG}, {FIN}
    s_add_u32 {oFG2}, {oFG}, 4096
    """)
    def kjob(idx):
        def f():
            a(f"s_lshl2_add_u32 m0, {sM}, {L_K + (4096 if idx >= 4 else 0)}\ns_add_u32 {oK}, {oK}, {65536 if idx == 4 else 0}")
            vmem("k", f"buffer_load_dwordx4 {vK[idx & 3]}, {SK}, {oK} offen offset:{(idx & 3)*1024} {pol('k')} lds")
        return f
    NKA = opt.get("nka", 0)
    NKP = opt.get("nkp", 6)
    b1r = v.get(); xf = v.get()
    def w2job(n):
        def f():
            if n == 0: a(f"s_add_u32 m0, {sM}, {L_W2}\ns_nop 0")
            else: a(f"s_add_u32 m0, {sM}, {L_W2 + 1024}\ns_add_u32 {oW2}, {oW2}, 8192")
            vmem("w2", f"buffer_load_dwordx4 {vWO}, {SW2}, {oW2} offen {pol('w2')} lds")
        return f
    def smalljob():
        vmem("b1", f"buffer_load_ushort {b1r}, {vB1}, {SB1}, {oB1} offen")
        vmem("xf", f"buffer_load_ushort {xf}, {vXF}, {SX}, {oXF} offen")
        if prewarm:
            a("s_mov_b32 exec_lo, 63\ns_mov_b32 exec_hi, 0")
            vmem("pre", f"buffer_load_dword {vPRE}, {vPRE}, {SWS}, 0 offen sc1")
            a("s_mov_b64 exec, -1")
    def w1job(n):
        def f():
            if n == 0: a(f"s_add_u32 m0, {sM}, {L_W1}\ns_nop 0")
            else: a(f"s_add_u32 m0, {sM}, {L_W1 + 1024}\ns_add_u32 {oW1}, {oW1}, 28672")
            vmem("w1", f"buffer_load_dwordx4 {vW1o if n else vW1e}, {SW1}, {oW1} offen {pol('w1')} lds")
        return f
    kw = opt.get("kw1", 2)
    alljobs = [kjob(i) for i in range(kw)] + [w1job(0), w1job(1)] + [kjob(i) for i in range(kw, 8)]
    kj = alljobs[:NKP]; later = alljobs[NKP:]
    for x in A[:27]: a(x)
    tch = opt.get("touch", "")
    if tch:
        a(f"""
        s_lshl_b32 {sTmp2}, {sG}, 2
        s_add_u32 {sTmp2}, {sTmp2}, {sA}
        s_lshl_b32 {sTmp2}, {sTmp2}, 17
        s_waitcnt lgkmcnt(0)
        """)
        if tch == "s":
            a(f"""
            s_load_dword {sE[1]}, {SK[0:2]}, {oK}
            s_load_dword {sE[1]}, {SV[0:2]}, {oK}
            s_load_dword {sE[1]}, {SWO[0:2]}, {sTmp2}
            s_load_dword {sE[1]}, {SW1[0:2]}, 0
            s_load_dword {sE[1]}, {SW2[0:2]}, 0
            s_load_dword {sE[1]}, {SB1[0:2]}, 0
            s_load_dword {sE[1]}, {SOUT[0:2]}, 0
            """)
        else:
            vD = v.get(2)
            a(f"v_mov_b32 {vD[0]}, {oK}")
            vmem("t", f"global_load_dword {vD[1]}, {vD[0]}, {SV[0:2]}")
            a(f"v_mov_b32 {vD[0]}, {sTmp2}")
            vmem("t", f"global_load_dword {vD[1]}, {vD[0]}, {SWO[0:2]}")
            a(f"v_mov_b32 {vD[0]}, 0")
            vmem("t", f"global_load_dword {vD[1]}, {vD[0]}, {SW2[0:2]}")
            vmem("t", f"global_load_dword {vD[1]}, {vD[0]}, {SW1[0:2]}")
            vmem("t", f"global_load_dword {vD[1]}, {vD[0]}, {SWS[0:2]}")
    a(f"s_load_dword {sE[0]}, {SWS[0:2]}, 0")
    if opt.get("spf", 0):
        a(f"s_bfe_u32 {sTmp2}, {oWQ}, 0x30007\ns_cmp_eq_u32 {sTmp2}, 3\ns_cbranch_scc0 L_nospf")
        for r in range(opt.get("spfr", 6)):
            for hf in range(2):
                a(f"s_buffer_load_dword {sE[1]}, {SWQ}, {oWQ} offset:{(7 - r) * 8192 + 64 * hf}")
        a("L_nospf:")
    for x in A[27:]: a(x)
    ja = [kj.pop(0) for _ in range(NKA)]
    weave(B, ja, max(len(B) // (NKA + 1), 1))
    for f in ja: f()
    mk = v.mark()
    f = v.get(16, 2); nm = v.get(2, 2); acc = v.get(2, 2); t0 = v.get(); t1 = v.get(); vMean = v.get(2, 2); vR = v.get(2, 2)
    g4 = v.get(8, 2)
    stamp("addr")
    wait_vm("xs")
    stamp("x")
    LN = []
    for k in range(8):
        LN += [f"v_lshlrev_b32 {f[2*k]}, 16, {xs[k]}", f"v_and_b32 {f[2*k+1]}, {sHi}, {xs[k]}"]
    LN += lines(f"""
    v_pk_add_f32 {g4[0:2]}, {f[0:2]}, {f[2:4]}
    v_pk_add_f32 {g4[2:4]}, {f[4:6]}, {f[6:8]}
    v_pk_add_f32 {g4[4:6]}, {f[8:10]}, {f[10:12]}
    v_pk_add_f32 {g4[6:8]}, {f[12:14]}, {f[14:16]}
    v_pk_add_f32 {g4[0:2]}, {g4[0:2]}, {g4[2:4]}
    v_pk_add_f32 {g4[4:6]}, {g4[4:6]}, {g4[6:8]}
    v_add_f32 {acc[0]}, {g4[0]}, {g4[1]}
    v_add_f32 {acc[1]}, {g4[4]}, {g4[5]}
    """)
    xu = g4
    def red(x, tmp, fill):
        o = []
        def F(n=2):
            for _ in range(n):
                if fill: o.append(fill.pop(0))
        o += [f"v_cndmask_b32 {tmp}, {acc[1]}, {acc[0]}, {sB3}", f"v_cndmask_b32 {x}, {acc[0]}, {acc[1]}, {sB3}"]
        F(2); o.append(f"v_add_f32_dpp {x}, {tmp}, {x} row_ror:8 {DPPM}")
        for m in ("quad_perm:[1,0,3,2]", "quad_perm:[2,3,0,1]", "row_half_mirror"):
            F(); o.append(f"v_add_f32_dpp {x}, {x}, {x} {m} {DPPM}")
        o.append(f"v_mov_b32 {tmp}, {x}"); F(); o += [f"v_permlane16_swap_b32 {x}, {tmp}", f"v_add_f32 {x}, {x}, {tmp}"]
        o.append(f"v_mov_b32 {tmp}, {x}"); F(); o += [f"v_permlane32_swap_b32 {x}, {tmp}", f"v_add_f32 {x}, {x}, {tmp}"]
        return o + fill
    XOW = "@waitxo"
    fill = [XOW]
    for k in range(4):
        fill += [f"v_lshlrev_b32 {xu[2*k]}, 16, {xo[k]}", f"v_and_b32 {xu[2*k+1]}, {sHi}, {xo[k]}"]
    LN += red(t0, t1, fill)
    nm2 = vR
    LN += lines(f"""
    v_mul_f32 {t0}, 0xbb000000, {t0}
    v_cvt_pk_bf16_f32 {vMean[0]}, {t0}, {t0}
    v_and_b32 {vMean[0]}, {sHi}, {vMean[0]}
    v_mov_b32_dpp {nm[0]}, {t0} row_newbcast:0 {DPPM}
    v_mov_b32_dpp {nm2[0]}, {t0} row_newbcast:8 {DPPM}
    v_mov_b32_dpp {nm[1]}, {t0} row_newbcast:0 {DPPM}
    v_mov_b32_dpp {nm2[1]}, {t0} row_newbcast:8 {DPPM}
    """)
    for k in range(8):
        LN.append(f"v_pk_add_f32 {f[2*k:2*k+2]}, {f[2*k:2*k+2]}, {nm if k < 4 else nm2}")
    LN += [f"v_pk_mul_f32 {nm}, {f[0:2]}, {f[0:2]}", f"v_pk_mul_f32 {nm2}, {f[8:10]}, {f[8:10]}"]
    for k in range(1, 4):
        LN += [f"v_pk_fma_f32 {nm}, {f[2*k:2*k+2]}, {f[2*k:2*k+2]}, {nm}", f"v_pk_fma_f32 {nm2}, {f[8+2*k:8+2*k+2]}, {f[8+2*k:8+2*k+2]}, {nm2}"]
    LN += [f"v_add_f32 {acc[0]}, {nm[0]}, {nm[1]}", f"v_add_f32 {acc[1]}, {nm2[0]}, {nm2[1]}"]
    fill = [f"v_mov_b32 {vMean[1]}, {vMean[0]}"]
    for k in range(4):
        fill.append(f"v_pk_add_f32 {xu[2*k:2*k+2]}, {xu[2*k:2*k+2]}, {vMean}")
    for k in range(4):
        fill.append(f"v_cvt_pk_bf16_f32 {xo[k]}, {xu[2*k]}, {xu[2*k+1]}")
    for k in range(2):
        fill += [f"v_lshlrev_b32 {xu[2*k]}, 16, {xo[k]}", f"v_and_b32 {xu[2*k+1]}, {sHi}, {xo[k]}"]
    LN += red(t0, t1, fill)
    LN += lines(f"""
    v_mul_f32 {t0}, 0x3b000000, {t0}
    v_cvt_pk_bf16_f32 {t0}, {t0}, {t0}
    v_lshlrev_b32 {t0}, 16, {t0}
    v_add_f32 {t0}, 0x3727c5ac, {t0}
    v_cvt_pk_bf16_f32 {t0}, {t0}, {t0}
    v_lshlrev_b32 {t0}, 16, {t0}
    v_sqrt_f32 {t0}, {t0}
    v_lshlrev_b32 {xu[4]}, 16, {xo[2]}
    v_cvt_pk_bf16_f32 {t0}, {t0}, {t0}
    v_lshlrev_b32 {t0}, 16, {t0}
    v_rcp_f32 {vR[0]}, {t0}
    v_and_b32 {xu[5]}, {sHi}, {xo[2]}
    v_lshlrev_b32 {xu[6]}, 16, {xo[3]}
    v_and_b32 {xu[7]}, {sHi}, {xo[3]}
    v_mov_b32 {vR[1]}, {vR[0]}
    """)
    for k in range(4):
        LN.append(f"v_pk_mul_f32 {xu[2*k:2*k+2]}, {xu[2*k:2*k+2]}, {vR}")
    for k in range(4):
        LN.append(f"v_cvt_pk_bf16_f32 {xo[k]}, {xu[2*k]}, {xu[2*k+1]}")
    LN.append(f"ds_write_b128 {vPW}, {xo} offset:{L_XN}")
    LN.append(f"ds_write_b32 {vZ}, {vZ} offset:{L_MIX}")
    every = opt.get("kevery", 12)
    k = every - opt.get("kfirst", 1)
    for ins in LN:
        if ins == XOW: wait_vm("xo"); continue
        a(ins); k += 1
        if kj and k >= every:
            kj.pop(0)(); k = 0
    for fj in kj: fj()
    v.release(mk)
    sTag = s.get(4); sXCC = s.get(); sTP = s.get()
    sCnt, sMix = s.get(), s.get()
    stamp("ln")
    a(f"""
    s_getreg_b32 {sXCC}, hwreg(HW_REG_XCC_ID, 0, 4)
    s_waitcnt lgkmcnt(0)
    s_add_u32 {sTag[0]}, {sE[0]}, {hex(PHI)}
    s_lshr_b32 {sTag[1]}, {sTag[0]}, 8
    s_lshr_b32 {sTag[2]}, {sTag[0]}, 16
    s_lshr_b32 {sTag[3]}, {sTag[0]}, 24
    s_xor_b32 {sTP}, {sTag[0]}, {sXCC}
    """)
    if NDB:
        vDBV = v.get(); sDBP = SK[0:2]; sDBX = 'vcc'
        a(f"""
        v_lshlrev_b32 {vDB}, 7, v0
        v_mov_b32 {vDBV}, {sTP}
        s_and_b32 {oDB}, {oDB}, 0xfffffc00
        s_xor_b32 {sTmp}, {sC}, {opt.get('cqx', 1)}
        s_lshl_b32 {sTmp}, {sTmp}, 2
        s_add_u32 {sTmp}, {sTmp}, {sA}
        s_lshl_b32 {sTmp}, {sTmp}, 2
        s_add_u32 {sTmp}, {sTmp}, {sW}
        s_add_u32 {oDB}, {oDB}, {sTmp}
        s_and_b32 vcc_lo, {sTP}, 0xff
        s_mul_i32 vcc_lo, vcc_lo, 0x01010101
        s_mov_b32 vcc_hi, vcc_lo
        """)
    wait_vm("wq")
    stamp("wq")
    a("s_barrier")
    xn = v.get(8, 2)
    mk = v.mark()
    xn2 = v.get(8, 2); aq = v.get(16, 2); dq = v.get(4, 2)
    xnt = [xn[0:4], xn[4:8], xn2[0:4], xn2[4:8]]
    for t in range(4):
        a(f"ds_read_b128 {xnt[t]}, {vL16} offset:{L_XN + 1024*t}")
        for hi in range(2):
            a(f"ds_read_b64_tr_b16 {aq[4*t+2*hi:4*t+2*hi+2]}, {vTQ} offset:{L_WQ + 4096*t + 512*hi}")
    for t in range(4):
        a(f"s_waitcnt lgkmcnt({9 - 3*t})")
        a(f"v_mfma_f32_16x16x32_bf16 {dq}, {aq[4*t:4*t+4]}, {xnt[t]}, {dq if t else 0}")
    def pub(d, voff, soff, name, tp):
        a("s_mov_b32 exec_lo, 0x01010101\ns_mov_b32 exec_hi, 0x01010101")
        a(f"v_bfi_b32 {d[0]}, {vFF}, {tp}, {d[0]}")
        for k in range(1, 4):
            a(f"v_bfi_b32 {d[k]}, {vFF}, {sTag[k]}, {d[k]}")
    pub(dq, vQS, oQS, "qs", sTP)
    vmem("qs", f"buffer_store_dwordx4 {dq}, {vQS}, {SWS}, {oQS} offen")
    a(f"ds_write_b128 {vSV}, {dq} offset:{L_QSV}")
    a("s_mov_b64 exec, -1")
    v.release(mk)
    stamp("pub1")
    qg = v.get(8, 2); hg = v.get(4, 2)
    DBR = Reg("s", 16, 8)
    def poll1(first):
        t = [f"buffer_load_dwordx4 {qg[0:4]}, {vQG}, {SWS}, {oQG} offen sc1",
             f"buffer_load_dwordx4 {qg[4:8]}, {vQG}, {SWS}, {oQG} offen offset:2048 sc1"]
        for x in t:
            if first: vmem("p1", x)
            else: a(x)
    def vjob(n):
        def f():
            a(f"s_add_u32 m0, {sM}, {L_V + 8192 * (n >> 1)}\ns_add_u32 {oV}, {oV}, {131072 if (n and not n & 1) else 0}")
            vmem("v%d" % (n // 2), f"buffer_load_dwordx4 {vV[n & 1]}, {SV}, {oV} offen offset:{1024 * (n & 1)} {pol('v')} lds")
        return f
    sMsk, sScale, sL2E, sLn2, sM2 = sT, oW1, oB1, oK, oKV
    qb = v.get(16, 2); sc = v.get(8, 2); tmp4 = v.get(4, 2); ones = v.get(4, 2); pr = v.get(4, 2); af = v.get(4, 2); mlr = v.get(4, 2)
    sEv = sB3; sEv2 = sE
    C2 = lines(f"""
    s_mov_b32 {sMsk}, 0xffffff00
    s_mov_b32 {sScale}, 0x3db504f3
    s_mov_b32 {sL2E}, 0x3fb8aa3b
    s_mov_b32 {sLn2}, 0x3f317218
    s_mov_b32 {sM2}, 0xc038aa3b
    s_mov_b32 {sEv[0]}, 0x55555555
    s_mov_b32 {sEv[1]}, 0x55555555
    s_mov_b32 {sEv2[0]}, 0x33333333
    s_mov_b32 {sEv2[1]}, 0x33333333
    v_mov_b32 {mlr[2]}, {sTag[0]}
    v_mov_b32 {mlr[3]}, {sTag[0]}
    """)
    for k in range(4):
        C2 += [f"v_mov_b32 {ones[k]}, 0x3f803f80", f"v_mov_b32 {pr[k]}, {sTag[0]}", f"v_mov_b32 {af[k]}, 0"]
    a(f"s_mov_b32 {sCnt}, 0")
    a1 = sc; dh = v.get(4, 2)
    def hjob():
        wait_vm("w1")
        a("s_waitcnt lgkmcnt(0)\ns_barrier")
        for t in range(2):
            for hi in range(2):
                a(f"ds_read_b64_tr_b16 {a1[4*t+2*hi:4*t+2*hi+2]}, {vTQ} offset:{L_W1 + 4096*t + 512*hi}")
        for t in range(2):
            a(f"s_waitcnt lgkmcnt({2 - 2*t})")
            a(f"v_mfma_f32_16x16x32_bf16 {dh}, {a1[4*t:4*t+4]}, {xn[4*t:4*t+4]}, {dh if t else 0}")
        for x in C[nC:nC+6]: a(x)
        del C[nC:nC+6]
        pub(dh, vHS, oHS, "hs", sTP)
        vmem("hs", f"buffer_store_dwordx4 {dh}, {vHS}, {SWS}, {oHS} offen")
        a("s_mov_b64 exec, -1")
        stamp("pubh")
    def hpoll(first=True):
        x = f"buffer_load_dwordx4 {hg}, {vHG}, {SWS}, {oHG} offen sc1"
        if first: vmem("ph", x)
        else: a(x)
    NVQ = opt.get("nvq", 2); NVH = opt.get("nvh", 2); NVP = opt.get("nvp", 9); NV1 = opt.get("nv1", 8)
    for fj in later + [smalljob]: fj()
    vj = [vjob(n) for n in range(8)]
    first = vj[:NVH]
    first.insert(NVQ, lambda: poll1(True))
    first.pop(0)()
    nC = opt.get("nc1", 40)
    weave(C[:nC], first, max(nC // (len(first) + 1), 1))
    for fj in first: fj()
    hjob()
    def wojob(n):
        def f():
            a(f"s_lshl1_add_u32 m0, {sM}, {L_WO + 1024 * n}\ns_add_u32 {oWO}, {oWO}, {8192 if n else 0}")
            vmem("wo", f"buffer_load_dwordx4 {vWO}, {SWO}, {oWO} offen {pol('wo')} lds")
        return f
    wj = [w2job(0), w2job(1)] + [wojob(n) for n in range(4)]
    if NVP > NV1: wj.insert(opt.get("hidx", 0), hpoll)
    wj = vj[NV1:] + wj
    NW0 = opt.get("nw0", 0)
    early = wj[:NW0]; wj = wj[NW0:]
    wopos = list(opt.get("wopos", [0, 0, 0, 1, 2, 3, 4]))[-len(wj):] if wj else []
    second = vj[NVH:NV1]
    if NVP <= NV1: second.insert(NVP - NVH, hpoll)
    weave(C[nC:] + C2, second, max((len(C) - nC + len(C2)) // (len(second) + 1), 1))
    for fj in second: fj()
    if early: a("s_waitcnt lgkmcnt(0)")
    for fj in early: fj()
    stamp("issV")
    wait_vm("k")
    for T in range(2):
        for st in range(4):
            a(f"ds_read_b128 {kk[16*T+4*st:16*T+4*st+4]}, {vKR[st]} offset:{4096*T}")
    wait_vm("p1")
    stamp("p1")
    a("L_chk1:")
    a(f"v_xor_b32 {vT0}, {sTP}, {qg[0]}\nv_xor_b32 {vT1}, {sTP}, {qg[4]}")
    seq = [(qg[1], sTag[1], vT0), (qg[5], sTag[1], vT1), (qg[2], sTag[2], vT0), (qg[6], sTag[2], vT1), (qg[3], sTag[3], vT0), (qg[7], sTag[3], vT1)]
    for r, tg, d in seq:
        a(f"v_bitop3_b32 {d}, {r}, {tg}, {d} {BOP}")
    a(f"""
    v_bitop3_b32 {vT0}, {vT0}, {vT1}, {vFF} bitop3:0xa8
    v_cmp_ne_u32 vcc, 0, {vT0}
    """)
    for k in range(8):
        a(f"v_and_b32 {sc[k]}, {sMsk}, {qg[k]}")
    a(f"""
    s_cbranch_vccnz L_retry1
    L_ok1:
    """)
    stamp("ok1")
    def WO(p):
        while wj and wopos and wopos[0] <= p:
            wopos.pop(0); wj.pop(0)()
    WO(-1)
    a(f"""
    v_pk_add_f32 {sc[0:2]}, {sc[0:2]}, {sc[4:6]}
    v_pk_add_f32 {sc[2:4]}, {sc[2:4]}, {sc[6:8]}
    v_permlane32_swap_b32 {sc[0]}, {sc[2]}
    v_permlane32_swap_b32 {sc[1]}, {sc[3]}
    v_add_f32 {sc[0]}, {sc[0]}, {sc[2]}
    v_add_f32 {sc[1]}, {sc[1]}, {sc[3]}
    v_cvt_pk_bf16_f32 {sc[0]}, {sc[0]}, {sc[1]}
    ds_write_b32 {vQW}, {sc[0]} offset:{L_Q}
    """)
    WO(0)
    a("s_waitcnt lgkmcnt(0)\ns_barrier")
    a(f"ds_read_b32 {vT1}, {vZ} offset:{L_MIX}")
    for st in range(4):
        a(f"ds_read_b128 {qb[4*st:4*st+4]}, {vQR} offset:{L_Q + 64*st}")
    for st in range(4):
        a(f"s_waitcnt lgkmcnt({3 - st})")
        for T in range(2):
            d = sc[4*T:4*T+4]
            a(f"v_mfma_f32_16x16x32_bf16 {d}, {kk[16*T+4*st:16*T+4*st+4]}, {qb[4*st:4*st+4]}, {d if st else 0}")
    a(f"v_readfirstlane_b32 {sMix}, {vT1}\ns_cmp_eq_u32 {sMix}, 0\ns_cbranch_scc0 L_mixed\nL_mixback:")
    pk = qb
    t4 = xn[0:4]
    for k in range(4):
        a(f"v_cvt_pk_bf16_f32 {t4[k]}, {sc[2*k]}, {sc[2*k+1]}")
    for k in range(4):
        a(f"v_lshlrev_b32 {sc[2*k]}, 16, {t4[k]}\nv_and_b32 {sc[2*k+1]}, {sHi}, {t4[k]}")
    for k in range(8):
        a(f"v_mul_f32 {sc[k]}, {sScale}, {sc[k]}")
    for k in range(4):
        a(f"v_cvt_pk_bf16_f32 {t4[k]}, {sc[2*k]}, {sc[2*k+1]}")
    for k in range(4):
        a(f"v_lshlrev_b32 {sc[2*k]}, 16, {t4[k]}\nv_and_b32 {sc[2*k+1]}, {sHi}, {t4[k]}")
    vMax = mlr[0]
    WO(1)
    a(f"""
    v_max3_f32 {vT0}, {sc[0]}, {sc[1]}, {sc[2]}
    v_max3_f32 {vT1}, {sc[3]}, {sc[4]}, {sc[5]}
    v_max3_f32 {vT0}, {vT0}, {sc[6]}, {sc[7]}
    v_max_f32 {vT0}, {vT0}, {vT1}
    v_mov_b32 {vT1}, {vT0}
    v_permlane16_swap_b32 {vT0}, {vT1}
    v_max_f32 {vT0}, {vT0}, {vT1}
    v_mov_b32 {vT1}, {vT0}
    v_permlane32_swap_b32 {vT0}, {vT1}
    v_max_f32 {vT0}, {vT0}, {vT1}
    ds_write_b32 {vMX}, {vT0} offset:{L_MX}
    """)
    WO(2)
    a(f"s_waitcnt lgkmcnt(0)\ns_barrier\nds_read_b128 {t4}, {vMR} offset:{L_MX}")
    bw = v.get(16, 2); df = v.get(16, 2)
    WO(3)
    a(f"""
    s_lshl_b32 {sTmp}, {sKH}, 12
    s_waitcnt lgkmcnt(0)
    v_max3_f32 {vT0}, {t4[0]}, {t4[1]}, {t4[2]}
    v_max_f32 {vT0}, {vT0}, {t4[3]}
    v_mul_f32 {vMax}, {sL2E}, {vT0}
    """)
    for k in range(8):
        a(f"v_fma_f32 {sc[k]}, {sc[k]}, {sL2E}, -{vMax}")
    for k in range(8):
        a(f"v_exp_f32 {sc[k]}, {sc[k]}")
    for k in range(4):
        a(f"v_cvt_pk_bf16_f32 {t4[k]}, {sc[2*k]}, {sc[2*k+1]}")
    a(f"ds_write_b128 {vPW}, {t4} offset:{L_XN}")
    vTO = v.get(4)
    for ct in range(4):
        a(f"v_add_u32 {vTO[ct]}, {sTmp}, {vTW[ct]}")
    WO(4)
    av = kk; do = v.get(8, 2); dl = sc[0:4]
    a(f"v_mov_b32 {vT0}, 0\nv_lshlrev_b32 {b1r}, 16, {b1r}\ns_lshl_b32 {sTmp}, 1, {sW}\ns_cmp_eq_u32 {sMix}, 0")
    wait_vm("v1")
    a("s_waitcnt lgkmcnt(0)\ns_barrier")
    def vreads(t):
        for T in range(2):
            for hi in range(2):
                a(f"ds_read_b64_tr_b16 {av[8*t+4*T+2*hi:8*t+4*T+2*hi+2]}, {vTV[T]} offset:{8192*t + 4096*hi}")
    def pvm(t, T):
        d = do[4*T:4*T+4]
        a(f"v_mfma_f32_16x16x32_bf16 {d}, {av[8*t+4*T:8*t+4*T+4]}, {pk[4*t:4*t+4]}, {d if t else 0}")
    for t in range(2):
        a(f"ds_read_b128 {pk[4*t:4*t+4]}, {vL16} offset:{L_XN + 1024*t}")
        vreads(t)
    for t in range(2, 4):
        a(f"ds_read_b128 {pk[4*t:4*t+4]}, {vL16} offset:{L_XN + 1024*t}")
    for t in range(2):
        for T in range(2):
            a(f"s_waitcnt lgkmcnt({9 - 5*t - 2*T})")
            pvm(t, T)
    stamp("soft")
    spec = opt.get("vspec", 1)
    for t in range(4):
        if t >= 2: a(f"s_waitcnt lgkmcnt({3 - t})")
        a(f"v_mfma_f32_16x16x32_bf16 {dl}, {ones}, {pk[4*t:4*t+4]}, {dl if t else 0}")
    wait_vm("v3")
    stamp("V")
    a("s_barrier")
    vreads(2); vreads(3)
    a(f"""
    v_mov_b32 {mlr[1]}, {dl[0]}
    s_mov_b32 exec_lo, {sTmp}
    s_mov_b32 exec_hi, 0
    s_cbranch_scc0 L_mlmix
    """)
    vmem("ml", f"buffer_store_dwordx4 {mlr}, {vT0}, {SWS}, {oML} offen")
    a("L_mlback:")
    a("s_mov_b64 exec, -1")
    for t in range(2, 4):
        for T in range(2):
            a(f"s_waitcnt lgkmcnt({6 - 4*(t-2) - 2*T})")
            pvm(t, T)
    a(f"""
    s_mov_b32 exec_lo, 0x000f000f
    s_mov_b32 exec_hi, 0x000f000f
    s_mov_b32 {sCnt}, 0
    v_cvt_pk_bf16_f32 {pr[2]}, {do[0]}, {do[1]}
    v_cvt_pk_bf16_f32 {pr[3]}, {do[2]}, {do[3]}
    s_mov_b32 exec_lo, 0x00f000f0
    s_mov_b32 exec_hi, 0x00f000f0
    v_cvt_pk_bf16_f32 {pr[0]}, {do[4]}, {do[5]}
    v_cvt_pk_bf16_f32 {pr[1]}, {do[6]}, {do[7]}
    s_mov_b32 exec_lo, 0x00ff00ff
    s_mov_b32 exec_hi, 0x00ff00ff
    s_cbranch_scc0 L_psmix
    """)
    vmem("ps", f"buffer_store_dwordx4 {pr}, {vPS}, {SWS}, {oPS} offen")
    a("L_psback:")
    a("s_mov_b64 exec, -1")
    stamp("pub2")
    wait_vm("ph")
    a("L_chkh:")
    a(f"v_xor_b32 {vT0}, {sTP}, {hg[0]}")
    for k in range(1, 4):
        a(f"v_bitop3_b32 {vT0}, {hg[k]}, {sTag[k]}, {vT0} {BOP}")
    a(f"v_and_b32 {vT0}, {vT0}, {vFF}\nv_cmp_ne_u32 vcc, 0, {vT0}")
    hm = sc[0:4]; hs4 = sc[4:8]
    for k in range(4):
        a(f"v_and_b32 {hm[k]}, {sMsk}, {hg[k]}")
    a("s_cbranch_vccnz L_retryh\nL_okh:")
    h = hm[0]; e = hm[1]; u = hm[2]; d1 = hm[3]; r1 = hs4[1]
    def rnd1(x): return [f"v_cvt_pk_bf16_f32 {x}, {x}, {x}", f"v_lshlrev_b32 {x}, 16, {x}"]
    ff = lines(f"""
    v_cndmask_b32 {hs4[0]}, {hm[0]}, {hm[2]}, {sEv}
    v_cndmask_b32 {hs4[1]}, {hm[1]}, {hm[3]}, {sEv}
    v_cndmask_b32 {hs4[2]}, {hm[2]}, {hm[0]}, {sEv}
    v_cndmask_b32 {hs4[3]}, {hm[3]}, {hm[1]}, {sEv}
    v_add_f32_dpp {hs4[2]}, {hs4[0]}, {hs4[2]} quad_perm:[1,0,3,2] {DPPM}
    v_add_f32_dpp {hs4[3]}, {hs4[1]}, {hs4[3]} quad_perm:[1,0,3,2] {DPPM}
    v_cndmask_b32 {hs4[0]}, {hs4[2]}, {hs4[3]}, {sEv2}
    v_cndmask_b32 {h}, {hs4[3]}, {hs4[2]}, {sEv2}
    v_add_f32_dpp {h}, {hs4[0]}, {h} quad_perm:[2,3,0,1] {DPPM}
    v_add_f32_dpp {h}, {h}, {h} row_shl:4 {DPPM}
    """)
    ff += rnd1(h) + [f"v_add_f32 {h}, {h}, {b1r}"] + rnd1(h)
    ff += [f"v_mul_f32 {e}, -abs({h}), {sL2E}", f"v_exp_f32 {e}, {e}"] + rnd1(e)
    ff += [f"v_add_f32 {u}, 1.0, {e}", f"v_add_f32 {d1}, -1.0, {u}", f"v_log_f32 {u}, {u}", f"v_rcp_f32 {r1}, {d1}",
           f"v_cmp_eq_f32 vcc, 0, {d1}", f"v_mul_f32 {u}, {sLn2}, {u}", f"v_mul_f32 {r1}, {r1}, {e}", f"v_mul_f32 {u}, {u}, {r1}",
           f"v_cndmask_b32 {u}, {u}, {e}, vcc"] + rnd1(u)
    ff += [f"v_max_f32 {e}, 0, {h}", f"v_add_f32 {u}, {u}, {e}"] + rnd1(u)
    ff += [f"v_mul_f32 {e}, {sM2}, {u}", f"v_exp_f32 {e}, {e}", f"v_cmp_gt_f32 vcc, 0x3a800000, {u}", f"v_add_f32 {d1}, 1.0, {e}", f"v_rcp_f32 {d1}, {d1}",
           f"v_sub_f32 {e}, 1.0, {e}", f"v_mul_f32 {e}, {e}, {d1}", f"v_cndmask_b32 {e}, {e}, {u}, vcc"] + rnd1(e)
    ff += [f"v_mul_f32 {e}, {e}, {h}", f"v_mov_b32_dpp {u}, {e} quad_perm:[2,3,0,1] {DPPM}", f"v_cvt_pk_bf16_f32 {u}, {e}, {u}"]
    ff += lines(f"""
    v_mov_b32_dpp {af[0]}, {u} quad_perm:[0,1,2,3] row_mask:0xf bank_mask:0x1
    v_mov_b32_dpp {af[1]}, {u} row_shl:1 row_mask:0xf bank_mask:0x1
    v_mov_b32_dpp {af[2]}, {u} row_shl:8 row_mask:0xf bank_mask:0x1
    v_mov_b32_dpp {af[3]}, {u} row_shl:9 row_mask:0xf bank_mask:0x1
    """)
    for x in ff: a(x)
    stamp("ffn")
    pa = qb; mlg = qg[0:4]; bo = kk; dd = v.get(16, 2)
    def poll2(first):
        t = []
        for tl in range(2):
            t.append(f"buffer_load_dwordx4 {pa[8*tl:8*tl+4]}, {vPA}, {SWS}, {oPA} offen offset:{2048*tl} sc1")
            t.append(f"buffer_load_dwordx4 {pa[8*tl+4:8*tl+8]}, {vPA}, {SWS}, {oPA} offen offset:{2048*tl+1024} sc1")
        t.append(f"buffer_load_dwordx4 {mlg}, {vMLG}, {SWS}, {oMLG} offen sc1")
        for x in t:
            if first: vmem("p2", x)
            else: a(x)
    allow = opt.get("p2allow", 4)
    if allow < 4: wait_vm("wo", allow)
    poll2(True)
    wait_vm("wo")
    stamp("wo")
    a("s_barrier")
    for ct in range(4):
        for hi in range(2):
            a(f"ds_read_b64_tr_b16 {bw[4*ct+2*hi:4*ct+2*hi+2]}, {vTW[ct]} offset:{L_W2 + 2048*hi}")
    for tl in range(2):
        for ct in range(4):
            for hi in range(2):
                r = bo[16*tl+4*ct+2*hi:16*tl+4*ct+2*hi+2]
                a(f"ds_read_b64_tr_b16 {r}, {vTO[ct]} offset:{L_WO + 4096*tl + 2048*hi}")
        if tl == 0:
            a("s_waitcnt lgkmcnt(8)")
            for ct in range(4):
                a(f"v_mfma_f32_16x16x32_bf16 {df[4*ct:4*ct+4]}, {af}, {bw[4*ct:4*ct+4]}, 0")
    fo = pr[0:2]
    a(f"s_mov_b32 {sCnt}, 0\nv_mov_b32 {fo[1]}, {sTag[0]}\nv_lshlrev_b32 {xf}, 16, {xf}")
    a("s_waitcnt vmcnt(0)")
    a("L_chk2:")
    a(f"v_xor_b32 {vT0}, {sTag[0]}, {pa[1]}")
    for r in (pa[6], pa[9], pa[14], mlg[2]):
        a(f"v_bitop3_b32 {vT0}, {r}, {sTag[0]}, {vT0} {BOP}")
    a(f"""
    v_cmp_ne_u32 vcc, 0, {vT0}
    s_cbranch_vccnz L_retry2
    L_ok2:
    s_mov_b64 exec, -1
    """)
    stamp("ok2")
    wv = vT1
    a(f"v_max_f32_dpp {vT0}, {mlg[0]}, {mlg[0]} row_ror:1 {DPPM}\ns_waitcnt lgkmcnt(8)")
    wchain = [f"v_max_f32_dpp {vT0}, {vT0}, {vT0} row_ror:{r} {DPPM}" for r in (2, 4, 8)]
    wchain += [f"v_sub_f32 {wv}, {mlg[0]}, {vT0}", f"v_exp_f32 {wv}, {wv}", f"v_mul_f32 {vT0}, {wv}, {mlg[1]}"]
    wchain += [f"v_add_f32_dpp {vT0}, {vT0}, {vT0} row_ror:{r} {DPPM}" for r in (1, 2, 4, 8)]
    wchain += [f"v_rcp_f32 {vT0}, {vT0}", f"v_mul_f32 {wv}, {wv}, {vT0}"]
    for tl in range(2):
        if tl: a("s_waitcnt lgkmcnt(0)")
        for ct in range(4):
            a(f"v_mfma_f32_16x16x32_bf16 {dd[4*ct:4*ct+4]}, {pa[8*tl+2:8*tl+6]}, {bo[16*tl+4*ct:16*tl+4*ct+4]}, {dd[4*ct:4*ct+4] if tl else 0}")
            a(wchain.pop(0))
    for x in wchain: a(x)
    for ct in range(4):
        for r in range(4):
            a(f"v_fmac_f32_dpp {df[4*ct]}, {wv}, {dd[4*ct+r]} row_newbcast:{r} {DPPM}")
    a(f"""
    v_permlane32_swap_b32 {df[0]}, {df[8]}
    v_permlane32_swap_b32 {df[4]}, {df[12]}
    v_add_f32 {df[0]}, {df[0]}, {df[8]}
    v_add_f32 {df[4]}, {df[4]}, {df[12]}
    s_cmp_eq_u32 {sW}, 0
    v_permlane16_swap_b32 {df[0]}, {df[4]}
    v_add_f32 {fo[0]}, {df[0]}, {df[4]}
    buffer_store_dwordx2 {fo}, {vFS}, {SWS}, {oFS} offen sc1
    """)
    if stamps or probe:
        stamp("pub3", flush=True)
        a(f"s_cmp_eq_u32 {sW}, 0")
    a("s_cbranch_scc0 L_fin")
    fg = bo[0:8]
    a(f"s_mov_b32 {sCnt}, 0")
    if opt.get("p3delay", 1):
        a("s_waitcnt vmcnt(0)")
    a(f"""
    L_poll3:
    buffer_load_dwordx4 {fg[0:4]}, {vFG}, {SWS}, {oFG} offen sc1
    buffer_load_dwordx4 {fg[4:8]}, {vFG}, {SWS}, {oFG2} offen sc1
    s_add_u32 {sCnt}, {sCnt}, 1
    s_cmp_gt_u32 {sCnt}, 20000
    s_cbranch_scc1 L_ok3
    s_waitcnt vmcnt(0)
    v_xor_b32 {vT0}, {sTag[0]}, {fg[1]}
    v_bitop3_b32 {vT0}, {fg[3]}, {sTag[0]}, {vT0} {BOP}
    v_bitop3_b32 {vT0}, {fg[5]}, {sTag[0]}, {vT0} {BOP}
    v_bitop3_b32 {vT0}, {fg[7]}, {sTag[0]}, {vT0} {BOP}
    v_cmp_ne_u32 vcc, 0, {vT0}
    s_cbranch_vccz L_ok3
    {'s_mov_b64 exec, vcc' if opt.get('sticky', 1) else ''}
    s_branch L_poll3
    L_ok3:
    s_mov_b64 exec, -1
    s_waitcnt vmcnt(0)
    v_add_f32 {dd[0]}, {fg[0]}, {fg[4]}
    v_add_f32 {dd[1]}, {fg[2]}, {fg[6]}
    """)
    stamp("ok3", flush=True)
    for r in (2, 4, 8):
        a(f"v_add_f32_dpp {dd[0]}, {dd[0]}, {dd[0]} row_ror:{r} {DPPM}")
        a(f"v_add_f32_dpp {dd[1]}, {dd[1]}, {dd[1]} row_ror:{r} {DPPM}")
    a(f"""
    s_cmp_eq_u32 s2, 0
    v_permlane16_swap_b32 {dd[0]}, {dd[1]}
    v_add_f32 {dd[0]}, {dd[0]}, {dd[1]}
    v_mov_b32 {dd[1]}, {dd[0]}
    v_permlane32_swap_b32 {dd[0]}, {dd[1]}
    v_add_f32 {dd[0]}, {dd[0]}, {dd[1]}
    v_add_f32 {dd[0]}, {dd[0]}, {xf}
    v_cvt_pk_bf16_f32 {dd[0]}, {dd[0]}, {dd[0]}
    s_mov_b32 exec_lo, 0x00030003
    s_mov_b32 exec_hi, 0
    buffer_store_short {dd[0]}, {vXF}, {SOUT}, {oXF} offen
    s_cbranch_scc0 L_fin
    s_mov_b32 exec_lo, 1
    v_mov_b32 {vT0}, 0
    buffer_store_dword {fo[1]}, {vT0}, {SWS}, 0 offen
    L_fin:
    """)
    if stamps:
        stamp("end", True)
        a("s_mov_b64 exec, -1")
        a(f"""
        s_getreg_b32 {sTmp}, hwreg(HW_REG_HW_ID)
        v_writelane_b32 {vST}, {sTmp}, 29
        v_writelane_b32 {vST}, {sXCC}, 30
        v_writelane_b32 {vST}, {sMix}, 31
        s_lshl_b32 {sTmp}, s2, 2
        s_add_u32 {sTmp}, {sTmp}, {sW}
        s_lshl_b32 {sTmp}, {sTmp}, 7
        s_add_u32 {sTmp}, {sTmp}, {STAMP}
        v_lshlrev_b32 {vT1}, 2, v0
        s_mov_b32 exec_lo, -1
        s_mov_b32 exec_hi, 0
        buffer_store_dword {vST}, {vT1}, {SWS}, {sTmp} offen
        """)
        out.insert(len(hdr), "; stamps: " + ",".join(names))
    if probe:
        stamp("end")
        a(f"""
        s_cmp_eq_u32 {sW}, {opt.get('pwave', 0)}
        s_cbranch_scc0 L_end
        s_load_dwordx2 s[8:9], s[0:1], 80
        s_mov_b32 s10, 256
        s_mov_b32 s11, 0x20000
        s_mov_b64 exec, 1
        s_waitcnt lgkmcnt(0)
        s_sub_u32 s4, 0, s100
        v_mov_b32 v2, s4
        v_mov_b32 v3, s98
        v_mov_b32 v4, 0
        buffer_atomic_umax v2, v4, s[8:11], 0 offen sc1
        buffer_atomic_umax v3, v4, s[8:11], 0 offen offset:128 sc1
        s_waitcnt vmcnt(0)
        L_hold0:
        s_memrealtime s[4:5]
        s_waitcnt lgkmcnt(0)
        s_sub_u32 s4, s4, s100
        s_cmp_lt_u32 s4, 2000
        s_cbranch_scc1 L_hold0
        buffer_load_dword v2, v4, s[8:11], 0 offen sc1
        buffer_load_dword v3, v4, s[8:11], 0 offen offset:128 sc1
        s_waitcnt vmcnt(0)
        v_readfirstlane_b32 s6, v2
        v_readfirstlane_b32 s98, v3
        s_add_u32 s98, s98, s6
        s_min_u32 s98, s98, 2000
        s_mul_i32 s98, s98, {opt.get('mult', 8)}
        s_add_u32 s98, s98, 2500
        L_hold1:
        s_memrealtime s[4:5]
        s_waitcnt lgkmcnt(0)
        s_sub_u32 s4, s4, s100
        s_cmp_lt_u32 s4, s98
        s_cbranch_scc1 L_hold1
        """)
    a("L_end:\ns_endpgm")
    a(f"""
    L_retry1:
    s_add_u32 {sCnt}, {sCnt}, 1
    s_cmp_gt_u32 {sCnt}, 20000
    s_cbranch_scc1 L_ok1
    s_cmp_eq_u32 {sCnt}, {opt.get('nplain', 12)}
    s_cbranch_scc0 L_r1b
    v_mov_b32 {vT0}, 1
    ds_write_b32 {vZ}, {vT0} offset:{L_MIX}
    ds_read_b128 {qg[0:4]}, {vL16} offset:{L_QSV}
    v_and_b32 {vT0}, 1, v0
    v_lshlrev_b32 {vT0}, 13, {vT0}
    v_lshrrev_b32 {vT1}, 1, v0
    v_lshl_add_u32 {vT0}, {vT1}, 4, {vT0}
    s_and_b32 {sTmp}, {oQS}, 0xffffff00
    s_add_u32 {sTmp}, {sTmp}, {SC1D}
    s_waitcnt lgkmcnt(0)
    v_xor_b32 {qg[0]}, {sXCC}, {qg[0]}
    s_mov_b32 exec_lo, -1
    s_mov_b32 exec_hi, 0
    buffer_store_dwordx4 {qg[0:4]}, {vT0}, {SWS}, {sTmp} offen sc1
    s_mov_b64 exec, -1
    s_mov_b32 {sTP}, {sTag[0]}
    s_add_u32 {oQG}, {oQG}, {SC1D}
    s_nop 1
    L_r1b:
    """)
    poll1(False)
    a("s_waitcnt vmcnt(0)\ns_branch L_chk1")
    a(f"""
    L_mixed:
    s_mov_b32 {sTP}, {sTag[0]}
    s_add_u32 {oHG}, {oHG}, {SC1D}
    s_add_u32 {oHS}, {oHS}, {SC1D}
    s_mov_b32 exec_lo, 0x01010101
    s_mov_b32 exec_hi, 0x01010101
    v_xor_b32 {dh[0]}, {sXCC}, {dh[0]}
    buffer_store_dwordx4 {dh}, {vHS}, {SWS}, {oHS} offen sc1
    s_waitcnt vmcnt(0)
    s_mov_b64 exec, -1
    s_branch L_mixback
    L_retryh:
    s_add_u32 {sCnt}, {sCnt}, 1
    s_cmp_gt_u32 {sCnt}, 20000
    s_cbranch_scc1 L_okh
    buffer_load_dwordx4 {hg}, {vHG}, {SWS}, {oHG} offen sc1
    s_waitcnt vmcnt(0)
    s_branch L_chkh
    L_mlmix:
    buffer_store_dwordx4 {mlr}, {vT0}, {SWS}, {oML} offen sc1
    s_branch L_mlback
    L_psmix:
    buffer_store_dwordx4 {pr}, {vPS}, {SWS}, {oPS} offen sc1
    s_branch L_psback
    L_retry2:
    s_add_u32 {sCnt}, {sCnt}, 1
    s_cmp_gt_u32 {sCnt}, 20000
    s_cbranch_scc1 L_ok2
    {'s_mov_b64 exec, vcc' if opt.get('sticky', 1) else ''}
    """)
    poll2(False)
    a("s_waitcnt vmcnt(0)\ns_branch L_chk2")
    a("L_codeend:")
    nv = (v.hw + 7) // 8 * 8
    out.append(a.text())
    out.append(f""".section .rodata,"a"
.p2align 6
.amdhsa_kernel {NAME}_kernel
  .amdhsa_next_free_vgpr {nv}
  .amdhsa_next_free_sgpr 102
  .amdhsa_accum_offset {nv}
  .amdhsa_group_segment_fixed_size 0
  .amdhsa_kernarg_size 96
  .amdhsa_user_sgpr_count 2
  .amdhsa_user_sgpr_kernarg_segment_ptr 1
  .amdhsa_system_sgpr_workgroup_id_x 1
.end_amdhsa_kernel""")
    sys.stderr.write("vgprs %d sgprs %d nops %d\n" % (v.hw, s.hw, a.nops))
    return "\n".join(out) + "\n"

if __name__ == "__main__":
    import json
    opt = json.loads(sys.argv[2]) if len(sys.argv) > 2 else {}
    open(sys.argv[1], "w").write(gen(opt))
```

```python
import sys
from asmlib import *

NAME = "parallel_sum__sliding_block_cached__dense_activation_mish__decode"
PHI = 0x9E3779B9
QBUF = 0x10000; HBUF = 0x50000; SC1D = 0x20000; MLB = 0x90000; DBB = 0x98000; PART = 0x100000; FIN = 0x180000; STAMP = 0x800000
L_XN = 0; L_Q = 4096; L_MX = 5632; L_MIX = 5760; L_QSV = 5888; L_WQ = 8192; L_W1 = 24576; L_W2 = 32768; L_WO = 40960; L_V = 57344; L_K = 90112; LDS_BYTES = 122880
QSTR = 320
DPPM = "row_mask:0xf bank_mask:0xf"
BOP = "bitop3:0xbe"

def lines(text):
    return [l.strip() for l in text.strip().split("\n") if l.strip() and not l.strip().startswith(";")]

def gen(opt):
    nt = opt.get("nt", {k: "nt" for k in ("wq", "w1", "k", "v", "wo", "w2")})
    def pol(k): return nt.get(k, "")
    stamps = opt.get("stamps", False)
    a = Asm()
    v = Alloc("v", 1, 256); s = Alloc("s", 44, 102)
    hdr = open("cdna_kernels/%s.s.ref" % NAME).read().split("\n")
    hdr = [l for l in hdr if l.startswith(";") and "@launch" not in l and "Override" not in l and "grid=ceil" not in l]
    out = list(hdr)
    out.append("; @launch grid=(256,1,1) block=(256,1,1) lds=%d" % LDS_BYTES)
    out.append('.amdgcn_target "amdgcn-amd-amdhsa--gfx950"')
    out.append(".text\n.globl %s_kernel\n.p2align 8\n.type %s_kernel,@function\n%s_kernel:" % (NAME, NAME, NAME))
    SX, SK, SV, SWQ, SWO, SW1, SB1, SW2, SOUT, SWS = [Reg("s", 4 + 4 * i, 4) for i in range(10)]
    vm = []
    def vmem(name, text):
        a(text); vm.append(name)
    def wait_vm(name, allow=0):
        idx = max(i for i, n in enumerate(vm) if n == name) - allow
        n = len(vm) - 1 - idx
        a("s_waitcnt vmcnt(%d)" % n)
    def weave(fill, jobs, every, start=0):
        k = -start
        for ins in fill:
            a(ins); k += 1
            if jobs and k >= every:
                jobs.pop(0)(); k = 0
    nst = [0, 0]
    names = []
    NR = 4
    if stamps:
        sST = [s.get(2, 2) for _ in range(NR)]; vST = v.get()
    probe = opt.get("probe")
    def stamp(name, last=False, flush=False):
        if probe and name == "start": a("s_memrealtime s[100:101]")
        if probe and name == probe: a("s_memrealtime s[98:99]")
        if stamps:
            k = nst[0]; nst[0] += 1; names.append(name)
            assert k < 29
            done = nst[1]
            if k - done >= NR:
                a("v_writelane_b32 %s, %s, %d" % (vST, sST[done % NR][0], done)); done += 1
            a("s_memrealtime %s" % sST[k % NR])
            if last or flush:
                a("s_waitcnt lgkmcnt(0)")
                while done <= k:
                    a("v_writelane_b32 %s, %s, %d" % (vST, sST[done % NR][0], done)); done += 1
            nst[1] = done
    stamp("start")
    a(f"""
    s_load_dwordx2 {SX[0:2]}, s[0:1], 0
    s_load_dwordx2 {SWQ[0:2]}, s[0:1], 24
    s_load_dwordx2 {SW1[0:2]}, s[0:1], 48
    s_load_dwordx2 {SK[0:2]}, s[0:1], 8
    s_load_dwordx2 {SWS[0:2]}, s[0:1], 88
    s_load_dwordx2 {SV[0:2]}, s[0:1], 16
    s_cmp_ge_u32 s2, 256
    s_cbranch_scc1 L_end
    """)
    if opt.get("vpf", 1):
        vP = v.get(2, 2); sPF = s.get(2, 2)
        a(f"""
        s_getpc_b64 {sPF}
        L_pc:
        s_lshr_b32 s3, s2, 1
        s_and_b32 s3, s3, 0x7c
        v_lshrrev_b32 {vP[0]}, 6, v0
        v_add_u32 {vP[0]}, s3, {vP[0]}
        v_lshlrev_b32 {vP[0]}, 6, {vP[0]}
        v_min_u32 {vP[0]}, L_codeend-L_pc-4, {vP[0]}
        """)
        vmem("pf", f"global_load_dword {vP[1]}, {vP[0]}, {sPF}")
    sW, sG, sJ, sA, sC, sT, sBLK, sTmp, sTmp2 = [s.get() for _ in range(9)]
    oXO, oWQ, oW1, oKV, oK, oW2 = [s.get() for _ in range(6)]
    sM = s.get()
    DBPRE = ""
    if opt.get("ndb", 0):
        oDB0 = s.get()
        DBPRE = f"""s_mov_b32 {SWS[2]}, 0x10000000
        s_mov_b32 {SWS[3]}, 0x20000
        s_lshl_b32 {sTmp}, {sJ}, 2
        s_add_u32 {sTmp}, {sTmp}, {sW}
        s_and_b32 {sTmp}, {sTmp}, 7
        s_lshl_b32 {sTmp2}, {sG}, 3
        s_add_u32 {sTmp}, {sTmp}, {sTmp2}
        s_lshl_b32 {sTmp}, {sTmp}, 7
        s_add_u32 {oDB0}, {sTmp}, {DBB}"""
    vGQ, vI, vT0, vT1 = [v.get() for _ in range(4)]
    vL16, vB3, vXO, vWQe, vWQo, vW1e, vW1o = [v.get() for _ in range(7)]
    vK = v.get(4)
    a(f"""
    v_readfirstlane_b32 {sW}, v0
    v_and_b32 v0, 63, v0
    s_and_b32 {sG}, s2, 7
    {'s_xor_b32 %s, %s, %d' % (sG, sG, opt['gxor']) if opt.get('gxor') else ''}
    s_lshr_b32 {sJ}, s2, 3
    s_lshr_b32 {sW}, {sW}, 6
    s_lshr_b32 {sA}, {sJ}, 3
    s_and_b32 {sC}, {sJ}, 7
    v_lshrrev_b32 {vGQ}, 4, v0
    v_and_b32 {vI}, 15, v0
    s_mov_b32 {SX[2]}, 2048
    s_mov_b32 {SX[3]}, 0x20000
    s_mov_b32 {SWQ[2]}, {512*4096*2}
    s_mov_b32 {SWQ[3]}, 0x20000
    v_lshlrev_b32 {vL16}, 4, v0
    v_bfe_u32 {vB3}, v0, 3, 1
    v_lshlrev_b32 {vT0}, 10, {vB3}
    v_lshl_add_u32 {vXO}, {vGQ}, 4, {vT0}
    v_and_b32 {vT0}, 1, {vGQ}
    v_lshlrev_b32 {vT0}, 1, {vT0}
    v_and_b32 {vT1}, 7, v0
    v_xor_b32 {vT0}, {vT0}, {vT1}
    v_lshlrev_b32 {vT0}, 4, {vT0}
    v_lshrrev_b32 {vT1}, 3, v0
    v_lshl_add_u32 {vWQe}, {vT1}, 13, {vT0}
    v_xor_b32 {vWQo}, 64, {vWQe}
    s_and_b32 {sTmp}, {sC}, 1
    s_lshl_b32 {sTmp2}, {sTmp}, 1
    s_xor_b32 {sTmp2}, {sTmp2}, {sW}
    s_lshl_b32 {sTmp2}, {sTmp2}, 5
    s_lshl_b32 {oXO}, {sA}, 7
    s_add_u32 {sTmp2}, {sTmp2}, {oXO}
    s_lshl_b32 {oWQ}, {sTmp2}, 13
    s_lshl_b32 {sM}, {sG}, 10
    s_add_u32 {oWQ}, {oWQ}, {sM}
    s_xor_b32 {sM}, {sC}, {opt.get('cqx', 1)}
    s_lshl_b32 {sM}, {sM}, 7
    s_add_u32 {oWQ}, {oWQ}, {sM}
    s_lshl_b32 {oXO}, {sTmp2}, 1
    s_lshl_b32 {sM}, {sW}, 12
    s_add_u32 m0, {sM}, {L_WQ}
    {DBPRE}
    s_waitcnt lgkmcnt(0)
    """)
    stamp("karg")
    xs = v.get(8, 2); xo = v.get(4, 2)
    kk = v.get(32, 2)
    sE = sPF if opt.get('vpf', 1) else s.get(2, 2)
    vmem("xs", f"buffer_load_dwordx4 {xs[0:4]}, {vL16}, {SX}, 0 offen")
    vmem("xs", f"buffer_load_dwordx4 {xs[4:8]}, {vL16}, {SX}, 0 offen offset:1024")
    vmem("xo", f"buffer_load_dwordx4 {xo}, {vXO}, {SX}, {oXO} offen")
    for k in range(4):
        vmem("wq", f"buffer_load_dwordx4 {vWQo if k & 1 else vWQe}, {SWQ}, {oWQ} offen {pol('wq')} lds")
        if k < 3:
            a(f"s_add_u32 m0, m0, 1024\ns_add_u32 {oWQ}, {oWQ}, 65536")
    NDB = opt.get("ndb", 0)
    if NDB:
        vDB = v.get(); oDB = oDB0
        vDum = v.get()
        vmem("dbpw", f"buffer_load_dword {vDum}, off, {SWS}, {oDB} sc1")
    stamp("iss1")
    if opt.get("codepf"):
        sPC = s.get(2, 2)
        a(f"""
        s_getpc_b64 {sPC}
        s_lshl_b32 {sTmp}, {sJ}, 2
        s_add_u32 {sTmp}, {sTmp}, {sW}
        s_min_u32 {sTmp}, {sTmp}, {opt['codepf']}
        s_lshl_b32 {sTmp}, {sTmp}, 7
        s_load_dword {sE[1]}, {sPC}, {sTmp}
        """)
    vWO, vTQ = [v.get() for _ in range(2)]
    vV = v.get(2)
    vKR = v.get(4); vTW = v.get(4); vTV = v.get(2); vFF = v.get(); vZ = v.get(); vSV = v.get()
    sHi = s.get()
    sB, sKH, sBA, sS, sC2 = [s.get() for _ in range(5)]
    oB1, oXF = oXO, oWQ
    vB1, vXF, vPRE, vF = v.get(), v.get(), v.get(), vXO
    oQS, oHS, oQG, oHG, oML, oPS, oV, oWO = [s.get() for _ in range(8)]
    vQS, vHS, vQG, vHG = [v.get() for _ in range(4)]
    vQW, vQR, vMX, vMR, vPW = [v.get() for _ in range(5)]
    vPS, vMLG, vFS, vFG = [v.get() for _ in range(4)]
    vPA = vL16
    oPA, oMLG, oFS, oFG, oFG2 = [s.get() for _ in range(5)]
    sB3 = s.get(2, 2)
    A = lines(f"""
    s_load_dwordx2 {SW2[0:2]}, s[0:1], 64
    s_load_dwordx2 {SWO[0:2]}, s[0:1], 32
    s_load_dwordx2 {SB1[0:2]}, s[0:1], 56
    s_load_dwordx2 {SOUT[0:2]}, s[0:1], 72
    s_mov_b32 {SK[2]}, {2*8*8192*256}
    s_mov_b32 {SK[3]}, 0x20000
    s_lshr_b32 {sBA}, {sJ}, 4
    s_and_b32 {sS}, {sJ}, 15
    s_lshl_b32 {sTmp}, {sBA}, 3
    s_add_u32 {sTmp}, {sTmp}, {sG}
    s_lshl_b32 {oKV}, {sTmp}, 21
    s_lshl_b32 {sTmp}, {sS}, 12
    s_add_u32 {oKV}, {oKV}, {sTmp}
    s_add_u32 {oKV}, {oKV}, {6144*256}
    s_lshl_b32 {oK}, {sW}, 17
    s_add_u32 {oK}, {oK}, {oKV}
    s_lshl_b32 {sTmp}, {sW}, 13
    s_lshl_b32 {sM}, {sW}, 11
    v_xor_b32 {vT0}, {vI}, {vGQ}
    v_lshlrev_b32 {vT0}, 4, {vT0}
    v_lshl_add_u32 {vK[0]}, {vGQ}, 8, {vT0}
    v_xor_b32 {vK[1]}, 64, {vK[0]}
    v_xor_b32 {vK[2]}, 0x80, {vK[0]}
    v_xor_b32 {vK[3]}, 0xc0, {vK[0]}
    v_lshl_add_u32 {vT0}, {vI}, 8, {vT0}
    s_add_u32 {sTmp}, {sTmp}, {L_K}
    v_add_u32 {vKR[0]}, {sTmp}, {vT0}
    s_mov_b32 {SWS[2]}, 0x10000000
    s_mov_b32 {SWS[3]}, 0x20000
    s_mov_b32 {sHi}, 0xffff0000
    s_mov_b32 {sB3[0]}, 0xff00ff00
    s_mov_b32 {sB3[1]}, 0xff00ff00
    v_mov_b32 {vFF}, 0xff
    v_mov_b32 {vZ}, 0
    v_lshlrev_b32 {vSV}, 1, v0
    s_lshl_b32 {sTmp}, {sW}, 7
    v_add_u32 {vSV}, {sTmp}, {vSV}
    s_lshl_b32 {sTmp}, {sW}, 10
    v_add_u32 {vPW}, {sTmp}, {vL16}
    s_and_b32 {sB}, {sW}, 1
    s_lshr_b32 {sKH}, {sW}, 1
    v_and_b32 {vT0}, 1, {vGQ}
    v_lshlrev_b32 {vF}, 1, {vT0}
    v_or_b32 {vF}, {vF}, {vB3}
    v_and_b32 {vT1}, 3, v0
    v_lshlrev_b32 {vT1}, 3, {vT1}
    v_lshrrev_b32 {vT0}, 2, {vI}
    v_lshl_add_u32 {vTQ}, {vGQ}, 3, {vT0}
    v_lshl_add_u32 {vTQ}, {vTQ}, 7, {vT1}
    v_xor_b32 {vTV[0]}, {sW}, {vF}
    v_lshl_add_u32 {vTQ}, {vTV[0]}, 5, {vTQ}
    v_lshl_add_u32 {vT0}, {vGQ}, 2, {vT0}
    v_lshl_add_u32 {vTW[0]}, {vT0}, 7, {vT1}
    v_lshl_add_u32 {vTW[0]}, {vF}, 5, {vTW[0]}
    v_lshl_add_u32 {vTV[1]}, {vT0}, 8, {vT1}
    v_and_b32 {vTV[0]}, 7, {vT0}
    v_lshlrev_b32 {vT0}, 4, {vGQ}
    v_lshl_add_u32 {vQS}, {vB3}, 13, {vT0}
    v_lshlrev_b32 {vHS}, 7, {vGQ}
    v_lshl_add_u32 {vHS}, {vB3}, 11, {vHS}
    s_lshl_b32 {oQG}, {sG}, 14
    s_add_u32 {oQG}, {oQG}, {QBUF}
    s_lshl_b32 {sTmp}, {sA}, 11
    s_add_u32 {oQS}, {oQG}, {sTmp}
    s_xor_b32 {sTmp}, {sC}, {opt.get('cqx', 1)}
    s_lshl_b32 {sTmp}, {sTmp}, 8
    s_add_u32 {oQS}, {oQS}, {sTmp}
    s_lshl_b32 {sTmp2}, {sW}, 6
    s_add_u32 {oQS}, {oQS}, {sTmp2}
    s_lshl_b32 {sTmp}, {sW}, 9
    s_add_u32 {oQG}, {oQG}, {sTmp}
    """)
    B = lines(f"""
    s_lshr_b32 {sT}, {sC}, 1
    s_sub_u32 {sT}, {sT}, {sA}
    s_and_b32 {sT}, {sT}, 3
    s_mul_i32 {sBLK}, {sG}, 7
    s_add_u32 {sBLK}, {sBLK}, 1
    s_lshr_b32 {sBLK}, {sBLK}, 1
    s_add_u32 {sBLK}, {sBLK}, {sT}
    s_and_b32 {sTmp2}, {sG}, 1
    s_add_u32 {sTmp2}, {sTmp2}, {sT}
    s_cmp_eq_u32 {sTmp2}, 4
    s_cselect_b32 {sBLK}, 0x4000, {sBLK}
    s_lshl_b32 {sTmp}, {sA}, 1
    s_and_b32 {sTmp2}, {sC}, 1
    s_add_u32 {sTmp}, {sTmp}, {sTmp2}
    s_lshl_b32 {oW1}, {sTmp}, 2
    s_add_u32 {oW1}, {oW1}, {sW}
    s_mul_i32 {oW1}, {oW1}, {16*3584}
    s_lshl_b32 {sTmp2}, {sBLK}, 7
    s_add_u32 {oW1}, {oW1}, {sTmp2}
    s_mov_b32 {SW1[2]}, {512*1792*2}
    s_mov_b32 {SW1[3]}, 0x20000
    v_lshrrev_b32 {vT1}, 3, v0
    v_mul_u32_u24 {vW1e}, 3584, {vT1}
    v_and_b32 {vT0}, 0x7f, {vWQe}
    v_add_u32 {vW1e}, {vW1e}, {vT0}
    v_xor_b32 {vW1o}, 64, {vW1e}
    s_lshl_b32 {oHG}, {sG}, 2
    s_add_u32 {oWO}, {oHG}, {sA}
    s_add_u32 {oHG}, {oHG}, {sT}
    s_lshl_b32 {oHG}, {oHG}, 12
    s_add_u32 {oHG}, {oHG}, {HBUF}
    s_lshl_b32 {sTmp}, {sTmp}, 4
    s_add_u32 {oHS}, {oHG}, {sTmp}
    s_lshl_b32 {sTmp}, {sW}, 9
    s_add_u32 {oHS}, {oHS}, {sTmp}
    s_mov_b32 {SW2[2]}, {512*1792*2}
    s_mov_b32 {SW2[3]}, 0x20000
    s_mov_b32 {SV[2]}, {2*8*8192*256}
    s_mov_b32 {SV[3]}, 0x20000
    s_mov_b32 {SB1[2]}, 3584
    s_mov_b32 {SB1[3]}, 0x20000
    s_lshl_b32 {sC2}, {sKH}, {2 if opt.get('crot', 1) else 8}
    s_xor_b32 {sC2}, {sC2}, {sC}
    s_and_b32 {sC2}, {sC2}, 7
    s_lshl_b32 {oW2}, {sBLK}, 2
    s_add_u32 {oW2}, {oW2}, {sW}
    s_lshl_b32 {oW2}, {oW2}, 14
    s_lshl_b32 {sTmp}, {sC2}, 7
    s_add_u32 {oW2}, {oW2}, {sTmp}
    v_lshlrev_b32 {vT0}, 1, {vGQ}
    v_and_b32 {vT1}, 7, v0
    v_xor_b32 {vT0}, {vT0}, {vT1}
    v_lshlrev_b32 {vT0}, 4, {vT0}
    v_lshrrev_b32 {vWO}, 3, v0
    v_lshl_add_u32 {vWO}, {vWO}, 10, {vT0}
    v_lshlrev_b32 {vT0}, 4, {vGQ}
    v_lshl_add_u32 {vT0}, {vB3}, 6, {vT0}
    v_lshlrev_b32 {vHG}, 4, {vT1}
    v_lshl_add_u32 {vHG}, {vT0}, 3, {vHG}
    v_lshrrev_b32 {vB1}, 1, {vT0}
    v_and_b32 {vT1}, 1, v0
    v_lshl_add_u32 {vB1}, {vT1}, 2, {vB1}
    v_and_b32 {vT0}, 2, v0
    v_add_u32 {vB1}, {vB1}, {vT0}
    v_and_b32 {vT0}, 1, {vGQ}
    v_lshlrev_b32 {vXF}, 1, {vT0}
    v_lshl_add_u32 {vXF}, {vT1}, 2, {vXF}
    v_lshlrev_b32 {vT0}, 1, {vGQ}
    v_xor_b32 {vT0}, {vT0}, {vI}
    v_lshlrev_b32 {vT0}, 4, {vT0}
    v_lshl_add_u32 {vV[0]}, {vGQ}, 8, {vT0}
    v_xor_b32 {vV[1]}, 0x80, {vV[0]}
    s_lshl_b32 {oV}, {sKH}, 16
    s_add_u32 {oV}, {oV}, {oKV}
    s_lshl_b32 {sTmp}, {sB}, 11
    s_add_u32 {oV}, {oV}, {sTmp}
    v_lshrrev_b32 {vFG}, 1, v0
    v_lshlrev_b32 {vFG}, 7, {vFG}
    v_lshl_add_u32 {vFG}, {vT1}, 4, {vFG}
    v_lshrrev_b32 {vT0}, 5, v0
    v_and_b32 {vT1}, 31, v0
    v_lshlrev_b32 {vQG}, 12, {vT0}
    v_lshl_add_u32 {vQG}, {vT1}, 4, {vQG}
    v_lshlrev_b32 {vQW}, 2, {vT0}
    v_lshl_add_u32 {vQW}, {vT1}, 3, {vQW}
    s_lshl_b32 {oB1}, {sBLK}, 7
    s_lshl_b32 {sTmp}, {sKH}, 6
    s_add_u32 {oB1}, {oB1}, {sTmp}
    s_lshl_b32 {oXF}, {sBA}, 10
    s_lshl_b32 {sTmp}, {sG}, 7
    s_add_u32 {oXF}, {oXF}, {sTmp}
    s_lshl_b32 {sTmp}, {sS}, 3
    s_add_u32 {oXF}, {oXF}, {sTmp}
    s_lshl_b32 {sTmp}, {sBA}, 13
    s_add_u32 {oQG}, {oQG}, {sTmp}
    s_lshl_b32 {sTmp}, {sB}, 11
    s_add_u32 {oHG}, {oHG}, {sTmp}
    s_lshl_b32 {sTmp}, {sKH}, 10
    s_add_u32 {oHG}, {oHG}, {sTmp}
    """)
    prewarm = opt.get("prewarm", 1)
    if prewarm:
        B += lines(f"""
        s_lshl_b32 {sTmp}, {sJ}, 2
        s_add_u32 {sTmp}, {sTmp}, {sW}
        s_lshl_b32 {sTmp2}, {sG}, 7
        s_add_u32 {sTmp2}, {sTmp2}, {sTmp}
        s_lshl_b32 {sTmp2}, {sTmp2}, 9
        s_add_u32 {sTmp2}, {sTmp2}, {PART}
        v_lshlrev_b32 {vPRE}, 7, v0
        v_add_u32 {vPRE}, {sTmp2}, {vPRE}
        s_and_b32 {sTmp}, {sTmp}, 15
        s_lshl_b32 {sTmp2}, {sG}, 4
        s_add_u32 {sTmp}, {sTmp}, {sTmp2}
        s_lshl_b32 {sTmp}, {sTmp}, 7
        s_add_u32 {sTmp}, {sTmp}, {MLB}
        v_writelane_b32 {vPRE}, {sTmp}, 4
        s_and_b32 {sTmp}, {oHS}, 0xfffff000
        s_lshl_b32 {sTmp2}, {sC}, 2
        s_add_u32 {sTmp2}, {sTmp2}, {sW}
        s_lshl_b32 {sTmp2}, {sTmp2}, 7
        s_add_u32 {sTmp}, {sTmp}, {sTmp2}
        v_writelane_b32 {vPRE}, {sTmp}, 5
        """)
    sU = sTmp2
    oWO2 = sBLK
    C = lines(f"""
    s_mov_b32 {SWO[2]}, {4096*512*2}
    s_mov_b32 {SWO[3]}, 0x20000
    s_mov_b32 {SOUT[2]}, 2048
    s_mov_b32 {SOUT[3]}, 0x20000
    v_xor_b32 {vKR[1]}, 64, {vKR[0]}
    v_xor_b32 {vKR[2]}, 0x80, {vKR[0]}
    v_xor_b32 {vKR[3]}, 0xc0, {vKR[0]}
    v_and_b32 {vT1}, 3, v0
    v_mul_u32_u24 {vQR}, {QSTR}, {vT1}
    v_lshl_add_u32 {vQR}, {vGQ}, 4, {vQR}
    v_lshlrev_b32 {vMR}, 4, {vT1}
    v_lshlrev_b32 {vPS}, 13, {vT1}
    v_lshl_add_u32 {vPS}, {vGQ}, 8, {vPS}
    v_bfe_u32 {vT0}, v0, 2, 1
    v_lshl_add_u32 {vPS}, {vT0}, 10, {vPS}
    s_lshl_b32 {sU}, {sW}, 2
    v_add_u32 {vMX}, {sU}, {vMR}
    s_lshl_b32 {sU}, {sKH}, 12
    v_add_u32 {vTW[0]}, {sU}, {vTW[0]}
    v_xor_b32 {vTW[1]}, 32, {vTW[0]}
    v_xor_b32 {vTW[2]}, 64, {vTW[0]}
    v_xor_b32 {vTW[3]}, 0x60, {vTW[0]}
    s_lshl_b32 {sU}, {sW}, 1
    v_xor_b32 {vTV[0]}, {sU}, {vTV[0]}
    v_lshl_add_u32 {vTV[0]}, {vTV[0]}, 5, {vTV[1]}
    v_add_u32 {vTV[0]}, {L_V}, {vTV[0]}
    v_xor_b32 {vTV[1]}, 32, {vTV[0]}
    s_mul_i32 {sU}, {sW}, {QSTR}
    v_add_u32 {vQW}, {sU}, {vQW}
    v_lshl_add_u32 {vMLG}, {vGQ}, 2, {vI}
    v_and_b32 {vMLG}, 15, {vMLG}
    v_lshlrev_b32 {vMLG}, 4, {vMLG}
    v_lshlrev_b32 {vFS}, 3, {vI}
    v_lshl_add_u32 {vFS}, {vGQ}, 13, {vFS}
    s_lshl_b32 {oFS}, {oWO}, 1
    s_add_u32 {oFS}, {oFS}, {sKH}
    s_lshl_b32 {oFS}, {oFS}, 7
    s_lshl_b32 {sU}, {sC2}, 1
    s_add_u32 {sU}, {sU}, {sB}
    s_lshl_b32 {sU}, {sU}, 15
    s_add_u32 {oFS}, {oFS}, {sU}
    s_add_u32 {oFS}, {oFS}, {FIN}
    s_lshl_b32 {oWO}, {oWO}, 4
    s_add_u32 {oWO}, {oWO}, {sW}
    s_lshl_b32 {oWO}, {oWO}, 13
    s_xor_b32 {sU}, {sC}, 4
    s_lshl_b32 {sU}, {sU}, 7
    s_add_u32 {oWO2}, {oWO}, {sU}
    s_add_u32 {oWO2}, {oWO2}, 65536
    s_lshl_b32 {sU}, {sC}, 7
    s_add_u32 {oWO}, {oWO}, {sU}
    s_lshl_b32 {oPS}, {sG}, 1
    s_add_u32 {oPS}, {oPS}, {sBA}
    s_lshl_b32 {oML}, {oPS}, 2
    s_add_u32 {oML}, {oML}, {sW}
    s_lshl_b32 {oML}, {oML}, 8
    s_lshl_b32 {sU}, {sS}, 4
    s_add_u32 {oML}, {oML}, {sU}
    s_add_u32 {oML}, {oML}, {MLB}
    s_lshl_b32 {oPS}, {oPS}, 15
    s_add_u32 {oPS}, {oPS}, {sU}
    s_lshl_b32 {sU}, {sW}, 11
    s_add_u32 {oPS}, {oPS}, {sU}
    s_add_u32 {oPS}, {oPS}, {PART}
    s_lshl_b32 {oPA}, {sG}, 1
    s_add_u32 {oPA}, {oPA}, {sB}
    s_lshl_b32 {oPA}, {oPA}, 2
    s_add_u32 {oPA}, {oPA}, {sA}
    s_lshl_b32 {oMLG}, {oPA}, 8
    s_add_u32 {oMLG}, {oMLG}, {MLB}
    s_lshl_b32 {oPA}, {oPA}, 13
    s_lshl_b32 {sU}, {sKH}, 12
    s_add_u32 {oPA}, {oPA}, {sU}
    s_add_u32 {oPA}, {oPA}, {PART}
    s_lshl_b32 {oFG}, {sG}, 3
    s_lshr_b32 {sU}, {sJ}, 2
    s_add_u32 {oFG}, {oFG}, {sU}
    s_lshl_b32 {oFG}, {oFG}, 13
    s_and_b32 {sU}, {sJ}, 3
    s_lshl_b32 {sU}, {sU}, 5
    s_add_u32 {oFG}, {oFG}, {sU}
    s_add_u32 {oFG}, {oFG}, {FIN}
    s_add_u32 {oFG2}, {oFG}, 4096
    """)
    def kjob(idx):
        def f():
            a(f"s_lshl2_add_u32 m0, {sM}, {L_K + (4096 if idx >= 4 else 0)}\ns_add_u32 {oK}, {oK}, {65536 if idx == 4 else 0}")
            vmem("k", f"buffer_load_dwordx4 {vK[idx & 3]}, {SK}, {oK} offen offset:{(idx & 3)*1024} {pol('k')} lds")
        return f
    NKA = opt.get("nka", 0)
    NKP = opt.get("nkp", 6)
    b1r = v.get(); xf = v.get()
    def w2job(n):
        def f():
            if n == 0: a(f"s_add_u32 m0, {sM}, {L_W2}\ns_nop 0")
            else: a(f"s_add_u32 m0, {sM}, {L_W2 + 1024}\ns_add_u32 {oW2}, {oW2}, 8192")
            vmem("w2", f"buffer_load_dwordx4 {vWO}, {SW2}, {oW2} offen {pol('w2')} lds")
        return f
    def smalljob():
        vmem("b1", f"buffer_load_ushort {b1r}, {vB1}, {SB1}, {oB1} offen")
        vmem("xf", f"buffer_load_ushort {xf}, {vXF}, {SX}, {oXF} offen")
        if prewarm:
            a("s_mov_b32 exec_lo, 63\ns_mov_b32 exec_hi, 0")
            vmem("pre", f"buffer_load_dword {vPRE}, {vPRE}, {SWS}, 0 offen sc1")
            a("s_mov_b64 exec, -1")
    def w1job(n):
        def f():
            if n == 0: a(f"s_add_u32 m0, {sM}, {L_W1}\ns_nop 0")
            else: a(f"s_add_u32 m0, {sM}, {L_W1 + 1024}\ns_add_u32 {oW1}, {oW1}, 28672")
            vmem("w1", f"buffer_load_dwordx4 {vW1o if n else vW1e}, {SW1}, {oW1} offen {pol('w1')} lds")
        return f
    kw = opt.get("kw1", 2)
    alljobs = [kjob(i) for i in range(kw)] + [w1job(0), w1job(1)] + [kjob(i) for i in range(kw, 8)]
    kj = alljobs[:NKP]; later = alljobs[NKP:]
    for x in A[:27]: a(x)
    tch = opt.get("touch", "")
    if tch:
        a(f"""
        s_lshl_b32 {sTmp2}, {sG}, 2
        s_add_u32 {sTmp2}, {sTmp2}, {sA}
        s_lshl_b32 {sTmp2}, {sTmp2}, 17
        s_waitcnt lgkmcnt(0)
        """)
        if tch == "s":
            a(f"""
            s_load_dword {sE[1]}, {SK[0:2]}, {oK}
            s_load_dword {sE[1]}, {SV[0:2]}, {oK}
            s_load_dword {sE[1]}, {SWO[0:2]}, {sTmp2}
            s_load_dword {sE[1]}, {SW1[0:2]}, 0
            s_load_dword {sE[1]}, {SW2[0:2]}, 0
            s_load_dword {sE[1]}, {SB1[0:2]}, 0
            s_load_dword {sE[1]}, {SOUT[0:2]}, 0
            """)
        else:
            vD = v.get(2)
            a(f"v_mov_b32 {vD[0]}, {oK}")
            vmem("t", f"global_load_dword {vD[1]}, {vD[0]}, {SV[0:2]}")
            a(f"v_mov_b32 {vD[0]}, {sTmp2}")
            vmem("t", f"global_load_dword {vD[1]}, {vD[0]}, {SWO[0:2]}")
            a(f"v_mov_b32 {vD[0]}, 0")
            vmem("t", f"global_load_dword {vD[1]}, {vD[0]}, {SW2[0:2]}")
            vmem("t", f"global_load_dword {vD[1]}, {vD[0]}, {SW1[0:2]}")
            vmem("t", f"global_load_dword {vD[1]}, {vD[0]}, {SWS[0:2]}")
    a(f"s_load_dword {sE[0]}, {SWS[0:2]}, 0")
    if opt.get("spf", 0):
        a(f"s_bfe_u32 {sTmp2}, {oWQ}, 0x30007\ns_cmp_eq_u32 {sTmp2}, 3\ns_cbranch_scc0 L_nospf")
        for r in range(opt.get("spfr", 6)):
            for hf in range(2):
                a(f"s_buffer_load_dword {sE[1]}, {SWQ}, {oWQ} offset:{(7 - r) * 8192 + 64 * hf}")
        a("L_nospf:")
    for x in A[27:]: a(x)
    ja = [kj.pop(0) for _ in range(NKA)]
    weave(B, ja, max(len(B) // (NKA + 1), 1))
    for f in ja: f()
    mk = v.mark()
    f = v.get(16, 2); nm = v.get(2, 2); acc = v.get(2, 2); t0 = v.get(); t1 = v.get(); vMean = v.get(2, 2); vR = v.get(2, 2)
    g4 = v.get(8, 2)
    stamp("addr")
    wait_vm("xs")
    stamp("x")
    LN = []
    for k in range(8):
        LN += [f"v_lshlrev_b32 {f[2*k]}, 16, {xs[k]}", f"v_and_b32 {f[2*k+1]}, {sHi}, {xs[k]}"]
    LN += lines(f"""
    v_pk_add_f32 {g4[0:2]}, {f[0:2]}, {f[2:4]}
    v_pk_add_f32 {g4[2:4]}, {f[4:6]}, {f[6:8]}
    v_pk_add_f32 {g4[4:6]}, {f[8:10]}, {f[10:12]}
    v_pk_add_f32 {g4[6:8]}, {f[12:14]}, {f[14:16]}
    v_pk_add_f32 {g4[0:2]}, {g4[0:2]}, {g4[2:4]}
    v_pk_add_f32 {g4[4:6]}, {g4[4:6]}, {g4[6:8]}
    v_add_f32 {acc[0]}, {g4[0]}, {g4[1]}
    v_add_f32 {acc[1]}, {g4[4]}, {g4[5]}
    """)
    xu = g4
    def red(x, tmp, fill):
        o = []
        def F(n=2):
            for _ in range(n):
                if fill: o.append(fill.pop(0))
        o += [f"v_cndmask_b32 {tmp}, {acc[1]}, {acc[0]}, {sB3}", f"v_cndmask_b32 {x}, {acc[0]}, {acc[1]}, {sB3}"]
        F(2); o.append(f"v_add_f32_dpp {x}, {tmp}, {x} row_ror:8 {DPPM}")
        for m in ("quad_perm:[1,0,3,2]", "quad_perm:[2,3,0,1]", "row_half_mirror"):
            F(); o.append(f"v_add_f32_dpp {x}, {x}, {x} {m} {DPPM}")
        o.append(f"v_mov_b32 {tmp}, {x}"); F(); o += [f"v_permlane16_swap_b32 {x}, {tmp}", f"v_add_f32 {x}, {x}, {tmp}"]
        o.append(f"v_mov_b32 {tmp}, {x}"); F(); o += [f"v_permlane32_swap_b32 {x}, {tmp}", f"v_add_f32 {x}, {x}, {tmp}"]
        return o + fill
    XOW = "@waitxo"
    fill = [XOW]
    for k in range(4):
        fill += [f"v_lshlrev_b32 {xu[2*k]}, 16, {xo[k]}", f"v_and_b32 {xu[2*k+1]}, {sHi}, {xo[k]}"]
    LN += red(t0, t1, fill)
    nm2 = vR
    LN += lines(f"""
    v_mul_f32 {t0}, 0xbb000000, {t0}
    v_cvt_pk_bf16_f32 {vMean[0]}, {t0}, {t0}
    v_and_b32 {vMean[0]}, {sHi}, {vMean[0]}
    v_mov_b32_dpp {nm[0]}, {t0} row_newbcast:0 {DPPM}
    v_mov_b32_dpp {nm2[0]}, {t0} row_newbcast:8 {DPPM}
    v_mov_b32_dpp {nm[1]}, {t0} row_newbcast:0 {DPPM}
    v_mov_b32_dpp {nm2[1]}, {t0} row_newbcast:8 {DPPM}
    """)
    for k in range(8):
        LN.append(f"v_pk_add_f32 {f[2*k:2*k+2]}, {f[2*k:2*k+2]}, {nm if k < 4 else nm2}")
    LN += [f"v_pk_mul_f32 {nm}, {f[0:2]}, {f[0:2]}", f"v_pk_mul_f32 {nm2}, {f[8:10]}, {f[8:10]}"]
    for k in range(1, 4):
        LN += [f"v_pk_fma_f32 {nm}, {f[2*k:2*k+2]}, {f[2*k:2*k+2]}, {nm}", f"v_pk_fma_f32 {nm2}, {f[8+2*k:8+2*k+2]}, {f[8+2*k:8+2*k+2]}, {nm2}"]
    LN += [f"v_add_f32 {acc[0]}, {nm[0]}, {nm[1]}", f"v_add_f32 {acc[1]}, {nm2[0]}, {nm2[1]}"]
    fill = [f"v_mov_b32 {vMean[1]}, {vMean[0]}"]
    for k in range(4):
        fill.append(f"v_pk_add_f32 {xu[2*k:2*k+2]}, {xu[2*k:2*k+2]}, {vMean}")
    for k in range(4):
        fill.append(f"v_cvt_pk_bf16_f32 {xo[k]}, {xu[2*k]}, {xu[2*k+1]}")
    for k in range(2):
        fill += [f"v_lshlrev_b32 {xu[2*k]}, 16, {xo[k]}", f"v_and_b32 {xu[2*k+1]}, {sHi}, {xo[k]}"]
    LN += red(t0, t1, fill)
    LN += lines(f"""
    v_mul_f32 {t0}, 0x3b000000, {t0}
    v_cvt_pk_bf16_f32 {t0}, {t0}, {t0}
    v_lshlrev_b32 {t0}, 16, {t0}
    v_add_f32 {t0}, 0x3727c5ac, {t0}
    v_cvt_pk_bf16_f32 {t0}, {t0}, {t0}
    v_lshlrev_b32 {t0}, 16, {t0}
    v_sqrt_f32 {t0}, {t0}
    v_lshlrev_b32 {xu[4]}, 16, {xo[2]}
    v_cvt_pk_bf16_f32 {t0}, {t0}, {t0}
    v_lshlrev_b32 {t0}, 16, {t0}
    v_rcp_f32 {vR[0]}, {t0}
    v_and_b32 {xu[5]}, {sHi}, {xo[2]}
    v_lshlrev_b32 {xu[6]}, 16, {xo[3]}
    v_and_b32 {xu[7]}, {sHi}, {xo[3]}
    v_mov_b32 {vR[1]}, {vR[0]}
    """)
    for k in range(4):
        LN.append(f"v_pk_mul_f32 {xu[2*k:2*k+2]}, {xu[2*k:2*k+2]}, {vR}")
    for k in range(4):
        LN.append(f"v_cvt_pk_bf16_f32 {xo[k]}, {xu[2*k]}, {xu[2*k+1]}")
    LN.append(f"ds_write_b128 {vPW}, {xo} offset:{L_XN}")
    LN.append(f"ds_write_b32 {vZ}, {vZ} offset:{L_MIX}")
    every = opt.get("kevery", 12)
    k = every - opt.get("kfirst", 1)
    for ins in LN:
        if ins == XOW: wait_vm("xo"); continue
        a(ins); k += 1
        if kj and k >= every:
            kj.pop(0)(); k = 0
    for fj in kj: fj()
    v.release(mk)
    sTag = s.get(4); sXCC = s.get(); sTP = s.get()
    sCnt, sMix = s.get(), s.get()
    stamp("ln")
    a(f"""
    s_getreg_b32 {sXCC}, hwreg(HW_REG_XCC_ID, 0, 4)
    s_waitcnt lgkmcnt(0)
    s_add_u32 {sTag[0]}, {sE[0]}, {hex(PHI)}
    s_lshr_b32 {sTag[1]}, {sTag[0]}, 8
    s_lshr_b32 {sTag[2]}, {sTag[0]}, 16
    s_lshr_b32 {sTag[3]}, {sTag[0]}, 24
    s_xor_b32 {sTP}, {sTag[0]}, {sXCC}
    """)
    if NDB:
        vDBV = v.get(); sDBP = SK[0:2]; sDBX = 'vcc'
        a(f"""
        v_lshlrev_b32 {vDB}, 7, v0
        v_mov_b32 {vDBV}, {sTP}
        s_and_b32 {oDB}, {oDB}, 0xfffffc00
        s_xor_b32 {sTmp}, {sC}, {opt.get('cqx', 1)}
        s_lshl_b32 {sTmp}, {sTmp}, 2
        s_add_u32 {sTmp}, {sTmp}, {sA}
        s_lshl_b32 {sTmp}, {sTmp}, 2
        s_add_u32 {sTmp}, {sTmp}, {sW}
        s_add_u32 {oDB}, {oDB}, {sTmp}
        s_and_b32 vcc_lo, {sTP}, 0xff
        s_mul_i32 vcc_lo, vcc_lo, 0x01010101
        s_mov_b32 vcc_hi, vcc_lo
        """)
    wait_vm("wq")
    stamp("wq")
    a("s_barrier")
    xn = v.get(8, 2)
    mk = v.mark()
    xn2 = v.get(8, 2); aq = v.get(16, 2); dq = v.get(4, 2)
    xnt = [xn[0:4], xn[4:8], xn2[0:4], xn2[4:8]]
    for t in range(4):
        a(f"ds_read_b128 {xnt[t]}, {vL16} offset:{L_XN + 1024*t}")
        for hi in range(2):
            a(f"ds_read_b64_tr_b16 {aq[4*t+2*hi:4*t+2*hi+2]}, {vTQ} offset:{L_WQ + 4096*t + 512*hi}")
    for t in range(4):
        a(f"s_waitcnt lgkmcnt({9 - 3*t})")
        a(f"v_mfma_f32_16x16x32_bf16 {dq}, {aq[4*t:4*t+4]}, {xnt[t]}, {dq if t else 0}")
    def pub(d, voff, soff, name, tp):
        a("s_mov_b32 exec_lo, 0x01010101\ns_mov_b32 exec_hi, 0x01010101")
        a(f"v_bfi_b32 {d[0]}, {vFF}, {tp}, {d[0]}")
        for k in range(1, 4):
            a(f"v_bfi_b32 {d[k]}, {vFF}, {sTag[k]}, {d[k]}")
    pub(dq, vQS, oQS, "qs", sTP)
    vmem("qs", f"buffer_store_dwordx4 {dq}, {vQS}, {SWS}, {oQS} offen")
    a(f"ds_write_b128 {vSV}, {dq} offset:{L_QSV}")
    a("s_mov_b64 exec, -1")
    v.release(mk)
    stamp("pub1")
    qg = v.get(8, 2); hg = v.get(4, 2)
    DBR = Reg("s", 16, 8)
    NVB2 = opt.get("nvb2", 6)
    dual = NVB2 is not None and NVB2 >= 0
    qg2 = v.get(8, 2) if dual else None
    def poll1(first, r=None, name="p1"):
        r = r or qg
        t = [f"buffer_load_dwordx4 {r[0:4]}, {vQG}, {SWS}, {oQG} offen sc1",
             f"buffer_load_dwordx4 {r[4:8]}, {vQG}, {SWS}, {oQG} offen offset:2048 sc1"]
        for x in t:
            if first: vmem(name, x)
            else: a(x)
    def vjob(n):
        def f():
            a(f"s_add_u32 m0, {sM}, {L_V + 8192 * (n >> 1)}\ns_add_u32 {oV}, {oV}, {131072 if (n and not n & 1) else 0}")
            vmem("v%d" % (n // 2), f"buffer_load_dwordx4 {vV[n & 1]}, {SV}, {oV} offen offset:{1024 * (n & 1)} {pol('v')} lds")
        return f
    sMsk, sScale, sL2E, sLn2, sM2 = sT, oW1, oB1, oK, oKV
    qb = v.get(16, 2); sc = v.get(8, 2); tmp4 = v.get(4, 2); ones = v.get(4, 2); pr = v.get(4, 2); af = v.get(4, 2); mlr = v.get(4, 2)
    sEv = sB3; sEv2 = sE
    C2 = lines(f"""
    s_mov_b32 {sMsk}, 0xffffff00
    s_mov_b32 {sScale}, 0x3db504f3
    s_mov_b32 {sL2E}, 0x3fb8aa3b
    s_mov_b32 {sLn2}, 0x3f317218
    s_mov_b32 {sM2}, 0xc038aa3b
    s_mov_b32 {sEv[0]}, 0x55555555
    s_mov_b32 {sEv[1]}, 0x55555555
    s_mov_b32 {sEv2[0]}, 0x33333333
    s_mov_b32 {sEv2[1]}, 0x33333333
    v_mov_b32 {mlr[2]}, {sTag[0]}
    v_mov_b32 {mlr[3]}, {sTag[0]}
    """)
    for k in range(4):
        C2 += [f"v_mov_b32 {ones[k]}, 0x3f803f80", f"v_mov_b32 {pr[k]}, {sTag[0]}", f"v_mov_b32 {af[k]}, 0"]
    a(f"s_mov_b32 {sCnt}, 0")
    a1 = sc; dh = v.get(4, 2)
    def hjob():
        wait_vm("w1")
        a("s_waitcnt lgkmcnt(0)\ns_barrier")
        for t in range(2):
            for hi in range(2):
                a(f"ds_read_b64_tr_b16 {a1[4*t+2*hi:4*t+2*hi+2]}, {vTQ} offset:{L_W1 + 4096*t + 512*hi}")
        for t in range(2):
            a(f"s_waitcnt lgkmcnt({2 - 2*t})")
            a(f"v_mfma_f32_16x16x32_bf16 {dh}, {a1[4*t:4*t+4]}, {xn[4*t:4*t+4]}, {dh if t else 0}")
        for x in C[nC:nC+6]: a(x)
        del C[nC:nC+6]
        pub(dh, vHS, oHS, "hs", sTP)
        vmem("hs", f"buffer_store_dwordx4 {dh}, {vHS}, {SWS}, {oHS} offen")
        a("s_mov_b64 exec, -1")
        stamp("pubh")
    def hpoll(first=True):
        x = f"buffer_load_dwordx4 {hg}, {vHG}, {SWS}, {oHG} offen sc1"
        if first: vmem("ph", x)
        else: a(x)
    NVQ = opt.get("nvq", 3); NVH = opt.get("nvh", 3); NVP = opt.get("nvp", 9); NV1 = opt.get("nv1", 8)
    for fj in later + [smalljob]: fj()
    vj = [vjob(n) for n in range(8)]
    first = vj[:NVH]
    first.insert(NVQ, lambda: poll1(True))
    first.pop(0)()
    nC = opt.get("nc1", 40)
    weave(C[:nC], first, max(nC // (len(first) + 1), 1))
    for fj in first: fj()
    hjob()
    def wojob(n):
        def f():
            ks = [0, 2, 1, 3][n]; o = oWO2 if ks >= 2 else oWO
            a(f"s_lshr_b32 m0, {sM}, 1\ns_add_u32 m0, m0, {L_WO + 4096 * ks}\ns_add_u32 {o}, {o}, {32768 if n >= 2 else 0}")
            vmem("wo%d" % (n >> 1), f"buffer_load_dwordx4 {vWO}, {SWO}, {o} offen {pol('wo')} lds")
        return f
    wj = [w2job(0), w2job(1)] + [wojob(n) for n in range(4)]
    if NVP > NV1: wj.insert(opt.get("hidx", 0), hpoll)
    wj = vj[NV1:] + wj
    NW0 = opt.get("nw0", 3)
    early = wj[:NW0]; wj = wj[NW0:]
    wopos = list(opt.get("wopos", [0, 0, 1, 2]))[-len(wj):] if wj else []
    second = vj[NVH:NV1]
    if dual: second.insert(NVB2 - NVH, lambda: poll1(True, qg2, "p1b"))
    assert NVP > NV1
    weave(C[nC:] + C2, second, max((len(C) - nC + len(C2)) // (len(second) + 1), 1))
    for fj in second: fj()
    if opt.get("finpw", 1):
        a("s_mov_b32 exec_lo, 0x00010001\ns_mov_b32 exec_hi, 0x00010001")
        vmem("pre", f"buffer_load_dword {vPRE}, {vFS}, {SWS}, {oFS} offen")
        a("s_mov_b64 exec, -1")
    if early: a("s_waitcnt lgkmcnt(0)")
    for fj in early: fj()
    stamp("issV")
    wait_vm("k")
    for T in range(2):
        for st in range(4):
            a(f"ds_read_b128 {kk[16*T+4*st:16*T+4*st+4]}, {vKR[st]} offset:{4096*T}")
    wait_vm("p1")
    nB = len(vm) - 1 - max(i for i, n in enumerate(vm) if n == "p1b") if dual else 0
    stamp("p1")
    a("L_chk1:")
    a(f"v_xor_b32 {vT0}, {sTP}, {qg[0]}\nv_xor_b32 {vT1}, {sTP}, {qg[4]}")
    seq = [(qg[1], sTag[1], vT0), (qg[5], sTag[1], vT1), (qg[2], sTag[2], vT0), (qg[6], sTag[2], vT1), (qg[3], sTag[3], vT0), (qg[7], sTag[3], vT1)]
    for r, tg, d in seq:
        a(f"v_bitop3_b32 {d}, {r}, {tg}, {d} {BOP}")
    a(f"""
    v_bitop3_b32 {vT0}, {vT0}, {vT1}, {vFF} bitop3:0xa8
    v_cmp_ne_u32 vcc, 0, {vT0}
    """)
    for k in range(8):
        a(f"v_and_b32 {sc[k]}, {sMsk}, {qg[k]}")
    a(f"""
    s_cbranch_vccnz L_retry1
    L_ok1:
    """)
    stamp("ok1")
    def WO(p):
        while wj and wopos and wopos[0] <= p:
            wopos.pop(0); wj.pop(0)()
    WO(-1)
    a(f"""
    v_pk_add_f32 {sc[0:2]}, {sc[0:2]}, {sc[4:6]}
    v_pk_add_f32 {sc[2:4]}, {sc[2:4]}, {sc[6:8]}
    v_permlane32_swap_b32 {sc[0]}, {sc[2]}
    v_permlane32_swap_b32 {sc[1]}, {sc[3]}
    v_add_f32 {sc[0]}, {sc[0]}, {sc[2]}
    v_add_f32 {sc[1]}, {sc[1]}, {sc[3]}
    v_cvt_pk_bf16_f32 {sc[0]}, {sc[0]}, {sc[1]}
    ds_write_b32 {vQW}, {sc[0]} offset:{L_Q}
    """)
    WO(0)
    a("s_waitcnt lgkmcnt(0)\ns_barrier")
    a(f"ds_read_b32 {vT1}, {vZ} offset:{L_MIX}")
    for st in range(4):
        a(f"ds_read_b128 {qb[4*st:4*st+4]}, {vQR} offset:{L_Q + 64*st}")
    for st in range(4):
        a(f"s_waitcnt lgkmcnt({3 - st})")
        for T in range(2):
            d = sc[4*T:4*T+4]
            a(f"v_mfma_f32_16x16x32_bf16 {d}, {kk[16*T+4*st:16*T+4*st+4]}, {qb[4*st:4*st+4]}, {d if st else 0}")
    a(f"v_readfirstlane_b32 {sMix}, {vT1}\ns_cmp_eq_u32 {sMix}, 0\ns_cbranch_scc0 L_mixed\nL_mixback:")
    pk = qb
    t4 = xn[0:4]
    for k in range(4):
        a(f"v_cvt_pk_bf16_f32 {t4[k]}, {sc[2*k]}, {sc[2*k+1]}")
    for k in range(4):
        a(f"v_lshlrev_b32 {sc[2*k]}, 16, {t4[k]}\nv_and_b32 {sc[2*k+1]}, {sHi}, {t4[k]}")
    for k in range(8):
        a(f"v_mul_f32 {sc[k]}, {sScale}, {sc[k]}")
    for k in range(4):
        a(f"v_cvt_pk_bf16_f32 {t4[k]}, {sc[2*k]}, {sc[2*k+1]}")
    for k in range(4):
        a(f"v_lshlrev_b32 {sc[2*k]}, 16, {t4[k]}\nv_and_b32 {sc[2*k+1]}, {sHi}, {t4[k]}")
    vMax = mlr[0]
    WO(1)
    a(f"""
    v_max3_f32 {vT0}, {sc[0]}, {sc[1]}, {sc[2]}
    v_max3_f32 {vT1}, {sc[3]}, {sc[4]}, {sc[5]}
    v_max3_f32 {vT0}, {vT0}, {sc[6]}, {sc[7]}
    v_max_f32 {vT0}, {vT0}, {vT1}
    v_mov_b32 {vT1}, {vT0}
    v_permlane16_swap_b32 {vT0}, {vT1}
    v_max_f32 {vT0}, {vT0}, {vT1}
    v_mov_b32 {vT1}, {vT0}
    v_permlane32_swap_b32 {vT0}, {vT1}
    v_max_f32 {vT0}, {vT0}, {vT1}
    ds_write_b32 {vMX}, {vT0} offset:{L_MX}
    """)
    WO(2)
    a(f"s_waitcnt lgkmcnt(0)\ns_barrier\nds_read_b128 {t4}, {vMR} offset:{L_MX}")
    bw = v.get(16, 2); df = v.get(16, 2)
    WO(3)
    a(f"""
    s_lshl_b32 {sTmp}, {sKH}, 12
    s_waitcnt lgkmcnt(0)
    v_max3_f32 {vT0}, {t4[0]}, {t4[1]}, {t4[2]}
    v_max_f32 {vT0}, {vT0}, {t4[3]}
    v_mul_f32 {vMax}, {sL2E}, {vT0}
    """)
    for k in range(8):
        a(f"v_fma_f32 {sc[k]}, {sc[k]}, {sL2E}, -{vMax}")
    for k in range(8):
        a(f"v_exp_f32 {sc[k]}, {sc[k]}")
    for k in range(4):
        a(f"v_cvt_pk_bf16_f32 {t4[k]}, {sc[2*k]}, {sc[2*k+1]}")
    a(f"ds_write_b128 {vPW}, {t4} offset:{L_XN}")
    vTO = v.get(4)
    for ct in range(4):
        a(f"v_add_u32 {vTO[ct]}, {sTmp}, {vTW[ct]}")
    WO(4)
    av = kk; do = v.get(8, 2); dl = sc[0:4]
    a(f"v_mov_b32 {vT0}, 0\nv_lshlrev_b32 {b1r}, 16, {b1r}\ns_lshl_b32 {sTmp}, 1, {sW}\ns_cmp_eq_u32 {sMix}, 0")
    wait_vm("v1")
    a("s_waitcnt lgkmcnt(0)\ns_barrier")
    def vreads(t):
        for T in range(2):
            for hi in range(2):
                a(f"ds_read_b64_tr_b16 {av[8*t+4*T+2*hi:8*t+4*T+2*hi+2]}, {vTV[T]} offset:{8192*t + 4096*hi}")
    def pvm(t, T):
        d = do[4*T:4*T+4]
        a(f"v_mfma_f32_16x16x32_bf16 {d}, {av[8*t+4*T:8*t+4*T+4]}, {pk[4*t:4*t+4]}, {d if t else 0}")
    for t in range(2):
        a(f"ds_read_b128 {pk[4*t:4*t+4]}, {vL16} offset:{L_XN + 1024*t}")
        vreads(t)
    for t in range(2, 4):
        a(f"ds_read_b128 {pk[4*t:4*t+4]}, {vL16} offset:{L_XN + 1024*t}")
    for t in range(2):
        for T in range(2):
            a(f"s_waitcnt lgkmcnt({9 - 5*t - 2*T})")
            pvm(t, T)
    stamp("soft")
    spec = opt.get("vspec", 1)
    for t in range(4):
        if t >= 2: a(f"s_waitcnt lgkmcnt({3 - t})")
        a(f"v_mfma_f32_16x16x32_bf16 {dl}, {ones}, {pk[4*t:4*t+4]}, {dl if t else 0}")
    wait_vm("v3")
    stamp("V")
    a("s_barrier")
    vreads(2); vreads(3)
    a(f"""
    v_mov_b32 {mlr[1]}, {dl[0]}
    s_mov_b32 exec_lo, {sTmp}
    s_mov_b32 exec_hi, 0
    s_cbranch_scc0 L_mlmix
    """)
    vmem("ml", f"buffer_store_dwordx4 {mlr}, {vT0}, {SWS}, {oML} offen")
    a("L_mlback:")
    a("s_mov_b64 exec, -1")
    for t in range(2, 4):
        for T in range(2):
            a(f"s_waitcnt lgkmcnt({6 - 4*(t-2) - 2*T})")
            pvm(t, T)
    a(f"""
    s_mov_b32 exec_lo, 0x000f000f
    s_mov_b32 exec_hi, 0x000f000f
    s_mov_b32 {sCnt}, 0
    v_cvt_pk_bf16_f32 {pr[2]}, {do[0]}, {do[1]}
    v_cvt_pk_bf16_f32 {pr[3]}, {do[2]}, {do[3]}
    s_mov_b32 exec_lo, 0x00f000f0
    s_mov_b32 exec_hi, 0x00f000f0
    v_cvt_pk_bf16_f32 {pr[0]}, {do[4]}, {do[5]}
    v_cvt_pk_bf16_f32 {pr[1]}, {do[6]}, {do[7]}
    s_mov_b32 exec_lo, 0x00ff00ff
    s_mov_b32 exec_hi, 0x00ff00ff
    s_cbranch_scc0 L_psmix
    """)
    vmem("ps", f"buffer_store_dwordx4 {pr}, {vPS}, {SWS}, {oPS} offen")
    a("L_psback:")
    a("s_mov_b64 exec, -1")
    stamp("pub2")
    wait_vm("ph")
    a("L_chkh:")
    a(f"v_xor_b32 {vT0}, {sTP}, {hg[0]}")
    for k in range(1, 4):
        a(f"v_bitop3_b32 {vT0}, {hg[k]}, {sTag[k]}, {vT0} {BOP}")
    a(f"v_and_b32 {vT0}, {vT0}, {vFF}\nv_cmp_ne_u32 vcc, 0, {vT0}")
    hm = sc[0:4]; hs4 = sc[4:8]
    for k in range(4):
        a(f"v_and_b32 {hm[k]}, {sMsk}, {hg[k]}")
    a("s_cbranch_vccnz L_retryh\nL_okh:")
    h = hm[0]; e = hm[1]; u = hm[2]; d1 = hm[3]; r1 = hs4[1]
    def rnd1(x): return [f"v_cvt_pk_bf16_f32 {x}, {x}, {x}", f"v_lshlrev_b32 {x}, 16, {x}"]
    ff = lines(f"""
    v_cndmask_b32 {hs4[0]}, {hm[0]}, {hm[2]}, {sEv}
    v_cndmask_b32 {hs4[1]}, {hm[1]}, {hm[3]}, {sEv}
    v_cndmask_b32 {hs4[2]}, {hm[2]}, {hm[0]}, {sEv}
    v_cndmask_b32 {hs4[3]}, {hm[3]}, {hm[1]}, {sEv}
    v_add_f32_dpp {hs4[2]}, {hs4[0]}, {hs4[2]} quad_perm:[1,0,3,2] {DPPM}
    v_add_f32_dpp {hs4[3]}, {hs4[1]}, {hs4[3]} quad_perm:[1,0,3,2] {DPPM}
    v_cndmask_b32 {hs4[0]}, {hs4[2]}, {hs4[3]}, {sEv2}
    v_cndmask_b32 {h}, {hs4[3]}, {hs4[2]}, {sEv2}
    v_add_f32_dpp {h}, {hs4[0]}, {h} quad_perm:[2,3,0,1] {DPPM}
    v_add_f32_dpp {h}, {h}, {h} row_shl:4 {DPPM}
    """)
    ff += rnd1(h) + [f"v_add_f32 {h}, {h}, {b1r}"] + rnd1(h)
    ff += [f"v_mul_f32 {e}, -abs({h}), {sL2E}", f"v_exp_f32 {e}, {e}"] + rnd1(e)
    ff += [f"v_add_f32 {u}, 1.0, {e}", f"v_add_f32 {d1}, -1.0, {u}", f"v_log_f32 {u}, {u}", f"v_rcp_f32 {r1}, {d1}",
           f"v_cmp_eq_f32 vcc, 0, {d1}", f"v_mul_f32 {u}, {sLn2}, {u}", f"v_mul_f32 {r1}, {r1}, {e}", f"v_mul_f32 {u}, {u}, {r1}",
           f"v_cndmask_b32 {u}, {u}, {e}, vcc"] + rnd1(u)
    ff += [f"v_max_f32 {e}, 0, {h}", f"v_add_f32 {u}, {u}, {e}"] + rnd1(u)
    ff += [f"v_mul_f32 {e}, {sM2}, {u}", f"v_exp_f32 {e}, {e}", f"v_cmp_gt_f32 vcc, 0x3a800000, {u}", f"v_add_f32 {d1}, 1.0, {e}", f"v_rcp_f32 {d1}, {d1}",
           f"v_sub_f32 {e}, 1.0, {e}", f"v_mul_f32 {e}, {e}, {d1}", f"v_cndmask_b32 {e}, {e}, {u}, vcc"] + rnd1(e)
    ff += [f"v_mul_f32 {e}, {e}, {h}", f"v_mov_b32_dpp {u}, {e} quad_perm:[2,3,0,1] {DPPM}", f"v_cvt_pk_bf16_f32 {u}, {e}, {u}"]
    ff += lines(f"""
    v_mov_b32_dpp {af[0]}, {u} quad_perm:[0,1,2,3] row_mask:0xf bank_mask:0x1
    v_mov_b32_dpp {af[1]}, {u} row_shl:1 row_mask:0xf bank_mask:0x1
    v_mov_b32_dpp {af[2]}, {u} row_shl:8 row_mask:0xf bank_mask:0x1
    v_mov_b32_dpp {af[3]}, {u} row_shl:9 row_mask:0xf bank_mask:0x1
    """)
    for x in ff: a(x)
    stamp("ffn")
    pa = qb; mlg = qg[0:4]; bo = kk; dd = v.get(16, 2)
    def poll2(first):
        t = []
        for tl in range(2):
            t.append(f"buffer_load_dwordx4 {pa[8*tl:8*tl+4]}, {vPA}, {SWS}, {oPA} offen offset:{2048*tl} sc1")
            t.append(f"buffer_load_dwordx4 {pa[8*tl+4:8*tl+8]}, {vPA}, {SWS}, {oPA} offen offset:{2048*tl+1024} sc1")
        t.append(f"buffer_load_dwordx4 {mlg}, {vMLG}, {SWS}, {oMLG} offen sc1")
        for x in t:
            if first: vmem("p2", x)
            else: a(x)
    def woreads(tl):
        for ct in range(4):
            for hi in range(2):
                r = bo[16*tl+4*ct+2*hi:16*tl+4*ct+2*hi+2]
                a(f"ds_read_b64_tr_b16 {r}, {vTO[ct]} offset:{L_WO + 4096*tl + 2048*hi}")
    p2at = opt.get("p2at", 2)
    if p2at == 0: poll2(True)
    wait_vm("w2")
    a("s_barrier")
    for ct in range(4):
        for hi in range(2):
            a(f"ds_read_b64_tr_b16 {bw[4*ct+2*hi:4*ct+2*hi+2]}, {vTW[ct]} offset:{L_W2 + 2048*hi}")
    fo = pr[0:2]
    a(f"s_mov_b32 {sCnt}, 0\nv_mov_b32 {fo[1]}, {sTag[0]}\nv_lshlrev_b32 {xf}, 16, {xf}")
    for ct in range(4):
        a(f"s_waitcnt lgkmcnt({6 - 2*ct})")
        a(f"v_mfma_f32_16x16x32_bf16 {df[4*ct:4*ct+4]}, {af}, {bw[4*ct:4*ct+4]}, 0")
    if p2at == 1: poll2(True)
    wait_vm("wo0")
    if p2at == 2: poll2(True)
    a("s_barrier")
    woreads(0)
    if p2at == 3: poll2(True)
    wait_vm("wo1")
    stamp("wo")
    a("s_barrier")
    woreads(1)
    a("s_waitcnt vmcnt(0)")
    a("L_chk2:")
    wv = vT1; vC = bw[0]
    chk = [f"v_xor_b32 {vC}, {sTag[0]}, {pa[1]}"] + [f"v_bitop3_b32 {vC}, {r}, {sTag[0]}, {vC} {BOP}" for r in (pa[6], pa[9], pa[14], mlg[2])] + [f"v_cmp_ne_u32 vcc, 0, {vC}"]
    wchain = [f"v_max_f32_dpp {vT0}, {mlg[0]}, {mlg[0]} row_ror:1 {DPPM}"] + [f"v_max_f32_dpp {vT0}, {vT0}, {vT0} row_ror:{r} {DPPM}" for r in (2, 4, 8)]
    wchain += [f"v_sub_f32 {wv}, {mlg[0]}, {vT0}", f"v_exp_f32 {wv}, {wv}", f"v_mul_f32 {vT0}, {wv}, {mlg[1]}"]
    wchain += [f"v_add_f32_dpp {vT0}, {vT0}, {vT0} row_ror:{r} {DPPM}" for r in (1, 2, 4, 8)]
    wchain += [f"v_rcp_f32 {vT0}, {vT0}", f"v_mul_f32 {wv}, {wv}, {vT0}"]
    a("s_waitcnt lgkmcnt(8)")
    for tl in range(2):
        if tl:
            a("s_cbranch_vccnz L_retry2\nL_ok2:")
            stamp("ok2")
            a("s_waitcnt lgkmcnt(0)")
        for ct in range(4):
            a(f"v_mfma_f32_16x16x32_bf16 {dd[4*ct:4*ct+4]}, {pa[8*tl+2:8*tl+6]}, {bo[16*tl+4*ct:16*tl+4*ct+4]}, {dd[4*ct:4*ct+4] if tl else 0}")
            a(wchain.pop(0))
            if tl == 0:
                a(chk.pop(0))
                if ct >= 2: a(chk.pop(0))
            else:
                a(wchain.pop(0))
    for x in wchain: a(x)
    for r in range(4):
        for ct in range(4):
            a(f"v_fmac_f32_dpp {df[4*ct]}, {wv}, {dd[4*ct+r]} row_newbcast:{r} {DPPM}")
    a(f"""
    v_permlane32_swap_b32 {df[0]}, {df[8]}
    v_permlane32_swap_b32 {df[4]}, {df[12]}
    v_add_f32 {df[0]}, {df[0]}, {df[8]}
    v_add_f32 {df[4]}, {df[4]}, {df[12]}
    s_cmp_eq_u32 {sW}, 0
    v_permlane16_swap_b32 {df[0]}, {df[4]}
    v_add_f32 {fo[0]}, {df[0]}, {df[4]}
    buffer_store_dwordx2 {fo}, {vFS}, {SWS}, {oFS} offen sc1
    """)
    if stamps or probe:
        stamp("pub3", flush=True)
        a(f"s_cmp_eq_u32 {sW}, 0")
    if opt.get("wb"):
        a("s_cbranch_scc0 L_wb")
    else:
        a("s_cbranch_scc0 L_fin")
    fg = bo[0:8]
    a(f"s_mov_b32 {sCnt}, 0")
    if opt.get("p3delay", 1):
        a("s_waitcnt vmcnt(0)")
    a(f"""
    L_poll3:
    buffer_load_dwordx4 {fg[0:4]}, {vFG}, {SWS}, {oFG} offen sc1
    buffer_load_dwordx4 {fg[4:8]}, {vFG}, {SWS}, {oFG2} offen sc1
    s_add_u32 {sCnt}, {sCnt}, 1
    s_cmp_gt_u32 {sCnt}, 20000
    s_cbranch_scc1 L_ok3
    s_waitcnt vmcnt(0)
    v_xor_b32 {vT0}, {sTag[0]}, {fg[1]}
    v_bitop3_b32 {vT0}, {fg[3]}, {sTag[0]}, {vT0} {BOP}
    v_bitop3_b32 {vT0}, {fg[5]}, {sTag[0]}, {vT0} {BOP}
    v_bitop3_b32 {vT0}, {fg[7]}, {sTag[0]}, {vT0} {BOP}
    v_cmp_ne_u32 vcc, 0, {vT0}
    s_cbranch_vccz L_ok3
    {'s_mov_b64 exec, vcc' if opt.get('sticky', 1) else ''}
    s_branch L_poll3
    L_ok3:
    s_mov_b64 exec, -1
    s_waitcnt vmcnt(0)
    v_add_f32 {dd[0]}, {fg[0]}, {fg[4]}
    v_add_f32 {dd[1]}, {fg[2]}, {fg[6]}
    """)
    stamp("ok3", flush=True)
    for r in (2, 4, 8):
        a(f"v_add_f32_dpp {dd[0]}, {dd[0]}, {dd[0]} row_ror:{r} {DPPM}")
        a(f"v_add_f32_dpp {dd[1]}, {dd[1]}, {dd[1]} row_ror:{r} {DPPM}")
    a(f"""
    s_cmp_eq_u32 s2, 0
    v_permlane16_swap_b32 {dd[0]}, {dd[1]}
    v_add_f32 {dd[0]}, {dd[0]}, {dd[1]}
    v_mov_b32 {dd[1]}, {dd[0]}
    v_permlane32_swap_b32 {dd[0]}, {dd[1]}
    v_add_f32 {dd[0]}, {dd[0]}, {dd[1]}
    v_add_f32 {dd[0]}, {dd[0]}, {xf}
    v_cvt_pk_bf16_f32 {dd[0]}, {dd[0]}, {dd[0]}
    s_mov_b32 exec_lo, 0x00030003
    s_mov_b32 exec_hi, 0
    buffer_store_short {dd[0]}, {vXF}, {SOUT}, {oXF} offen
    s_cbranch_scc0 L_fin
    s_mov_b32 exec_lo, 1
    v_mov_b32 {vT0}, 0
    buffer_store_dword {fo[1]}, {vT0}, {SWS}, 0 offen
    L_fin:
    """)
    if stamps:
        stamp("end", True)
        a("s_mov_b64 exec, -1")
        a(f"""
        s_getreg_b32 {sTmp}, hwreg(HW_REG_HW_ID)
        v_writelane_b32 {vST}, {sTmp}, 29
        v_writelane_b32 {vST}, {sXCC}, 30
        v_writelane_b32 {vST}, {sMix}, 31
        s_lshl_b32 {sTmp}, s2, 2
        s_add_u32 {sTmp}, {sTmp}, {sW}
        s_lshl_b32 {sTmp}, {sTmp}, 7
        s_add_u32 {sTmp}, {sTmp}, {STAMP}
        v_lshlrev_b32 {vT1}, 2, v0
        s_mov_b32 exec_lo, -1
        s_mov_b32 exec_hi, 0
        buffer_store_dword {vST}, {vT1}, {SWS}, {sTmp} offen
        """)
        out.insert(len(hdr), "; stamps: " + ",".join(names))
    if probe:
        stamp("end")
        a(f"""
        s_cmp_eq_u32 {sW}, {opt.get('pwave', 0)}
        s_cbranch_scc0 L_end
        s_load_dwordx2 s[8:9], s[0:1], 80
        s_mov_b32 s10, 256
        s_mov_b32 s11, 0x20000
        s_mov_b64 exec, 1
        s_waitcnt lgkmcnt(0)
        s_sub_u32 s4, 0, s100
        v_mov_b32 v2, s4
        v_mov_b32 v3, s98
        v_mov_b32 v4, 0
        buffer_atomic_umax v2, v4, s[8:11], 0 offen sc1
        buffer_atomic_umax v3, v4, s[8:11], 0 offen offset:128 sc1
        s_waitcnt vmcnt(0)
        L_hold0:
        s_memrealtime s[4:5]
        s_waitcnt lgkmcnt(0)
        s_sub_u32 s4, s4, s100
        s_cmp_lt_u32 s4, 2000
        s_cbranch_scc1 L_hold0
        buffer_load_dword v2, v4, s[8:11], 0 offen sc1
        buffer_load_dword v3, v4, s[8:11], 0 offen offset:128 sc1
        s_waitcnt vmcnt(0)
        v_readfirstlane_b32 s6, v2
        v_readfirstlane_b32 s98, v3
        s_add_u32 s98, s98, s6
        s_min_u32 s98, s98, 2000
        s_mul_i32 s98, s98, {opt.get('mult', 8)}
        s_add_u32 s98, s98, 2500
        L_hold1:
        s_memrealtime s[4:5]
        s_waitcnt lgkmcnt(0)
        s_sub_u32 s4, s4, s100
        s_cmp_lt_u32 s4, s98
        s_cbranch_scc1 L_hold1
        """)
    a("L_end:\ns_endpgm")
    if opt.get("wb"):
        a(f"""
        L_wb:
        s_cmp_eq_u32 {sW}, 1
        s_cbranch_scc0 L_fin
        s_cmp_lt_u32 {sJ}, {opt['wb']}
        s_cbranch_scc0 L_fin
        buffer_wbl2 sc1
        s_branch L_fin
        """)
    a(f"""
    L_retry1:
    s_add_u32 {sCnt}, {sCnt}, 1
    {'s_cmp_eq_u32 %s, 1' % sCnt if dual else ''}
    {'s_cbranch_scc1 L_useB' if dual else ''}
    s_cmp_gt_u32 {sCnt}, 20000
    s_cbranch_scc1 L_ok1
    s_cmp_eq_u32 {sCnt}, {opt.get('nplain', 12)}
    s_cbranch_scc0 L_r1b
    v_mov_b32 {vT0}, 1
    ds_write_b32 {vZ}, {vT0} offset:{L_MIX}
    ds_read_b128 {qg[0:4]}, {vL16} offset:{L_QSV}
    v_and_b32 {vT0}, 1, v0
    v_lshlrev_b32 {vT0}, 13, {vT0}
    v_lshrrev_b32 {vT1}, 1, v0
    v_lshl_add_u32 {vT0}, {vT1}, 4, {vT0}
    s_and_b32 {sTmp}, {oQS}, 0xffffff00
    s_add_u32 {sTmp}, {sTmp}, {SC1D}
    s_waitcnt lgkmcnt(0)
    v_xor_b32 {qg[0]}, {sXCC}, {qg[0]}
    s_mov_b32 exec_lo, -1
    s_mov_b32 exec_hi, 0
    buffer_store_dwordx4 {qg[0:4]}, {vT0}, {SWS}, {sTmp} offen sc1
    s_mov_b64 exec, -1
    s_mov_b32 {sTP}, {sTag[0]}
    s_add_u32 {oQG}, {oQG}, {SC1D}
    s_nop 1
    L_r1b:
    """)
    poll1(False)
    a("s_waitcnt vmcnt(0)\ns_branch L_chk1")
    if dual:
        a(f"L_useB:\ns_waitcnt vmcnt({nB})")
        for k in range(8):
            a(f"v_mov_b32 {qg[k]}, {qg2[k]}")
        a("s_branch L_chk1")
    a(f"""
    L_mixed:
    s_mov_b32 {sTP}, {sTag[0]}
    s_add_u32 {oHG}, {oHG}, {SC1D}
    s_add_u32 {oHS}, {oHS}, {SC1D}
    s_mov_b32 exec_lo, 0x01010101
    s_mov_b32 exec_hi, 0x01010101
    v_xor_b32 {dh[0]}, {sXCC}, {dh[0]}
    buffer_store_dwordx4 {dh}, {vHS}, {SWS}, {oHS} offen sc1
    s_waitcnt vmcnt(0)
    s_mov_b64 exec, -1
    s_branch L_mixback
    L_retryh:
    s_add_u32 {sCnt}, {sCnt}, 1
    s_cmp_gt_u32 {sCnt}, 20000
    s_cbranch_scc1 L_okh
    buffer_load_dwordx4 {hg}, {vHG}, {SWS}, {oHG} offen sc1
    s_waitcnt vmcnt(0)
    s_branch L_chkh
    L_mlmix:
    buffer_store_dwordx4 {mlr}, {vT0}, {SWS}, {oML} offen sc1
    s_branch L_mlback
    L_psmix:
    buffer_store_dwordx4 {pr}, {vPS}, {SWS}, {oPS} offen sc1
    s_branch L_psback
    L_retry2:
    s_add_u32 {sCnt}, {sCnt}, 1
    s_cmp_gt_u32 {sCnt}, 20000
    s_cbranch_scc1 L_ok2
    {'s_mov_b64 exec, vcc' if opt.get('sticky', 1) else ''}
    """)
    poll2(False)
    a("s_waitcnt vmcnt(0)\ns_mov_b64 exec, -1\ns_nop 3\ns_branch L_chk2")
    a("L_codeend:")
    nv = (v.hw + 7) // 8 * 8
    out.append(a.text())
    out.append(f""".section .rodata,"a"
.p2align 6
.amdhsa_kernel {NAME}_kernel
  .amdhsa_next_free_vgpr {nv}
  .amdhsa_next_free_sgpr 102
  .amdhsa_accum_offset {nv}
  .amdhsa_group_segment_fixed_size 0
  .amdhsa_kernarg_size 96
  .amdhsa_user_sgpr_count 2
  .amdhsa_user_sgpr_kernarg_segment_ptr 1
  .amdhsa_system_sgpr_workgroup_id_x 1
.end_amdhsa_kernel""")
    sys.stderr.write("vgprs %d sgprs %d nops %d\n" % (v.hw, s.hw, a.nops))
    return "\n".join(out) + "\n"

if __name__ == "__main__":
    import json
    opt = json.loads(sys.argv[2]) if len(sys.argv) > 2 else {}
    open(sys.argv[1], "w").write(gen(opt))
```

```python
import sys
from asmlib import *

NAME = "parallel_sum__sliding_block_cached__dense_activation_mish__decode"
PHI = 0x9E3779B9
QBUF = 0x10000; HBUF = 0x50000; SC1D = 0x20000; MLB = 0x90000; DBB = 0x98000; PART = 0x100000; FIN = 0x180000; STAMP = 0x800000
L_XN = 0; L_Q = 4096; L_MX = 5632; L_MIX = 5760; L_QSV = 5888; L_WQ = 8192; L_W1 = 24576; L_W2 = 32768; L_WO = 40960; L_V = 57344; L_K = 90112; LDS_BYTES = 122880
QSTR = 320
DPPM = "row_mask:0xf bank_mask:0xf"
BOP = "bitop3:0xbe"

def lines(text):
    return [l.strip() for l in text.strip().split("\n") if l.strip() and not l.strip().startswith(";")]

KVMAP = {
    "p4": (4, 128, [64 * (n >> 2) + (n & 3) for n in range(8)]),
    "p4i": (4, 1, [64 * n for n in range(8)]),
    "p1i": (1, 16, [64 * n for n in range(8)]),
    "p2": (2, 128, [32 * (n >> 1) + (n & 1) for n in range(8)]),
    "p2i": (2, 32, [128 * (n >> 1) + (n & 1) for n in range(8)]),
    "p8i": (8, 2, [128 * (n >> 1) + (n & 1) for n in range(8)]),
    "p1": (1, 128, [16 * n for n in range(8)]),
}
def gen(opt):
    KS, KW, KH_ = KVMAP[opt.get("kv", "p4")]
    nt = opt.get("nt", {k: "nt" for k in ("wq", "w1", "k", "v", "wo", "w2")})
    def pol(k): return nt.get(k, "")
    stamps = opt.get("stamps", False)
    a = Asm()
    v = Alloc("v", 1, 256); s = Alloc("s", 44, 102)
    hdr = open("cdna_kernels/%s.s.ref" % NAME).read().split("\n")
    hdr = [l for l in hdr if l.startswith(";") and "@launch" not in l and "Override" not in l and "grid=ceil" not in l]
    out = list(hdr)
    out.append("; @launch grid=(256,1,1) block=(256,1,1) lds=%d" % LDS_BYTES)
    out.append('.amdgcn_target "amdgcn-amd-amdhsa--gfx950"')
    out.append(".text\n.globl %s_kernel\n.p2align 8\n.type %s_kernel,@function\n%s_kernel:" % (NAME, NAME, NAME))
    SX, SK, SV, SWQ, SWO, SW1, SB1, SW2, SOUT, SWS = [Reg("s", 4 + 4 * i, 4) for i in range(10)]
    vm = []
    def vmem(name, text):
        a(text); vm.append(name)
    def wait_vm(name, allow=0):
        idx = max(i for i, n in enumerate(vm) if n == name) - allow
        n = len(vm) - 1 - idx
        a("s_waitcnt vmcnt(%d)" % n)
    def weave(fill, jobs, every, start=0):
        k = -start
        for ins in fill:
            a(ins); k += 1
            if jobs and k >= every:
                jobs.pop(0)(); k = 0
    nst = [0, 0]
    names = []
    NR = 4
    if stamps:
        sST = [s.get(2, 2) for _ in range(NR)]; vST = v.get()
    probe = opt.get("probe")
    def stamp(name, last=False, flush=False):
        if probe and name == "start": a("s_memrealtime s[100:101]")
        if probe and name == probe: a("s_memrealtime s[98:99]")
        if stamps:
            k = nst[0]; nst[0] += 1; names.append(name)
            assert k < 29
            done = nst[1]
            if k - done >= NR:
                a("v_writelane_b32 %s, %s, %d" % (vST, sST[done % NR][0], done)); done += 1
            a("s_memrealtime %s" % sST[k % NR])
            if last or flush:
                a("s_waitcnt lgkmcnt(0)")
                while done <= k:
                    a("v_writelane_b32 %s, %s, %d" % (vST, sST[done % NR][0], done)); done += 1
            nst[1] = done
    stamp("start")
    a(f"""
    s_load_dwordx2 {SX[0:2]}, s[0:1], 0
    s_load_dwordx2 {SWQ[0:2]}, s[0:1], 24
    s_load_dwordx2 {SW1[0:2]}, s[0:1], 48
    s_load_dwordx2 {SK[0:2]}, s[0:1], 8
    s_load_dwordx2 {SWS[0:2]}, s[0:1], 88
    s_load_dwordx2 {SV[0:2]}, s[0:1], 16
    s_cmp_ge_u32 s2, 256
    s_cbranch_scc1 L_end
    """)
    if opt.get("vpf", 1):
        vP = v.get(2, 2); sPF = s.get(2, 2)
        a(f"""
        s_getpc_b64 {sPF}
        L_pc:
        s_lshr_b32 s3, s2, 1
        s_and_b32 s3, s3, 0x7c
        v_lshrrev_b32 {vP[0]}, 6, v0
        v_add_u32 {vP[0]}, s3, {vP[0]}
        v_lshlrev_b32 {vP[0]}, 6, {vP[0]}
        v_min_u32 {vP[0]}, L_codeend-L_pc-4, {vP[0]}
        """)
        vmem("pf", f"global_load_dword {vP[1]}, {vP[0]}, {sPF}")
    sW, sG, sJ, sA, sC, sT, sBLK, sTmp, sTmp2 = [s.get() for _ in range(9)]
    oXO, oWQ, oW1, oKV, oK, oW2 = [s.get() for _ in range(6)]
    sM = s.get()
    DBPRE = ""
    if opt.get("ndb", 0):
        oDB0 = s.get()
        DBPRE = f"""s_mov_b32 {SWS[2]}, 0x10000000
        s_mov_b32 {SWS[3]}, 0x20000
        s_lshl_b32 {sTmp}, {sJ}, 2
        s_add_u32 {sTmp}, {sTmp}, {sW}
        s_and_b32 {sTmp}, {sTmp}, 7
        s_lshl_b32 {sTmp2}, {sG}, 3
        s_add_u32 {sTmp}, {sTmp}, {sTmp2}
        s_lshl_b32 {sTmp}, {sTmp}, 7
        s_add_u32 {oDB0}, {sTmp}, {DBB}"""
    vGQ, vI, vT0, vT1 = [v.get() for _ in range(4)]
    vL16, vB3, vXO, vWQe, vWQo, vW1e, vW1o = [v.get() for _ in range(7)]
    vK = v.get(4)
    a(f"""
    v_readfirstlane_b32 {sW}, v0
    v_and_b32 v0, 63, v0
    s_and_b32 {sG}, s2, 7
    {'s_xor_b32 %s, %s, %d' % (sG, sG, opt['gxor']) if opt.get('gxor') else ''}
    s_lshr_b32 {sJ}, s2, 3
    s_lshr_b32 {sW}, {sW}, 6
    s_lshr_b32 {sA}, {sJ}, 3
    s_and_b32 {sC}, {sJ}, 7
    v_lshrrev_b32 {vGQ}, 4, v0
    v_and_b32 {vI}, 15, v0
    s_mov_b32 {SX[2]}, 2048
    s_mov_b32 {SX[3]}, 0x20000
    s_mov_b32 {SWQ[2]}, {512*4096*2}
    s_mov_b32 {SWQ[3]}, 0x20000
    v_lshlrev_b32 {vL16}, 4, v0
    v_bfe_u32 {vB3}, v0, 3, 1
    v_lshlrev_b32 {vT0}, 10, {vB3}
    v_lshl_add_u32 {vXO}, {vGQ}, 4, {vT0}
    v_and_b32 {vT0}, 1, {vGQ}
    v_lshlrev_b32 {vT0}, 1, {vT0}
    v_and_b32 {vT1}, 7, v0
    v_xor_b32 {vT0}, {vT0}, {vT1}
    v_lshlrev_b32 {vT0}, 4, {vT0}
    v_lshrrev_b32 {vT1}, 3, v0
    v_lshl_add_u32 {vWQe}, {vT1}, 13, {vT0}
    v_xor_b32 {vWQo}, 64, {vWQe}
    s_and_b32 {sTmp}, {sC}, 1
    s_lshl_b32 {sTmp2}, {sTmp}, 1
    s_xor_b32 {sTmp2}, {sTmp2}, {sW}
    s_lshl_b32 {sTmp2}, {sTmp2}, 5
    s_lshl_b32 {oXO}, {sA}, 7
    s_add_u32 {sTmp2}, {sTmp2}, {oXO}
    s_lshl_b32 {oWQ}, {sTmp2}, 13
    s_lshl_b32 {sM}, {sG}, 10
    s_add_u32 {oWQ}, {oWQ}, {sM}
    s_xor_b32 {sM}, {sC}, {opt.get('cqx', 1)}
    s_lshl_b32 {sM}, {sM}, 7
    s_add_u32 {oWQ}, {oWQ}, {sM}
    s_lshl_b32 {oXO}, {sTmp2}, 1
    s_lshl_b32 {sM}, {sW}, 12
    s_add_u32 m0, {sM}, {L_WQ}
    {DBPRE}
    s_waitcnt lgkmcnt(0)
    """)
    stamp("karg")
    xs = v.get(8, 2); xo = v.get(4, 2)
    kk = v.get(32, 2)
    sE = sPF if opt.get('vpf', 1) else s.get(2, 2)
    vmem("xs", f"buffer_load_dwordx4 {xs[0:4]}, {vL16}, {SX}, 0 offen")
    vmem("xs", f"buffer_load_dwordx4 {xs[4:8]}, {vL16}, {SX}, 0 offen offset:1024")
    vmem("xo", f"buffer_load_dwordx4 {xo}, {vXO}, {SX}, {oXO} offen")
    for k in range(4):
        vmem("wq", f"buffer_load_dwordx4 {vWQo if k & 1 else vWQe}, {SWQ}, {oWQ} offen {pol('wq')} lds")
        if k < 3:
            a(f"s_add_u32 m0, m0, 1024\ns_add_u32 {oWQ}, {oWQ}, 65536")
    NDB = opt.get("ndb", 0)
    if NDB:
        vDB = v.get(); oDB = oDB0
        vDum = v.get()
        vmem("dbpw", f"buffer_load_dword {vDum}, off, {SWS}, {oDB} sc1")
    stamp("iss1")
    if opt.get("codepf"):
        sPC = s.get(2, 2)
        a(f"""
        s_getpc_b64 {sPC}
        s_lshl_b32 {sTmp}, {sJ}, 2
        s_add_u32 {sTmp}, {sTmp}, {sW}
        s_min_u32 {sTmp}, {sTmp}, {opt['codepf']}
        s_lshl_b32 {sTmp}, {sTmp}, 7
        s_load_dword {sE[1]}, {sPC}, {sTmp}
        """)
    vWO, vTQ = [v.get() for _ in range(2)]
    vV = v.get(2)
    vKR = v.get(4); vTW = v.get(4); vTV = v.get(2); vFF = v.get(); vZ = v.get(); vSV = v.get()
    sHi = s.get()
    sB, sKH, sBA, sS, sC2 = [s.get() for _ in range(5)]
    oB1, oXF = oXO, oWQ
    vB1, vXF, vPRE, vF = v.get(), v.get(), v.get(), vXO
    oQS, oHS, oQG, oHG, oML, oPS, oV, oWO = [s.get() for _ in range(8)]
    vQS, vHS, vQG, vHG = [v.get() for _ in range(4)]
    vQW, vQR, vMX, vMR, vPW = [v.get() for _ in range(5)]
    vPS, vMLG, vFS, vFG = [v.get() for _ in range(4)]
    vPA = vL16
    oPA, oMLG, oFS, oFG, oFG2 = [s.get() for _ in range(5)]
    sB3 = s.get(2, 2)
    A = lines(f"""
    s_load_dwordx2 {SW2[0:2]}, s[0:1], 64
    s_load_dwordx2 {SWO[0:2]}, s[0:1], 32
    s_load_dwordx2 {SB1[0:2]}, s[0:1], 56
    s_load_dwordx2 {SOUT[0:2]}, s[0:1], 72
    s_mov_b32 {SK[2]}, {2*8*8192*256}
    s_mov_b32 {SK[3]}, 0x20000
    s_lshr_b32 {sBA}, {sJ}, 4
    s_and_b32 {sS}, {sJ}, 15
    s_lshl_b32 {sTmp}, {sBA}, 3
    s_add_u32 {sTmp}, {sTmp}, {sG}
    s_lshl_b32 {oKV}, {sTmp}, 21
    s_mul_i32 {sTmp}, {sS}, {KS * 1024}
    s_add_u32 {oKV}, {oKV}, {sTmp}
    s_add_u32 {oKV}, {oKV}, {6144*256}
    s_mul_i32 {oK}, {sW}, {KW * 1024}
    s_add_u32 {oK}, {oK}, {oKV}
    s_lshl_b32 {sTmp}, {sW}, 13
    s_lshl_b32 {sM}, {sW}, 11
    v_xor_b32 {vT0}, {vI}, {vGQ}
    v_lshlrev_b32 {vT0}, 4, {vT0}
    v_lshl_add_u32 {vK[0]}, {vGQ}, 8, {vT0}
    v_xor_b32 {vK[1]}, 64, {vK[0]}
    v_xor_b32 {vK[2]}, 0x80, {vK[0]}
    v_xor_b32 {vK[3]}, 0xc0, {vK[0]}
    v_lshl_add_u32 {vT0}, {vI}, 8, {vT0}
    s_add_u32 {sTmp}, {sTmp}, {L_K}
    v_add_u32 {vKR[0]}, {sTmp}, {vT0}
    s_mov_b32 {SWS[2]}, 0x10000000
    s_mov_b32 {SWS[3]}, 0x20000
    s_mov_b32 {sHi}, 0xffff0000
    s_mov_b32 {sB3[0]}, 0xff00ff00
    s_mov_b32 {sB3[1]}, 0xff00ff00
    v_mov_b32 {vFF}, 0xff
    v_mov_b32 {vZ}, 0
    v_lshlrev_b32 {vSV}, 1, v0
    s_lshl_b32 {sTmp}, {sW}, 7
    v_add_u32 {vSV}, {sTmp}, {vSV}
    s_lshl_b32 {sTmp}, {sW}, 10
    v_add_u32 {vPW}, {sTmp}, {vL16}
    s_and_b32 {sB}, {sW}, 1
    s_lshr_b32 {sKH}, {sW}, 1
    v_and_b32 {vT0}, 1, {vGQ}
    v_lshlrev_b32 {vF}, 1, {vT0}
    v_or_b32 {vF}, {vF}, {vB3}
    v_and_b32 {vT1}, 3, v0
    v_lshlrev_b32 {vT1}, 3, {vT1}
    v_lshrrev_b32 {vT0}, 2, {vI}
    v_lshl_add_u32 {vTQ}, {vGQ}, 3, {vT0}
    v_lshl_add_u32 {vTQ}, {vTQ}, 7, {vT1}
    v_xor_b32 {vTV[0]}, {sW}, {vF}
    v_lshl_add_u32 {vTQ}, {vTV[0]}, 5, {vTQ}
    v_lshl_add_u32 {vT0}, {vGQ}, 2, {vT0}
    v_lshl_add_u32 {vTW[0]}, {vT0}, 7, {vT1}
    v_lshl_add_u32 {vTW[0]}, {vF}, 5, {vTW[0]}
    v_lshl_add_u32 {vTV[1]}, {vT0}, 8, {vT1}
    v_and_b32 {vTV[0]}, 7, {vT0}
    v_lshlrev_b32 {vT0}, 4, {vGQ}
    v_lshl_add_u32 {vQS}, {vB3}, 13, {vT0}
    v_lshlrev_b32 {vHS}, 7, {vGQ}
    v_lshl_add_u32 {vHS}, {vB3}, 11, {vHS}
    s_lshl_b32 {oQG}, {sG}, 14
    s_add_u32 {oQG}, {oQG}, {QBUF}
    s_lshl_b32 {sTmp}, {sA}, 11
    s_add_u32 {oQS}, {oQG}, {sTmp}
    s_xor_b32 {sTmp}, {sC}, {opt.get('cqx', 1)}
    s_lshl_b32 {sTmp}, {sTmp}, 8
    s_add_u32 {oQS}, {oQS}, {sTmp}
    s_lshl_b32 {sTmp2}, {sW}, 6
    s_add_u32 {oQS}, {oQS}, {sTmp2}
    s_lshl_b32 {sTmp}, {sW}, 9
    s_add_u32 {oQG}, {oQG}, {sTmp}
    """)
    B = lines(f"""
    s_lshr_b32 {sT}, {sC}, 1
    s_sub_u32 {sT}, {sT}, {sA}
    s_and_b32 {sT}, {sT}, 3
    s_mul_i32 {sBLK}, {sG}, 7
    s_add_u32 {sBLK}, {sBLK}, 1
    s_lshr_b32 {sBLK}, {sBLK}, 1
    s_add_u32 {sBLK}, {sBLK}, {sT}
    s_and_b32 {sTmp2}, {sG}, 1
    s_add_u32 {sTmp2}, {sTmp2}, {sT}
    s_cmp_eq_u32 {sTmp2}, 4
    s_cselect_b32 {sBLK}, 0x4000, {sBLK}
    s_lshl_b32 {sTmp}, {sA}, 1
    s_and_b32 {sTmp2}, {sC}, 1
    s_add_u32 {sTmp}, {sTmp}, {sTmp2}
    s_lshl_b32 {oW1}, {sTmp}, 2
    s_add_u32 {oW1}, {oW1}, {sW}
    s_mul_i32 {oW1}, {oW1}, {16*3584}
    s_lshl_b32 {sTmp2}, {sBLK}, 7
    s_add_u32 {oW1}, {oW1}, {sTmp2}
    s_mov_b32 {SW1[2]}, {512*1792*2}
    s_mov_b32 {SW1[3]}, 0x20000
    v_lshrrev_b32 {vT1}, 3, v0
    v_mul_u32_u24 {vW1e}, 3584, {vT1}
    v_and_b32 {vT0}, 0x7f, {vWQe}
    v_add_u32 {vW1e}, {vW1e}, {vT0}
    v_xor_b32 {vW1o}, 64, {vW1e}
    s_lshl_b32 {oHG}, {sG}, 2
    s_add_u32 {oWO}, {oHG}, {sA}
    s_add_u32 {oHG}, {oHG}, {sT}
    s_lshl_b32 {oHG}, {oHG}, 12
    s_add_u32 {oHG}, {oHG}, {HBUF}
    s_lshl_b32 {sTmp}, {sTmp}, 4
    s_add_u32 {oHS}, {oHG}, {sTmp}
    s_lshl_b32 {sTmp}, {sW}, 9
    s_add_u32 {oHS}, {oHS}, {sTmp}
    s_mov_b32 {SW2[2]}, {512*1792*2}
    s_mov_b32 {SW2[3]}, 0x20000
    s_mov_b32 {SV[2]}, {2*8*8192*256}
    s_mov_b32 {SV[3]}, 0x20000
    s_mov_b32 {SB1[2]}, 3584
    s_mov_b32 {SB1[3]}, 0x20000
    s_lshl_b32 {sC2}, {sKH}, {2 if opt.get('crot', 1) else 8}
    s_xor_b32 {sC2}, {sC2}, {sC}
    s_and_b32 {sC2}, {sC2}, 7
    s_lshl_b32 {oW2}, {sBLK}, 2
    s_add_u32 {oW2}, {oW2}, {sW}
    s_lshl_b32 {oW2}, {oW2}, 14
    s_lshl_b32 {sTmp}, {sC2}, 7
    s_add_u32 {oW2}, {oW2}, {sTmp}
    v_lshlrev_b32 {vT0}, 1, {vGQ}
    v_and_b32 {vT1}, 7, v0
    v_xor_b32 {vT0}, {vT0}, {vT1}
    v_lshlrev_b32 {vT0}, 4, {vT0}
    v_lshrrev_b32 {vWO}, 3, v0
    v_lshl_add_u32 {vWO}, {vWO}, 10, {vT0}
    v_lshlrev_b32 {vT0}, 4, {vGQ}
    v_lshl_add_u32 {vT0}, {vB3}, 6, {vT0}
    v_lshlrev_b32 {vHG}, 4, {vT1}
    v_lshl_add_u32 {vHG}, {vT0}, 3, {vHG}
    v_lshrrev_b32 {vB1}, 1, {vT0}
    v_and_b32 {vT1}, 1, v0
    v_lshl_add_u32 {vB1}, {vT1}, 2, {vB1}
    v_and_b32 {vT0}, 2, v0
    v_add_u32 {vB1}, {vB1}, {vT0}
    v_and_b32 {vT0}, 1, {vGQ}
    v_lshlrev_b32 {vXF}, 1, {vT0}
    v_lshl_add_u32 {vXF}, {vT1}, 2, {vXF}
    v_lshlrev_b32 {vT0}, 1, {vGQ}
    v_xor_b32 {vT0}, {vT0}, {vI}
    v_lshlrev_b32 {vT0}, 4, {vT0}
    v_lshl_add_u32 {vV[0]}, {vGQ}, 8, {vT0}
    v_xor_b32 {vV[1]}, 0x80, {vV[0]}
    s_mul_i32 {oV}, {sKH}, {KH_[4] * 1024}
    s_add_u32 {oV}, {oV}, {oKV}
    s_mul_i32 {sTmp}, {sB}, {KH_[2] * 1024}
    s_add_u32 {oV}, {oV}, {sTmp}
    v_lshrrev_b32 {vFG}, 1, v0
    v_lshlrev_b32 {vFG}, 7, {vFG}
    v_lshl_add_u32 {vFG}, {vT1}, 4, {vFG}
    v_lshrrev_b32 {vT0}, 5, v0
    v_and_b32 {vT1}, 31, v0
    v_lshlrev_b32 {vQG}, 12, {vT0}
    v_lshl_add_u32 {vQG}, {vT1}, 4, {vQG}
    v_lshlrev_b32 {vQW}, 2, {vT0}
    v_lshl_add_u32 {vQW}, {vT1}, 3, {vQW}
    s_lshl_b32 {oB1}, {sBLK}, 7
    s_lshl_b32 {sTmp}, {sKH}, 6
    s_add_u32 {oB1}, {oB1}, {sTmp}
    s_lshl_b32 {oXF}, {sBA}, 10
    s_lshl_b32 {sTmp}, {sG}, 7
    s_add_u32 {oXF}, {oXF}, {sTmp}
    s_lshl_b32 {sTmp}, {sS}, 3
    s_add_u32 {oXF}, {oXF}, {sTmp}
    s_lshl_b32 {sTmp}, {sBA}, 13
    s_add_u32 {oQG}, {oQG}, {sTmp}
    s_lshl_b32 {sTmp}, {sB}, 11
    s_add_u32 {oHG}, {oHG}, {sTmp}
    s_lshl_b32 {sTmp}, {sKH}, 10
    s_add_u32 {oHG}, {oHG}, {sTmp}
    """)
    prewarm = opt.get("prewarm", 1)
    if prewarm:
        B += lines(f"""
        s_lshl_b32 {sTmp}, {sJ}, 2
        s_add_u32 {sTmp}, {sTmp}, {sW}
        s_lshl_b32 {sTmp2}, {sG}, 7
        s_add_u32 {sTmp2}, {sTmp2}, {sTmp}
        s_lshl_b32 {sTmp2}, {sTmp2}, 9
        s_add_u32 {sTmp2}, {sTmp2}, {PART}
        v_lshlrev_b32 {vPRE}, 7, v0
        v_add_u32 {vPRE}, {sTmp2}, {vPRE}
        s_and_b32 {sTmp}, {sTmp}, 15
        s_lshl_b32 {sTmp2}, {sG}, 4
        s_add_u32 {sTmp}, {sTmp}, {sTmp2}
        s_lshl_b32 {sTmp}, {sTmp}, 7
        s_add_u32 {sTmp}, {sTmp}, {MLB}
        v_writelane_b32 {vPRE}, {sTmp}, 4
        s_and_b32 {sTmp}, {oHS}, 0xfffff000
        s_lshl_b32 {sTmp2}, {sC}, 2
        s_add_u32 {sTmp2}, {sTmp2}, {sW}
        s_lshl_b32 {sTmp2}, {sTmp2}, 7
        s_add_u32 {sTmp}, {sTmp}, {sTmp2}
        v_writelane_b32 {vPRE}, {sTmp}, 5
        """)
    sU = sTmp2
    oWO2 = sBLK
    C = lines(f"""
    s_mov_b32 {SWO[2]}, {4096*512*2}
    s_mov_b32 {SWO[3]}, 0x20000
    s_mov_b32 {SOUT[2]}, 2048
    s_mov_b32 {SOUT[3]}, 0x20000
    v_xor_b32 {vKR[1]}, 64, {vKR[0]}
    v_xor_b32 {vKR[2]}, 0x80, {vKR[0]}
    v_xor_b32 {vKR[3]}, 0xc0, {vKR[0]}
    v_and_b32 {vT1}, 3, v0
    v_mul_u32_u24 {vQR}, {QSTR}, {vT1}
    v_lshl_add_u32 {vQR}, {vGQ}, 4, {vQR}
    v_lshlrev_b32 {vMR}, 4, {vT1}
    v_lshlrev_b32 {vPS}, 13, {vT1}
    v_lshl_add_u32 {vPS}, {vGQ}, 8, {vPS}
    v_bfe_u32 {vT0}, v0, 2, 1
    v_lshl_add_u32 {vPS}, {vT0}, 10, {vPS}
    s_lshl_b32 {sU}, {sW}, 2
    v_add_u32 {vMX}, {sU}, {vMR}
    s_lshl_b32 {sU}, {sKH}, 12
    v_add_u32 {vTW[0]}, {sU}, {vTW[0]}
    v_xor_b32 {vTW[1]}, 32, {vTW[0]}
    v_xor_b32 {vTW[2]}, 64, {vTW[0]}
    v_xor_b32 {vTW[3]}, 0x60, {vTW[0]}
    s_lshl_b32 {sU}, {sW}, 1
    v_xor_b32 {vTV[0]}, {sU}, {vTV[0]}
    v_lshl_add_u32 {vTV[0]}, {vTV[0]}, 5, {vTV[1]}
    v_add_u32 {vTV[0]}, {L_V}, {vTV[0]}
    v_xor_b32 {vTV[1]}, 32, {vTV[0]}
    s_mul_i32 {sU}, {sW}, {QSTR}
    v_add_u32 {vQW}, {sU}, {vQW}
    v_lshl_add_u32 {vMLG}, {vGQ}, 2, {vI}
    v_and_b32 {vMLG}, 15, {vMLG}
    v_lshlrev_b32 {vMLG}, 4, {vMLG}
    v_lshlrev_b32 {vFS}, 3, {vI}
    v_lshl_add_u32 {vFS}, {vGQ}, 13, {vFS}
    s_lshl_b32 {oFS}, {oWO}, 1
    s_add_u32 {oFS}, {oFS}, {sKH}
    s_lshl_b32 {oFS}, {oFS}, 7
    s_lshl_b32 {sU}, {sC2}, 1
    s_add_u32 {sU}, {sU}, {sB}
    s_lshl_b32 {sU}, {sU}, 15
    s_add_u32 {oFS}, {oFS}, {sU}
    s_add_u32 {oFS}, {oFS}, {FIN}
    s_lshl_b32 {oWO}, {oWO}, 4
    s_add_u32 {oWO}, {oWO}, {sW}
    s_lshl_b32 {oWO}, {oWO}, 13
    s_xor_b32 {sU}, {sC}, 4
    s_lshl_b32 {sU}, {sU}, 7
    s_add_u32 {oWO2}, {oWO}, {sU}
    s_add_u32 {oWO2}, {oWO2}, 65536
    s_lshl_b32 {sU}, {sC}, 7
    s_add_u32 {oWO}, {oWO}, {sU}
    s_lshl_b32 {oPS}, {sG}, 1
    s_add_u32 {oPS}, {oPS}, {sBA}
    s_lshl_b32 {oML}, {oPS}, 2
    s_add_u32 {oML}, {oML}, {sW}
    s_lshl_b32 {oML}, {oML}, 8
    s_lshl_b32 {sU}, {sS}, 4
    s_add_u32 {oML}, {oML}, {sU}
    s_add_u32 {oML}, {oML}, {MLB}
    s_lshl_b32 {oPS}, {oPS}, 15
    s_add_u32 {oPS}, {oPS}, {sU}
    s_lshl_b32 {sU}, {sW}, 11
    s_add_u32 {oPS}, {oPS}, {sU}
    s_add_u32 {oPS}, {oPS}, {PART}
    s_lshl_b32 {oPA}, {sG}, 1
    s_add_u32 {oPA}, {oPA}, {sB}
    s_lshl_b32 {oPA}, {oPA}, 2
    s_add_u32 {oPA}, {oPA}, {sA}
    s_lshl_b32 {oMLG}, {oPA}, 8
    s_add_u32 {oMLG}, {oMLG}, {MLB}
    s_lshl_b32 {oPA}, {oPA}, 13
    s_lshl_b32 {sU}, {sKH}, 12
    s_add_u32 {oPA}, {oPA}, {sU}
    s_add_u32 {oPA}, {oPA}, {PART}
    s_lshl_b32 {oFG}, {sG}, 3
    s_lshr_b32 {sU}, {sJ}, 2
    s_add_u32 {oFG}, {oFG}, {sU}
    s_lshl_b32 {oFG}, {oFG}, 13
    s_and_b32 {sU}, {sJ}, 3
    s_lshl_b32 {sU}, {sU}, 5
    s_add_u32 {oFG}, {oFG}, {sU}
    s_add_u32 {oFG}, {oFG}, {FIN}
    s_add_u32 {oFG2}, {oFG}, 4096
    """)
    def kjob(idx):
        def f():
            a(f"s_lshl2_add_u32 m0, {sM}, {L_K + 1024 * idx}\ns_add_u32 {oK}, {oK}, {1024 * (KH_[idx] - KH_[idx - 1]) if idx else 0}")
            vmem("k", f"buffer_load_dwordx4 {vK[idx & 3]}, {SK}, {oK} offen {pol('k')} lds")
        return f
    NKA = opt.get("nka", 0)
    NKP = opt.get("nkp", 6)
    b1r = v.get(); xf = v.get()
    def w2job(n):
        def f():
            if n == 0: a(f"s_add_u32 m0, {sM}, {L_W2}\ns_nop 0")
            else: a(f"s_add_u32 m0, {sM}, {L_W2 + 1024}\ns_add_u32 {oW2}, {oW2}, 8192")
            vmem("w2", f"buffer_load_dwordx4 {vWO}, {SW2}, {oW2} offen {pol('w2')} lds")
        return f
    def smalljob():
        vmem("b1", f"buffer_load_ushort {b1r}, {vB1}, {SB1}, {oB1} offen")
        vmem("xf", f"buffer_load_ushort {xf}, {vXF}, {SX}, {oXF} offen")
        if prewarm:
            a("s_mov_b32 exec_lo, 63\ns_mov_b32 exec_hi, 0")
            vmem("pre", f"buffer_load_dword {vPRE}, {vPRE}, {SWS}, 0 offen sc1")
            a("s_mov_b64 exec, -1")
    def w1job(n):
        def f():
            if n == 0: a(f"s_add_u32 m0, {sM}, {L_W1}\ns_nop 0")
            else: a(f"s_add_u32 m0, {sM}, {L_W1 + 1024}\ns_add_u32 {oW1}, {oW1}, 28672")
            vmem("w1", f"buffer_load_dwordx4 {vW1o if n else vW1e}, {SW1}, {oW1} offen {pol('w1')} lds")
        return f
    kw = opt.get("kw1", 2)
    alljobs = [kjob(i) for i in range(kw)] + [w1job(0), w1job(1)] + [kjob(i) for i in range(kw, 8)]
    kj = alljobs[:NKP]; later = alljobs[NKP:]
    for x in A[:27]: a(x)
    tch = opt.get("touch", "")
    if tch:
        a(f"""
        s_lshl_b32 {sTmp2}, {sG}, 2
        s_add_u32 {sTmp2}, {sTmp2}, {sA}
        s_lshl_b32 {sTmp2}, {sTmp2}, 17
        s_waitcnt lgkmcnt(0)
        """)
        if tch == "s":
            a(f"""
            s_load_dword {sE[1]}, {SK[0:2]}, {oK}
            s_load_dword {sE[1]}, {SV[0:2]}, {oK}
            s_load_dword {sE[1]}, {SWO[0:2]}, {sTmp2}
            s_load_dword {sE[1]}, {SW1[0:2]}, 0
            s_load_dword {sE[1]}, {SW2[0:2]}, 0
            s_load_dword {sE[1]}, {SB1[0:2]}, 0
            s_load_dword {sE[1]}, {SOUT[0:2]}, 0
            """)
        else:
            vD = v.get(2)
            a(f"v_mov_b32 {vD[0]}, {oK}")
            vmem("t", f"global_load_dword {vD[1]}, {vD[0]}, {SV[0:2]}")
            a(f"v_mov_b32 {vD[0]}, {sTmp2}")
            vmem("t", f"global_load_dword {vD[1]}, {vD[0]}, {SWO[0:2]}")
            a(f"v_mov_b32 {vD[0]}, 0")
            vmem("t", f"global_load_dword {vD[1]}, {vD[0]}, {SW2[0:2]}")
            vmem("t", f"global_load_dword {vD[1]}, {vD[0]}, {SW1[0:2]}")
            vmem("t", f"global_load_dword {vD[1]}, {vD[0]}, {SWS[0:2]}")
    a(f"s_load_dword {sE[0]}, {SWS[0:2]}, 0")
    if opt.get("spf", 0):
        a(f"s_bfe_u32 {sTmp2}, {oWQ}, 0x30007\ns_cmp_eq_u32 {sTmp2}, 3\ns_cbranch_scc0 L_nospf")
        for r in range(opt.get("spfr", 6)):
            for hf in range(2):
                a(f"s_buffer_load_dword {sE[1]}, {SWQ}, {oWQ} offset:{(7 - r) * 8192 + 64 * hf}")
        a("L_nospf:")
    for x in A[27:]: a(x)
    ja = [kj.pop(0) for _ in range(NKA)]
    weave(B, ja, max(len(B) // (NKA + 1), 1))
    for f in ja: f()
    mk = v.mark()
    f = v.get(16, 2); nm = v.get(2, 2); acc = v.get(2, 2); t0 = v.get(); t1 = v.get(); vMean = v.get(2, 2); vR = v.get(2, 2)
    g4 = v.get(8, 2)
    stamp("addr")
    wait_vm("xs")
    stamp("x")
    LN = []
    for k in range(8):
        LN += [f"v_lshlrev_b32 {f[2*k]}, 16, {xs[k]}", f"v_and_b32 {f[2*k+1]}, {sHi}, {xs[k]}"]
    LN += lines(f"""
    v_pk_add_f32 {g4[0:2]}, {f[0:2]}, {f[2:4]}
    v_pk_add_f32 {g4[2:4]}, {f[4:6]}, {f[6:8]}
    v_pk_add_f32 {g4[4:6]}, {f[8:10]}, {f[10:12]}
    v_pk_add_f32 {g4[6:8]}, {f[12:14]}, {f[14:16]}
    v_pk_add_f32 {g4[0:2]}, {g4[0:2]}, {g4[2:4]}
    v_pk_add_f32 {g4[4:6]}, {g4[4:6]}, {g4[6:8]}
    v_add_f32 {acc[0]}, {g4[0]}, {g4[1]}
    v_add_f32 {acc[1]}, {g4[4]}, {g4[5]}
    """)
    xu = g4
    def red(x, tmp, fill):
        o = []
        def F(n=2):
            for _ in range(n):
                if fill: o.append(fill.pop(0))
        o += [f"v_cndmask_b32 {tmp}, {acc[1]}, {acc[0]}, {sB3}", f"v_cndmask_b32 {x}, {acc[0]}, {acc[1]}, {sB3}"]
        F(2); o.append(f"v_add_f32_dpp {x}, {tmp}, {x} row_ror:8 {DPPM}")
        for m in ("quad_perm:[1,0,3,2]", "quad_perm:[2,3,0,1]", "row_half_mirror"):
            F(); o.append(f"v_add_f32_dpp {x}, {x}, {x} {m} {DPPM}")
        o.append(f"v_mov_b32 {tmp}, {x}"); F(); o += [f"v_permlane16_swap_b32 {x}, {tmp}", f"v_add_f32 {x}, {x}, {tmp}"]
        o.append(f"v_mov_b32 {tmp}, {x}"); F(); o += [f"v_permlane32_swap_b32 {x}, {tmp}", f"v_add_f32 {x}, {x}, {tmp}"]
        return o + fill
    XOW = "@waitxo"
    fill = [XOW]
    for k in range(4):
        fill += [f"v_lshlrev_b32 {xu[2*k]}, 16, {xo[k]}", f"v_and_b32 {xu[2*k+1]}, {sHi}, {xo[k]}"]
    LN += red(t0, t1, fill)
    nm2 = vR
    LN += lines(f"""
    v_mul_f32 {t0}, 0xbb000000, {t0}
    v_cvt_pk_bf16_f32 {vMean[0]}, {t0}, {t0}
    v_and_b32 {vMean[0]}, {sHi}, {vMean[0]}
    v_mov_b32_dpp {nm[0]}, {t0} row_newbcast:0 {DPPM}
    v_mov_b32_dpp {nm2[0]}, {t0} row_newbcast:8 {DPPM}
    v_mov_b32_dpp {nm[1]}, {t0} row_newbcast:0 {DPPM}
    v_mov_b32_dpp {nm2[1]}, {t0} row_newbcast:8 {DPPM}
    """)
    for k in range(8):
        LN.append(f"v_pk_add_f32 {f[2*k:2*k+2]}, {f[2*k:2*k+2]}, {nm if k < 4 else nm2}")
    LN += [f"v_pk_mul_f32 {nm}, {f[0:2]}, {f[0:2]}", f"v_pk_mul_f32 {nm2}, {f[8:10]}, {f[8:10]}"]
    for k in range(1, 4):
        LN += [f"v_pk_fma_f32 {nm}, {f[2*k:2*k+2]}, {f[2*k:2*k+2]}, {nm}", f"v_pk_fma_f32 {nm2}, {f[8+2*k:8+2*k+2]}, {f[8+2*k:8+2*k+2]}, {nm2}"]
    LN += [f"v_add_f32 {acc[0]}, {nm[0]}, {nm[1]}", f"v_add_f32 {acc[1]}, {nm2[0]}, {nm2[1]}"]
    fill = [f"v_mov_b32 {vMean[1]}, {vMean[0]}"]
    for k in range(4):
        fill.append(f"v_pk_add_f32 {xu[2*k:2*k+2]}, {xu[2*k:2*k+2]}, {vMean}")
    for k in range(4):
        fill.append(f"v_cvt_pk_bf16_f32 {xo[k]}, {xu[2*k]}, {xu[2*k+1]}")
    for k in range(2):
        fill += [f"v_lshlrev_b32 {xu[2*k]}, 16, {xo[k]}", f"v_and_b32 {xu[2*k+1]}, {sHi}, {xo[k]}"]
    LN += red(t0, t1, fill)
    LN += lines(f"""
    v_mul_f32 {t0}, 0x3b000000, {t0}
    v_cvt_pk_bf16_f32 {t0}, {t0}, {t0}
    v_lshlrev_b32 {t0}, 16, {t0}
    v_add_f32 {t0}, 0x3727c5ac, {t0}
    v_cvt_pk_bf16_f32 {t0}, {t0}, {t0}
    v_lshlrev_b32 {t0}, 16, {t0}
    v_sqrt_f32 {t0}, {t0}
    v_lshlrev_b32 {xu[4]}, 16, {xo[2]}
    v_cvt_pk_bf16_f32 {t0}, {t0}, {t0}
    v_lshlrev_b32 {t0}, 16, {t0}
    v_rcp_f32 {vR[0]}, {t0}
    v_and_b32 {xu[5]}, {sHi}, {xo[2]}
    v_lshlrev_b32 {xu[6]}, 16, {xo[3]}
    v_and_b32 {xu[7]}, {sHi}, {xo[3]}
    v_mov_b32 {vR[1]}, {vR[0]}
    """)
    for k in range(4):
        LN.append(f"v_pk_mul_f32 {xu[2*k:2*k+2]}, {xu[2*k:2*k+2]}, {vR}")
    for k in range(4):
        LN.append(f"v_cvt_pk_bf16_f32 {xo[k]}, {xu[2*k]}, {xu[2*k+1]}")
    LN.append(f"ds_write_b128 {vPW}, {xo} offset:{L_XN}")
    LN.append(f"ds_write_b32 {vZ}, {vZ} offset:{L_MIX}")
    every = opt.get("kevery", 12)
    k = every - opt.get("kfirst", 1)
    for ins in LN:
        if ins == XOW: wait_vm("xo"); continue
        a(ins); k += 1
        if kj and k >= every:
            kj.pop(0)(); k = 0
    for fj in kj: fj()
    v.release(mk)
    sTag = s.get(4); sXCC = s.get(); sTP = s.get()
    sCnt, sMix = s.get(), s.get()
    stamp("ln")
    a(f"""
    s_getreg_b32 {sXCC}, hwreg(HW_REG_XCC_ID, 0, 4)
    s_waitcnt lgkmcnt(0)
    s_add_u32 {sTag[0]}, {sE[0]}, {hex(PHI)}
    s_lshr_b32 {sTag[1]}, {sTag[0]}, 8
    s_lshr_b32 {sTag[2]}, {sTag[0]}, 16
    s_lshr_b32 {sTag[3]}, {sTag[0]}, 24
    s_xor_b32 {sTP}, {sTag[0]}, {sXCC}
    """)
    if NDB:
        vDBV = v.get(); sDBP = SK[0:2]; sDBX = 'vcc'
        a(f"""
        v_lshlrev_b32 {vDB}, 7, v0
        v_mov_b32 {vDBV}, {sTP}
        s_and_b32 {oDB}, {oDB}, 0xfffffc00
        s_xor_b32 {sTmp}, {sC}, {opt.get('cqx', 1)}
        s_lshl_b32 {sTmp}, {sTmp}, 2
        s_add_u32 {sTmp}, {sTmp}, {sA}
        s_lshl_b32 {sTmp}, {sTmp}, 2
        s_add_u32 {sTmp}, {sTmp}, {sW}
        s_add_u32 {oDB}, {oDB}, {sTmp}
        s_and_b32 vcc_lo, {sTP}, 0xff
        s_mul_i32 vcc_lo, vcc_lo, 0x01010101
        s_mov_b32 vcc_hi, vcc_lo
        """)
    wait_vm("wq")
    stamp("wq")
    a("s_barrier")
    xn = v.get(8, 2)
    mk = v.mark()
    xn2 = v.get(8, 2); aq = v.get(16, 2); dq = v.get(4, 2)
    xnt = [xn[0:4], xn[4:8], xn2[0:4], xn2[4:8]]
    for t in range(4):
        a(f"ds_read_b128 {xnt[t]}, {vL16} offset:{L_XN + 1024*t}")
        for hi in range(2):
            a(f"ds_read_b64_tr_b16 {aq[4*t+2*hi:4*t+2*hi+2]}, {vTQ} offset:{L_WQ + 4096*t + 512*hi}")
    for t in range(4):
        a(f"s_waitcnt lgkmcnt({9 - 3*t})")
        a(f"v_mfma_f32_16x16x32_bf16 {dq}, {aq[4*t:4*t+4]}, {xnt[t]}, {dq if t else 0}")
    def pub(d, voff, soff, name, tp):
        a("s_mov_b32 exec_lo, 0x01010101\ns_mov_b32 exec_hi, 0x01010101")
        a(f"v_bfi_b32 {d[0]}, {vFF}, {tp}, {d[0]}")
        for k in range(1, 4):
            a(f"v_bfi_b32 {d[k]}, {vFF}, {sTag[k]}, {d[k]}")
    pub(dq, vQS, oQS, "qs", sTP)
    vmem("qs", f"buffer_store_dwordx4 {dq}, {vQS}, {SWS}, {oQS} offen {opt.get('stpol', '')}")
    a(f"ds_write_b128 {vSV}, {dq} offset:{L_QSV}")
    a("s_mov_b64 exec, -1")
    v.release(mk)
    stamp("pub1")
    qg = v.get(8, 2); hg = v.get(4, 2)
    DBR = Reg("s", 16, 8)
    NVB2 = opt.get("nvb2", -1)
    dual = NVB2 is not None and NVB2 >= 0
    qg2 = v.get(8, 2) if dual else None
    def poll1(first, r=None, name="p1"):
        r = r or qg
        t = [f"buffer_load_dwordx4 {r[0:4]}, {vQG}, {SWS}, {oQG} offen sc1",
             f"buffer_load_dwordx4 {r[4:8]}, {vQG}, {SWS}, {oQG} offen offset:2048 sc1"]
        for x in t:
            if first: vmem(name, x)
            else: a(x)
    def vjob(n):
        def f():
            assert KH_[6] == KH_[4] + KH_[2] and all(KH_[2 * k + 1] - KH_[2 * k] == KH_[1] for k in range(4))
            d = 0 if n == 0 else (KH_[1] if n & 1 else KW - KH_[1])
            a(f"s_add_u32 m0, {sM}, {L_V + 8192 * (n >> 1) + 1024 * (n & 1)}\ns_add_i32 {oV}, {oV}, {1024 * d}")
            vmem("v%d" % (n // 2), f"buffer_load_dwordx4 {vV[n & 1]}, {SV}, {oV} offen {pol('v')} lds")
        return f
    sMsk, sScale, sL2E, sLn2, sM2 = sT, oW1, oB1, oK, oKV
    qb = v.get(16, 2); sc = v.get(8, 2); tmp4 = v.get(4, 2); ones = v.get(4, 2); pr = v.get(4, 2); af = v.get(4, 2); mlr = v.get(4, 2)
    sEv = sB3; sEv2 = sE
    C2 = lines(f"""
    s_mov_b32 {sMsk}, 0xffffff00
    s_mov_b32 {sScale}, 0x3db504f3
    s_mov_b32 {sL2E}, 0x3fb8aa3b
    s_mov_b32 {sLn2}, 0x3f317218
    s_mov_b32 {sM2}, 0xc038aa3b
    s_mov_b32 {sEv[0]}, 0x55555555
    s_mov_b32 {sEv[1]}, 0x55555555
    s_mov_b32 {sEv2[0]}, 0x33333333
    s_mov_b32 {sEv2[1]}, 0x33333333
    v_mov_b32 {mlr[2]}, {sTag[0]}
    v_mov_b32 {mlr[3]}, {sTag[0]}
    """)
    for k in range(4):
        C2 += [f"v_mov_b32 {ones[k]}, 0x3f803f80", f"v_mov_b32 {pr[k]}, {sTag[0]}", f"v_mov_b32 {af[k]}, 0"]
    a(f"s_mov_b32 {sCnt}, 0")
    a1 = sc; dh = v.get(4, 2)
    def hjob():
        wait_vm("w1")
        a("s_waitcnt lgkmcnt(0)\ns_barrier")
        for t in range(2):
            for hi in range(2):
                a(f"ds_read_b64_tr_b16 {a1[4*t+2*hi:4*t+2*hi+2]}, {vTQ} offset:{L_W1 + 4096*t + 512*hi}")
        for t in range(2):
            a(f"s_waitcnt lgkmcnt({2 - 2*t})")
            a(f"v_mfma_f32_16x16x32_bf16 {dh}, {a1[4*t:4*t+4]}, {xn[4*t:4*t+4]}, {dh if t else 0}")
        for x in C[nC:nC+6]: a(x)
        del C[nC:nC+6]
        pub(dh, vHS, oHS, "hs", sTP)
        vmem("hs", f"buffer_store_dwordx4 {dh}, {vHS}, {SWS}, {oHS} offen {opt.get('stpol', '')}")
        a("s_mov_b64 exec, -1")
        stamp("pubh")
    def hpoll(first=True):
        x = f"buffer_load_dwordx4 {hg}, {vHG}, {SWS}, {oHG} offen sc1"
        if first: vmem("ph", x)
        else: a(x)
    NVQ = opt.get("nvq", 4); NVH = opt.get("nvh", 4); NVP = opt.get("nvp", 9); NV1 = opt.get("nv1", 8)
    for fj in later + [smalljob]: fj()
    vj = [vjob(n) for n in range(8)]
    first = vj[:NVH]
    if NVQ <= NVH: first.insert(NVQ, lambda: poll1(True))
    if first: first.pop(0)()
    nC = opt.get("nc1", 40)
    weave(C[:nC], first, max(nC // (len(first) + 1), 1))
    for fj in first: fj()
    hjob()
    def wojob(n):
        def f():
            ks = [0, 2, 1, 3][n]; o = oWO2 if ks >= 2 else oWO
            a(f"s_lshr_b32 m0, {sM}, 1\ns_add_u32 m0, m0, {L_WO + 4096 * ks}\ns_add_u32 {o}, {o}, {32768 if n >= 2 else 0}")
            vmem("wo%d" % (n >> 1), f"buffer_load_dwordx4 {vWO}, {SWO}, {o} offen {pol('wo')} lds")
        return f
    wj = [w2job(0), w2job(1)] + [wojob(n) for n in range(4)]
    if NVP > NV1: wj.insert(opt.get("hidx", 0), hpoll)
    wj = vj[NV1:] + wj
    def finpw():
        a("s_mov_b32 exec_lo, 0x00010001\ns_mov_b32 exec_hi, 0x00010001")
        vmem("pre", f"buffer_load_dword {vPRE}, {vFS}, {SWS}, {oFS} offen")
        a("s_mov_b64 exec, -1")
    if opt.get("finpw", 2) == 2:
        last = wj[-1]
        wj[-1] = lambda: (last(), finpw())
    NW0 = opt.get("nw0", 1)
    early = wj[:NW0]; wj = wj[NW0:]
    wopos = list(opt.get("wopos", [0, 0, 0, 1, 2, 2]))[-len(wj):] if wj else []
    second = vj[NVH:NV1]
    if dual: second.insert(NVB2 - NVH, lambda: poll1(True, qg2, "p1b"))
    if NVQ > NVH: second.insert(NVQ - NVH, lambda: poll1(True))
    assert NVP > NV1
    weave(C[nC:] + C2, second, max((len(C) - nC + len(C2)) // (len(second) + 1), 1))
    for fj in second: fj()
    if opt.get("finpw", 2) == 1: finpw()
    if early: a("s_waitcnt lgkmcnt(0)")
    for fj in early: fj()
    stamp("issV")
    wait_vm("k")
    for T in range(2):
        for st in range(4):
            a(f"ds_read_b128 {kk[16*T+4*st:16*T+4*st+4]}, {vKR[st]} offset:{4096*T}")
    wait_vm("p1")
    nB = len(vm) - 1 - max(i for i, n in enumerate(vm) if n == "p1b") if dual else 0
    stamp("p1")
    a("L_chk1:")
    a(f"v_xor_b32 {vT0}, {sTP}, {qg[0]}\nv_xor_b32 {vT1}, {sTP}, {qg[4]}")
    seq = [(qg[1], sTag[1], vT0), (qg[5], sTag[1], vT1), (qg[2], sTag[2], vT0), (qg[6], sTag[2], vT1), (qg[3], sTag[3], vT0), (qg[7], sTag[3], vT1)]
    for r, tg, d in seq:
        a(f"v_bitop3_b32 {d}, {r}, {tg}, {d} {BOP}")
    a(f"""
    v_bitop3_b32 {vT0}, {vT0}, {vT1}, {vFF} bitop3:0xa8
    v_cmp_ne_u32 vcc, 0, {vT0}
    """)
    for k in range(8):
        a(f"v_and_b32 {sc[k]}, {sMsk}, {qg[k]}")
    a(f"""
    s_cbranch_vccnz L_retry1
    L_ok1:
    """)
    stamp("ok1")
    def WO(p):
        while wj and wopos and wopos[0] <= p:
            wopos.pop(0); wj.pop(0)()
    WO(-1)
    a(f"""
    v_pk_add_f32 {sc[0:2]}, {sc[0:2]}, {sc[4:6]}
    v_pk_add_f32 {sc[2:4]}, {sc[2:4]}, {sc[6:8]}
    v_permlane32_swap_b32 {sc[0]}, {sc[2]}
    v_permlane32_swap_b32 {sc[1]}, {sc[3]}
    v_add_f32 {sc[0]}, {sc[0]}, {sc[2]}
    v_add_f32 {sc[1]}, {sc[1]}, {sc[3]}
    v_cvt_pk_bf16_f32 {sc[0]}, {sc[0]}, {sc[1]}
    ds_write_b32 {vQW}, {sc[0]} offset:{L_Q}
    """)
    WO(0)
    a("s_waitcnt lgkmcnt(0)\ns_barrier")
    a(f"ds_read_b32 {vT1}, {vZ} offset:{L_MIX}")
    for st in range(4):
        a(f"ds_read_b128 {qb[4*st:4*st+4]}, {vQR} offset:{L_Q + 64*st}")
    for st in range(4):
        a(f"s_waitcnt lgkmcnt({3 - st})")
        for T in range(2):
            d = sc[4*T:4*T+4]
            a(f"v_mfma_f32_16x16x32_bf16 {d}, {kk[16*T+4*st:16*T+4*st+4]}, {qb[4*st:4*st+4]}, {d if st else 0}")
    a(f"v_readfirstlane_b32 {sMix}, {vT1}\ns_cmp_eq_u32 {sMix}, 0\ns_cbranch_scc0 L_mixed\nL_mixback:")
    pk = qb
    t4 = xn[0:4]
    for k in range(4):
        a(f"v_cvt_pk_bf16_f32 {t4[k]}, {sc[2*k]}, {sc[2*k+1]}")
    for k in range(4):
        a(f"v_lshlrev_b32 {sc[2*k]}, 16, {t4[k]}\nv_and_b32 {sc[2*k+1]}, {sHi}, {t4[k]}")
    for k in range(8):
        a(f"v_mul_f32 {sc[k]}, {sScale}, {sc[k]}")
    for k in range(4):
        a(f"v_cvt_pk_bf16_f32 {t4[k]}, {sc[2*k]}, {sc[2*k+1]}")
    for k in range(4):
        a(f"v_lshlrev_b32 {sc[2*k]}, 16, {t4[k]}\nv_and_b32 {sc[2*k+1]}, {sHi}, {t4[k]}")
    vMax = mlr[0]
    WO(1)
    a(f"""
    v_max3_f32 {vT0}, {sc[0]}, {sc[1]}, {sc[2]}
    v_max3_f32 {vT1}, {sc[3]}, {sc[4]}, {sc[5]}
    v_max3_f32 {vT0}, {vT0}, {sc[6]}, {sc[7]}
    v_max_f32 {vT0}, {vT0}, {vT1}
    v_mov_b32 {vT1}, {vT0}
    v_permlane16_swap_b32 {vT0}, {vT1}
    v_max_f32 {vT0}, {vT0}, {vT1}
    v_mov_b32 {vT1}, {vT0}
    v_permlane32_swap_b32 {vT0}, {vT1}
    v_max_f32 {vT0}, {vT0}, {vT1}
    ds_write_b32 {vMX}, {vT0} offset:{L_MX}
    """)
    WO(2)
    a(f"s_waitcnt lgkmcnt(0)\ns_barrier\nds_read_b128 {t4}, {vMR} offset:{L_MX}")
    bw = v.get(16, 2); df = v.get(16, 2)
    WO(3)
    a(f"""
    s_lshl_b32 {sTmp}, {sKH}, 12
    s_waitcnt lgkmcnt(0)
    v_max3_f32 {vT0}, {t4[0]}, {t4[1]}, {t4[2]}
    v_max_f32 {vT0}, {vT0}, {t4[3]}
    v_mul_f32 {vMax}, {sL2E}, {vT0}
    """)
    for k in range(8):
        a(f"v_fma_f32 {sc[k]}, {sc[k]}, {sL2E}, -{vMax}")
    for k in range(8):
        a(f"v_exp_f32 {sc[k]}, {sc[k]}")
    for k in range(4):
        a(f"v_cvt_pk_bf16_f32 {t4[k]}, {sc[2*k]}, {sc[2*k+1]}")
    a(f"ds_write_b128 {vPW}, {t4} offset:{L_XN}")
    vTO = v.get(4)
    for ct in range(4):
        a(f"v_add_u32 {vTO[ct]}, {sTmp}, {vTW[ct]}")
    WO(4)
    av = kk; do = v.get(8, 2); dl = sc[0:4]
    a(f"v_mov_b32 {vT0}, 0\nv_lshlrev_b32 {b1r}, 16, {b1r}\ns_lshl_b32 {sTmp}, 1, {sW}\ns_cmp_eq_u32 {sMix}, 0")
    wait_vm("v1")
    a("s_waitcnt lgkmcnt(0)\ns_barrier")
    def vreads(t):
        for T in range(2):
            for hi in range(2):
                a(f"ds_read_b64_tr_b16 {av[8*t+4*T+2*hi:8*t+4*T+2*hi+2]}, {vTV[T]} offset:{8192*t + 4096*hi}")
    def pvm(t, T):
        d = do[4*T:4*T+4]
        a(f"v_mfma_f32_16x16x32_bf16 {d}, {av[8*t+4*T:8*t+4*T+4]}, {pk[4*t:4*t+4]}, {d if t else 0}")
    for t in range(2):
        a(f"ds_read_b128 {pk[4*t:4*t+4]}, {vL16} offset:{L_XN + 1024*t}")
        vreads(t)
    for t in range(2, 4):
        a(f"ds_read_b128 {pk[4*t:4*t+4]}, {vL16} offset:{L_XN + 1024*t}")
    for t in range(2):
        for T in range(2):
            a(f"s_waitcnt lgkmcnt({9 - 5*t - 2*T})")
            pvm(t, T)
    stamp("soft")
    spec = opt.get("vspec", 1)
    for t in range(4):
        if t >= 2: a(f"s_waitcnt lgkmcnt({3 - t})")
        a(f"v_mfma_f32_16x16x32_bf16 {dl}, {ones}, {pk[4*t:4*t+4]}, {dl if t else 0}")
    def mlstore():
        a(f"""
        v_mov_b32 {mlr[1]}, {dl[0]}
        s_mov_b32 exec_lo, {sTmp}
        s_mov_b32 exec_hi, 0
        s_cbranch_scc0 L_mlmix
        """)
        vmem("ml", f"buffer_store_dwordx4 {mlr}, {vT0}, {SWS}, {oML} offen {opt.get('stpol', '')}")
        a("L_mlback:")
        a("s_mov_b64 exec, -1")
    if opt.get("pv3", 1):
        wait_vm("v2")
        a("s_barrier")
        vreads(2)
        mlstore()
        for T in range(2):
            a(f"s_waitcnt lgkmcnt({2 - 2*T})")
            pvm(2, T)
        wait_vm("v3")
        stamp("V")
        a("s_barrier")
        vreads(3)
        for T in range(2):
            a(f"s_waitcnt lgkmcnt({2 - 2*T})")
            pvm(3, T)
    else:
        wait_vm("v3")
        stamp("V")
        a("s_barrier")
        vreads(2); vreads(3)
        mlstore()
        for t in range(2, 4):
            for T in range(2):
                a(f"s_waitcnt lgkmcnt({6 - 4*(t-2) - 2*T})")
                pvm(t, T)
    a(f"""
    s_mov_b32 exec_lo, 0x000f000f
    s_mov_b32 exec_hi, 0x000f000f
    s_mov_b32 {sCnt}, 0
    v_cvt_pk_bf16_f32 {pr[2]}, {do[0]}, {do[1]}
    v_cvt_pk_bf16_f32 {pr[3]}, {do[2]}, {do[3]}
    s_mov_b32 exec_lo, 0x00f000f0
    s_mov_b32 exec_hi, 0x00f000f0
    v_cvt_pk_bf16_f32 {pr[0]}, {do[4]}, {do[5]}
    v_cvt_pk_bf16_f32 {pr[1]}, {do[6]}, {do[7]}
    s_mov_b32 exec_lo, 0x00ff00ff
    s_mov_b32 exec_hi, 0x00ff00ff
    s_cbranch_scc0 L_psmix
    """)
    vmem("ps", f"buffer_store_dwordx4 {pr}, {vPS}, {SWS}, {oPS} offen {opt.get('stpol', '')}")
    a("L_psback:")
    a("s_mov_b64 exec, -1")
    WO(7)
    assert not wj
    stamp("pub2")
    if opt.get("wb2"):
        a(f"s_lshl_b32 {sTmp}, {sJ}, 2\ns_add_u32 {sTmp}, {sTmp}, {sW}\ns_cmp_eq_u32 {sTmp}, {opt['wb2']}\ns_cbranch_scc0 L_nowb2\nbuffer_wbl2 sc1\ns_waitcnt vmcnt(0)\nL_nowb2:")
    wait_vm("ph")
    a("L_chkh:")
    a(f"v_xor_b32 {vT0}, {sTP}, {hg[0]}")
    for k in range(1, 4):
        a(f"v_bitop3_b32 {vT0}, {hg[k]}, {sTag[k]}, {vT0} {BOP}")
    a(f"v_and_b32 {vT0}, {vT0}, {vFF}\nv_cmp_ne_u32 vcc, 0, {vT0}")
    hm = sc[0:4]; hs4 = sc[4:8]
    for k in range(4):
        a(f"v_and_b32 {hm[k]}, {sMsk}, {hg[k]}")
    a("s_cbranch_vccnz L_retryh\nL_okh:")
    h = hm[0]; e = hm[1]; u = hm[2]; d1 = hm[3]; r1 = hs4[1]
    def rnd1(x): return [f"v_cvt_pk_bf16_f32 {x}, {x}, {x}", f"v_lshlrev_b32 {x}, 16, {x}"]
    ff = lines(f"""
    v_cndmask_b32 {hs4[0]}, {hm[0]}, {hm[2]}, {sEv}
    v_cndmask_b32 {hs4[1]}, {hm[1]}, {hm[3]}, {sEv}
    v_cndmask_b32 {hs4[2]}, {hm[2]}, {hm[0]}, {sEv}
    v_cndmask_b32 {hs4[3]}, {hm[3]}, {hm[1]}, {sEv}
    v_add_f32_dpp {hs4[2]}, {hs4[0]}, {hs4[2]} quad_perm:[1,0,3,2] {DPPM}
    v_add_f32_dpp {hs4[3]}, {hs4[1]}, {hs4[3]} quad_perm:[1,0,3,2] {DPPM}
    v_cndmask_b32 {hs4[0]}, {hs4[2]}, {hs4[3]}, {sEv2}
    v_cndmask_b32 {h}, {hs4[3]}, {hs4[2]}, {sEv2}
    v_add_f32_dpp {h}, {hs4[0]}, {h} quad_perm:[2,3,0,1] {DPPM}
    v_add_f32_dpp {h}, {h}, {h} row_shl:4 {DPPM}
    """)
    ff += rnd1(h) + [f"v_add_f32 {h}, {h}, {b1r}"] + rnd1(h)
    ff += [f"v_mul_f32 {e}, -abs({h}), {sL2E}", f"v_exp_f32 {e}, {e}"] + rnd1(e)
    ff += [f"v_add_f32 {u}, 1.0, {e}", f"v_add_f32 {d1}, -1.0, {u}", f"v_log_f32 {u}, {u}", f"v_rcp_f32 {r1}, {d1}",
           f"v_cmp_eq_f32 vcc, 0, {d1}", f"v_mul_f32 {u}, {sLn2}, {u}", f"v_mul_f32 {r1}, {r1}, {e}", f"v_mul_f32 {u}, {u}, {r1}",
           f"v_cndmask_b32 {u}, {u}, {e}, vcc"] + rnd1(u)
    ff += [f"v_max_f32 {e}, 0, {h}", f"v_add_f32 {u}, {u}, {e}"] + rnd1(u)
    ff += [f"v_mul_f32 {e}, {sM2}, {u}", f"v_exp_f32 {e}, {e}", f"v_cmp_gt_f32 vcc, 0x3a800000, {u}", f"v_add_f32 {d1}, 1.0, {e}", f"v_rcp_f32 {d1}, {d1}",
           f"v_sub_f32 {e}, 1.0, {e}", f"v_mul_f32 {e}, {e}, {d1}", f"v_cndmask_b32 {e}, {e}, {u}, vcc"] + rnd1(e)
    ff += [f"v_mul_f32 {e}, {e}, {h}", f"v_mov_b32_dpp {u}, {e} quad_perm:[2,3,0,1] {DPPM}", f"v_cvt_pk_bf16_f32 {u}, {e}, {u}"]
    ff += lines(f"""
    v_mov_b32_dpp {af[0]}, {u} quad_perm:[0,1,2,3] row_mask:0xf bank_mask:0x1
    v_mov_b32_dpp {af[1]}, {u} row_shl:1 row_mask:0xf bank_mask:0x1
    v_mov_b32_dpp {af[2]}, {u} row_shl:8 row_mask:0xf bank_mask:0x1
    v_mov_b32_dpp {af[3]}, {u} row_shl:9 row_mask:0xf bank_mask:0x1
    """)
    for x in ff: a(x)
    stamp("ffn")
    pa = qb; mlg = qg[0:4]; bo = kk; dd = v.get(16, 2)
    def poll2(first):
        t = []
        for tl in range(2):
            t.append(f"buffer_load_dwordx4 {pa[8*tl:8*tl+4]}, {vPA}, {SWS}, {oPA} offen offset:{2048*tl} sc1")
            t.append(f"buffer_load_dwordx4 {pa[8*tl+4:8*tl+8]}, {vPA}, {SWS}, {oPA} offen offset:{2048*tl+1024} sc1")
        t.append(f"buffer_load_dwordx4 {mlg}, {vMLG}, {SWS}, {oMLG} offen sc1")
        for x in t:
            if first: vmem("p2", x)
            else: a(x)
    def woreads(tl):
        for ct in range(4):
            for hi in range(2):
                r = bo[16*tl+4*ct+2*hi:16*tl+4*ct+2*hi+2]
                a(f"ds_read_b64_tr_b16 {r}, {vTO[ct]} offset:{L_WO + 4096*tl + 2048*hi}")
    p2at = opt.get("p2at", 2)
    if p2at == 0: poll2(True)
    wait_vm("w2")
    a("s_barrier")
    for ct in range(4):
        for hi in range(2):
            a(f"ds_read_b64_tr_b16 {bw[4*ct+2*hi:4*ct+2*hi+2]}, {vTW[ct]} offset:{L_W2 + 2048*hi}")
    fo = pr[0:2]
    a(f"s_mov_b32 {sCnt}, 0\nv_mov_b32 {fo[1]}, {sTag[0]}\nv_lshlrev_b32 {xf}, 16, {xf}")
    for ct in range(4):
        a(f"s_waitcnt lgkmcnt({6 - 2*ct})")
        a(f"v_mfma_f32_16x16x32_bf16 {df[4*ct:4*ct+4]}, {af}, {bw[4*ct:4*ct+4]}, 0")
    if p2at == 1: poll2(True)
    wait_vm("wo0")
    if p2at == 2: poll2(True)
    a("s_barrier")
    woreads(0)
    if p2at == 3: poll2(True)
    wait_vm("wo1")
    stamp("wo")
    a("s_barrier")
    woreads(1)
    a("s_waitcnt vmcnt(0)")
    a("L_chk2:")
    wv = vT1; vC = bw[0]
    chk = [f"v_xor_b32 {vC}, {sTag[0]}, {pa[1]}"] + [f"v_bitop3_b32 {vC}, {r}, {sTag[0]}, {vC} {BOP}" for r in (pa[6], pa[9], pa[14], mlg[2])] + [f"v_cmp_ne_u32 vcc, 0, {vC}"]
    wchain = [f"v_max_f32_dpp {vT0}, {mlg[0]}, {mlg[0]} row_ror:1 {DPPM}"] + [f"v_max_f32_dpp {vT0}, {vT0}, {vT0} row_ror:{r} {DPPM}" for r in (2, 4, 8)]
    wchain += [f"v_sub_f32 {wv}, {mlg[0]}, {vT0}", f"v_exp_f32 {wv}, {wv}", f"v_mul_f32 {vT0}, {wv}, {mlg[1]}"]
    wchain += [f"v_add_f32_dpp {vT0}, {vT0}, {vT0} row_ror:{r} {DPPM}" for r in (1, 2, 4, 8)]
    wchain += [f"v_rcp_f32 {vT0}, {vT0}", f"v_mul_f32 {wv}, {wv}, {vT0}"]
    a("s_waitcnt lgkmcnt(8)")
    for tl in range(2):
        if tl:
            a("s_cbranch_vccnz L_retry2\nL_ok2:")
            stamp("ok2")
            a("s_waitcnt lgkmcnt(0)")
        for ct in range(4):
            a(f"v_mfma_f32_16x16x32_bf16 {dd[4*ct:4*ct+4]}, {pa[8*tl+2:8*tl+6]}, {bo[16*tl+4*ct:16*tl+4*ct+4]}, {dd[4*ct:4*ct+4] if tl else 0}")
            a(wchain.pop(0))
            if tl == 0:
                a(chk.pop(0))
                if ct >= 2: a(chk.pop(0))
            else:
                a(wchain.pop(0))
    for x in wchain: a(x)
    for r in range(4):
        for ct in range(4):
            a(f"v_fmac_f32_dpp {df[4*ct]}, {wv}, {dd[4*ct+r]} row_newbcast:{r} {DPPM}")
    a(f"""
    v_permlane32_swap_b32 {df[0]}, {df[8]}
    v_permlane32_swap_b32 {df[4]}, {df[12]}
    v_add_f32 {df[0]}, {df[0]}, {df[8]}
    v_add_f32 {df[4]}, {df[4]}, {df[12]}
    s_cmp_eq_u32 {sW}, 0
    v_permlane16_swap_b32 {df[0]}, {df[4]}
    v_add_f32 {fo[0]}, {df[0]}, {df[4]}
    buffer_store_dwordx2 {fo}, {vFS}, {SWS}, {oFS} offen sc1
    """)
    if stamps or probe:
        stamp("pub3", flush=True)
        a(f"s_cmp_eq_u32 {sW}, 0")
    if opt.get("wb"):
        a("s_cbranch_scc0 L_wb")
    else:
        a("s_cbranch_scc0 L_fin")
    fg = bo[0:8]
    a(f"s_mov_b32 {sCnt}, 0")
    if opt.get("p3delay", 1):
        a("s_waitcnt vmcnt(0)")
    a(f"""
    L_poll3:
    buffer_load_dwordx4 {fg[0:4]}, {vFG}, {SWS}, {oFG} offen sc1
    buffer_load_dwordx4 {fg[4:8]}, {vFG}, {SWS}, {oFG2} offen sc1
    s_add_u32 {sCnt}, {sCnt}, 1
    s_cmp_gt_u32 {sCnt}, 20000
    s_cbranch_scc1 L_ok3
    s_waitcnt vmcnt(0)
    s_mov_b64 exec, -1
    v_add_f32 {dd[0]}, {fg[0]}, {fg[4]}
    v_add_f32 {dd[1]}, {fg[2]}, {fg[6]}
    v_xor_b32 {vT0}, {sTag[0]}, {fg[1]}
    v_add_f32_dpp {dd[0]}, {dd[0]}, {dd[0]} row_ror:2 {DPPM}
    v_add_f32_dpp {dd[1]}, {dd[1]}, {dd[1]} row_ror:2 {DPPM}
    v_bitop3_b32 {vT0}, {fg[3]}, {sTag[0]}, {vT0} {BOP}
    v_add_f32_dpp {dd[0]}, {dd[0]}, {dd[0]} row_ror:4 {DPPM}
    v_add_f32_dpp {dd[1]}, {dd[1]}, {dd[1]} row_ror:4 {DPPM}
    v_bitop3_b32 {vT0}, {fg[5]}, {sTag[0]}, {vT0} {BOP}
    v_add_f32_dpp {dd[0]}, {dd[0]}, {dd[0]} row_ror:8 {DPPM}
    v_add_f32_dpp {dd[1]}, {dd[1]}, {dd[1]} row_ror:8 {DPPM}
    v_bitop3_b32 {vT0}, {fg[7]}, {sTag[0]}, {vT0} {BOP}
    v_cmp_ne_u32 vcc, 0, {vT0}
    v_permlane16_swap_b32 {dd[0]}, {dd[1]}
    v_add_f32 {dd[0]}, {dd[0]}, {dd[1]}
    v_mov_b32 {dd[1]}, {dd[0]}
    s_cbranch_vccnz L_retry3
    L_ok3:
    """)
    stamp("ok3", flush=True)
    a(f"""
    s_cmp_eq_u32 s2, 0
    v_permlane32_swap_b32 {dd[0]}, {dd[1]}
    v_add_f32 {dd[0]}, {dd[0]}, {dd[1]}
    v_add_f32 {dd[0]}, {dd[0]}, {xf}
    v_cvt_pk_bf16_f32 {dd[0]}, {dd[0]}, {dd[0]}
    s_mov_b32 exec_lo, 0x00030003
    s_mov_b32 exec_hi, 0
    buffer_store_short {dd[0]}, {vXF}, {SOUT}, {oXF} offen {opt.get('outpol', '')}
    s_cbranch_scc0 L_fin
    s_mov_b32 exec_lo, 1
    v_mov_b32 {vT0}, 0
    buffer_store_dword {fo[1]}, {vT0}, {SWS}, 0 offen {opt.get('outpol', '')}
    L_fin:
    """)
    if stamps:
        stamp("end", True)
        a("s_mov_b64 exec, -1")
        a(f"""
        s_getreg_b32 {sTmp}, hwreg(HW_REG_HW_ID)
        v_writelane_b32 {vST}, {sTmp}, 29
        v_writelane_b32 {vST}, {sXCC}, 30
        v_writelane_b32 {vST}, {sMix}, 31
        s_lshl_b32 {sTmp}, s2, 2
        s_add_u32 {sTmp}, {sTmp}, {sW}
        s_lshl_b32 {sTmp}, {sTmp}, 7
        s_add_u32 {sTmp}, {sTmp}, {STAMP}
        v_lshlrev_b32 {vT1}, 2, v0
        s_mov_b32 exec_lo, -1
        s_mov_b32 exec_hi, 0
        buffer_store_dword {vST}, {vT1}, {SWS}, {sTmp} offen
        """)
        out.insert(len(hdr), "; stamps: " + ",".join(names))
    if probe:
        stamp("end")
        a(f"""
        s_cmp_eq_u32 {sW}, {opt.get('pwave', 0)}
        s_cbranch_scc0 L_end
        s_load_dwordx2 s[8:9], s[0:1], 80
        s_mov_b32 s10, 256
        s_mov_b32 s11, 0x20000
        s_mov_b64 exec, 1
        s_waitcnt lgkmcnt(0)
        s_sub_u32 s4, 0, s100
        v_mov_b32 v2, s4
        v_mov_b32 v3, s98
        v_mov_b32 v4, 0
        buffer_atomic_umax v2, v4, s[8:11], 0 offen sc1
        buffer_atomic_umax v3, v4, s[8:11], 0 offen offset:128 sc1
        s_waitcnt vmcnt(0)
        L_hold0:
        s_memrealtime s[4:5]
        s_waitcnt lgkmcnt(0)
        s_sub_u32 s4, s4, s100
        s_cmp_lt_u32 s4, 2000
        s_cbranch_scc1 L_hold0
        buffer_load_dword v2, v4, s[8:11], 0 offen sc1
        buffer_load_dword v3, v4, s[8:11], 0 offen offset:128 sc1
        s_waitcnt vmcnt(0)
        v_readfirstlane_b32 s6, v2
        v_readfirstlane_b32 s98, v3
        s_add_u32 s98, s98, s6
        s_min_u32 s98, s98, 2000
        s_mul_i32 s98, s98, {opt.get('mult', 8)}
        s_add_u32 s98, s98, 2500
        L_hold1:
        s_memrealtime s[4:5]
        s_waitcnt lgkmcnt(0)
        s_sub_u32 s4, s4, s100
        s_cmp_lt_u32 s4, s98
        s_cbranch_scc1 L_hold1
        """)
    a("L_end:\ns_endpgm")
    if opt.get("wb"):
        a(f"""
        L_wb:
        s_cmp_eq_u32 {sW}, 1
        s_cbranch_scc0 L_fin
        s_cmp_lt_u32 {sJ}, {opt['wb']}
        s_cbranch_scc0 L_fin
        buffer_wbl2 sc1
        s_branch L_fin
        """)
    a("L_retry3:\ns_mov_b64 exec, vcc\ns_branch L_poll3")
    a(f"""
    L_retry1:
    s_add_u32 {sCnt}, {sCnt}, 1
    {'s_cmp_eq_u32 %s, 1' % sCnt if dual else ''}
    {'s_cbranch_scc1 L_useB' if dual else ''}
    s_cmp_gt_u32 {sCnt}, 20000
    s_cbranch_scc1 L_ok1
    s_cmp_eq_u32 {sCnt}, {opt.get('nplain', 12)}
    s_cbranch_scc0 L_r1b
    v_mov_b32 {vT0}, 1
    ds_write_b32 {vZ}, {vT0} offset:{L_MIX}
    ds_read_b128 {qg[0:4]}, {vL16} offset:{L_QSV}
    v_and_b32 {vT0}, 1, v0
    v_lshlrev_b32 {vT0}, 13, {vT0}
    v_lshrrev_b32 {vT1}, 1, v0
    v_lshl_add_u32 {vT0}, {vT1}, 4, {vT0}
    s_and_b32 {sTmp}, {oQS}, 0xffffff00
    s_add_u32 {sTmp}, {sTmp}, {SC1D}
    s_waitcnt lgkmcnt(0)
    v_xor_b32 {qg[0]}, {sXCC}, {qg[0]}
    s_mov_b32 exec_lo, -1
    s_mov_b32 exec_hi, 0
    buffer_store_dwordx4 {qg[0:4]}, {vT0}, {SWS}, {sTmp} offen sc1
    s_mov_b64 exec, -1
    s_mov_b32 {sTP}, {sTag[0]}
    s_add_u32 {oQG}, {oQG}, {SC1D}
    s_nop 1
    L_r1b:
    """)
    poll1(False)
    a("s_waitcnt vmcnt(0)\ns_branch L_chk1")
    if dual:
        a(f"L_useB:\ns_waitcnt vmcnt({nB})")
        for k in range(8):
            a(f"v_mov_b32 {qg[k]}, {qg2[k]}")
        a("s_branch L_chk1")
    a(f"""
    L_mixed:
    s_mov_b32 {sTP}, {sTag[0]}
    s_add_u32 {oHG}, {oHG}, {SC1D}
    s_add_u32 {oHS}, {oHS}, {SC1D}
    s_mov_b32 exec_lo, 0x01010101
    s_mov_b32 exec_hi, 0x01010101
    v_xor_b32 {dh[0]}, {sXCC}, {dh[0]}
    buffer_store_dwordx4 {dh}, {vHS}, {SWS}, {oHS} offen sc1
    s_waitcnt vmcnt(0)
    s_mov_b64 exec, -1
    s_branch L_mixback
    L_retryh:
    s_add_u32 {sCnt}, {sCnt}, 1
    s_cmp_gt_u32 {sCnt}, 20000
    s_cbranch_scc1 L_okh
    buffer_load_dwordx4 {hg}, {vHG}, {SWS}, {oHG} offen sc1
    s_waitcnt vmcnt(0)
    s_branch L_chkh
    L_mlmix:
    buffer_store_dwordx4 {mlr}, {vT0}, {SWS}, {oML} offen sc1
    s_branch L_mlback
    L_psmix:
    buffer_store_dwordx4 {pr}, {vPS}, {SWS}, {oPS} offen sc1
    s_branch L_psback
    L_retry2:
    s_add_u32 {sCnt}, {sCnt}, 1
    s_cmp_gt_u32 {sCnt}, 20000
    s_cbranch_scc1 L_ok2
    {'s_mov_b64 exec, vcc' if opt.get('sticky', 1) else ''}
    """)
    poll2(False)
    a("s_waitcnt vmcnt(0)\ns_mov_b64 exec, -1\ns_nop 3\ns_branch L_chk2")
    a("L_codeend:")
    nv = (v.hw + 7) // 8 * 8
    out.append(a.text())
    out.append(f""".section .rodata,"a"
.p2align 6
.amdhsa_kernel {NAME}_kernel
  .amdhsa_next_free_vgpr {nv}
  .amdhsa_next_free_sgpr 102
  .amdhsa_accum_offset {nv}
  .amdhsa_group_segment_fixed_size 0
  .amdhsa_kernarg_size 96
  .amdhsa_user_sgpr_count 2
  .amdhsa_user_sgpr_kernarg_segment_ptr 1
  .amdhsa_system_sgpr_workgroup_id_x 1
.end_amdhsa_kernel""")
    sys.stderr.write("vgprs %d sgprs %d nops %d\n" % (v.hw, s.hw, a.nops))
    return "\n".join(out) + "\n"

if __name__ == "__main__":
    import json
    opt = json.loads(sys.argv[2]) if len(sys.argv) > 2 else {}
    open(sys.argv[1], "w").write(gen(opt))
```

```python
import sys
from asmlib import *

NAME = "parallel_sum__sliding_block_cached__dense_activation_mish__decode"
PHI = 0x9E3779B9
QBUF = 0x40000; HBUF = 0x80000; SC1D = 0x20000; MLB = 0xC0000; DBB = 0xC8000; PART = 0x100000; FIN = 0x180000; STAMP = 0x800000
L_XN = 0; L_Q = 4096; L_MX = 5632; L_MIX = 5760; L_QSV = 5888; L_WQ = 8192; L_W1 = 24576; L_W2 = 32768; L_WO = 40960; L_V = 57344; L_K = 90112; LDS_BYTES = 122880
QSTR = 320
DPPM = "row_mask:0xf bank_mask:0xf"
BOP = "bitop3:0xbe"

def lines(text):
    return [l.strip() for l in text.strip().split("\n") if l.strip() and not l.strip().startswith(";")]

KVMAP = {
    "p4": (4, 128, [64 * (n >> 2) + (n & 3) for n in range(8)]),
    "p4i": (4, 1, [64 * n for n in range(8)]),
    "p1i": (1, 16, [64 * n for n in range(8)]),
    "p2": (2, 128, [32 * (n >> 1) + (n & 1) for n in range(8)]),
    "p2i": (2, 32, [128 * (n >> 1) + (n & 1) for n in range(8)]),
    "p8i": (8, 2, [128 * (n >> 1) + (n & 1) for n in range(8)]),
    "p1": (1, 128, [16 * n for n in range(8)]),
}
def gen(opt):
    KS, KW, KH_ = KVMAP[opt.get("kv", "p4")]
    nt = opt.get("nt", {k: "nt" for k in ("wq", "w1", "k", "v", "wo", "w2")})
    def pol(k): return nt.get(k, "")
    stamps = opt.get("stamps", False)
    a = Asm()
    v = Alloc("v", 1, 256); s = Alloc("s", 44, 102)
    hdr = open("cdna_kernels/%s.s.ref" % NAME).read().split("\n")
    hdr = [l for l in hdr if l.startswith(";") and "@launch" not in l and "Override" not in l and "grid=ceil" not in l]
    out = list(hdr)
    out.append("; @launch grid=(256,1,1) block=(256,1,1) lds=%d" % LDS_BYTES)
    out.append('.amdgcn_target "amdgcn-amd-amdhsa--gfx950"')
    out.append(".text\n.globl %s_kernel\n" % NAME + (".p2align 12\n" if opt.get("al", 1) else "") + ".p2align 8\n.type %s_kernel,@function\n%s_kernel:" % (NAME, NAME))
    SX, SK, SV, SWQ, SWO, SW1, SB1, SW2, SOUT, SWS = [Reg("s", 4 + 4 * i, 4) for i in range(10)]
    vm = []
    def vmem(name, text):
        a(text); vm.append(name)
    def wait_vm(name, allow=0):
        idx = max(i for i, n in enumerate(vm) if n == name) - allow
        n = len(vm) - 1 - idx
        a("s_waitcnt vmcnt(%d)" % n)
    def weave(fill, jobs, every, start=0):
        k = -start
        for ins in fill:
            a(ins); k += 1
            if jobs and k >= every:
                jobs.pop(0)(); k = 0
    nst = [0, 0]
    names = []
    NR = 4
    if stamps:
        sST = [s.get(2, 2) for _ in range(NR)]; vST = v.get()
    probe = opt.get("probe")
    def stamp(name, last=False, flush=False):
        if probe and name == "start": a("s_memrealtime s[100:101]")
        if probe and name == probe: a("s_memrealtime s[98:99]")
        if stamps:
            k = nst[0]; nst[0] += 1; names.append(name)
            assert k < 29
            done = nst[1]
            if k - done >= NR:
                a("v_writelane_b32 %s, %s, %d" % (vST, sST[done % NR][0], done)); done += 1
            a("s_memrealtime %s" % sST[k % NR])
            if last or flush:
                a("s_waitcnt lgkmcnt(0)")
                while done <= k:
                    a("v_writelane_b32 %s, %s, %d" % (vST, sST[done % NR][0], done)); done += 1
            nst[1] = done
    stamp("start")
    a(f"""
    s_load_dwordx2 {SX[0:2]}, s[0:1], 0
    s_load_dwordx2 {SWQ[0:2]}, s[0:1], 24
    s_load_dwordx2 {SW1[0:2]}, s[0:1], 48
    s_load_dwordx2 {SK[0:2]}, s[0:1], 8
    s_load_dwordx2 {SWS[0:2]}, s[0:1], 88
    s_load_dwordx2 {SV[0:2]}, s[0:1], 16
    s_cmp_ge_u32 s2, 256
    s_cbranch_scc1 L_end
    """)
    if opt.get("vpf", 1):
        vP = v.get(2, 2); sPF = s.get(2, 2)
        a(f"""
        s_getpc_b64 {sPF}
        L_pc:
        s_lshr_b32 s3, s2, 1
        s_and_b32 s3, s3, 0x7c
        v_lshrrev_b32 {vP[0]}, 6, v0
        v_add_u32 {vP[0]}, s3, {vP[0]}
        v_lshlrev_b32 {vP[0]}, 6, {vP[0]}
        v_min_u32 {vP[0]}, L_codeend-L_pc-4, {vP[0]}
        """)
        vmem("pf", f"global_load_dword {vP[1]}, {vP[0]}, {sPF}")
    sW, sG, sJ, sA, sC, sT, sBLK, sTmp, sTmp2 = [s.get() for _ in range(9)]
    oXO, oWQ, oW1, oKV, oK, oW2 = [s.get() for _ in range(6)]
    sM = s.get()
    DBPRE = ""
    if opt.get("ndb", 0):
        oDB0 = s.get()
        DBPRE = f"""s_mov_b32 {SWS[2]}, 0x10000000
        s_mov_b32 {SWS[3]}, 0x20000
        s_lshl_b32 {sTmp}, {sJ}, 2
        s_add_u32 {sTmp}, {sTmp}, {sW}
        s_and_b32 {sTmp}, {sTmp}, 7
        s_lshl_b32 {sTmp2}, {sG}, 3
        s_add_u32 {sTmp}, {sTmp}, {sTmp2}
        s_lshl_b32 {sTmp}, {sTmp}, 7
        s_add_u32 {oDB0}, {sTmp}, {DBB}"""
    vGQ, vI, vT0, vT1 = [v.get() for _ in range(4)]
    vL16, vB3, vXO, vWQe, vWQo, vW1e, vW1o = [v.get() for _ in range(7)]
    vK = v.get(4)
    a(f"""
    v_readfirstlane_b32 {sW}, v0
    v_and_b32 v0, 63, v0
    s_and_b32 {sG}, s2, 7
    {'s_xor_b32 %s, %s, %d' % (sG, sG, opt['gxor']) if opt.get('gxor') else ''}
    s_lshr_b32 {sJ}, s2, 3
    s_lshr_b32 {sW}, {sW}, 6
    s_lshr_b32 {sA}, {sJ}, 3
    s_and_b32 {sC}, {sJ}, 7
    v_lshrrev_b32 {vGQ}, 4, v0
    v_and_b32 {vI}, 15, v0
    s_mov_b32 {SX[2]}, 2048
    s_mov_b32 {SX[3]}, 0x20000
    s_mov_b32 {SWQ[2]}, {512*4096*2}
    s_mov_b32 {SWQ[3]}, 0x20000
    v_lshlrev_b32 {vL16}, 4, v0
    v_bfe_u32 {vB3}, v0, 3, 1
    v_lshlrev_b32 {vT0}, 10, {vB3}
    v_lshl_add_u32 {vXO}, {vGQ}, 4, {vT0}
    v_and_b32 {vT0}, 1, {vGQ}
    v_lshlrev_b32 {vT0}, 1, {vT0}
    v_and_b32 {vT1}, 7, v0
    v_xor_b32 {vT0}, {vT0}, {vT1}
    v_lshlrev_b32 {vT0}, 4, {vT0}
    v_lshrrev_b32 {vT1}, 3, v0
    v_lshl_add_u32 {vWQe}, {vT1}, 13, {vT0}
    v_xor_b32 {vWQo}, 64, {vWQe}
    s_and_b32 {sTmp}, {sC}, 1
    s_lshl_b32 {sTmp2}, {sTmp}, 1
    s_xor_b32 {sTmp2}, {sTmp2}, {sW}
    s_lshl_b32 {sTmp2}, {sTmp2}, 5
    s_lshl_b32 {oXO}, {sA}, 7
    s_add_u32 {sTmp2}, {sTmp2}, {oXO}
    s_lshl_b32 {oWQ}, {sTmp2}, 13
    s_lshl_b32 {sM}, {sG}, 10
    s_add_u32 {oWQ}, {oWQ}, {sM}
    s_xor_b32 {sM}, {sC}, {opt.get('cqx', 1)}
    s_lshl_b32 {sM}, {sM}, 7
    s_add_u32 {oWQ}, {oWQ}, {sM}
    s_lshl_b32 {oXO}, {sTmp2}, 1
    s_lshl_b32 {sM}, {sW}, 12
    s_add_u32 m0, {sM}, {L_WQ}
    {DBPRE}
    s_waitcnt lgkmcnt(0)
    """)
    stamp("karg")
    xs = v.get(8, 2); xo = v.get(4, 2)
    kk = v.get(32, 2)
    sE = sPF if opt.get('vpf', 1) else s.get(2, 2)
    vmem("xs", f"buffer_load_dwordx4 {xs[0:4]}, {vL16}, {SX}, 0 offen")
    vmem("xs", f"buffer_load_dwordx4 {xs[4:8]}, {vL16}, {SX}, 0 offen offset:1024")
    vmem("xo", f"buffer_load_dwordx4 {xo}, {vXO}, {SX}, {oXO} offen")
    for k in range(4):
        vmem("wq", f"buffer_load_dwordx4 {vWQo if k & 1 else vWQe}, {SWQ}, {oWQ} offen {pol('wq')} lds")
        if k < 3:
            a(f"s_add_u32 m0, m0, 1024\ns_add_u32 {oWQ}, {oWQ}, 65536")
    NDB = opt.get("ndb", 0)
    if NDB:
        vDB = v.get(); oDB = oDB0
        vDum = v.get()
        vmem("dbpw", f"buffer_load_dword {vDum}, off, {SWS}, {oDB} sc1")
    stamp("iss1")
    if opt.get("codepf"):
        sPC = s.get(2, 2)
        a(f"""
        s_getpc_b64 {sPC}
        s_lshl_b32 {sTmp}, {sJ}, 2
        s_add_u32 {sTmp}, {sTmp}, {sW}
        s_min_u32 {sTmp}, {sTmp}, {opt['codepf']}
        s_lshl_b32 {sTmp}, {sTmp}, 7
        s_load_dword {sE[1]}, {sPC}, {sTmp}
        """)
    vWO, vTQ = [v.get() for _ in range(2)]
    vV = v.get(2)
    vKR = v.get(4); vTW = v.get(4); vTV = v.get(2); vFF = v.get(); vZ = v.get(); vSV = v.get()
    sHi = s.get()
    sB, sKH, sBA, sS, sC2 = [s.get() for _ in range(5)]
    oB1, oXF = oXO, oWQ
    vB1, vXF, vPRE, vF = v.get(), v.get(), v.get(), vXO
    oQS, oHS, oQG, oHG, oML, oPS, oV, oWO = [s.get() for _ in range(8)]
    vQS, vHS, vQG, vHG = [v.get() for _ in range(4)]
    vQW, vQR, vMX, vMR, vPW = [v.get() for _ in range(5)]
    vPS, vMLG, vFS, vFG = [v.get() for _ in range(4)]
    vPA = vL16
    oPA, oMLG, oFS, oFG, oFG2 = [s.get() for _ in range(5)]
    sB3 = s.get(2, 2)
    A = lines(f"""
    s_load_dwordx2 {SW2[0:2]}, s[0:1], 64
    s_load_dwordx2 {SWO[0:2]}, s[0:1], 32
    s_load_dwordx2 {SB1[0:2]}, s[0:1], 56
    s_load_dwordx2 {SOUT[0:2]}, s[0:1], 72
    s_mov_b32 {SK[2]}, {2*8*8192*256}
    s_mov_b32 {SK[3]}, 0x20000
    s_lshr_b32 {sBA}, {sJ}, 4
    s_and_b32 {sS}, {sJ}, 15
    s_lshl_b32 {sTmp}, {sBA}, 3
    s_add_u32 {sTmp}, {sTmp}, {sG}
    s_lshl_b32 {oKV}, {sTmp}, 21
    s_mul_i32 {sTmp}, {sS}, {KS * 1024}
    s_add_u32 {oKV}, {oKV}, {sTmp}
    s_add_u32 {oKV}, {oKV}, {6144*256}
    s_mul_i32 {oK}, {sW}, {KW * 1024}
    s_add_u32 {oK}, {oK}, {oKV}
    s_lshl_b32 {sTmp}, {sW}, 13
    s_lshl_b32 {sM}, {sW}, 11
    v_xor_b32 {vT0}, {vI}, {vGQ}
    v_lshlrev_b32 {vT0}, 4, {vT0}
    v_lshl_add_u32 {vK[0]}, {vGQ}, 8, {vT0}
    v_xor_b32 {vK[1]}, 64, {vK[0]}
    v_xor_b32 {vK[2]}, 0x80, {vK[0]}
    v_xor_b32 {vK[3]}, 0xc0, {vK[0]}
    v_lshl_add_u32 {vT0}, {vI}, 8, {vT0}
    s_add_u32 {sTmp}, {sTmp}, {L_K}
    v_add_u32 {vKR[0]}, {sTmp}, {vT0}
    s_mov_b32 {SWS[2]}, 0x10000000
    s_mov_b32 {SWS[3]}, 0x20000
    s_mov_b32 {sHi}, 0xffff0000
    s_mov_b32 {sB3[0]}, 0xff00ff00
    s_mov_b32 {sB3[1]}, 0xff00ff00
    v_mov_b32 {vFF}, 0xff
    v_mov_b32 {vZ}, 0
    v_lshlrev_b32 {vSV}, 1, v0
    s_lshl_b32 {sTmp}, {sW}, 7
    v_add_u32 {vSV}, {sTmp}, {vSV}
    s_lshl_b32 {sTmp}, {sW}, 10
    v_add_u32 {vPW}, {sTmp}, {vL16}
    s_and_b32 {sB}, {sW}, 1
    s_lshr_b32 {sKH}, {sW}, 1
    v_and_b32 {vT0}, 1, {vGQ}
    v_lshlrev_b32 {vF}, 1, {vT0}
    v_or_b32 {vF}, {vF}, {vB3}
    v_and_b32 {vT1}, 3, v0
    v_lshlrev_b32 {vT1}, 3, {vT1}
    v_lshrrev_b32 {vT0}, 2, {vI}
    v_lshl_add_u32 {vTQ}, {vGQ}, 3, {vT0}
    v_lshl_add_u32 {vTQ}, {vTQ}, 7, {vT1}
    v_xor_b32 {vTV[0]}, {sW}, {vF}
    v_lshl_add_u32 {vTQ}, {vTV[0]}, 5, {vTQ}
    v_lshl_add_u32 {vT0}, {vGQ}, 2, {vT0}
    v_lshl_add_u32 {vTW[0]}, {vT0}, 7, {vT1}
    v_lshl_add_u32 {vTW[0]}, {vF}, 5, {vTW[0]}
    v_lshl_add_u32 {vTV[1]}, {vT0}, 8, {vT1}
    v_and_b32 {vTV[0]}, 7, {vT0}
    v_lshlrev_b32 {vT0}, 4, {vGQ}
    v_lshl_add_u32 {vQS}, {vB3}, 13, {vT0}
    v_lshlrev_b32 {vHS}, 7, {vGQ}
    v_lshl_add_u32 {vHS}, {vB3}, 11, {vHS}
    s_lshl_b32 {oQG}, {sG}, 14
    s_add_u32 {oQG}, {oQG}, {QBUF}
    s_lshl_b32 {sTmp}, {sA}, 11
    s_add_u32 {oQS}, {oQG}, {sTmp}
    s_xor_b32 {sTmp}, {sC}, {opt.get('cqx', 1)}
    s_lshl_b32 {sTmp}, {sTmp}, 8
    s_add_u32 {oQS}, {oQS}, {sTmp}
    s_lshl_b32 {sTmp2}, {sW}, 6
    s_add_u32 {oQS}, {oQS}, {sTmp2}
    s_lshl_b32 {sTmp}, {sW}, 9
    s_add_u32 {oQG}, {oQG}, {sTmp}
    """)
    B = lines(f"""
    s_lshr_b32 {sT}, {sC}, 1
    s_sub_u32 {sT}, {sT}, {sA}
    s_and_b32 {sT}, {sT}, 3
    s_mul_i32 {sBLK}, {sG}, 7
    s_add_u32 {sBLK}, {sBLK}, 1
    s_lshr_b32 {sBLK}, {sBLK}, 1
    s_add_u32 {sBLK}, {sBLK}, {sT}
    s_and_b32 {sTmp2}, {sG}, 1
    s_add_u32 {sTmp2}, {sTmp2}, {sT}
    s_cmp_eq_u32 {sTmp2}, 4
    s_cselect_b32 {sBLK}, 0x4000, {sBLK}
    s_lshl_b32 {sTmp}, {sA}, 1
    s_and_b32 {sTmp2}, {sC}, 1
    s_add_u32 {sTmp}, {sTmp}, {sTmp2}
    s_lshl_b32 {oW1}, {sTmp}, 2
    s_add_u32 {oW1}, {oW1}, {sW}
    s_mul_i32 {oW1}, {oW1}, {16*3584}
    s_lshl_b32 {sTmp2}, {sBLK}, 7
    s_add_u32 {oW1}, {oW1}, {sTmp2}
    s_mov_b32 {SW1[2]}, {512*1792*2}
    s_mov_b32 {SW1[3]}, 0x20000
    v_lshrrev_b32 {vT1}, 3, v0
    v_mul_u32_u24 {vW1e}, 3584, {vT1}
    v_and_b32 {vT0}, 0x7f, {vWQe}
    v_add_u32 {vW1e}, {vW1e}, {vT0}
    v_xor_b32 {vW1o}, 64, {vW1e}
    s_lshl_b32 {oHG}, {sG}, 2
    s_add_u32 {oWO}, {oHG}, {sA}
    s_add_u32 {oHG}, {oHG}, {sT}
    s_lshl_b32 {oHG}, {oHG}, 12
    s_add_u32 {oHG}, {oHG}, {HBUF}
    s_lshl_b32 {sTmp}, {sTmp}, 4
    s_add_u32 {oHS}, {oHG}, {sTmp}
    s_lshl_b32 {sTmp}, {sW}, 9
    s_add_u32 {oHS}, {oHS}, {sTmp}
    s_mov_b32 {SW2[2]}, {512*1792*2}
    s_mov_b32 {SW2[3]}, 0x20000
    s_mov_b32 {SV[2]}, {2*8*8192*256}
    s_mov_b32 {SV[3]}, 0x20000
    s_mov_b32 {SB1[2]}, 3584
    s_mov_b32 {SB1[3]}, 0x20000
    s_lshl_b32 {sC2}, {sKH}, {2 if opt.get('crot', 1) else 8}
    s_xor_b32 {sC2}, {sC2}, {sC}
    s_and_b32 {sC2}, {sC2}, 7
    s_lshl_b32 {oW2}, {sBLK}, 2
    s_add_u32 {oW2}, {oW2}, {sW}
    s_lshl_b32 {oW2}, {oW2}, 14
    s_lshl_b32 {sTmp}, {sC2}, 7
    s_add_u32 {oW2}, {oW2}, {sTmp}
    v_lshlrev_b32 {vT0}, 1, {vGQ}
    v_and_b32 {vT1}, 7, v0
    v_xor_b32 {vT0}, {vT0}, {vT1}
    v_lshlrev_b32 {vT0}, 4, {vT0}
    v_lshrrev_b32 {vWO}, 3, v0
    v_lshl_add_u32 {vWO}, {vWO}, 10, {vT0}
    v_lshlrev_b32 {vT0}, 4, {vGQ}
    v_lshl_add_u32 {vT0}, {vB3}, 6, {vT0}
    v_lshlrev_b32 {vHG}, 4, {vT1}
    v_lshl_add_u32 {vHG}, {vT0}, 3, {vHG}
    v_lshrrev_b32 {vB1}, 1, {vT0}
    v_and_b32 {vT1}, 1, v0
    v_lshl_add_u32 {vB1}, {vT1}, 2, {vB1}
    v_and_b32 {vT0}, 2, v0
    v_add_u32 {vB1}, {vB1}, {vT0}
    v_and_b32 {vT0}, 1, {vGQ}
    v_lshlrev_b32 {vXF}, 1, {vT0}
    v_lshl_add_u32 {vXF}, {vT1}, 2, {vXF}
    v_lshlrev_b32 {vT0}, 1, {vGQ}
    v_xor_b32 {vT0}, {vT0}, {vI}
    v_lshlrev_b32 {vT0}, 4, {vT0}
    v_lshl_add_u32 {vV[0]}, {vGQ}, 8, {vT0}
    v_xor_b32 {vV[1]}, 0x80, {vV[0]}
    s_mul_i32 {oV}, {sKH}, {KH_[4] * 1024}
    s_add_u32 {oV}, {oV}, {oKV}
    s_mul_i32 {sTmp}, {sB}, {KH_[2] * 1024}
    s_add_u32 {oV}, {oV}, {sTmp}
    v_lshrrev_b32 {vFG}, 1, v0
    v_lshlrev_b32 {vFG}, 7, {vFG}
    v_lshl_add_u32 {vFG}, {vT1}, 4, {vFG}
    v_lshrrev_b32 {vT0}, 5, v0
    v_and_b32 {vT1}, 31, v0
    v_lshlrev_b32 {vQG}, 12, {vT0}
    v_lshl_add_u32 {vQG}, {vT1}, 4, {vQG}
    v_lshlrev_b32 {vQW}, 2, {vT0}
    v_lshl_add_u32 {vQW}, {vT1}, 3, {vQW}
    s_lshl_b32 {oB1}, {sBLK}, 7
    s_lshl_b32 {sTmp}, {sKH}, 6
    s_add_u32 {oB1}, {oB1}, {sTmp}
    s_lshl_b32 {oXF}, {sBA}, 10
    s_lshl_b32 {sTmp}, {sG}, 7
    s_add_u32 {oXF}, {oXF}, {sTmp}
    s_lshl_b32 {sTmp}, {sS}, 3
    s_add_u32 {oXF}, {oXF}, {sTmp}
    s_lshl_b32 {sTmp}, {sBA}, 13
    s_add_u32 {oQG}, {oQG}, {sTmp}
    s_lshl_b32 {sTmp}, {sB}, 11
    s_add_u32 {oHG}, {oHG}, {sTmp}
    s_lshl_b32 {sTmp}, {sKH}, 10
    s_add_u32 {oHG}, {oHG}, {sTmp}
    """)
    prewarm = opt.get("prewarm", 1)
    if prewarm:
        B += lines(f"""
        s_lshl_b32 {sTmp}, {sJ}, 2
        s_add_u32 {sTmp}, {sTmp}, {sW}
        s_lshl_b32 {sTmp2}, {sG}, 7
        s_add_u32 {sTmp2}, {sTmp2}, {sTmp}
        s_lshl_b32 {sTmp2}, {sTmp2}, 9
        s_add_u32 {sTmp2}, {sTmp2}, {PART}
        v_lshlrev_b32 {vPRE}, 7, v0
        v_add_u32 {vPRE}, {sTmp2}, {vPRE}
        s_and_b32 {sTmp}, {sTmp}, 15
        s_lshl_b32 {sTmp2}, {sG}, 4
        s_add_u32 {sTmp}, {sTmp}, {sTmp2}
        s_lshl_b32 {sTmp}, {sTmp}, 7
        s_add_u32 {sTmp}, {sTmp}, {MLB}
        v_writelane_b32 {vPRE}, {sTmp}, 4
        s_and_b32 {sTmp}, {oHS}, 0xfffff000
        s_lshl_b32 {sTmp2}, {sC}, 2
        s_add_u32 {sTmp2}, {sTmp2}, {sW}
        s_lshl_b32 {sTmp2}, {sTmp2}, 7
        s_add_u32 {sTmp}, {sTmp}, {sTmp2}
        v_writelane_b32 {vPRE}, {sTmp}, 5
        """)
    sU = sTmp2
    oWO2 = sBLK
    C = lines(f"""
    s_mov_b32 {SWO[2]}, {4096*512*2}
    s_mov_b32 {SWO[3]}, 0x20000
    s_mov_b32 {SOUT[2]}, 2048
    s_mov_b32 {SOUT[3]}, 0x20000
    v_xor_b32 {vKR[1]}, 64, {vKR[0]}
    v_xor_b32 {vKR[2]}, 0x80, {vKR[0]}
    v_xor_b32 {vKR[3]}, 0xc0, {vKR[0]}
    v_and_b32 {vT1}, 3, v0
    v_mul_u32_u24 {vQR}, {QSTR}, {vT1}
    v_lshl_add_u32 {vQR}, {vGQ}, 4, {vQR}
    v_lshlrev_b32 {vMR}, 4, {vT1}
    v_lshlrev_b32 {vPS}, 13, {vT1}
    v_lshl_add_u32 {vPS}, {vGQ}, 8, {vPS}
    v_bfe_u32 {vT0}, v0, 2, 1
    v_lshl_add_u32 {vPS}, {vT0}, 10, {vPS}
    s_lshl_b32 {sU}, {sW}, 2
    v_add_u32 {vMX}, {sU}, {vMR}
    s_lshl_b32 {sU}, {sKH}, 12
    v_add_u32 {vTW[0]}, {sU}, {vTW[0]}
    v_xor_b32 {vTW[1]}, 32, {vTW[0]}
    v_xor_b32 {vTW[2]}, 64, {vTW[0]}
    v_xor_b32 {vTW[3]}, 0x60, {vTW[0]}
    s_lshl_b32 {sU}, {sW}, 1
    v_xor_b32 {vTV[0]}, {sU}, {vTV[0]}
    v_lshl_add_u32 {vTV[0]}, {vTV[0]}, 5, {vTV[1]}
    v_add_u32 {vTV[0]}, {L_V}, {vTV[0]}
    v_xor_b32 {vTV[1]}, 32, {vTV[0]}
    s_mul_i32 {sU}, {sW}, {QSTR}
    v_add_u32 {vQW}, {sU}, {vQW}
    v_lshl_add_u32 {vMLG}, {vGQ}, 2, {vI}
    v_and_b32 {vMLG}, 15, {vMLG}
    v_lshlrev_b32 {vMLG}, 4, {vMLG}
    v_lshlrev_b32 {vFS}, 3, {vI}
    v_lshl_add_u32 {vFS}, {vGQ}, 13, {vFS}
    s_lshl_b32 {oFS}, {oWO}, 1
    s_add_u32 {oFS}, {oFS}, {sKH}
    s_lshl_b32 {oFS}, {oFS}, 7
    s_lshl_b32 {sU}, {sC2}, 1
    s_add_u32 {sU}, {sU}, {sB}
    s_lshl_b32 {sU}, {sU}, 15
    s_add_u32 {oFS}, {oFS}, {sU}
    s_add_u32 {oFS}, {oFS}, {FIN}
    s_lshl_b32 {oWO}, {oWO}, 4
    s_add_u32 {oWO}, {oWO}, {sW}
    s_lshl_b32 {oWO}, {oWO}, 13
    s_xor_b32 {sU}, {sC}, 4
    s_lshl_b32 {sU}, {sU}, 7
    s_add_u32 {oWO2}, {oWO}, {sU}
    s_add_u32 {oWO2}, {oWO2}, 65536
    s_lshl_b32 {sU}, {sC}, 7
    s_add_u32 {oWO}, {oWO}, {sU}
    s_lshl_b32 {oPS}, {sG}, 1
    s_add_u32 {oPS}, {oPS}, {sBA}
    s_lshl_b32 {oML}, {oPS}, 2
    s_add_u32 {oML}, {oML}, {sW}
    s_lshl_b32 {oML}, {oML}, 8
    s_lshl_b32 {sU}, {sS}, 4
    s_add_u32 {oML}, {oML}, {sU}
    s_add_u32 {oML}, {oML}, {MLB}
    s_lshl_b32 {oPS}, {oPS}, 15
    s_add_u32 {oPS}, {oPS}, {sU}
    s_lshl_b32 {sU}, {sW}, 11
    s_add_u32 {oPS}, {oPS}, {sU}
    s_add_u32 {oPS}, {oPS}, {PART}
    s_lshl_b32 {oPA}, {sG}, 1
    s_add_u32 {oPA}, {oPA}, {sB}
    s_lshl_b32 {oPA}, {oPA}, 2
    s_add_u32 {oPA}, {oPA}, {sA}
    s_lshl_b32 {oMLG}, {oPA}, 8
    s_add_u32 {oMLG}, {oMLG}, {MLB}
    s_lshl_b32 {oPA}, {oPA}, 13
    s_lshl_b32 {sU}, {sKH}, 12
    s_add_u32 {oPA}, {oPA}, {sU}
    s_add_u32 {oPA}, {oPA}, {PART}
    s_lshl_b32 {oFG}, {sG}, 3
    s_lshr_b32 {sU}, {sJ}, 2
    s_add_u32 {oFG}, {oFG}, {sU}
    s_lshl_b32 {oFG}, {oFG}, 13
    s_and_b32 {sU}, {sJ}, 3
    s_lshl_b32 {sU}, {sU}, 5
    s_add_u32 {oFG}, {oFG}, {sU}
    s_add_u32 {oFG}, {oFG}, {FIN}
    s_add_u32 {oFG2}, {oFG}, 4096
    """)
    def kjob(idx):
        def f():
            a(f"s_lshl2_add_u32 m0, {sM}, {L_K + 1024 * idx}\ns_add_u32 {oK}, {oK}, {1024 * (KH_[idx] - KH_[idx - 1]) if idx else 0}")
            vmem("k", f"buffer_load_dwordx4 {vK[idx & 3]}, {SK}, {oK} offen {pol('k')} lds")
        return f
    NKA = opt.get("nka", 0)
    NKP = opt.get("nkp", 6)
    b1r = v.get(); xf = v.get()
    def w2job(n):
        def f():
            if n == 0: a(f"s_add_u32 m0, {sM}, {L_W2}\ns_nop 0")
            else: a(f"s_add_u32 m0, {sM}, {L_W2 + 1024}\ns_add_u32 {oW2}, {oW2}, 8192")
            vmem("w2", f"buffer_load_dwordx4 {vWO}, {SW2}, {oW2} offen {pol('w2')} lds")
        return f
    def smalljob():
        vmem("b1", f"buffer_load_ushort {b1r}, {vB1}, {SB1}, {oB1} offen")
        vmem("xf", f"buffer_load_ushort {xf}, {vXF}, {SX}, {oXF} offen")
        if prewarm:
            a("s_mov_b32 exec_lo, %d\ns_mov_b32 exec_hi, 0" % (31 if opt.get("qpw", 1) else 63))
            vmem("pre", f"buffer_load_dword {vPRE}, {vPRE}, {SWS}, 0 offen sc1")
            a("s_mov_b64 exec, -1")
    def w1job(n):
        def f():
            if n == 0: a(f"s_add_u32 m0, {sM}, {L_W1}\ns_nop 0")
            else: a(f"s_add_u32 m0, {sM}, {L_W1 + 1024}\ns_add_u32 {oW1}, {oW1}, 28672")
            vmem("w1", f"buffer_load_dwordx4 {vW1o if n else vW1e}, {SW1}, {oW1} offen {pol('w1')} lds")
        return f
    kw = opt.get("kw1", 2)
    alljobs = [kjob(i) for i in range(kw)] + [w1job(0), w1job(1)] + [kjob(i) for i in range(kw, 8)]
    kj = alljobs[:NKP]; later = alljobs[NKP:]
    for x in A[:27]: a(x)
    tch = opt.get("touch", "")
    if tch:
        a(f"""
        s_lshl_b32 {sTmp2}, {sG}, 2
        s_add_u32 {sTmp2}, {sTmp2}, {sA}
        s_lshl_b32 {sTmp2}, {sTmp2}, 17
        s_waitcnt lgkmcnt(0)
        """)
        if tch == "s":
            a(f"""
            s_load_dword {sE[1]}, {SK[0:2]}, {oK}
            s_load_dword {sE[1]}, {SV[0:2]}, {oK}
            s_load_dword {sE[1]}, {SWO[0:2]}, {sTmp2}
            s_load_dword {sE[1]}, {SW1[0:2]}, 0
            s_load_dword {sE[1]}, {SW2[0:2]}, 0
            s_load_dword {sE[1]}, {SB1[0:2]}, 0
            s_load_dword {sE[1]}, {SOUT[0:2]}, 0
            """)
        else:
            vD = v.get(2)
            a(f"v_mov_b32 {vD[0]}, {oK}")
            vmem("t", f"global_load_dword {vD[1]}, {vD[0]}, {SV[0:2]}")
            a(f"v_mov_b32 {vD[0]}, {sTmp2}")
            vmem("t", f"global_load_dword {vD[1]}, {vD[0]}, {SWO[0:2]}")
            a(f"v_mov_b32 {vD[0]}, 0")
            vmem("t", f"global_load_dword {vD[1]}, {vD[0]}, {SW2[0:2]}")
            vmem("t", f"global_load_dword {vD[1]}, {vD[0]}, {SW1[0:2]}")
            vmem("t", f"global_load_dword {vD[1]}, {vD[0]}, {SWS[0:2]}")
    a(f"s_load_dword {sE[0]}, {SWS[0:2]}, 0")
    if opt.get("spf", 0):
        a(f"s_bfe_u32 {sTmp2}, {oWQ}, 0x30007\ns_cmp_eq_u32 {sTmp2}, 3\ns_cbranch_scc0 L_nospf")
        for r in range(opt.get("spfr", 6)):
            for hf in range(2):
                a(f"s_buffer_load_dword {sE[1]}, {SWQ}, {oWQ} offset:{(7 - r) * 8192 + 64 * hf}")
        a("L_nospf:")
    for x in A[27:]: a(x)
    ja = [kj.pop(0) for _ in range(NKA)]
    if opt.get("qpw", 1) == 1:
        vD2 = v.get(2)
        a(f"""
        s_lshl_b32 {sTmp}, {sJ}, 2
        s_add_u32 {sTmp}, {sTmp}, {sW}
        s_lshl_b32 {sTmp}, {sTmp}, 7
        s_and_b32 {sTmp2}, {oQS}, 0xffffc000
        s_add_u32 {sTmp}, {sTmp}, {sTmp2}
        """)
        vmem("pre", f"buffer_load_dword {vD2[0]}, off, {SWS}, {sTmp} sc1")
    weave(B, ja, max(len(B) // (NKA + 1), 1))
    for f in ja: f()
    if opt.get("qpw", 1) == 1:
        a(f"v_readlane_b32 {sTmp}, {vPRE}, 5\ns_nop 3")
        vmem("pre", f"buffer_load_dword {vD2[1]}, off, {SWS}, {sTmp} sc1")
    mk = v.mark()
    f = v.get(16, 2); nm = v.get(2, 2); acc = v.get(2, 2); t0 = v.get(); t1 = v.get(); vMean = v.get(2, 2); vR = v.get(2, 2)
    g4 = v.get(8, 2)
    stamp("addr")
    wait_vm("xs")
    stamp("x")
    LN = []
    for k in range(8):
        LN += [f"v_lshlrev_b32 {f[2*k]}, 16, {xs[k]}", f"v_and_b32 {f[2*k+1]}, {sHi}, {xs[k]}"]
    LN += lines(f"""
    v_pk_add_f32 {g4[0:2]}, {f[0:2]}, {f[2:4]}
    v_pk_add_f32 {g4[2:4]}, {f[4:6]}, {f[6:8]}
    v_pk_add_f32 {g4[4:6]}, {f[8:10]}, {f[10:12]}
    v_pk_add_f32 {g4[6:8]}, {f[12:14]}, {f[14:16]}
    v_pk_add_f32 {g4[0:2]}, {g4[0:2]}, {g4[2:4]}
    v_pk_add_f32 {g4[4:6]}, {g4[4:6]}, {g4[6:8]}
    v_add_f32 {acc[0]}, {g4[0]}, {g4[1]}
    v_add_f32 {acc[1]}, {g4[4]}, {g4[5]}
    """)
    xu = g4
    def red(x, tmp, fill):
        o = []
        def F(n=2):
            for _ in range(n):
                if fill: o.append(fill.pop(0))
        o += [f"v_cndmask_b32 {tmp}, {acc[1]}, {acc[0]}, {sB3}", f"v_cndmask_b32 {x}, {acc[0]}, {acc[1]}, {sB3}"]
        F(2); o.append(f"v_add_f32_dpp {x}, {tmp}, {x} row_ror:8 {DPPM}")
        for m in ("quad_perm:[1,0,3,2]", "quad_perm:[2,3,0,1]", "row_half_mirror"):
            F(); o.append(f"v_add_f32_dpp {x}, {x}, {x} {m} {DPPM}")
        o.append(f"v_mov_b32 {tmp}, {x}"); F(); o += [f"v_permlane16_swap_b32 {x}, {tmp}", f"v_add_f32 {x}, {x}, {tmp}"]
        o.append(f"v_mov_b32 {tmp}, {x}"); F(); o += [f"v_permlane32_swap_b32 {x}, {tmp}", f"v_add_f32 {x}, {x}, {tmp}"]
        return o + fill
    XOW = "@waitxo"
    fill = [XOW]
    for k in range(4):
        fill += [f"v_lshlrev_b32 {xu[2*k]}, 16, {xo[k]}", f"v_and_b32 {xu[2*k+1]}, {sHi}, {xo[k]}"]
    LN += red(t0, t1, fill)
    nm2 = vR
    LN += lines(f"""
    v_mul_f32 {t0}, 0xbb000000, {t0}
    v_cvt_pk_bf16_f32 {vMean[0]}, {t0}, {t0}
    v_and_b32 {vMean[0]}, {sHi}, {vMean[0]}
    v_mov_b32_dpp {nm[0]}, {t0} row_newbcast:0 {DPPM}
    v_mov_b32_dpp {nm2[0]}, {t0} row_newbcast:8 {DPPM}
    v_mov_b32_dpp {nm[1]}, {t0} row_newbcast:0 {DPPM}
    v_mov_b32_dpp {nm2[1]}, {t0} row_newbcast:8 {DPPM}
    """)
    for k in range(8):
        LN.append(f"v_pk_add_f32 {f[2*k:2*k+2]}, {f[2*k:2*k+2]}, {nm if k < 4 else nm2}")
    LN += [f"v_pk_mul_f32 {nm}, {f[0:2]}, {f[0:2]}", f"v_pk_mul_f32 {nm2}, {f[8:10]}, {f[8:10]}"]
    for k in range(1, 4):
        LN += [f"v_pk_fma_f32 {nm}, {f[2*k:2*k+2]}, {f[2*k:2*k+2]}, {nm}", f"v_pk_fma_f32 {nm2}, {f[8+2*k:8+2*k+2]}, {f[8+2*k:8+2*k+2]}, {nm2}"]
    LN += [f"v_add_f32 {acc[0]}, {nm[0]}, {nm[1]}", f"v_add_f32 {acc[1]}, {nm2[0]}, {nm2[1]}"]
    fill = [f"v_mov_b32 {vMean[1]}, {vMean[0]}"]
    for k in range(4):
        fill.append(f"v_pk_add_f32 {xu[2*k:2*k+2]}, {xu[2*k:2*k+2]}, {vMean}")
    for k in range(4):
        fill.append(f"v_cvt_pk_bf16_f32 {xo[k]}, {xu[2*k]}, {xu[2*k+1]}")
    for k in range(2):
        fill += [f"v_lshlrev_b32 {xu[2*k]}, 16, {xo[k]}", f"v_and_b32 {xu[2*k+1]}, {sHi}, {xo[k]}"]
    LN += red(t0, t1, fill)
    LN += lines(f"""
    v_mul_f32 {t0}, 0x3b000000, {t0}
    v_cvt_pk_bf16_f32 {t0}, {t0}, {t0}
    v_lshlrev_b32 {t0}, 16, {t0}
    v_add_f32 {t0}, 0x3727c5ac, {t0}
    v_cvt_pk_bf16_f32 {t0}, {t0}, {t0}
    v_lshlrev_b32 {t0}, 16, {t0}
    v_sqrt_f32 {t0}, {t0}
    v_lshlrev_b32 {xu[4]}, 16, {xo[2]}
    v_cvt_pk_bf16_f32 {t0}, {t0}, {t0}
    v_lshlrev_b32 {t0}, 16, {t0}
    v_rcp_f32 {vR[0]}, {t0}
    v_and_b32 {xu[5]}, {sHi}, {xo[2]}
    v_lshlrev_b32 {xu[6]}, 16, {xo[3]}
    v_and_b32 {xu[7]}, {sHi}, {xo[3]}
    v_mov_b32 {vR[1]}, {vR[0]}
    """)
    for k in range(4):
        LN.append(f"v_pk_mul_f32 {xu[2*k:2*k+2]}, {xu[2*k:2*k+2]}, {vR}")
    for k in range(4):
        LN.append(f"v_cvt_pk_bf16_f32 {xo[k]}, {xu[2*k]}, {xu[2*k+1]}")
    LN.append(f"ds_write_b128 {vPW}, {xo} offset:{L_XN}")
    LN.append(f"ds_write_b32 {vZ}, {vZ} offset:{L_MIX}")
    every = opt.get("kevery", 12)
    k = every - opt.get("kfirst", 1)
    for ins in LN:
        if ins == XOW: wait_vm("xo"); continue
        a(ins); k += 1
        if kj and k >= every:
            kj.pop(0)(); k = 0
    for fj in kj: fj()
    v.release(mk)
    sTag = s.get(4); sXCC = s.get(); sTP = s.get(); sTH = s.get()
    sCnt, sMix = s.get(), s.get()
    stamp("ln")
    a(f"""
    s_getreg_b32 {sXCC}, hwreg(HW_REG_XCC_ID, 0, 4)
    s_waitcnt lgkmcnt(0)
    s_add_u32 {sTag[0]}, {sE[0]}, {hex(PHI)}
    s_lshr_b32 {sTag[1]}, {sTag[0]}, 8
    s_lshr_b32 {sTag[2]}, {sTag[0]}, 16
    s_lshr_b32 {sTag[3]}, {sTag[0]}, 24
    s_xor_b32 {sTP}, {sTag[0]}, {sXCC}
    s_mov_b32 {sTH}, {sTP}
    """)
    if NDB:
        vDBV = v.get(); sDBP = SK[0:2]; sDBX = 'vcc'
        a(f"""
        v_lshlrev_b32 {vDB}, 7, v0
        v_mov_b32 {vDBV}, {sTP}
        s_and_b32 {oDB}, {oDB}, 0xfffffc00
        s_xor_b32 {sTmp}, {sC}, {opt.get('cqx', 1)}
        s_lshl_b32 {sTmp}, {sTmp}, 2
        s_add_u32 {sTmp}, {sTmp}, {sA}
        s_lshl_b32 {sTmp}, {sTmp}, 2
        s_add_u32 {sTmp}, {sTmp}, {sW}
        s_add_u32 {oDB}, {oDB}, {sTmp}
        s_and_b32 vcc_lo, {sTP}, 0xff
        s_mul_i32 vcc_lo, vcc_lo, 0x01010101
        s_mov_b32 vcc_hi, vcc_lo
        """)
    wait_vm("wq")
    stamp("wq")
    a("s_barrier")
    xn = v.get(8, 2)
    mk = v.mark()
    xn2 = v.get(8, 2); aq = v.get(16, 2); dq = v.get(4, 2)
    xnt = [xn[0:4], xn[4:8], xn2[0:4], xn2[4:8]]
    for t in range(4):
        a(f"ds_read_b128 {xnt[t]}, {vL16} offset:{L_XN + 1024*t}")
        for hi in range(2):
            a(f"ds_read_b64_tr_b16 {aq[4*t+2*hi:4*t+2*hi+2]}, {vTQ} offset:{L_WQ + 4096*t + 512*hi}")
    for t in range(4):
        a(f"s_waitcnt lgkmcnt({9 - 3*t})")
        a(f"v_mfma_f32_16x16x32_bf16 {dq}, {aq[4*t:4*t+4]}, {xnt[t]}, {dq if t else 0}")
    def pub(d, voff, soff, name, tp):
        a("s_mov_b32 exec_lo, 0x01010101\ns_mov_b32 exec_hi, 0x01010101")
        a(f"v_bfi_b32 {d[0]}, {vFF}, {tp}, {d[0]}")
        for k in range(1, 4):
            a(f"v_bfi_b32 {d[k]}, {vFF}, {sTag[k]}, {d[k]}")
    pub(dq, vQS, oQS, "qs", sTP)
    vmem("qs", f"buffer_store_dwordx4 {dq}, {vQS}, {SWS}, {oQS} offen {opt.get('stpol', '')}")
    a(f"ds_write_b128 {vSV}, {dq} offset:{L_QSV}")
    a("s_mov_b64 exec, -1")
    v.release(mk)
    stamp("pub1")
    qg = v.get(8, 2); hg = v.get(4, 2)
    DBR = Reg("s", 16, 8)
    NVB2 = opt.get("nvb2", -1)
    dual = NVB2 is not None and NVB2 >= 0
    qg2 = v.get(8, 2) if dual else None
    def poll1(first, r=None, name="p1"):
        r = r or qg
        t = [f"buffer_load_dwordx4 {r[0:4]}, {vQG}, {SWS}, {oQG} offen sc1",
             f"buffer_load_dwordx4 {r[4:8]}, {vQG}, {SWS}, {oQG} offen offset:2048 sc1"]
        for x in t:
            if first: vmem(name, x)
            else: a(x)
    def vjob(n):
        def f():
            assert KH_[6] == KH_[4] + KH_[2] and all(KH_[2 * k + 1] - KH_[2 * k] == KH_[1] for k in range(4))
            d = 0 if n == 0 else (KH_[1] if n & 1 else KW - KH_[1])
            a(f"s_add_u32 m0, {sM}, {L_V + 8192 * (n >> 1) + 1024 * (n & 1)}\ns_add_i32 {oV}, {oV}, {1024 * d}")
            vmem("v%d" % (n // 2), f"buffer_load_dwordx4 {vV[n & 1]}, {SV}, {oV} offen {pol('v')} lds")
        return f
    sMsk, sScale, sL2E, sLn2, sM2 = sT, oW1, oB1, oK, oKV
    qb = v.get(16, 2); sc = v.get(8, 2); tmp4 = v.get(4, 2); ones = v.get(4, 2); pr = v.get(4, 2); af = v.get(4, 2); mlr = v.get(4, 2)
    sEv = sB3; sEv2 = sE
    C2 = lines(f"""
    s_mov_b32 {sMsk}, 0xffffff00
    s_mov_b32 {sScale}, 0x3db504f3
    s_mov_b32 {sL2E}, 0x3fb8aa3b
    s_mov_b32 {sLn2}, 0x3f317218
    s_mov_b32 {sM2}, 0xc038aa3b
    s_mov_b32 {sEv[0]}, 0x55555555
    s_mov_b32 {sEv[1]}, 0x55555555
    s_mov_b32 {sEv2[0]}, 0x33333333
    s_mov_b32 {sEv2[1]}, 0x33333333
    v_mov_b32 {mlr[2]}, {sTag[0]}
    v_mov_b32 {mlr[3]}, {sTag[0]}
    """)
    for k in range(4):
        C2 += [f"v_mov_b32 {ones[k]}, 0x3f803f80", f"v_mov_b32 {pr[k]}, {sTag[0]}", f"v_mov_b32 {af[k]}, 0"]
    a(f"s_mov_b32 {sCnt}, 0")
    a1 = sc; dh = v.get(4, 2)
    def hjob():
        wait_vm("w1")
        a("s_waitcnt lgkmcnt(0)\ns_barrier")
        for t in range(2):
            for hi in range(2):
                a(f"ds_read_b64_tr_b16 {a1[4*t+2*hi:4*t+2*hi+2]}, {vTQ} offset:{L_W1 + 4096*t + 512*hi}")
        for t in range(2):
            a(f"s_waitcnt lgkmcnt({2 - 2*t})")
            a(f"v_mfma_f32_16x16x32_bf16 {dh}, {a1[4*t:4*t+4]}, {xn[4*t:4*t+4]}, {dh if t else 0}")
        for x in C[nC:nC+6]: a(x)
        del C[nC:nC+6]
        pub(dh, vHS, oHS, "hs", sTH)
        vmem("hs", f"buffer_store_dwordx4 {dh}, {vHS}, {SWS}, {oHS} offen {opt.get('stpol', '')}")
        a("s_mov_b64 exec, -1")
        stamp("pubh")
    def hpoll(first=True):
        x = f"buffer_load_dwordx4 {hg}, {vHG}, {SWS}, {oHG} offen sc1"
        if first: vmem("ph", x)
        else: a(x)
    NVQ = opt.get("nvq", 4); NVH = opt.get("nvh", 4); NVP = opt.get("nvp", 9); NV1 = opt.get("nv1", 8)
    for fj in later + [smalljob]: fj()
    vj = [vjob(n) for n in range(8)]
    first = vj[:NVH]
    if NVQ <= NVH: first.insert(NVQ, lambda: poll1(True))
    if first: first.pop(0)()
    nC = opt.get("nc1", 40)
    weave(C[:nC], first, max(nC // (len(first) + 1), 1))
    for fj in first: fj()
    hjob()
    def wojob(n):
        def f():
            ks = [0, 2, 1, 3][n]; o = oWO2 if ks >= 2 else oWO
            a(f"s_lshr_b32 m0, {sM}, 1\ns_add_u32 m0, m0, {L_WO + 4096 * ks}\ns_add_u32 {o}, {o}, {32768 if n >= 2 else 0}")
            vmem("wo%d" % (n >> 1), f"buffer_load_dwordx4 {vWO}, {SWO}, {o} offen {pol('wo')} lds")
        return f
    W2AT = opt.get("w2at")
    wj = ([] if W2AT is not None else [w2job(0), w2job(1)]) + [wojob(n) for n in range(4)]
    if NVP > NV1: wj.insert(opt.get("hidx", 0), hpoll)
    wj = vj[NV1:] + wj
    def finpw():
        a("s_mov_b32 exec_lo, 0x00010001\ns_mov_b32 exec_hi, 0x00010001")
        vmem("pre", f"buffer_load_dword {vPRE}, {vFS}, {SWS}, {oFS} offen {opt.get('fpwpol', '')}")
        if opt.get("outpw"):
            vmem("pre", f"buffer_load_ushort {vPRE}, {vXF}, {SOUT}, {oXF} offen")
        a("s_mov_b64 exec, -1")
    if opt.get("finpw", 2) == 2:
        last = wj[-1]
        wj[-1] = lambda: (last(), finpw())
    NW0 = opt.get("nw0", 1)
    early = wj[:NW0]; wj = wj[NW0:]
    wopos = list(opt.get("wopos", [0, 0, 0, 1, 2, 2]))[-len(wj):] if wj else []
    second = vj[NVH:NV1]
    if W2AT is not None:
        second[W2AT - NVH:W2AT - NVH] = [w2job(0), w2job(1)]
    if dual: second.insert(NVB2 - NVH, lambda: poll1(True, qg2, "p1b"))
    if NVQ > NVH: second.insert(NVQ - NVH, lambda: poll1(True))
    assert NVP > NV1
    weave(C[nC:] + C2, second, max((len(C) - nC + len(C2)) // (len(second) + 1), 1))
    for fj in second: fj()
    if opt.get("finpw", 2) == 1: finpw()
    if early: a("s_waitcnt lgkmcnt(0)")
    for fj in early: fj()
    stamp("issV")
    wait_vm("k")
    for T in range(2):
        for st in range(4):
            a(f"ds_read_b128 {kk[16*T+4*st:16*T+4*st+4]}, {vKR[st]} offset:{4096*T}")
    wait_vm("p1")
    nB = len(vm) - 1 - max(i for i, n in enumerate(vm) if n == "p1b") if dual else 0
    stamp("p1")
    a("L_chk1:")
    a(f"v_xor_b32 {vT0}, {sTP}, {qg[0]}\nv_xor_b32 {vT1}, {sTP}, {qg[4]}")
    seq = [(qg[1], sTag[1], vT0), (qg[5], sTag[1], vT1), (qg[2], sTag[2], vT0), (qg[6], sTag[2], vT1), (qg[3], sTag[3], vT0), (qg[7], sTag[3], vT1)]
    for r, tg, d in seq:
        a(f"v_bitop3_b32 {d}, {r}, {tg}, {d} {BOP}")
    a(f"""
    v_bitop3_b32 {vT0}, {vT0}, {vT1}, {vFF} bitop3:0xa8
    v_cmp_ne_u32 vcc, 0, {vT0}
    """)
    for k in range(8):
        a(f"v_and_b32 {sc[k]}, {sMsk}, {qg[k]}")
    a(f"""
    s_cbranch_vccnz L_retry1
    L_ok1:
    """)
    stamp("ok1")
    def WO(p):
        while wj and wopos and wopos[0] <= p:
            wopos.pop(0); wj.pop(0)()
    WO(-1)
    a(f"""
    v_pk_add_f32 {sc[0:2]}, {sc[0:2]}, {sc[4:6]}
    v_pk_add_f32 {sc[2:4]}, {sc[2:4]}, {sc[6:8]}
    v_permlane32_swap_b32 {sc[0]}, {sc[2]}
    v_permlane32_swap_b32 {sc[1]}, {sc[3]}
    v_add_f32 {sc[0]}, {sc[0]}, {sc[2]}
    v_add_f32 {sc[1]}, {sc[1]}, {sc[3]}
    v_cvt_pk_bf16_f32 {sc[0]}, {sc[0]}, {sc[1]}
    ds_write_b32 {vQW}, {sc[0]} offset:{L_Q}
    """)
    WO(0)
    a("s_waitcnt lgkmcnt(0)\ns_barrier")
    a(f"ds_read_b32 {vT1}, {vZ} offset:{L_MIX}")
    for st in range(4):
        a(f"ds_read_b128 {qb[4*st:4*st+4]}, {vQR} offset:{L_Q + 64*st}")
    for st in range(4):
        a(f"s_waitcnt lgkmcnt({3 - st})")
        for T in range(2):
            d = sc[4*T:4*T+4]
            a(f"v_mfma_f32_16x16x32_bf16 {d}, {kk[16*T+4*st:16*T+4*st+4]}, {qb[4*st:4*st+4]}, {d if st else 0}")
    a(f"v_readfirstlane_b32 {sMix}, {vT1}\ns_cmp_eq_u32 {sMix}, 0\ns_cbranch_scc0 L_mixed\nL_mixback:")
    pk = qb
    t4 = xn[0:4]
    for k in range(4):
        a(f"v_cvt_pk_bf16_f32 {t4[k]}, {sc[2*k]}, {sc[2*k+1]}")
    for k in range(4):
        a(f"v_lshlrev_b32 {sc[2*k]}, 16, {t4[k]}\nv_and_b32 {sc[2*k+1]}, {sHi}, {t4[k]}")
    for k in range(8):
        a(f"v_mul_f32 {sc[k]}, {sScale}, {sc[k]}")
    for k in range(4):
        a(f"v_cvt_pk_bf16_f32 {t4[k]}, {sc[2*k]}, {sc[2*k+1]}")
    for k in range(4):
        a(f"v_lshlrev_b32 {sc[2*k]}, 16, {t4[k]}\nv_and_b32 {sc[2*k+1]}, {sHi}, {t4[k]}")
    vMax = mlr[0]
    WO(1)
    a(f"""
    v_max3_f32 {vT0}, {sc[0]}, {sc[1]}, {sc[2]}
    v_max3_f32 {vT1}, {sc[3]}, {sc[4]}, {sc[5]}
    v_max3_f32 {vT0}, {vT0}, {sc[6]}, {sc[7]}
    v_max_f32 {vT0}, {vT0}, {vT1}
    v_mov_b32 {vT1}, {vT0}
    v_permlane16_swap_b32 {vT0}, {vT1}
    v_max_f32 {vT0}, {vT0}, {vT1}
    v_mov_b32 {vT1}, {vT0}
    v_permlane32_swap_b32 {vT0}, {vT1}
    v_max_f32 {vT0}, {vT0}, {vT1}
    ds_write_b32 {vMX}, {vT0} offset:{L_MX}
    """)
    WO(2)
    a(f"s_waitcnt lgkmcnt(0)\ns_barrier\nds_read_b128 {t4}, {vMR} offset:{L_MX}")
    bw = v.get(16, 2); df = v.get(16, 2)
    WO(3)
    a(f"""
    s_lshl_b32 {sTmp}, {sKH}, 12
    s_waitcnt lgkmcnt(0)
    v_max3_f32 {vT0}, {t4[0]}, {t4[1]}, {t4[2]}
    v_max_f32 {vT0}, {vT0}, {t4[3]}
    v_mul_f32 {vMax}, {sL2E}, {vT0}
    """)
    for k in range(8):
        a(f"v_fma_f32 {sc[k]}, {sc[k]}, {sL2E}, -{vMax}")
    for k in range(8):
        a(f"v_exp_f32 {sc[k]}, {sc[k]}")
    for k in range(4):
        a(f"v_cvt_pk_bf16_f32 {t4[k]}, {sc[2*k]}, {sc[2*k+1]}")
    a(f"ds_write_b128 {vPW}, {t4} offset:{L_XN}")
    vTO = v.get(4)
    for ct in range(4):
        a(f"v_add_u32 {vTO[ct]}, {sTmp}, {vTW[ct]}")
    WO(4)
    av = kk; do = v.get(8, 2); dl = sc[0:4]
    a(f"v_mov_b32 {vT0}, 0\nv_lshlrev_b32 {b1r}, 16, {b1r}\ns_lshl_b32 {sTmp}, 1, {sW}\ns_cmp_eq_u32 {sMix}, 0")
    wait_vm("v1")
    a("s_waitcnt lgkmcnt(0)\ns_barrier")
    def vreads(t):
        for T in range(2):
            for hi in range(2):
                a(f"ds_read_b64_tr_b16 {av[8*t+4*T+2*hi:8*t+4*T+2*hi+2]}, {vTV[T]} offset:{8192*t + 4096*hi}")
    def pvm(t, T):
        d = do[4*T:4*T+4]
        a(f"v_mfma_f32_16x16x32_bf16 {d}, {av[8*t+4*T:8*t+4*T+4]}, {pk[4*t:4*t+4]}, {d if t else 0}")
    for t in range(2):
        a(f"ds_read_b128 {pk[4*t:4*t+4]}, {vL16} offset:{L_XN + 1024*t}")
        vreads(t)
    for t in range(2, 4):
        a(f"ds_read_b128 {pk[4*t:4*t+4]}, {vL16} offset:{L_XN + 1024*t}")
    for t in range(2):
        for T in range(2):
            a(f"s_waitcnt lgkmcnt({9 - 5*t - 2*T})")
            pvm(t, T)
    stamp("soft")
    spec = opt.get("vspec", 1)
    for t in range(4):
        if t >= 2: a(f"s_waitcnt lgkmcnt({3 - t})")
        a(f"v_mfma_f32_16x16x32_bf16 {dl}, {ones}, {pk[4*t:4*t+4]}, {dl if t else 0}")
    def mlstore():
        a(f"""
        v_mov_b32 {mlr[1]}, {dl[0]}
        s_mov_b32 exec_lo, {sTmp}
        s_mov_b32 exec_hi, 0
        s_cbranch_scc0 L_mlmix
        """)
        vmem("ml", f"buffer_store_dwordx4 {mlr}, {vT0}, {SWS}, {oML} offen {opt.get('stpol', '')}")
        a("L_mlback:")
        a("s_mov_b64 exec, -1")
    if opt.get("pv3", 1):
        wait_vm("v2")
        a("s_barrier")
        vreads(2)
        mlstore()
        for T in range(2):
            a(f"s_waitcnt lgkmcnt({2 - 2*T})")
            pvm(2, T)
        wait_vm("v3")
        stamp("V")
        a("s_barrier")
        vreads(3)
        for T in range(2):
            a(f"s_waitcnt lgkmcnt({2 - 2*T})")
            pvm(3, T)
    else:
        wait_vm("v3")
        stamp("V")
        a("s_barrier")
        vreads(2); vreads(3)
        mlstore()
        for t in range(2, 4):
            for T in range(2):
                a(f"s_waitcnt lgkmcnt({6 - 4*(t-2) - 2*T})")
                pvm(t, T)
    a(f"""
    s_mov_b32 exec_lo, 0x000f000f
    s_mov_b32 exec_hi, 0x000f000f
    s_mov_b32 {sCnt}, 0
    v_cvt_pk_bf16_f32 {pr[2]}, {do[0]}, {do[1]}
    v_cvt_pk_bf16_f32 {pr[3]}, {do[2]}, {do[3]}
    s_mov_b32 exec_lo, 0x00f000f0
    s_mov_b32 exec_hi, 0x00f000f0
    v_cvt_pk_bf16_f32 {pr[0]}, {do[4]}, {do[5]}
    v_cvt_pk_bf16_f32 {pr[1]}, {do[6]}, {do[7]}
    s_mov_b32 exec_lo, 0x00ff00ff
    s_mov_b32 exec_hi, 0x00ff00ff
    s_cbranch_scc0 L_psmix
    """)
    vmem("ps", f"buffer_store_dwordx4 {pr}, {vPS}, {SWS}, {oPS} offen {opt.get('stpol', '')}")
    a("L_psback:")
    a("s_mov_b64 exec, -1")
    WO(7)
    if opt.get("finpw", 2) == 3: finpw()
    assert not wj
    stamp("pub2")
    if opt.get("wb2"):
        a(f"s_lshl_b32 {sTmp}, {sJ}, 2\ns_add_u32 {sTmp}, {sTmp}, {sW}\ns_cmp_eq_u32 {sTmp}, {opt['wb2']}\ns_cbranch_scc0 L_nowb2\nbuffer_wbl2 sc1\ns_waitcnt vmcnt(0)\nL_nowb2:")
    wait_vm("ph")
    a("L_chkh:")
    a(f"v_xor_b32 {vT0}, {sTH}, {hg[0]}")
    for k in range(1, 4):
        a(f"v_bitop3_b32 {vT0}, {hg[k]}, {sTag[k]}, {vT0} {BOP}")
    a(f"v_and_b32 {vT0}, {vT0}, {vFF}\nv_cmp_ne_u32 vcc, 0, {vT0}")
    hm = sc[0:4]; hs4 = sc[4:8]
    for k in range(4):
        a(f"v_and_b32 {hm[k]}, {sMsk}, {hg[k]}")
    a("s_cbranch_vccnz L_retryh\nL_okh:")
    h = hm[0]; e = hm[1]; u = hm[2]; d1 = hm[3]; r1 = hs4[1]
    def rnd1(x): return [f"v_cvt_pk_bf16_f32 {x}, {x}, {x}", f"v_lshlrev_b32 {x}, 16, {x}"]
    ff = lines(f"""
    v_cndmask_b32 {hs4[0]}, {hm[0]}, {hm[2]}, {sEv}
    v_cndmask_b32 {hs4[1]}, {hm[1]}, {hm[3]}, {sEv}
    v_cndmask_b32 {hs4[2]}, {hm[2]}, {hm[0]}, {sEv}
    v_cndmask_b32 {hs4[3]}, {hm[3]}, {hm[1]}, {sEv}
    v_add_f32_dpp {hs4[2]}, {hs4[0]}, {hs4[2]} quad_perm:[1,0,3,2] {DPPM}
    v_add_f32_dpp {hs4[3]}, {hs4[1]}, {hs4[3]} quad_perm:[1,0,3,2] {DPPM}
    v_cndmask_b32 {hs4[0]}, {hs4[2]}, {hs4[3]}, {sEv2}
    v_cndmask_b32 {h}, {hs4[3]}, {hs4[2]}, {sEv2}
    v_add_f32_dpp {h}, {hs4[0]}, {h} quad_perm:[2,3,0,1] {DPPM}
    v_add_f32_dpp {h}, {h}, {h} row_shl:4 {DPPM}
    """)
    ff += rnd1(h) + [f"v_add_f32 {h}, {h}, {b1r}"] + rnd1(h)
    ff += [f"v_mul_f32 {e}, -abs({h}), {sL2E}", f"v_exp_f32 {e}, {e}"] + rnd1(e)
    ff += [f"v_add_f32 {u}, 1.0, {e}", f"v_add_f32 {d1}, -1.0, {u}", f"v_log_f32 {u}, {u}", f"v_rcp_f32 {r1}, {d1}",
           f"v_cmp_eq_f32 vcc, 0, {d1}", f"v_mul_f32 {u}, {sLn2}, {u}", f"v_mul_f32 {r1}, {r1}, {e}", f"v_mul_f32 {u}, {u}, {r1}",
           f"v_cndmask_b32 {u}, {u}, {e}, vcc"] + rnd1(u)
    ff += [f"v_max_f32 {e}, 0, {h}", f"v_add_f32 {u}, {u}, {e}"] + rnd1(u)
    ff += [f"v_mul_f32 {e}, {sM2}, {u}", f"v_exp_f32 {e}, {e}", f"v_cmp_gt_f32 vcc, 0x3a800000, {u}", f"v_add_f32 {d1}, 1.0, {e}", f"v_rcp_f32 {d1}, {d1}",
           f"v_sub_f32 {e}, 1.0, {e}", f"v_mul_f32 {e}, {e}, {d1}", f"v_cndmask_b32 {e}, {e}, {u}, vcc"] + rnd1(e)
    ff += [f"v_mul_f32 {e}, {e}, {h}", f"v_mov_b32_dpp {u}, {e} quad_perm:[2,3,0,1] {DPPM}", f"v_cvt_pk_bf16_f32 {u}, {e}, {u}"]
    ff += lines(f"""
    v_mov_b32_dpp {af[0]}, {u} quad_perm:[0,1,2,3] row_mask:0xf bank_mask:0x1
    v_mov_b32_dpp {af[1]}, {u} row_shl:1 row_mask:0xf bank_mask:0x1
    v_mov_b32_dpp {af[2]}, {u} row_shl:8 row_mask:0xf bank_mask:0x1
    v_mov_b32_dpp {af[3]}, {u} row_shl:9 row_mask:0xf bank_mask:0x1
    """)
    for x in ff: a(x)
    stamp("ffn")
    pa = qb; mlg = qg[0:4]; bo = kk; dd = v.get(16, 2)
    def poll2(first):
        t = []
        for tl in range(2):
            t.append(f"buffer_load_dwordx4 {pa[8*tl:8*tl+4]}, {vPA}, {SWS}, {oPA} offen offset:{2048*tl} sc1")
            t.append(f"buffer_load_dwordx4 {pa[8*tl+4:8*tl+8]}, {vPA}, {SWS}, {oPA} offen offset:{2048*tl+1024} sc1")
        t.append(f"buffer_load_dwordx4 {mlg}, {vMLG}, {SWS}, {oMLG} offen sc1")
        for x in t:
            if first: vmem("p2", x)
            else: a(x)
    def woreads(tl):
        for ct in range(4):
            for hi in range(2):
                r = bo[16*tl+4*ct+2*hi:16*tl+4*ct+2*hi+2]
                a(f"ds_read_b64_tr_b16 {r}, {vTO[ct]} offset:{L_WO + 4096*tl + 2048*hi}")
    p2at = opt.get("p2at", 2)
    if p2at == 0: poll2(True)
    wait_vm("w2")
    a("s_barrier")
    for ct in range(4):
        for hi in range(2):
            a(f"ds_read_b64_tr_b16 {bw[4*ct+2*hi:4*ct+2*hi+2]}, {vTW[ct]} offset:{L_W2 + 2048*hi}")
    fo = pr[0:2]
    a(f"s_mov_b32 {sCnt}, 0\nv_mov_b32 {fo[1]}, {sTag[0]}\nv_lshlrev_b32 {xf}, 16, {xf}")
    for ct in range(4):
        a(f"s_waitcnt lgkmcnt({6 - 2*ct})")
        a(f"v_mfma_f32_16x16x32_bf16 {df[4*ct:4*ct+4]}, {af}, {bw[4*ct:4*ct+4]}, 0")
    if p2at == 1: poll2(True)
    wait_vm("wo0")
    if p2at == 2: poll2(True)
    a("s_barrier")
    woreads(0)
    if p2at == 3: poll2(True)
    wait_vm("wo1")
    stamp("wo")
    a("s_barrier")
    woreads(1)
    a("s_waitcnt vmcnt(0)")
    a("L_chk2:")
    wv = vT1; vC = bw[0]
    chk = [f"v_xor_b32 {vC}, {sTag[0]}, {pa[1]}"] + [f"v_bitop3_b32 {vC}, {r}, {sTag[0]}, {vC} {BOP}" for r in (pa[6], pa[9], pa[14], mlg[2])] + [f"v_cmp_ne_u32 vcc, 0, {vC}"]
    wchain = [f"v_max_f32_dpp {vT0}, {mlg[0]}, {mlg[0]} row_ror:1 {DPPM}"] + [f"v_max_f32_dpp {vT0}, {vT0}, {vT0} row_ror:{r} {DPPM}" for r in (2, 4, 8)]
    wchain += [f"v_sub_f32 {wv}, {mlg[0]}, {vT0}", f"v_exp_f32 {wv}, {wv}", f"v_mul_f32 {vT0}, {wv}, {mlg[1]}"]
    wchain += [f"v_add_f32_dpp {vT0}, {vT0}, {vT0} row_ror:{r} {DPPM}" for r in (1, 2, 4, 8)]
    wchain += [f"v_rcp_f32 {vT0}, {vT0}", f"v_mul_f32 {wv}, {wv}, {vT0}"]
    a("s_waitcnt lgkmcnt(8)")
    for tl in range(2):
        if tl:
            a("s_cbranch_vccnz L_retry2\nL_ok2:")
            stamp("ok2")
            a("s_waitcnt lgkmcnt(0)")
        for ct in range(4):
            a(f"v_mfma_f32_16x16x32_bf16 {dd[4*ct:4*ct+4]}, {pa[8*tl+2:8*tl+6]}, {bo[16*tl+4*ct:16*tl+4*ct+4]}, {dd[4*ct:4*ct+4] if tl else 0}")
            a(wchain.pop(0))
            if tl == 0:
                a(chk.pop(0))
                if ct >= 2: a(chk.pop(0))
            else:
                a(wchain.pop(0))
    for x in wchain: a(x)
    for r in range(4):
        for ct in range(4):
            a(f"v_fmac_f32_dpp {df[4*ct]}, {wv}, {dd[4*ct+r]} row_newbcast:{r} {DPPM}")
    a(f"""
    v_permlane32_swap_b32 {df[0]}, {df[8]}
    v_permlane32_swap_b32 {df[4]}, {df[12]}
    v_add_f32 {df[0]}, {df[0]}, {df[8]}
    v_add_f32 {df[4]}, {df[4]}, {df[12]}
    s_cmp_eq_u32 {sW}, 0
    v_permlane16_swap_b32 {df[0]}, {df[4]}
    v_add_f32 {fo[0]}, {df[0]}, {df[4]}
    buffer_store_dwordx2 {fo}, {vFS}, {SWS}, {oFS} offen {opt.get('finpol', 'sc1')}
    """)
    if stamps or probe:
        stamp("pub3", flush=True)
        a(f"s_cmp_eq_u32 {sW}, 0")
    if opt.get("finbar", 1):
        a("s_waitcnt vmcnt(0)\ns_barrier")
    if opt.get("wb"):
        a("s_cbranch_scc0 L_wb")
    else:
        a("s_cbranch_scc0 L_fin")
    fg = bo[0:8]
    a(f"s_mov_b32 {sCnt}, 0")
    if opt.get("p3delay", 1):
        a("s_waitcnt vmcnt(0)")
    if opt.get("p3sleep"):
        a("s_sleep %d" % opt["p3sleep"])
    a(f"""
    L_poll3:
    buffer_load_dwordx4 {fg[0:4]}, {vFG}, {SWS}, {oFG} offen sc1
    buffer_load_dwordx4 {fg[4:8]}, {vFG}, {SWS}, {oFG2} offen sc1
    s_add_u32 {sCnt}, {sCnt}, 1
    s_cmp_gt_u32 {sCnt}, 20000
    s_cbranch_scc1 L_ok3
    s_waitcnt vmcnt(0)
    s_mov_b64 exec, -1
    v_add_f32 {dd[0]}, {fg[0]}, {fg[4]}
    v_add_f32 {dd[1]}, {fg[2]}, {fg[6]}
    v_xor_b32 {vT0}, {sTag[0]}, {fg[1]}
    v_add_f32_dpp {dd[0]}, {dd[0]}, {dd[0]} row_ror:2 {DPPM}
    v_add_f32_dpp {dd[1]}, {dd[1]}, {dd[1]} row_ror:2 {DPPM}
    v_bitop3_b32 {vT0}, {fg[3]}, {sTag[0]}, {vT0} {BOP}
    v_add_f32_dpp {dd[0]}, {dd[0]}, {dd[0]} row_ror:4 {DPPM}
    v_add_f32_dpp {dd[1]}, {dd[1]}, {dd[1]} row_ror:4 {DPPM}
    v_bitop3_b32 {vT0}, {fg[5]}, {sTag[0]}, {vT0} {BOP}
    v_add_f32_dpp {dd[0]}, {dd[0]}, {dd[0]} row_ror:8 {DPPM}
    v_add_f32_dpp {dd[1]}, {dd[1]}, {dd[1]} row_ror:8 {DPPM}
    v_bitop3_b32 {vT0}, {fg[7]}, {sTag[0]}, {vT0} {BOP}
    v_cmp_ne_u32 vcc, 0, {vT0}
    v_permlane16_swap_b32 {dd[0]}, {dd[1]}
    v_add_f32 {dd[0]}, {dd[0]}, {dd[1]}
    v_mov_b32 {dd[1]}, {dd[0]}
    s_cbranch_vccnz L_retry3
    L_ok3:
    """)
    stamp("ok3", flush=True)
    a(f"""
    s_cmp_eq_u32 s2, 0
    v_permlane32_swap_b32 {dd[0]}, {dd[1]}
    v_add_f32 {dd[0]}, {dd[0]}, {dd[1]}
    v_add_f32 {dd[0]}, {dd[0]}, {xf}
    v_cvt_pk_bf16_f32 {dd[0]}, {dd[0]}, {dd[0]}
    s_mov_b32 exec_lo, 0x00030003
    s_mov_b32 exec_hi, 0
    buffer_store_short {dd[0]}, {vXF}, {SOUT}, {oXF} offen {opt.get('outpol', 'nt')}
    s_cbranch_scc0 L_fin
    s_mov_b32 exec_lo, 1
    v_mov_b32 {vT0}, 0
    buffer_store_dword {fo[1]}, {vT0}, {SWS}, 0 offen {opt.get('eppol', opt.get('outpol', 'nt'))}
    L_fin:
    """)
    if stamps:
        stamp("end", True)
        a("s_mov_b64 exec, -1")
        a(f"""
        s_getreg_b32 {sTmp}, hwreg(HW_REG_HW_ID)
        v_writelane_b32 {vST}, {sTmp}, 29
        v_writelane_b32 {vST}, {sXCC}, 30
        v_writelane_b32 {vST}, {sMix}, 31
        s_lshl_b32 {sTmp}, s2, 2
        s_add_u32 {sTmp}, {sTmp}, {sW}
        s_lshl_b32 {sTmp}, {sTmp}, 7
        s_add_u32 {sTmp}, {sTmp}, {STAMP}
        v_lshlrev_b32 {vT1}, 2, v0
        s_mov_b32 exec_lo, -1
        s_mov_b32 exec_hi, 0
        buffer_store_dword {vST}, {vT1}, {SWS}, {sTmp} offen
        """)
        out.insert(len(hdr), "; stamps: " + ",".join(names))
    if probe:
        stamp("end")
        a(f"""
        s_cmp_eq_u32 {sW}, {opt.get('pwave', 0)}
        s_cbranch_scc0 L_end
        s_load_dwordx2 s[8:9], s[0:1], 80
        s_mov_b32 s10, 256
        s_mov_b32 s11, 0x20000
        s_mov_b64 exec, 1
        s_waitcnt lgkmcnt(0)
        s_sub_u32 s4, 0, s100
        v_mov_b32 v2, s4
        v_mov_b32 v3, s98
        v_mov_b32 v4, 0
        buffer_atomic_umax v2, v4, s[8:11], 0 offen sc1
        buffer_atomic_umax v3, v4, s[8:11], 0 offen offset:128 sc1
        s_waitcnt vmcnt(0)
        L_hold0:
        s_memrealtime s[4:5]
        s_waitcnt lgkmcnt(0)
        s_sub_u32 s4, s4, s100
        s_cmp_lt_u32 s4, 2000
        s_cbranch_scc1 L_hold0
        buffer_load_dword v2, v4, s[8:11], 0 offen sc1
        buffer_load_dword v3, v4, s[8:11], 0 offen offset:128 sc1
        s_waitcnt vmcnt(0)
        v_readfirstlane_b32 s6, v2
        v_readfirstlane_b32 s98, v3
        s_add_u32 s98, s98, s6
        s_min_u32 s98, s98, 2000
        s_mul_i32 s98, s98, {opt.get('mult', 8)}
        s_add_u32 s98, s98, 2500
        L_hold1:
        s_memrealtime s[4:5]
        s_waitcnt lgkmcnt(0)
        s_sub_u32 s4, s4, s100
        s_cmp_lt_u32 s4, s98
        s_cbranch_scc1 L_hold1
        """)
    a("L_end:\ns_endpgm")
    if opt.get("wb"):
        a(f"""
        L_wb:
        s_cmp_eq_u32 {sW}, 1
        s_cbranch_scc0 L_fin
        s_cmp_lt_u32 {sJ}, {opt['wb']}
        s_cbranch_scc0 L_fin
        buffer_wbl2 sc1
        s_branch L_fin
        """)
    a("L_retry3:\ns_mov_b64 exec, vcc\ns_branch L_poll3")
    a(f"""
    L_retry1:
    s_add_u32 {sCnt}, {sCnt}, 1
    {'s_cmp_eq_u32 %s, 1' % sCnt if dual else ''}
    {'s_cbranch_scc1 L_useB' if dual else ''}
    s_cmp_gt_u32 {sCnt}, 20000
    s_cbranch_scc1 L_ok1
    s_cmp_lt_u32 {sCnt}, {opt.get('nplain', 12)}
    s_cbranch_scc1 L_r1b
    s_cmp_eq_u32 {sCnt}, {opt.get('nplain', 12)}
    s_cbranch_scc0 L_r1a
    v_mov_b32 {vT0}, 1
    ds_write_b32 {vZ}, {vT0} offset:{L_MIX}
    ds_read_b128 {qg[0:4]}, {vL16} offset:{L_QSV}
    v_and_b32 {vT0}, 1, v0
    v_lshlrev_b32 {vT0}, 13, {vT0}
    v_lshrrev_b32 {vT1}, 1, v0
    v_lshl_add_u32 {vT0}, {vT1}, 4, {vT0}
    s_and_b32 {sTmp}, {oQS}, 0xffffff00
    s_add_u32 {sTmp}, {sTmp}, {SC1D}
    s_waitcnt lgkmcnt(0)
    v_xor_b32 {qg[0]}, {sXCC}, {qg[0]}
    s_mov_b32 exec_lo, -1
    s_mov_b32 exec_hi, 0
    buffer_store_dwordx4 {qg[0:4]}, {vT0}, {SWS}, {sTmp} offen sc1
    s_mov_b64 exec, -1
    L_r1a:
    s_xor_b32 {sTP}, {sTP}, {sXCC}
    s_xor_b32 {oQG}, {oQG}, {SC1D}
    s_nop 1
    L_r1b:
    """)
    poll1(False)
    a("s_waitcnt vmcnt(0)\ns_branch L_chk1")
    if dual:
        a(f"L_useB:\ns_waitcnt vmcnt({nB})")
        for k in range(8):
            a(f"v_mov_b32 {qg[k]}, {qg2[k]}")
        a("s_branch L_chk1")
    a(f"""
    L_mixed:
    s_add_u32 {oHS}, {oHS}, {SC1D}
    s_mov_b32 exec_lo, 0x01010101
    s_mov_b32 exec_hi, 0x01010101
    v_xor_b32 {dh[0]}, {sXCC}, {dh[0]}
    buffer_store_dwordx4 {dh}, {vHS}, {SWS}, {oHS} offen sc1
    s_waitcnt vmcnt(0)
    s_mov_b64 exec, -1
    s_branch L_mixback
    L_retryh:
    s_add_u32 {sCnt}, {sCnt}, 1
    s_cmp_gt_u32 {sCnt}, 20000
    s_cbranch_scc1 L_okh
    s_cmp_eq_u32 {sMix}, 0
    s_cbranch_scc1 L_rhb
    s_xor_b32 {sTH}, {sTH}, {sXCC}
    s_xor_b32 {oHG}, {oHG}, {SC1D}
    L_rhb:
    buffer_load_dwordx4 {hg}, {vHG}, {SWS}, {oHG} offen sc1
    s_waitcnt vmcnt(0)
    s_branch L_chkh
    L_mlmix:
    buffer_store_dwordx4 {mlr}, {vT0}, {SWS}, {oML} offen sc1
    s_branch L_mlback
    L_psmix:
    buffer_store_dwordx4 {pr}, {vPS}, {SWS}, {oPS} offen sc1
    s_branch L_psback
    L_retry2:
    s_add_u32 {sCnt}, {sCnt}, 1
    s_cmp_gt_u32 {sCnt}, 20000
    s_cbranch_scc1 L_ok2
    {'s_mov_b64 exec, vcc' if opt.get('sticky', 1) else ''}
    """)
    poll2(False)
    a("s_waitcnt vmcnt(0)\ns_mov_b64 exec, -1\ns_nop 3\ns_branch L_chk2")
    a("L_codeend:")
    nv = (v.hw + 7) // 8 * 8
    out.append(a.text())
    out.append(f""".section .rodata,"a"
.p2align 6
.amdhsa_kernel {NAME}_kernel
  .amdhsa_next_free_vgpr {nv}
  .amdhsa_next_free_sgpr 102
  .amdhsa_accum_offset {nv}
  .amdhsa_group_segment_fixed_size 0
  .amdhsa_kernarg_size 96
  .amdhsa_user_sgpr_count 2
  .amdhsa_user_sgpr_kernarg_segment_ptr 1
  .amdhsa_system_sgpr_workgroup_id_x 1
.end_amdhsa_kernel""")
    sys.stderr.write("vgprs %d sgprs %d nops %d\n" % (v.hw, s.hw, a.nops))
    return "\n".join(out) + "\n"

if __name__ == "__main__":
    import json
    opt = json.loads(sys.argv[2]) if len(sys.argv) > 2 else {}
    open(sys.argv[1], "w").write(gen(opt))
```

```python
import sys
from asmlib import *

NAME = "parallel_sum__sliding_block_cached__dense_activation_mish__decode"
PHI = 0x9E3779B9
QBUF = 0x40000; HBUF = 0x80000; SC1D = 0x20000; MLB = 0xC0000; DBB = 0xC8000; PART = 0x100000; FIN = 0x180000; STAMP = 0x800000
L_XN = 0; L_Q = 4096; L_MX = 5632; L_MIX = 5760; L_QSV = 5888; L_SP = 7168; L_WQ = 8192; L_W1 = 24576; L_W2 = 32768; L_WO = 40960; L_V = 57344; L_K = 90112; LDS_BYTES = 122880
QSTR = 320
DPPM = "row_mask:0xf bank_mask:0xf"
BOP = "bitop3:0xbe"

def lines(text):
    return [l.strip() for l in text.strip().split("\n") if l.strip() and not l.strip().startswith(";")]

KVMAP = {
    "p4": (4, 128, [64 * (n >> 2) + (n & 3) for n in range(8)]),
    "p4i": (4, 1, [64 * n for n in range(8)]),
    "p1i": (1, 16, [64 * n for n in range(8)]),
    "p2": (2, 128, [32 * (n >> 1) + (n & 1) for n in range(8)]),
    "p2i": (2, 32, [128 * (n >> 1) + (n & 1) for n in range(8)]),
    "p8i": (8, 2, [128 * (n >> 1) + (n & 1) for n in range(8)]),
    "p1": (1, 128, [16 * n for n in range(8)]),
}
def gen(opt):
    KS, KW, KH_ = KVMAP[opt.get("kv", "p4")]
    nt = opt.get("nt", {k: "nt" for k in ("wq", "w1", "k", "v", "wo", "w2")})
    def pol(k): return nt.get(k, "")
    stamps = opt.get("stamps", False)
    a = Asm()
    v = Alloc("v", 1, 256); s = Alloc("s", 44, 102)
    hdr = open("cdna_kernels/%s.s.ref" % NAME).read().split("\n")
    hdr = [l for l in hdr if l.startswith(";") and "@launch" not in l and "Override" not in l and "grid=ceil" not in l]
    out = list(hdr)
    out += """;
; One launch, 256 workgroups of 4 waves (one per CU); wg = 8*j + g, g = kv head, j = 8*a + c.
;   P1  LayerNorm (every wave), q partial = xn[128 rows a] @ wq[.., 64 cols c'], h partial = xn[64 rows] @ w1[.., 64 cols]
;   P2  (b = j>>4, s = j&15) 128 keys of (b, g): scores, true max over the workgroup's keys, exp, P@V -> partial o, m, l
;   P3  (head 4g+a, 64 output columns): combine the 16 key splits, @ wo, + mish(h) @ w2 -> partial outputs
;   P4  4 outputs per workgroup: sum of 64 partials + x
; Hand-offs go through d_ws as tagged 16/8-byte granules; the tag is d_ws[0] + const (d_ws[0] is advanced at the end),
; so it only tells this launch's granules from older ones. Inside a group plain stores are used when all 32
; workgroups report the same XCC id (it is part of the first tag); otherwise write-through copies take over.
; All weights, K and V are streamed once by LDS-DMA in an order that keeps the per-CU request window filled.""".split("\n")
    out.append("; @launch grid=(256,1,1) block=(256,1,1) lds=%d" % LDS_BYTES)
    out.append('.amdgcn_target "amdgcn-amd-amdhsa--gfx950"')
    out.append(".text\n.globl %s_kernel\n" % NAME + (".p2align 12\n" if opt.get("al", 1) else "") + ".p2align 8\n.type %s_kernel,@function\n%s_kernel:" % (NAME, NAME))
    SX, SK, SV, SWQ, SWO, SW1, SB1, SW2, SOUT, SWS = [Reg("s", 4 + 4 * i, 4) for i in range(10)]
    vm = []
    def vmem(name, text):
        a(text); vm.append(name)
    def wait_vm(name, allow=0):
        idx = max(i for i, n in enumerate(vm) if n == name) - allow
        n = len(vm) - 1 - idx
        a("s_waitcnt vmcnt(%d)" % n)
    def weave(fill, jobs, every, start=0):
        k = -start
        for ins in fill:
            a(ins); k += 1
            if jobs and k >= every:
                jobs.pop(0)(); k = 0
    nst = [0, 0]
    names = []
    NR = 4
    if stamps:
        sST = [s.get(2, 2) for _ in range(NR)]; vST = v.get()
    probe = opt.get("probe")
    def stamp(name, last=False, flush=False):
        if probe and name == "start": a("s_memrealtime s[100:101]")
        if probe and name == probe: a("s_memrealtime s[98:99]")
        if stamps:
            k = nst[0]; nst[0] += 1; names.append(name)
            assert k < 27
            done = nst[1]
            if k - done >= NR:
                a("v_writelane_b32 %s, %s, %d" % (vST, sST[done % NR][0], done)); done += 1
            a("s_memrealtime %s" % sST[k % NR])
            if last or flush:
                a("s_waitcnt lgkmcnt(0)")
                while done <= k:
                    a("v_writelane_b32 %s, %s, %d" % (vST, sST[done % NR][0], done)); done += 1
            nst[1] = done
    stamp("start")
    a(f"""
    s_load_dwordx2 {SX[0:2]}, s[0:1], 0
    s_load_dwordx2 {SWQ[0:2]}, s[0:1], 24
    s_load_dwordx2 {SW1[0:2]}, s[0:1], 48
    s_load_dwordx2 {SK[0:2]}, s[0:1], 8
    s_load_dwordx2 {SWS[0:2]}, s[0:1], 88
    s_load_dwordx2 {SV[0:2]}, s[0:1], 16
    s_cmp_ge_u32 s2, 256
    s_cbranch_scc1 L_end
    """)
    if opt.get("vpf", 1):
        vP = v.get(2, 2); sPF = s.get(2, 2)
        a(f"""
        s_getpc_b64 {sPF}
        L_pc:
        s_lshr_b32 s3, s2, 1
        s_and_b32 s3, s3, 0x7c
        v_lshrrev_b32 {vP[0]}, 6, v0
        v_add_u32 {vP[0]}, s3, {vP[0]}
        v_lshlrev_b32 {vP[0]}, 6, {vP[0]}
        v_min_u32 {vP[0]}, L_codeend-L_pc-4, {vP[0]}
        """)
        vmem("pf", f"global_load_dword {vP[1]}, {vP[0]}, {sPF}")
    sW, sG, sJ, sA, sC, sT, sBLK, sTmp, sTmp2 = [s.get() for _ in range(9)]
    oXO, oWQ, oW1, oKV, oK, oW2 = [s.get() for _ in range(6)]
    sM = s.get()
    DBPRE = ""
    if opt.get("ndb", 0):
        oDB0 = s.get()
        DBPRE = f"""s_mov_b32 {SWS[2]}, 0x10000000
        s_mov_b32 {SWS[3]}, 0x20000
        s_lshl_b32 {sTmp}, {sJ}, 2
        s_add_u32 {sTmp}, {sTmp}, {sW}
        s_and_b32 {sTmp}, {sTmp}, 7
        s_lshl_b32 {sTmp2}, {sG}, 3
        s_add_u32 {sTmp}, {sTmp}, {sTmp2}
        s_lshl_b32 {sTmp}, {sTmp}, 7
        s_add_u32 {oDB0}, {sTmp}, {DBB}"""
    vGQ, vI, vT0, vT1 = [v.get() for _ in range(4)]
    vL16, vB3, vXO, vWQe, vWQo, vW1e, vW1o = [v.get() for _ in range(7)]
    vK = v.get(4)
    a(f"""
    v_readfirstlane_b32 {sW}, v0
    v_and_b32 v0, 63, v0
    s_and_b32 {sG}, s2, 7
    {'s_xor_b32 %s, %s, %d' % (sG, sG, opt['gxor']) if opt.get('gxor') else ''}
    s_lshr_b32 {sJ}, s2, 3
    s_lshr_b32 {sW}, {sW}, 6
    s_lshr_b32 {sA}, {sJ}, 3
    s_and_b32 {sC}, {sJ}, 7
    v_lshrrev_b32 {vGQ}, 4, v0
    v_and_b32 {vI}, 15, v0
    s_mov_b32 {SX[2]}, 2048
    s_mov_b32 {SX[3]}, 0x20000
    s_mov_b32 {SWQ[2]}, {512*4096*2}
    s_mov_b32 {SWQ[3]}, 0x20000
    v_lshlrev_b32 {vL16}, 4, v0
    v_bfe_u32 {vB3}, v0, 3, 1
    v_lshlrev_b32 {vT0}, 10, {vB3}
    v_lshl_add_u32 {vXO}, {vGQ}, 4, {vT0}
    v_and_b32 {vT0}, 1, {vGQ}
    v_lshlrev_b32 {vT0}, 1, {vT0}
    v_and_b32 {vT1}, 7, v0
    v_xor_b32 {vT0}, {vT0}, {vT1}
    v_lshlrev_b32 {vT0}, 4, {vT0}
    v_lshrrev_b32 {vT1}, 3, v0
    v_lshl_add_u32 {vWQe}, {vT1}, 13, {vT0}
    v_xor_b32 {vWQo}, 64, {vWQe}
    s_and_b32 {sTmp}, {sC}, 1
    s_lshl_b32 {sTmp2}, {sTmp}, 1
    s_xor_b32 {sTmp2}, {sTmp2}, {sW}
    s_lshl_b32 {sTmp2}, {sTmp2}, 5
    s_lshl_b32 {oXO}, {sA}, 7
    s_add_u32 {sTmp2}, {sTmp2}, {oXO}
    s_lshl_b32 {oWQ}, {sTmp2}, 13
    s_lshl_b32 {sM}, {sG}, 10
    s_add_u32 {oWQ}, {oWQ}, {sM}
    s_xor_b32 {sM}, {sC}, {opt.get('cqx', 1)}
    s_lshl_b32 {sM}, {sM}, 7
    s_add_u32 {oWQ}, {oWQ}, {sM}
    s_lshl_b32 {oXO}, {sTmp2}, 1
    s_lshl_b32 {sM}, {sW}, 12
    s_add_u32 m0, {sM}, {L_WQ}
    {DBPRE}
    s_waitcnt lgkmcnt(0)
    """)
    stamp("karg")
    xs = v.get(8, 2); xo = v.get(4, 2)
    kk = v.get(32, 2)
    sE = sPF if opt.get('vpf', 1) else s.get(2, 2)
    vmem("xs", f"buffer_load_dwordx4 {xs[0:4]}, {vL16}, {SX}, 0 offen")
    vmem("xs", f"buffer_load_dwordx4 {xs[4:8]}, {vL16}, {SX}, 0 offen offset:1024")
    vmem("xo", f"buffer_load_dwordx4 {xo}, {vXO}, {SX}, {oXO} offen")
    for k in range(4):
        vmem("wq", f"buffer_load_dwordx4 {vWQo if k & 1 else vWQe}, {SWQ}, {oWQ} offen {pol('wq')} lds")
        if k < 3:
            a(f"s_add_u32 m0, m0, 1024\ns_add_u32 {oWQ}, {oWQ}, 65536")
    NDB = opt.get("ndb", 0)
    if NDB:
        vDB = v.get(); oDB = oDB0
        vDum = v.get()
        vmem("dbpw", f"buffer_load_dword {vDum}, off, {SWS}, {oDB} sc1")
    stamp("iss1")
    if opt.get("codepf"):
        sPC = s.get(2, 2)
        a(f"""
        s_getpc_b64 {sPC}
        s_lshl_b32 {sTmp}, {sJ}, 2
        s_add_u32 {sTmp}, {sTmp}, {sW}
        s_min_u32 {sTmp}, {sTmp}, {opt['codepf']}
        s_lshl_b32 {sTmp}, {sTmp}, 7
        s_load_dword {sE[1]}, {sPC}, {sTmp}
        """)
    vWO, vTQ = [v.get() for _ in range(2)]
    vV = v.get(2)
    vKR = v.get(4); vTW = v.get(4); vTO = v.get(4); vTV = v.get(2); vFF = v.get(); vZ = v.get(); vSV = v.get()
    sHi = s.get()
    sB, sKH, sBA, sS, sC2 = [s.get() for _ in range(5)]
    oB1, oXF = oXO, oWQ
    vB1, vXF, vPRE, vF = v.get(), v.get(), v.get(), vXO
    oQS, oHS, oQG, oHG, oML, oPS, oV, oWO = [s.get() for _ in range(8)]
    vQS, vHS, vQG, vHG = [v.get() for _ in range(4)]
    vQW, vQR, vMX, vMR, vPW = [v.get() for _ in range(5)]
    vPS, vMLG, vFS, vFG = [v.get() for _ in range(4)]
    vPA = vL16
    oPA, oMLG, oFS, oFG, oFG2 = [s.get() for _ in range(5)]
    sB3 = s.get(2, 2)
    A = lines(f"""
    s_load_dwordx2 {SW2[0:2]}, s[0:1], 64
    s_load_dwordx2 {SWO[0:2]}, s[0:1], 32
    s_load_dwordx2 {SB1[0:2]}, s[0:1], 56
    s_load_dwordx2 {SOUT[0:2]}, s[0:1], 72
    s_mov_b32 {SK[2]}, {2*8*8192*256}
    s_mov_b32 {SK[3]}, 0x20000
    s_lshr_b32 {sBA}, {sJ}, 4
    s_and_b32 {sS}, {sJ}, 15
    s_lshl_b32 {sTmp}, {sBA}, 3
    s_add_u32 {sTmp}, {sTmp}, {sG}
    s_lshl_b32 {oKV}, {sTmp}, 21
    s_mul_i32 {sTmp}, {sS}, {KS * 1024}
    s_add_u32 {oKV}, {oKV}, {sTmp}
    s_add_u32 {oKV}, {oKV}, {6144*256}
    s_mul_i32 {oK}, {sW}, {KW * 1024}
    s_add_u32 {oK}, {oK}, {oKV}
    s_lshl_b32 {sTmp}, {sW}, 13
    s_lshl_b32 {sM}, {sW}, 11
    v_xor_b32 {vT0}, {vI}, {vGQ}
    v_lshlrev_b32 {vT0}, 4, {vT0}
    v_lshl_add_u32 {vK[0]}, {vGQ}, 8, {vT0}
    v_xor_b32 {vK[1]}, 64, {vK[0]}
    v_xor_b32 {vK[2]}, 0x80, {vK[0]}
    v_xor_b32 {vK[3]}, 0xc0, {vK[0]}
    v_lshl_add_u32 {vT0}, {vI}, 8, {vT0}
    s_add_u32 {sTmp}, {sTmp}, {L_K}
    v_add_u32 {vKR[0]}, {sTmp}, {vT0}
    s_mov_b32 {SWS[2]}, 0x10000000
    s_mov_b32 {SWS[3]}, 0x20000
    s_mov_b32 {sHi}, 0xffff0000
    s_mov_b32 {sB3[0]}, 0xff00ff00
    s_mov_b32 {sB3[1]}, 0xff00ff00
    v_mov_b32 {vFF}, 0xff
    v_mov_b32 {vZ}, 0
    v_lshlrev_b32 {vSV}, 1, v0
    s_lshl_b32 {sTmp}, {sW}, 7
    v_add_u32 {vSV}, {sTmp}, {vSV}
    s_lshl_b32 {sTmp}, {sW}, 10
    v_add_u32 {vPW}, {sTmp}, {vL16}
    s_and_b32 {sB}, {sW}, 1
    s_lshr_b32 {sKH}, {sW}, 1
    v_and_b32 {vT0}, 1, {vGQ}
    v_lshlrev_b32 {vF}, 1, {vT0}
    v_or_b32 {vF}, {vF}, {vB3}
    v_and_b32 {vT1}, 3, v0
    v_lshlrev_b32 {vT1}, 3, {vT1}
    v_lshrrev_b32 {vT0}, 2, {vI}
    v_lshl_add_u32 {vTQ}, {vGQ}, 3, {vT0}
    v_lshl_add_u32 {vTQ}, {vTQ}, 7, {vT1}
    v_xor_b32 {vTV[0]}, {sW}, {vF}
    v_lshl_add_u32 {vTQ}, {vTV[0]}, 5, {vTQ}
    v_lshl_add_u32 {vT0}, {vGQ}, 2, {vT0}
    v_lshl_add_u32 {vTW[0]}, {vT0}, 7, {vT1}
    v_lshl_add_u32 {vTW[0]}, {vF}, 5, {vTW[0]}
    v_lshl_add_u32 {vTV[1]}, {vT0}, 8, {vT1}
    v_and_b32 {vTV[0]}, 7, {vT0}
    v_lshlrev_b32 {vT0}, 4, {vGQ}
    v_lshl_add_u32 {vQS}, {vB3}, 13, {vT0}
    v_lshlrev_b32 {vHS}, 7, {vGQ}
    v_lshl_add_u32 {vHS}, {vB3}, 11, {vHS}
    s_lshl_b32 {oQG}, {sG}, 14
    s_add_u32 {oQG}, {oQG}, {QBUF}
    s_lshl_b32 {sTmp}, {sA}, 11
    s_add_u32 {oQS}, {oQG}, {sTmp}
    s_xor_b32 {sTmp}, {sC}, {opt.get('cqx', 1)}
    s_lshl_b32 {sTmp}, {sTmp}, 8
    s_add_u32 {oQS}, {oQS}, {sTmp}
    s_lshl_b32 {sTmp2}, {sW}, 6
    s_add_u32 {oQS}, {oQS}, {sTmp2}
    s_lshl_b32 {sTmp}, {sW}, 9
    s_add_u32 {oQG}, {oQG}, {sTmp}
    """)
    B = lines(f"""
    s_lshr_b32 {sT}, {sC}, 1
    s_sub_u32 {sT}, {sT}, {sA}
    s_and_b32 {sT}, {sT}, 3
    s_mul_i32 {sBLK}, {sG}, 7
    s_add_u32 {sBLK}, {sBLK}, 1
    s_lshr_b32 {sBLK}, {sBLK}, 1
    s_add_u32 {sBLK}, {sBLK}, {sT}
    s_and_b32 {sTmp2}, {sG}, 1
    s_add_u32 {sTmp2}, {sTmp2}, {sT}
    s_cmp_eq_u32 {sTmp2}, 4
    s_cselect_b32 {sBLK}, 0x4000, {sBLK}
    s_lshl_b32 {sTmp}, {sA}, 1
    s_and_b32 {sTmp2}, {sC}, 1
    s_add_u32 {sTmp}, {sTmp}, {sTmp2}
    s_lshl_b32 {oW1}, {sTmp}, 2
    s_add_u32 {oW1}, {oW1}, {sW}
    s_mul_i32 {oW1}, {oW1}, {16*3584}
    s_lshl_b32 {sTmp2}, {sBLK}, 7
    s_add_u32 {oW1}, {oW1}, {sTmp2}
    s_mov_b32 {SW1[2]}, {512*1792*2}
    s_mov_b32 {SW1[3]}, 0x20000
    v_lshrrev_b32 {vT1}, 3, v0
    v_mul_u32_u24 {vW1e}, 3584, {vT1}
    v_and_b32 {vT0}, 0x7f, {vWQe}
    v_add_u32 {vW1e}, {vW1e}, {vT0}
    v_xor_b32 {vW1o}, 64, {vW1e}
    s_lshl_b32 {oHG}, {sG}, 2
    s_add_u32 {oWO}, {oHG}, {sA}
    s_add_u32 {oHG}, {oHG}, {sT}
    s_lshl_b32 {oHG}, {oHG}, 12
    s_add_u32 {oHG}, {oHG}, {HBUF}
    s_lshl_b32 {sTmp}, {sTmp}, 4
    s_add_u32 {oHS}, {oHG}, {sTmp}
    s_lshl_b32 {sTmp}, {sW}, 9
    s_add_u32 {oHS}, {oHS}, {sTmp}
    s_mov_b32 {SW2[2]}, {512*1792*2}
    s_mov_b32 {SW2[3]}, 0x20000
    s_mov_b32 {SV[2]}, {2*8*8192*256}
    s_mov_b32 {SV[3]}, 0x20000
    s_mov_b32 {SB1[2]}, 3584
    s_mov_b32 {SB1[3]}, 0x20000
    s_lshl_b32 {sC2}, {sKH}, {2 if opt.get('crot', 1) else 8}
    s_xor_b32 {sC2}, {sC2}, {sC}
    s_and_b32 {sC2}, {sC2}, 7
    s_lshl_b32 {oW2}, {sBLK}, 2
    s_add_u32 {oW2}, {oW2}, {sW}
    s_lshl_b32 {oW2}, {oW2}, 14
    s_lshl_b32 {sTmp}, {sC2}, 7
    s_add_u32 {oW2}, {oW2}, {sTmp}
    v_lshlrev_b32 {vT0}, 1, {vGQ}
    v_and_b32 {vT1}, 7, v0
    v_xor_b32 {vT0}, {vT0}, {vT1}
    v_lshlrev_b32 {vT0}, 4, {vT0}
    v_lshrrev_b32 {vWO}, 3, v0
    v_lshl_add_u32 {vWO}, {vWO}, 10, {vT0}
    v_lshlrev_b32 {vT0}, 4, {vGQ}
    v_lshl_add_u32 {vT0}, {vB3}, 6, {vT0}
    v_lshlrev_b32 {vHG}, 4, {vT1}
    v_lshl_add_u32 {vHG}, {vT0}, 3, {vHG}
    v_lshrrev_b32 {vB1}, 1, {vT0}
    v_and_b32 {vT1}, 1, v0
    v_lshl_add_u32 {vB1}, {vT1}, 2, {vB1}
    v_and_b32 {vT0}, 2, v0
    v_add_u32 {vB1}, {vB1}, {vT0}
    v_and_b32 {vT0}, 1, {vGQ}
    v_lshlrev_b32 {vXF}, 1, {vT0}
    v_lshl_add_u32 {vXF}, {vT1}, 2, {vXF}
    v_lshlrev_b32 {vT0}, 1, {vGQ}
    v_xor_b32 {vT0}, {vT0}, {vI}
    v_lshlrev_b32 {vT0}, 4, {vT0}
    v_lshl_add_u32 {vV[0]}, {vGQ}, 8, {vT0}
    v_xor_b32 {vV[1]}, 0x80, {vV[0]}
    s_mul_i32 {oV}, {sKH}, {KH_[4] * 1024}
    s_add_u32 {oV}, {oV}, {oKV}
    s_mul_i32 {sTmp}, {sB}, {KH_[2] * 1024}
    s_add_u32 {oV}, {oV}, {sTmp}
    v_lshrrev_b32 {vFG}, 1, v0
    v_lshlrev_b32 {vFG}, 7, {vFG}
    v_lshl_add_u32 {vFG}, {vT1}, 4, {vFG}
    v_lshrrev_b32 {vT0}, 5, v0
    v_and_b32 {vT1}, 31, v0
    v_lshlrev_b32 {vQG}, 12, {vT0}
    v_lshl_add_u32 {vQG}, {vT1}, 4, {vQG}
    v_lshlrev_b32 {vQW}, 2, {vT0}
    v_lshl_add_u32 {vQW}, {vT1}, 3, {vQW}
    s_lshl_b32 {oB1}, {sBLK}, 7
    s_lshl_b32 {sTmp}, {sKH}, 6
    s_add_u32 {oB1}, {oB1}, {sTmp}
    s_lshl_b32 {oXF}, {sBA}, 10
    s_lshl_b32 {sTmp}, {sG}, 7
    s_add_u32 {oXF}, {oXF}, {sTmp}
    s_lshl_b32 {sTmp}, {sS}, 3
    s_add_u32 {oXF}, {oXF}, {sTmp}
    s_lshl_b32 {sTmp}, {sBA}, 13
    s_add_u32 {oQG}, {oQG}, {sTmp}
    s_lshl_b32 {sTmp}, {sB}, 11
    s_add_u32 {oHG}, {oHG}, {sTmp}
    s_lshl_b32 {sTmp}, {sKH}, 10
    s_add_u32 {oHG}, {oHG}, {sTmp}
    """)
    prewarm = opt.get("prewarm", 1)
    if prewarm:
        B += lines(f"""
        s_lshl_b32 {sTmp}, {sJ}, 2
        s_add_u32 {sTmp}, {sTmp}, {sW}
        s_lshl_b32 {sTmp2}, {sG}, 7
        s_add_u32 {sTmp2}, {sTmp2}, {sTmp}
        s_lshl_b32 {sTmp2}, {sTmp2}, 9
        s_add_u32 {sTmp2}, {sTmp2}, {PART}
        v_lshlrev_b32 {vPRE}, 7, v0
        v_add_u32 {vPRE}, {sTmp2}, {vPRE}
        s_and_b32 {sTmp}, {sTmp}, 15
        s_lshl_b32 {sTmp2}, {sG}, 4
        s_add_u32 {sTmp}, {sTmp}, {sTmp2}
        s_lshl_b32 {sTmp}, {sTmp}, 7
        s_add_u32 {sTmp}, {sTmp}, {MLB}
        v_writelane_b32 {vPRE}, {sTmp}, 4
        s_and_b32 {sTmp}, {oHS}, 0xfffff000
        s_lshl_b32 {sTmp2}, {sC}, 2
        s_add_u32 {sTmp2}, {sTmp2}, {sW}
        s_lshl_b32 {sTmp2}, {sTmp2}, 7
        s_add_u32 {sTmp}, {sTmp}, {sTmp2}
        v_writelane_b32 {vPRE}, {sTmp}, 5
        """)
    sU = sTmp2
    oWO2 = sBLK
    C = lines(f"""
    s_mov_b32 {SWO[2]}, {4096*512*2}
    s_mov_b32 {SWO[3]}, 0x20000
    s_mov_b32 {SOUT[2]}, 2048
    s_mov_b32 {SOUT[3]}, 0x20000
    v_xor_b32 {vKR[1]}, 64, {vKR[0]}
    v_xor_b32 {vKR[2]}, 0x80, {vKR[0]}
    v_xor_b32 {vKR[3]}, 0xc0, {vKR[0]}
    v_and_b32 {vT1}, 3, v0
    v_mul_u32_u24 {vQR}, {QSTR}, {vT1}
    v_lshl_add_u32 {vQR}, {vGQ}, 4, {vQR}
    v_lshlrev_b32 {vMR}, 4, {vT1}
    v_lshlrev_b32 {vPS}, 13, {vT1}
    v_lshl_add_u32 {vPS}, {vGQ}, 8, {vPS}
    v_bfe_u32 {vT0}, v0, 2, 1
    v_lshl_add_u32 {vPS}, {vT0}, 10, {vPS}
    s_lshl_b32 {sU}, {sW}, 2
    v_add_u32 {vMX}, {sU}, {vMR}
    s_lshl_b32 {sU}, {sKH}, 12
    v_add_u32 {vTW[0]}, {sU}, {vTW[0]}
    v_xor_b32 {vTW[1]}, 32, {vTW[0]}
    v_xor_b32 {vTW[2]}, 64, {vTW[0]}
    v_xor_b32 {vTW[3]}, 0x60, {vTW[0]}
    v_add_u32 {vTO[0]}, {sU}, {vTW[0]}
    v_add_u32 {vTO[1]}, {sU}, {vTW[1]}
    v_add_u32 {vTO[2]}, {sU}, {vTW[2]}
    v_add_u32 {vTO[3]}, {sU}, {vTW[3]}
    s_lshl_b32 {sU}, {sW}, 1
    v_xor_b32 {vTV[0]}, {sU}, {vTV[0]}
    v_lshl_add_u32 {vTV[0]}, {vTV[0]}, 5, {vTV[1]}
    v_add_u32 {vTV[0]}, {L_V}, {vTV[0]}
    v_xor_b32 {vTV[1]}, 32, {vTV[0]}
    s_mul_i32 {sU}, {sW}, {QSTR}
    v_add_u32 {vQW}, {sU}, {vQW}
    v_lshl_add_u32 {vMLG}, {vGQ}, 2, {vI}
    v_and_b32 {vMLG}, 15, {vMLG}
    v_lshlrev_b32 {vMLG}, 4, {vMLG}
    v_lshlrev_b32 {vFS}, 3, {vI}
    v_lshl_add_u32 {vFS}, {vGQ}, 13, {vFS}
    s_lshl_b32 {oFS}, {oWO}, 1
    s_add_u32 {oFS}, {oFS}, {sKH}
    s_lshl_b32 {oFS}, {oFS}, 7
    s_lshl_b32 {sU}, {sC2}, 1
    s_add_u32 {sU}, {sU}, {sB}
    s_lshl_b32 {sU}, {sU}, 15
    s_add_u32 {oFS}, {oFS}, {sU}
    s_add_u32 {oFS}, {oFS}, {FIN}
    s_lshl_b32 {oWO}, {oWO}, 4
    s_add_u32 {oWO}, {oWO}, {sW}
    s_lshl_b32 {oWO}, {oWO}, 13
    s_xor_b32 {sU}, {sC}, 4
    s_lshl_b32 {sU}, {sU}, 7
    s_add_u32 {oWO2}, {oWO}, {sU}
    s_add_u32 {oWO2}, {oWO2}, 65536
    s_lshl_b32 {sU}, {sC}, 7
    s_add_u32 {oWO}, {oWO}, {sU}
    s_lshl_b32 {oPS}, {sG}, 1
    s_add_u32 {oPS}, {oPS}, {sBA}
    s_lshl_b32 {oML}, {oPS}, 2
    s_add_u32 {oML}, {oML}, {sW}
    s_lshl_b32 {oML}, {oML}, 8
    s_lshl_b32 {sU}, {sS}, 4
    s_add_u32 {oML}, {oML}, {sU}
    s_add_u32 {oML}, {oML}, {MLB}
    s_lshl_b32 {oPS}, {oPS}, 15
    s_add_u32 {oPS}, {oPS}, {sU}
    s_lshl_b32 {sU}, {sW}, 11
    s_add_u32 {oPS}, {oPS}, {sU}
    s_add_u32 {oPS}, {oPS}, {PART}
    s_lshl_b32 {oPA}, {sG}, 1
    s_add_u32 {oPA}, {oPA}, {sB}
    s_lshl_b32 {oPA}, {oPA}, 2
    s_add_u32 {oPA}, {oPA}, {sA}
    s_lshl_b32 {oMLG}, {oPA}, 8
    s_add_u32 {oMLG}, {oMLG}, {MLB}
    s_lshl_b32 {oPA}, {oPA}, 13
    s_lshl_b32 {sU}, {sKH}, 12
    s_add_u32 {oPA}, {oPA}, {sU}
    s_add_u32 {oPA}, {oPA}, {PART}
    s_lshl_b32 {oFG}, {sG}, 3
    s_lshr_b32 {sU}, {sJ}, 2
    s_add_u32 {oFG}, {oFG}, {sU}
    s_lshl_b32 {oFG}, {oFG}, 13
    s_and_b32 {sU}, {sJ}, 3
    s_lshl_b32 {sU}, {sU}, 5
    s_add_u32 {oFG}, {oFG}, {sU}
    s_add_u32 {oFG}, {oFG}, {FIN}
    s_add_u32 {oFG2}, {oFG}, 4096
    """)
    def kjob(idx):
        def f():
            a(f"s_lshl2_add_u32 m0, {sM}, {L_K + 1024 * idx}\ns_add_u32 {oK}, {oK}, {1024 * (KH_[idx] - KH_[idx - 1]) if idx else 0}")
            vmem("k", f"buffer_load_dwordx4 {vK[idx & 3]}, {SK}, {oK} offen {pol('k')} lds")
        return f
    NKA = opt.get("nka", 0)
    NKP = opt.get("nkp", 6)
    b1r = v.get(); xf = v.get()
    def w2job(n):
        def f():
            if n == 0: a(f"s_add_u32 m0, {sM}, {L_W2}\ns_nop 0")
            else: a(f"s_add_u32 m0, {sM}, {L_W2 + 1024}\ns_add_u32 {oW2}, {oW2}, 8192")
            vmem("w2", f"buffer_load_dwordx4 {vWO}, {SW2}, {oW2} offen {pol('w2')} lds")
        return f
    def smalljob():
        vmem("b1", f"buffer_load_ushort {b1r}, {vB1}, {SB1}, {oB1} offen")
        vmem("xf", f"buffer_load_ushort {xf}, {vXF}, {SX}, {oXF} offen")
        if prewarm:
            a("s_mov_b32 exec_lo, %d\ns_mov_b32 exec_hi, 0" % (31 if opt.get("qpw", 1) else 63))
            vmem("pre", f"buffer_load_dword {vPRE}, {vPRE}, {SWS}, 0 offen sc1")
            a("s_mov_b64 exec, -1")
    def w1job(n):
        def f():
            if n == 0: a(f"s_add_u32 m0, {sM}, {L_W1}\ns_nop 0")
            else: a(f"s_add_u32 m0, {sM}, {L_W1 + 1024}\ns_add_u32 {oW1}, {oW1}, 28672")
            vmem("w1", f"buffer_load_dwordx4 {vW1o if n else vW1e}, {SW1}, {oW1} offen {pol('w1')} lds")
        return f
    kw = opt.get("kw1", 0)
    alljobs = [kjob(i) for i in range(kw)] + [w1job(0), w1job(1)] + [kjob(i) for i in range(kw, 8)]
    kj = alljobs[:NKP]; later = alljobs[NKP:]
    for x in A[:27]: a(x)
    tch = opt.get("touch", "")
    if tch:
        a(f"""
        s_lshl_b32 {sTmp2}, {sG}, 2
        s_add_u32 {sTmp2}, {sTmp2}, {sA}
        s_lshl_b32 {sTmp2}, {sTmp2}, 17
        s_waitcnt lgkmcnt(0)
        """)
        if tch == "s":
            a(f"""
            s_load_dword {sE[1]}, {SK[0:2]}, {oK}
            s_load_dword {sE[1]}, {SV[0:2]}, {oK}
            s_load_dword {sE[1]}, {SWO[0:2]}, {sTmp2}
            s_load_dword {sE[1]}, {SW1[0:2]}, 0
            s_load_dword {sE[1]}, {SW2[0:2]}, 0
            s_load_dword {sE[1]}, {SB1[0:2]}, 0
            s_load_dword {sE[1]}, {SOUT[0:2]}, 0
            """)
        else:
            vD = v.get(2)
            a(f"v_mov_b32 {vD[0]}, {oK}")
            vmem("t", f"global_load_dword {vD[1]}, {vD[0]}, {SV[0:2]}")
            a(f"v_mov_b32 {vD[0]}, {sTmp2}")
            vmem("t", f"global_load_dword {vD[1]}, {vD[0]}, {SWO[0:2]}")
            a(f"v_mov_b32 {vD[0]}, 0")
            vmem("t", f"global_load_dword {vD[1]}, {vD[0]}, {SW2[0:2]}")
            vmem("t", f"global_load_dword {vD[1]}, {vD[0]}, {SW1[0:2]}")
            vmem("t", f"global_load_dword {vD[1]}, {vD[0]}, {SWS[0:2]}")
    a(f"s_load_dword {sE[0]}, {SWS[0:2]}, 0")
    if opt.get("spf", 0):
        a(f"s_bfe_u32 {sTmp2}, {oWQ}, 0x30007\ns_cmp_eq_u32 {sTmp2}, 3\ns_cbranch_scc0 L_nospf")
        for r in range(opt.get("spfr", 6)):
            for hf in range(2):
                a(f"s_buffer_load_dword {sE[1]}, {SWQ}, {oWQ} offset:{(7 - r) * 8192 + 64 * hf}")
        a("L_nospf:")
    for x in A[27:]: a(x)
    ja = [kj.pop(0) for _ in range(NKA)]
    if opt.get("qpw", 1) == 1:
        vD2 = v.get(2)
        a(f"""
        s_lshl_b32 {sTmp}, {sJ}, 2
        s_add_u32 {sTmp}, {sTmp}, {sW}
        s_lshl_b32 {sTmp}, {sTmp}, 7
        s_and_b32 {sTmp2}, {oQS}, 0xffffc000
        s_add_u32 {sTmp}, {sTmp}, {sTmp2}
        """)
        vmem("pre", f"buffer_load_dword {vD2[0]}, off, {SWS}, {sTmp} sc1")
    weave(B, ja, max(len(B) // (NKA + 1), 1))
    for f in ja: f()
    if opt.get("qpw", 1) == 1:
        a(f"v_readlane_b32 {sTmp}, {vPRE}, 5\ns_nop 3")
        vmem("pre", f"buffer_load_dword {vD2[1]}, off, {SWS}, {sTmp} sc1")
    mk = v.mark()
    f = v.get(16, 2); nm = v.get(2, 2); acc = v.get(2, 2); t0 = v.get(); t1 = v.get(); vMean = v.get(2, 2); vR = v.get(2, 2)
    g4 = v.get(8, 2)
    stamp("addr")
    wait_vm("xs")
    stamp("x")
    LN = []
    for k in range(8):
        LN += [f"v_lshlrev_b32 {f[2*k]}, 16, {xs[k]}", f"v_and_b32 {f[2*k+1]}, {sHi}, {xs[k]}"]
    LN += lines(f"""
    v_pk_add_f32 {g4[0:2]}, {f[0:2]}, {f[2:4]}
    v_pk_add_f32 {g4[2:4]}, {f[4:6]}, {f[6:8]}
    v_pk_add_f32 {g4[4:6]}, {f[8:10]}, {f[10:12]}
    v_pk_add_f32 {g4[6:8]}, {f[12:14]}, {f[14:16]}
    v_pk_add_f32 {g4[0:2]}, {g4[0:2]}, {g4[2:4]}
    v_pk_add_f32 {g4[4:6]}, {g4[4:6]}, {g4[6:8]}
    v_add_f32 {acc[0]}, {g4[0]}, {g4[1]}
    v_add_f32 {acc[1]}, {g4[4]}, {g4[5]}
    """)
    xu = g4
    def red(x, tmp, fill):
        o = []
        def F(n=2):
            for _ in range(n):
                if fill: o.append(fill.pop(0))
        o += [f"v_cndmask_b32 {tmp}, {acc[1]}, {acc[0]}, {sB3}", f"v_cndmask_b32 {x}, {acc[0]}, {acc[1]}, {sB3}"]
        F(2); o.append(f"v_add_f32_dpp {x}, {tmp}, {x} row_ror:8 {DPPM}")
        for m in ("quad_perm:[1,0,3,2]", "quad_perm:[2,3,0,1]", "row_half_mirror"):
            F(); o.append(f"v_add_f32_dpp {x}, {x}, {x} {m} {DPPM}")
        o.append(f"v_mov_b32 {tmp}, {x}"); F(); o += [f"v_permlane16_swap_b32 {x}, {tmp}", f"v_add_f32 {x}, {x}, {tmp}"]
        o.append(f"v_mov_b32 {tmp}, {x}"); F(); o += [f"v_permlane32_swap_b32 {x}, {tmp}", f"v_add_f32 {x}, {x}, {tmp}"]
        return o + fill
    XOW = "@waitxo"
    fill = [XOW]
    for k in range(4):
        fill += [f"v_lshlrev_b32 {xu[2*k]}, 16, {xo[k]}", f"v_and_b32 {xu[2*k+1]}, {sHi}, {xo[k]}"]
    LN += red(t0, t1, fill)
    nm2 = vR
    LN += lines(f"""
    v_mul_f32 {t0}, 0xbb000000, {t0}
    v_cvt_pk_bf16_f32 {vMean[0]}, {t0}, {t0}
    v_and_b32 {vMean[0]}, {sHi}, {vMean[0]}
    v_mov_b32_dpp {nm[0]}, {t0} row_newbcast:0 {DPPM}
    v_mov_b32_dpp {nm2[0]}, {t0} row_newbcast:8 {DPPM}
    v_mov_b32_dpp {nm[1]}, {t0} row_newbcast:0 {DPPM}
    v_mov_b32_dpp {nm2[1]}, {t0} row_newbcast:8 {DPPM}
    """)
    for k in range(8):
        LN.append(f"v_pk_add_f32 {f[2*k:2*k+2]}, {f[2*k:2*k+2]}, {nm if k < 4 else nm2}")
    LN += [f"v_pk_mul_f32 {nm}, {f[0:2]}, {f[0:2]}", f"v_pk_mul_f32 {nm2}, {f[8:10]}, {f[8:10]}"]
    for k in range(1, 4):
        LN += [f"v_pk_fma_f32 {nm}, {f[2*k:2*k+2]}, {f[2*k:2*k+2]}, {nm}", f"v_pk_fma_f32 {nm2}, {f[8+2*k:8+2*k+2]}, {f[8+2*k:8+2*k+2]}, {nm2}"]
    LN += [f"v_add_f32 {acc[0]}, {nm[0]}, {nm[1]}", f"v_add_f32 {acc[1]}, {nm2[0]}, {nm2[1]}"]
    fill = [f"v_mov_b32 {vMean[1]}, {vMean[0]}"]
    for k in range(4):
        fill.append(f"v_pk_add_f32 {xu[2*k:2*k+2]}, {xu[2*k:2*k+2]}, {vMean}")
    for k in range(4):
        fill.append(f"v_cvt_pk_bf16_f32 {xo[k]}, {xu[2*k]}, {xu[2*k+1]}")
    for k in range(2):
        fill += [f"v_lshlrev_b32 {xu[2*k]}, 16, {xo[k]}", f"v_and_b32 {xu[2*k+1]}, {sHi}, {xo[k]}"]
    LN += red(t0, t1, fill)
    LN += lines(f"""
    v_mul_f32 {t0}, 0x3b000000, {t0}
    v_cvt_pk_bf16_f32 {t0}, {t0}, {t0}
    v_lshlrev_b32 {t0}, 16, {t0}
    v_add_f32 {t0}, 0x3727c5ac, {t0}
    v_cvt_pk_bf16_f32 {t0}, {t0}, {t0}
    v_lshlrev_b32 {t0}, 16, {t0}
    v_sqrt_f32 {t0}, {t0}
    v_lshlrev_b32 {xu[4]}, 16, {xo[2]}
    v_cvt_pk_bf16_f32 {t0}, {t0}, {t0}
    v_lshlrev_b32 {t0}, 16, {t0}
    v_rcp_f32 {vR[0]}, {t0}
    v_and_b32 {xu[5]}, {sHi}, {xo[2]}
    v_lshlrev_b32 {xu[6]}, 16, {xo[3]}
    v_and_b32 {xu[7]}, {sHi}, {xo[3]}
    v_mov_b32 {vR[1]}, {vR[0]}
    """)
    for k in range(4):
        LN.append(f"v_pk_mul_f32 {xu[2*k:2*k+2]}, {xu[2*k:2*k+2]}, {vR}")
    for k in range(4):
        LN.append(f"v_cvt_pk_bf16_f32 {xo[k]}, {xu[2*k]}, {xu[2*k+1]}")
    LN.append(f"ds_write_b128 {vPW}, {xo} offset:{L_XN}")
    LN.append(f"ds_write_b32 {vZ}, {vZ} offset:{L_MIX}")
    every = opt.get("kevery", 12)
    k = every - opt.get("kfirst", 1)
    for ins in LN:
        if ins == XOW: wait_vm("xo"); continue
        a(ins); k += 1
        if kj and k >= every:
            kj.pop(0)(); k = 0
    for fj in kj: fj()
    v.release(mk)
    sTag = s.get(4); sXCC = s.get(); sTP = s.get(); sTH = s.get()
    sCnt, sMix = s.get(), s.get()
    stamp("ln")
    a(f"""
    s_getreg_b32 {sXCC}, hwreg(HW_REG_XCC_ID, 0, 4)
    s_waitcnt lgkmcnt(0)
    s_add_u32 {sTag[0]}, {sE[0]}, {hex(PHI)}
    s_lshr_b32 {sTag[1]}, {sTag[0]}, 8
    s_lshr_b32 {sTag[2]}, {sTag[0]}, 16
    s_lshr_b32 {sTag[3]}, {sTag[0]}, 24
    s_xor_b32 {sTP}, {sTag[0]}, {sXCC}
    s_mov_b32 {sTH}, {sTP}
    """)
    if NDB:
        vDBV = v.get(); sDBP = SK[0:2]; sDBX = 'vcc'
        a(f"""
        v_lshlrev_b32 {vDB}, 7, v0
        v_mov_b32 {vDBV}, {sTP}
        s_and_b32 {oDB}, {oDB}, 0xfffffc00
        s_xor_b32 {sTmp}, {sC}, {opt.get('cqx', 1)}
        s_lshl_b32 {sTmp}, {sTmp}, 2
        s_add_u32 {sTmp}, {sTmp}, {sA}
        s_lshl_b32 {sTmp}, {sTmp}, 2
        s_add_u32 {sTmp}, {sTmp}, {sW}
        s_add_u32 {oDB}, {oDB}, {sTmp}
        s_and_b32 vcc_lo, {sTP}, 0xff
        s_mul_i32 vcc_lo, vcc_lo, 0x01010101
        s_mov_b32 vcc_hi, vcc_lo
        """)
    wait_vm("wq")
    stamp("wq")
    a("s_barrier")
    xn = v.get(8, 2)
    mk = v.mark()
    xn2 = v.get(8, 2); aq = v.get(16, 2); dq = v.get(4, 2)
    xnt = [xn[0:4], xn[4:8], xn2[0:4], xn2[4:8]]
    for t in range(4):
        a(f"ds_read_b128 {xnt[t]}, {vL16} offset:{L_XN + 1024*t}")
        for hi in range(2):
            a(f"ds_read_b64_tr_b16 {aq[4*t+2*hi:4*t+2*hi+2]}, {vTQ} offset:{L_WQ + 4096*t + 512*hi}")
    for t in range(4):
        a(f"s_waitcnt lgkmcnt({9 - 3*t})")
        a(f"v_mfma_f32_16x16x32_bf16 {dq}, {aq[4*t:4*t+4]}, {xnt[t]}, {dq if t else 0}")
    def pub(d, voff, soff, name, tp):
        a("s_mov_b32 exec_lo, 0x01010101\ns_mov_b32 exec_hi, 0x01010101")
        a(f"v_bfi_b32 {d[0]}, {vFF}, {tp}, {d[0]}")
        for k in range(1, 4):
            a(f"v_bfi_b32 {d[k]}, {vFF}, {sTag[k]}, {d[k]}")
    pub(dq, vQS, oQS, "qs", sTP)
    vmem("qs", f"buffer_store_dwordx4 {dq}, {vQS}, {SWS}, {oQS} offen {opt.get('stpol', '')}")
    a(f"ds_write_b128 {vSV}, {dq} offset:{L_QSV}")
    a("s_mov_b64 exec, -1")
    v.release(mk)
    stamp("pub1")
    qg = v.get(8, 2); hg = v.get(4, 2)
    DBR = Reg("s", 16, 8)
    NVB2 = opt.get("nvb2", -1)
    dual = NVB2 is not None and NVB2 >= 0
    qg2 = v.get(8, 2) if dual else None
    def poll1(first, r=None, name="p1"):
        r = r or qg
        t = [f"buffer_load_dwordx4 {r[0:4]}, {vQG}, {SWS}, {oQG} offen sc1",
             f"buffer_load_dwordx4 {r[4:8]}, {vQG}, {SWS}, {oQG} offen offset:2048 sc1"]
        for x in t:
            if first: vmem(name, x)
            else: a(x)
    def vjob(n):
        def f():
            assert KH_[6] == KH_[4] + KH_[2] and all(KH_[2 * k + 1] - KH_[2 * k] == KH_[1] for k in range(4))
            d = 0 if n == 0 else (KH_[1] if n & 1 else KW - KH_[1])
            a(f"s_add_u32 m0, {sM}, {L_V + 8192 * (n >> 1) + 1024 * (n & 1)}\ns_add_i32 {oV}, {oV}, {1024 * d}")
            vmem("v%d" % (n // 2), f"buffer_load_dwordx4 {vV[n & 1]}, {SV}, {oV} offen {pol('v')} lds")
        return f
    sMsk, sScale, sL2E, sLn2, sM2 = sT, oW1, oB1, oK, oKV
    qb = v.get(16, 2); sc = v.get(8, 2); tmp4 = v.get(4, 2); ones = v.get(4, 2); pr = v.get(4, 2); af = v.get(4, 2); mlr = v.get(4, 2)
    sEv = sB3; sEv2 = sE; vSc2 = v.get(2, 2)
    C2 = lines(f"""
    s_mov_b32 {sMsk}, 0xffffff00
    v_mov_b32 {vSc2[0]}, 0x3db504f3
    v_mov_b32 {vSc2[1]}, 0x3db504f3
    s_mov_b32 {sL2E}, 0x3fb8aa3b
    s_mov_b32 {sLn2}, 0x3f317218
    s_mov_b32 {sM2}, 0xc038aa3b
    s_mov_b32 {sEv[0]}, 0x55555555
    s_mov_b32 {sEv[1]}, 0x55555555
    s_mov_b32 {sEv2[0]}, 0x33333333
    s_mov_b32 {sEv2[1]}, 0x33333333
    v_mov_b32 {mlr[2]}, {sTag[0]}
    v_mov_b32 {mlr[3]}, {sTag[0]}
    """)
    for k in range(4):
        C2 += [f"v_mov_b32 {ones[k]}, 0x3f803f80", f"v_mov_b32 {pr[k]}, {sTag[0]}", f"v_mov_b32 {af[k]}, 0"]
    a(f"s_mov_b32 {sCnt}, 0")
    a1 = sc; dh = v.get(4, 2)
    def hjob():
        wait_vm("w1")
        a("s_waitcnt lgkmcnt(0)\ns_barrier")
        for t in range(2):
            for hi in range(2):
                a(f"ds_read_b64_tr_b16 {a1[4*t+2*hi:4*t+2*hi+2]}, {vTQ} offset:{L_W1 + 4096*t + 512*hi}")
        for t in range(2):
            a(f"s_waitcnt lgkmcnt({2 - 2*t})")
            a(f"v_mfma_f32_16x16x32_bf16 {dh}, {a1[4*t:4*t+4]}, {xn[4*t:4*t+4]}, {dh if t else 0}")
        for x in C[nC:nC+6]: a(x)
        del C[nC:nC+6]
        pub(dh, vHS, oHS, "hs", sTH)
        vmem("hs", f"buffer_store_dwordx4 {dh}, {vHS}, {SWS}, {oHS} offen {opt.get('stpol', '')}")
        a("s_mov_b64 exec, -1")
        stamp("pubh")
    def hpoll(first=True):
        x = f"buffer_load_dwordx4 {hg}, {vHG}, {SWS}, {oHG} offen sc1"
        if first: vmem("ph", x)
        else: a(x)
    NVQ = opt.get("nvq", 4); NVH = opt.get("nvh", 0); NVP = opt.get("nvp", 9); NV1 = opt.get("nv1", 8)
    for fj in later + [smalljob]: fj()
    vj = [vjob(n) for n in range(8)]
    first = vj[:NVH]
    if NVQ <= NVH: first.insert(NVQ, lambda: poll1(True))
    if first: first.pop(0)()
    nC = opt.get("nc1", 40)
    weave(C[:nC], first, max(nC // (len(first) + 1), 1))
    for fj in first: fj()
    hjob()
    HOLD = opt.get("hold3", 0)
    def wojob(n, late=False):
        def f():
            ks = [0, 2, 1, 3][n]; o = oWO2 if ks >= 2 else oWO
            if HOLD and n >= 4 - HOLD:
                if not late: a(f"s_add_u32 {o}, {o}, 32768")
                a(f"""
                s_lshr_b32 {sTmp2}, {sM}, 1
                s_add_u32 {sTmp2}, {sTmp2}, {L_WO + 4096 * ks}
                s_and_b32 m0, {sC}, 3
                s_cmp_{'lg' if late else 'eq'}_u32 m0, 3
                s_cselect_b32 m0, {L_SP}, {sTmp2}
                s_cselect_b32 {sTmp2}, 0x40000000, {o}
                """)
                vmem("wo%d" % (n >> 1), f"buffer_load_dwordx4 {vWO}, {SWO}, {sTmp2} offen {pol('wo')} lds")
                if n == 3:
                    a(f"s_cselect_b32 {sTmp2}, 0x40000000, {oFS}")
                    finpw(sTmp2)
                return
            a(f"s_lshr_b32 m0, {sM}, 1\ns_add_u32 m0, m0, {L_WO + 4096 * ks}\ns_add_u32 {o}, {o}, {32768 if n >= 2 else 0}")
            vmem("wo%d" % (n >> 1), f"buffer_load_dwordx4 {vWO}, {SWO}, {o} offen {pol('wo')} lds")
        return f
    W2AT = opt.get("w2at")
    wj = ([] if W2AT is not None else [w2job(0), w2job(1)]) + [wojob(n) for n in range(4)]
    if NVP > NV1: wj.insert(opt.get("hidx", 0), hpoll)
    wj = vj[NV1:] + wj
    def finpw(o=None):
        a("s_mov_b32 exec_lo, 0x00010001\ns_mov_b32 exec_hi, 0x00010001")
        vmem("pre", f"buffer_load_dword {vPRE}, {vFS}, {SWS}, {o or oFS} offen {opt.get('fpwpol', '')}")
        if opt.get("outpw"):
            vmem("pre", f"buffer_load_ushort {vPRE}, {vXF}, {SOUT}, {oXF} offen")
        a("s_mov_b64 exec, -1")
    if opt.get("finpw", 2) == 2 and not HOLD:
        last = wj[-1]
        wj[-1] = lambda: (last(), finpw())
    NW0 = opt.get("nw0", 1)
    early = wj[:NW0]; wj = wj[NW0:]
    wopos = list(opt.get("wopos", [0, 0, 1, 2, 2, 2]))[-len(wj):] if wj else []
    second = vj[NVH:NV1]
    if W2AT is not None:
        second[W2AT - NVH:W2AT - NVH] = [w2job(0), w2job(1)]
    if dual: second.insert(NVB2 - NVH, lambda: poll1(True, qg2, "p1b"))
    if NVQ > NVH: second.insert(NVQ - NVH, lambda: poll1(True))
    assert NVP > NV1
    weave(C[nC:] + C2, second, max((len(C) - nC + len(C2)) // (len(second) + 1), 1))
    for fj in second: fj()
    if opt.get("finpw", 2) == 1: finpw()
    if early: a("s_waitcnt lgkmcnt(0)")
    for fj in early: fj()
    stamp("issV")
    wait_vm("k")
    for T in range(2):
        for st in range(4):
            a(f"ds_read_b128 {kk[16*T+4*st:16*T+4*st+4]}, {vKR[st]} offset:{4096*T}")
    wait_vm("p1")
    nB = len(vm) - 1 - max(i for i, n in enumerate(vm) if n == "p1b") if dual else 0
    stamp("p1")
    a("L_chk1:")
    a(f"v_xor_b32 {vT0}, {sTP}, {qg[0]}\nv_xor_b32 {vT1}, {sTP}, {qg[4]}")
    seq = [(qg[1], sTag[1], vT0), (qg[5], sTag[1], vT1), (qg[2], sTag[2], vT0), (qg[6], sTag[2], vT1), (qg[3], sTag[3], vT0), (qg[7], sTag[3], vT1)]
    for r, tg, d in seq:
        a(f"v_bitop3_b32 {d}, {r}, {tg}, {d} {BOP}")
    a(f"""
    v_bitop3_b32 {vT0}, {vT0}, {vT1}, {vFF} bitop3:0xa8
    v_cmp_ne_u32 vcc, 0, {vT0}
    """)
    for k in range(8):
        a(f"v_and_b32 {sc[k]}, {sMsk}, {qg[k]}")
    a(f"""
    s_cbranch_vccnz L_retry1
    L_ok1:
    """)
    stamp("ok1")
    def WO(p):
        while wj and wopos and wopos[0] <= p:
            wopos.pop(0); wj.pop(0)()
    WO(-1)
    a(f"""
    v_pk_add_f32 {sc[0:2]}, {sc[0:2]}, {sc[4:6]}
    v_pk_add_f32 {sc[2:4]}, {sc[2:4]}, {sc[6:8]}
    v_permlane32_swap_b32 {sc[0]}, {sc[2]}
    v_permlane32_swap_b32 {sc[1]}, {sc[3]}
    v_add_f32 {sc[0]}, {sc[0]}, {sc[2]}
    v_add_f32 {sc[1]}, {sc[1]}, {sc[3]}
    v_cvt_pk_bf16_f32 {sc[0]}, {sc[0]}, {sc[1]}
    ds_write_b32 {vQW}, {sc[0]} offset:{L_Q}
    """)
    WO(0)
    a("s_waitcnt lgkmcnt(0)\ns_barrier")
    a(f"ds_read_b32 {vT1}, {vZ} offset:{L_MIX}")
    for st in range(4):
        a(f"ds_read_b128 {qb[4*st:4*st+4]}, {vQR} offset:{L_Q + 64*st}")
    for st in range(4):
        a(f"s_waitcnt lgkmcnt({3 - st})")
        for T in range(2):
            d = sc[4*T:4*T+4]
            a(f"v_mfma_f32_16x16x32_bf16 {d}, {kk[16*T+4*st:16*T+4*st+4]}, {qb[4*st:4*st+4]}, {d if st else 0}")
    a(f"v_readfirstlane_b32 {sMix}, {vT1}")
    WO(1)
    pk = qb
    t4 = xn[0:4]; t4b = xn[4:8]
    vMax = mlr[0]
    a(f"""
    v_max3_f32 {vT0}, {sc[0]}, {sc[1]}, {sc[2]}
    v_max3_f32 {vT1}, {sc[3]}, {sc[4]}, {sc[5]}
    v_max3_f32 {vT0}, {vT0}, {sc[6]}, {sc[7]}
    v_max_f32 {vT0}, {vT0}, {vT1}
    v_mov_b32 {vT1}, {vT0}
    v_cvt_pk_bf16_f32 {t4[0]}, {sc[0]}, {sc[1]}
    v_cvt_pk_bf16_f32 {t4[1]}, {sc[2]}, {sc[3]}
    v_permlane16_swap_b32 {vT0}, {vT1}
    v_max_f32 {vT0}, {vT0}, {vT1}
    v_mov_b32 {vT1}, {vT0}
    v_cvt_pk_bf16_f32 {t4[2]}, {sc[4]}, {sc[5]}
    v_cvt_pk_bf16_f32 {t4[3]}, {sc[6]}, {sc[7]}
    v_permlane32_swap_b32 {vT0}, {vT1}
    v_max_f32 {vT0}, {vT0}, {vT1}
    ds_write_b32 {vMX}, {vT0} offset:{L_MX}
    """)
    for k in range(4):
        a(f"v_lshlrev_b32 {sc[2*k]}, 16, {t4[k]}\nv_and_b32 {sc[2*k+1]}, {sHi}, {t4[k]}")
    for k in range(4):
        a(f"v_pk_mul_f32 {sc[2*k:2*k+2]}, {sc[2*k:2*k+2]}, {vSc2}")
    a(f"s_cmp_eq_u32 {sMix}, 0\ns_cbranch_scc0 L_mixed\nL_mixback:")
    a(f"s_waitcnt lgkmcnt(0)\ns_barrier\nds_read_b128 {t4b}, {vMR} offset:{L_MX}")
    bw = v.get(16, 2); df = v.get(16, 2)
    for k in range(4):
        a(f"v_cvt_pk_bf16_f32 {t4[k]}, {sc[2*k]}, {sc[2*k+1]}")
    for k in range(4):
        a(f"v_lshlrev_b32 {sc[2*k]}, 16, {t4[k]}\nv_and_b32 {sc[2*k+1]}, {sHi}, {t4[k]}")
    a(f"""
    s_waitcnt lgkmcnt(0)
    v_max3_f32 {vT0}, {t4b[0]}, {t4b[1]}, {t4b[2]}
    v_max_f32 {vT0}, {vT0}, {t4b[3]}
    v_cvt_pk_bf16_f32 {vT0}, {vT0}, {vT0}
    v_lshlrev_b32 {vT0}, 16, {vT0}
    v_mul_f32 {vT0}, {vT0}, {vSc2[0]}
    v_cvt_pk_bf16_f32 {vT0}, {vT0}, {vT0}
    v_lshlrev_b32 {vT0}, 16, {vT0}
    v_mul_f32 {vMax}, {sL2E}, {vT0}
    """)
    for k in range(8):
        a(f"v_fma_f32 {sc[k]}, {sc[k]}, {sL2E}, -{vMax}")
    for k in range(8):
        a(f"v_exp_f32 {sc[k]}, {sc[k]}")
    for k in range(4):
        a(f"v_cvt_pk_bf16_f32 {t4[k]}, {sc[2*k]}, {sc[2*k+1]}")
    a(f"ds_write_b128 {vPW}, {t4} offset:{L_XN}")
    WO(2); WO(3)
    WO(4)
    av = kk; do = v.get(8, 2); dl = sc[0:4]
    a(f"v_mov_b32 {vT0}, 0\nv_lshlrev_b32 {b1r}, 16, {b1r}\ns_lshl_b32 {sTmp}, 1, {sW}\ns_cmp_eq_u32 {sMix}, 0")
    wait_vm("v1")
    a("s_waitcnt lgkmcnt(0)\ns_barrier")
    def vreads(t):
        for T in range(2):
            for hi in range(2):
                a(f"ds_read_b64_tr_b16 {av[8*t+4*T+2*hi:8*t+4*T+2*hi+2]}, {vTV[T]} offset:{8192*t + 4096*hi}")
    def pvm(t, T):
        d = do[4*T:4*T+4]
        a(f"v_mfma_f32_16x16x32_bf16 {d}, {av[8*t+4*T:8*t+4*T+4]}, {pk[4*t:4*t+4]}, {d if t else 0}")
    for t in range(4):
        a(f"ds_read_b128 {pk[4*t:4*t+4]}, {vL16} offset:{L_XN + 1024*t}")
    vreads(0); vreads(1)
    for t in range(4):
        a(f"s_waitcnt lgkmcnt({11 - t})")
        a(f"v_mfma_f32_16x16x32_bf16 {dl}, {ones}, {pk[4*t:4*t+4]}, {dl if t else 0}")
    for t in range(2):
        for T in range(2):
            a(f"s_waitcnt lgkmcnt({6 - 4*t - 2*T})")
            pvm(t, T)
    stamp("soft")
    def mlstore():
        a(f"""
        v_mov_b32 {mlr[1]}, {dl[0]}
        s_mov_b32 exec_lo, {sTmp}
        s_mov_b32 exec_hi, 0
        s_cbranch_scc0 L_mlmix
        """)
        vmem("ml", f"buffer_store_dwordx4 {mlr}, {vT0}, {SWS}, {oML} offen {opt.get('stpol', '')}")
        a("L_mlback:")
        a("s_mov_b64 exec, -1")
    if opt.get("pv3", 1):
        wait_vm("v2")
        a("s_barrier")
        vreads(2)
        mlstore()
        for T in range(2):
            a(f"s_waitcnt lgkmcnt({2 - 2*T})")
            pvm(2, T)
        wait_vm("v3")
        stamp("V")
        a("s_barrier")
        vreads(3)
        for T in range(2):
            a(f"s_waitcnt lgkmcnt({2 - 2*T})")
            pvm(3, T)
    else:
        wait_vm("v3")
        stamp("V")
        a("s_barrier")
        vreads(2); vreads(3)
        mlstore()
        for t in range(2, 4):
            for T in range(2):
                a(f"s_waitcnt lgkmcnt({6 - 4*(t-2) - 2*T})")
                pvm(t, T)
    a(f"""
    s_mov_b32 exec_lo, 0x000f000f
    s_mov_b32 exec_hi, 0x000f000f
    s_mov_b32 {sCnt}, 0
    v_cvt_pk_bf16_f32 {pr[2]}, {do[0]}, {do[1]}
    v_cvt_pk_bf16_f32 {pr[3]}, {do[2]}, {do[3]}
    s_mov_b32 exec_lo, 0x00f000f0
    s_mov_b32 exec_hi, 0x00f000f0
    v_cvt_pk_bf16_f32 {pr[0]}, {do[4]}, {do[5]}
    v_cvt_pk_bf16_f32 {pr[1]}, {do[6]}, {do[7]}
    s_mov_b32 exec_lo, 0x00ff00ff
    s_mov_b32 exec_hi, 0x00ff00ff
    s_cbranch_scc0 L_psmix
    """)
    vmem("ps", f"buffer_store_dwordx4 {pr}, {vPS}, {SWS}, {oPS} offen {opt.get('stpol', '')}")
    a("L_psback:")
    a("s_mov_b64 exec, -1")
    WO(7)
    for n in range(4 - HOLD, 4): wojob(n, True)()
    if opt.get("finpw", 2) == 3: finpw()
    assert not wj
    stamp("pub2")
    if opt.get("wb2"):
        a(f"s_lshl_b32 {sTmp}, {sJ}, 2\ns_add_u32 {sTmp}, {sTmp}, {sW}\ns_cmp_eq_u32 {sTmp}, {opt['wb2']}\ns_cbranch_scc0 L_nowb2\nbuffer_wbl2 sc1\ns_waitcnt vmcnt(0)\nL_nowb2:")
    wait_vm("ph")
    a("L_chkh:")
    a(f"v_xor_b32 {vT0}, {sTH}, {hg[0]}")
    for k in range(1, 4):
        a(f"v_bitop3_b32 {vT0}, {hg[k]}, {sTag[k]}, {vT0} {BOP}")
    a(f"v_and_b32 {vT0}, {vT0}, {vFF}\nv_cmp_ne_u32 vcc, 0, {vT0}")
    hm = sc[0:4]; hs4 = sc[4:8]
    for k in range(4):
        a(f"v_and_b32 {hm[k]}, {sMsk}, {hg[k]}")
    a("s_cbranch_vccnz L_retryh\nL_okh:")
    h = hm[0]; e = hm[1]; u = hm[2]; d1 = hm[3]; r1 = hs4[1]
    def rnd1(x): return [f"v_cvt_pk_bf16_f32 {x}, {x}, {x}", f"v_lshlrev_b32 {x}, 16, {x}"]
    ff = lines(f"""
    v_cndmask_b32 {hs4[0]}, {hm[0]}, {hm[2]}, {sEv}
    v_cndmask_b32 {hs4[1]}, {hm[1]}, {hm[3]}, {sEv}
    v_cndmask_b32 {hs4[2]}, {hm[2]}, {hm[0]}, {sEv}
    v_cndmask_b32 {hs4[3]}, {hm[3]}, {hm[1]}, {sEv}
    v_add_f32_dpp {hs4[2]}, {hs4[0]}, {hs4[2]} quad_perm:[1,0,3,2] {DPPM}
    v_add_f32_dpp {hs4[3]}, {hs4[1]}, {hs4[3]} quad_perm:[1,0,3,2] {DPPM}
    v_cndmask_b32 {hs4[0]}, {hs4[2]}, {hs4[3]}, {sEv2}
    v_cndmask_b32 {h}, {hs4[3]}, {hs4[2]}, {sEv2}
    v_add_f32_dpp {h}, {hs4[0]}, {h} quad_perm:[2,3,0,1] {DPPM}
    v_add_f32_dpp {h}, {h}, {h} row_shl:4 {DPPM}
    """)
    ff += rnd1(h) + [f"v_add_f32 {h}, {h}, {b1r}"] + rnd1(h)
    ff += [f"v_mul_f32 {e}, -abs({h}), {sL2E}", f"v_exp_f32 {e}, {e}"] + rnd1(e)
    ff += [f"v_add_f32 {u}, 1.0, {e}", f"v_add_f32 {d1}, -1.0, {u}", f"v_log_f32 {u}, {u}", f"v_rcp_f32 {r1}, {d1}",
           f"v_cmp_eq_f32 vcc, 0, {d1}", f"v_mul_f32 {u}, {sLn2}, {u}", f"v_mul_f32 {r1}, {r1}, {e}", f"v_mul_f32 {u}, {u}, {r1}",
           f"v_cndmask_b32 {u}, {u}, {e}, vcc"] + rnd1(u)
    ff += [f"v_max_f32 {e}, 0, {h}", f"v_add_f32 {u}, {u}, {e}"] + rnd1(u)
    ff += [f"v_mul_f32 {e}, {sM2}, {u}", f"v_exp_f32 {e}, {e}", f"v_cmp_gt_f32 vcc, 0x3a800000, {u}", f"v_add_f32 {d1}, 1.0, {e}", f"v_rcp_f32 {d1}, {d1}",
           f"v_sub_f32 {e}, 1.0, {e}", f"v_mul_f32 {e}, {e}, {d1}", f"v_cndmask_b32 {e}, {e}, {u}, vcc"] + rnd1(e)
    ff += [f"v_mul_f32 {e}, {e}, {h}", f"v_mov_b32_dpp {u}, {e} quad_perm:[2,3,0,1] {DPPM}", f"v_cvt_pk_bf16_f32 {u}, {e}, {u}"]
    ff += lines(f"""
    v_mov_b32_dpp {af[0]}, {u} quad_perm:[0,1,2,3] row_mask:0xf bank_mask:0x1
    v_mov_b32_dpp {af[1]}, {u} row_shl:1 row_mask:0xf bank_mask:0x1
    v_mov_b32_dpp {af[2]}, {u} row_shl:8 row_mask:0xf bank_mask:0x1
    v_mov_b32_dpp {af[3]}, {u} row_shl:9 row_mask:0xf bank_mask:0x1
    """)
    for x in ff: a(x)
    stamp("ffn")
    pa = qb; mlg = qg[0:4]; bo = kk; dd = v.get(16, 2)
    def poll2(first):
        t = []
        for tl in range(2):
            t.append(f"buffer_load_dwordx4 {pa[8*tl:8*tl+4]}, {vPA}, {SWS}, {oPA} offen offset:{2048*tl} sc1")
            t.append(f"buffer_load_dwordx4 {pa[8*tl+4:8*tl+8]}, {vPA}, {SWS}, {oPA} offen offset:{2048*tl+1024} sc1")
        t.append(f"buffer_load_dwordx4 {mlg}, {vMLG}, {SWS}, {oMLG} offen sc1")
        for x in t:
            if first: vmem("p2", x)
            else: a(x)
    def woreads(tl):
        for ct in range(4):
            for hi in range(2):
                r = bo[16*tl+4*ct+2*hi:16*tl+4*ct+2*hi+2]
                a(f"ds_read_b64_tr_b16 {r}, {vTO[ct]} offset:{L_WO + 4096*tl + 2048*hi}")
    p2at = opt.get("p2at", 2)
    if p2at == 0: poll2(True)
    wait_vm("w2")
    a("s_barrier")
    for ct in range(4):
        for hi in range(2):
            a(f"ds_read_b64_tr_b16 {bw[4*ct+2*hi:4*ct+2*hi+2]}, {vTW[ct]} offset:{L_W2 + 2048*hi}")
    fo = pr[0:2]
    a(f"s_mov_b32 {sCnt}, 0\nv_mov_b32 {fo[1]}, {sTag[0]}\nv_lshlrev_b32 {xf}, 16, {xf}")
    for ct in range(4):
        a(f"s_waitcnt lgkmcnt({6 - 2*ct})")
        a(f"v_mfma_f32_16x16x32_bf16 {df[4*ct:4*ct+4]}, {af}, {bw[4*ct:4*ct+4]}, 0")
    if p2at == 1: poll2(True)
    wait_vm("wo0")
    if p2at == 2:
        stamp("p2i")
        if stamps: a(f"s_mov_b32 {sTmp}, 0\nv_writelane_b32 {vST}, {sTmp}, 27\nv_writelane_b32 {vST}, {sTmp}, 28")
        poll2(True)
    a("s_barrier")
    woreads(0)
    if p2at == 3: poll2(True)
    wait_vm("wo1")
    stamp("wo")
    a("s_barrier")
    woreads(1)
    a("s_waitcnt vmcnt(0)")
    a("L_chk2:")
    wv = vT1; vC = bw[0]
    chk = [f"v_xor_b32 {vC}, {sTag[0]}, {pa[1]}"] + [f"v_bitop3_b32 {vC}, {r}, {sTag[0]}, {vC} {BOP}" for r in (pa[6], pa[9], pa[14], mlg[2])] + [f"v_cmp_ne_u32 vcc, 0, {vC}"]
    wchain = [f"v_max_f32_dpp {vT0}, {mlg[0]}, {mlg[0]} row_ror:1 {DPPM}"] + [f"v_max_f32_dpp {vT0}, {vT0}, {vT0} row_ror:{r} {DPPM}" for r in (2, 4, 8)]
    wchain += [f"v_sub_f32 {wv}, {mlg[0]}, {vT0}", f"v_exp_f32 {wv}, {wv}", f"v_mul_f32 {vT0}, {wv}, {mlg[1]}"]
    wchain += [f"v_add_f32_dpp {vT0}, {vT0}, {vT0} row_ror:{r} {DPPM}" for r in (1, 2, 4, 8)]
    wchain += [f"v_rcp_f32 {vT0}, {vT0}", f"v_mul_f32 {wv}, {wv}, {vT0}"]
    a("s_waitcnt lgkmcnt(8)")
    for tl in range(2):
        if tl:
            a("s_cbranch_vccnz L_retry2\nL_ok2:")
            stamp("ok2")
            a("s_waitcnt lgkmcnt(0)")
        for ct in range(4):
            a(f"v_mfma_f32_16x16x32_bf16 {dd[4*ct:4*ct+4]}, {pa[8*tl+2:8*tl+6]}, {bo[16*tl+4*ct:16*tl+4*ct+4]}, {dd[4*ct:4*ct+4] if tl else 0}")
            a(wchain.pop(0))
            if tl == 0:
                a(chk.pop(0))
                if ct >= 2: a(chk.pop(0))
            else:
                a(wchain.pop(0))
    for x in wchain: a(x)
    for r in range(4):
        for ct in range(4):
            a(f"v_fmac_f32_dpp {df[4*ct]}, {wv}, {dd[4*ct+r]} row_newbcast:{r} {DPPM}")
    a(f"""
    v_permlane32_swap_b32 {df[0]}, {df[8]}
    v_permlane32_swap_b32 {df[4]}, {df[12]}
    v_add_f32 {df[0]}, {df[0]}, {df[8]}
    v_add_f32 {df[4]}, {df[4]}, {df[12]}
    s_cmp_eq_u32 {sW}, 0
    v_permlane16_swap_b32 {df[0]}, {df[4]}
    v_add_f32 {fo[0]}, {df[0]}, {df[4]}
    buffer_store_dwordx2 {fo}, {vFS}, {SWS}, {oFS} offen {opt.get('finpol', 'sc1')}
    """)
    if stamps or probe:
        stamp("pub3", flush=True)
        a(f"s_cmp_eq_u32 {sW}, 0")
    if opt.get("finbar", 1):
        a("s_waitcnt vmcnt(0)\ns_barrier")
    if opt.get("wb"):
        a("s_cbranch_scc0 L_wb")
    else:
        a("s_cbranch_scc0 L_fin")
    fg = bo[0:8]
    a(f"s_mov_b32 {sCnt}, 0")
    if opt.get("p3delay", 1):
        a("s_waitcnt vmcnt(0)")
    if opt.get("p3sleep"):
        a("s_sleep %d" % opt["p3sleep"])
    a(f"""
    L_poll3:
    buffer_load_dwordx4 {fg[0:4]}, {vFG}, {SWS}, {oFG} offen sc1
    buffer_load_dwordx4 {fg[4:8]}, {vFG}, {SWS}, {oFG2} offen sc1
    s_add_u32 {sCnt}, {sCnt}, 1
    s_cmp_gt_u32 {sCnt}, 200000
    s_cbranch_scc1 L_ok3
    s_waitcnt vmcnt(0)
    s_mov_b64 exec, -1
    v_add_f32 {dd[0]}, {fg[0]}, {fg[4]}
    v_add_f32 {dd[1]}, {fg[2]}, {fg[6]}
    v_xor_b32 {vT0}, {sTag[0]}, {fg[1]}
    v_add_f32_dpp {dd[0]}, {dd[0]}, {dd[0]} row_ror:2 {DPPM}
    v_add_f32_dpp {dd[1]}, {dd[1]}, {dd[1]} row_ror:2 {DPPM}
    v_bitop3_b32 {vT0}, {fg[3]}, {sTag[0]}, {vT0} {BOP}
    v_add_f32_dpp {dd[0]}, {dd[0]}, {dd[0]} row_ror:4 {DPPM}
    v_add_f32_dpp {dd[1]}, {dd[1]}, {dd[1]} row_ror:4 {DPPM}
    v_bitop3_b32 {vT0}, {fg[5]}, {sTag[0]}, {vT0} {BOP}
    v_add_f32_dpp {dd[0]}, {dd[0]}, {dd[0]} row_ror:8 {DPPM}
    v_add_f32_dpp {dd[1]}, {dd[1]}, {dd[1]} row_ror:8 {DPPM}
    v_bitop3_b32 {vT0}, {fg[7]}, {sTag[0]}, {vT0} {BOP}
    v_cmp_ne_u32 vcc, 0, {vT0}
    v_permlane16_swap_b32 {dd[0]}, {dd[1]}
    v_add_f32 {dd[0]}, {dd[0]}, {dd[1]}
    v_mov_b32 {dd[1]}, {dd[0]}
    s_cbranch_vccnz L_retry3
    L_ok3:
    """)
    stamp("ok3", flush=True)
    a(f"""
    s_cmp_eq_u32 s2, 0
    v_permlane32_swap_b32 {dd[0]}, {dd[1]}
    v_add_f32 {dd[0]}, {dd[0]}, {dd[1]}
    v_add_f32 {dd[0]}, {dd[0]}, {xf}
    v_cvt_pk_bf16_f32 {dd[0]}, {dd[0]}, {dd[0]}
    s_mov_b32 exec_lo, 0x00030003
    s_mov_b32 exec_hi, 0
    buffer_store_short {dd[0]}, {vXF}, {SOUT}, {oXF} offen {opt.get('outpol', 'nt')}
    s_cbranch_scc0 L_fin
    s_mov_b32 exec_lo, 1
    v_mov_b32 {vT0}, 0
    buffer_store_dword {fo[1]}, {vT0}, {SWS}, 0 offen {opt.get('eppol', opt.get('outpol', 'nt'))}
    L_fin:
    """)
    if stamps:
        stamp("end", True)
        a("s_mov_b64 exec, -1")
        a(f"""
        s_getreg_b32 {sTmp}, hwreg(HW_REG_HW_ID)
        v_writelane_b32 {vST}, {sTmp}, 29
        v_writelane_b32 {vST}, {sXCC}, 30
        v_writelane_b32 {vST}, {sMix}, 31
        s_lshl_b32 {sTmp}, s2, 2
        s_add_u32 {sTmp}, {sTmp}, {sW}
        s_lshl_b32 {sTmp}, {sTmp}, 7
        s_add_u32 {sTmp}, {sTmp}, {STAMP}
        v_lshlrev_b32 {vT1}, 2, v0
        s_mov_b32 exec_lo, -1
        s_mov_b32 exec_hi, 0
        buffer_store_dword {vST}, {vT1}, {SWS}, {sTmp} offen
        """)
        out.insert(len(hdr), "; stamps: " + ",".join(names))
    if probe:
        stamp("end")
        a(f"""
        s_cmp_eq_u32 {sW}, {opt.get('pwave', 0)}
        s_cbranch_scc0 L_end
        s_load_dwordx2 s[8:9], s[0:1], 80
        s_mov_b32 s10, 256
        s_mov_b32 s11, 0x20000
        s_mov_b64 exec, 1
        s_waitcnt lgkmcnt(0)
        s_sub_u32 s4, 0, s100
        v_mov_b32 v2, s4
        v_mov_b32 v3, s98
        v_mov_b32 v4, 0
        buffer_atomic_umax v2, v4, s[8:11], 0 offen sc1
        buffer_atomic_umax v3, v4, s[8:11], 0 offen offset:128 sc1
        s_waitcnt vmcnt(0)
        L_hold0:
        s_memrealtime s[4:5]
        s_waitcnt lgkmcnt(0)
        s_sub_u32 s4, s4, s100
        s_cmp_lt_u32 s4, 2000
        s_cbranch_scc1 L_hold0
        buffer_load_dword v2, v4, s[8:11], 0 offen sc1
        buffer_load_dword v3, v4, s[8:11], 0 offen offset:128 sc1
        s_waitcnt vmcnt(0)
        v_readfirstlane_b32 s6, v2
        v_readfirstlane_b32 s98, v3
        s_add_u32 s98, s98, s6
        s_min_u32 s98, s98, 2000
        s_mul_i32 s98, s98, {opt.get('mult', 8)}
        s_add_u32 s98, s98, 2500
        L_hold1:
        s_memrealtime s[4:5]
        s_waitcnt lgkmcnt(0)
        s_sub_u32 s4, s4, s100
        s_cmp_lt_u32 s4, s98
        s_cbranch_scc1 L_hold1
        """)
    a("L_end:\ns_endpgm")
    if opt.get("wb"):
        a(f"""
        L_wb:
        s_cmp_eq_u32 {sW}, 1
        s_cbranch_scc0 L_fin
        s_cmp_lt_u32 {sJ}, {opt['wb']}
        s_cbranch_scc0 L_fin
        buffer_wbl2 sc1
        s_branch L_fin
        """)
    a("L_retry3:\ns_mov_b64 exec, vcc\ns_branch L_poll3")
    a(f"""
    L_retry1:
    s_add_u32 {sCnt}, {sCnt}, 1
    {'s_cmp_eq_u32 %s, 1' % sCnt if dual else ''}
    {'s_cbranch_scc1 L_useB' if dual else ''}
    s_cmp_gt_u32 {sCnt}, 200000
    s_cbranch_scc1 L_ok1
    s_cmp_lt_u32 {sCnt}, {opt.get('nplain', 12)}
    s_cbranch_scc1 L_r1b
    s_cmp_eq_u32 {sCnt}, {opt.get('nplain', 12)}
    s_cbranch_scc0 L_r1a
    v_mov_b32 {vT0}, 1
    ds_write_b32 {vZ}, {vT0} offset:{L_MIX}
    ds_read_b128 {qg[0:4]}, {vL16} offset:{L_QSV}
    v_and_b32 {vT0}, 1, v0
    v_lshlrev_b32 {vT0}, 13, {vT0}
    v_lshrrev_b32 {vT1}, 1, v0
    v_lshl_add_u32 {vT0}, {vT1}, 4, {vT0}
    s_and_b32 {sTmp}, {oQS}, 0xffffff00
    s_add_u32 {sTmp}, {sTmp}, {SC1D}
    s_waitcnt lgkmcnt(0)
    v_xor_b32 {qg[0]}, {sXCC}, {qg[0]}
    s_mov_b32 exec_lo, -1
    s_mov_b32 exec_hi, 0
    buffer_store_dwordx4 {qg[0:4]}, {vT0}, {SWS}, {sTmp} offen sc1
    s_mov_b64 exec, -1
    L_r1a:
    s_xor_b32 {sTP}, {sTP}, {sXCC}
    s_xor_b32 {oQG}, {oQG}, {SC1D}
    s_nop 1
    L_r1b:
    """)
    poll1(False)
    a("s_waitcnt vmcnt(0)\ns_branch L_chk1")
    if dual:
        a(f"L_useB:\ns_waitcnt vmcnt({nB})")
        for k in range(8):
            a(f"v_mov_b32 {qg[k]}, {qg2[k]}")
        a("s_branch L_chk1")
    a(f"""
    L_mixed:
    s_add_u32 {oHS}, {oHS}, {SC1D}
    s_mov_b32 exec_lo, 0x01010101
    s_mov_b32 exec_hi, 0x01010101
    v_xor_b32 {dh[0]}, {sXCC}, {dh[0]}
    buffer_store_dwordx4 {dh}, {vHS}, {SWS}, {oHS} offen sc1
    s_waitcnt vmcnt(0)
    s_mov_b64 exec, -1
    s_branch L_mixback
    L_retryh:
    s_add_u32 {sCnt}, {sCnt}, 1
    s_cmp_gt_u32 {sCnt}, 200000
    s_cbranch_scc1 L_okh
    s_cmp_eq_u32 {sMix}, 0
    s_cbranch_scc1 L_rhb
    s_xor_b32 {sTH}, {sTH}, {sXCC}
    s_xor_b32 {oHG}, {oHG}, {SC1D}
    L_rhb:
    buffer_load_dwordx4 {hg}, {vHG}, {SWS}, {oHG} offen sc1
    s_waitcnt vmcnt(0)
    s_branch L_chkh
    L_mlmix:
    buffer_store_dwordx4 {mlr}, {vT0}, {SWS}, {oML} offen sc1
    s_branch L_mlback
    L_psmix:
    buffer_store_dwordx4 {pr}, {vPS}, {SWS}, {oPS} offen sc1
    s_branch L_psback
    L_retry2:
    s_add_u32 {sCnt}, {sCnt}, 1
    {('v_writelane_b32 %s, %s, 28' % (vST, sCnt)) if stamps else ''}
    {('s_cmp_eq_u32 %s, 1' % sCnt) if stamps else ''}
    {'s_cbranch_scc0 L_r2x' if stamps else ''}
    {('v_writelane_b32 %s, vcc_lo, 27' % vST) if stamps else ''}
    {'L_r2x:' if stamps else ''}
    s_cmp_gt_u32 {sCnt}, 200000
    s_cbranch_scc1 L_ok2
    {'s_mov_b64 exec, vcc' if opt.get('sticky', 1) else ''}
    """)
    poll2(False)
    a("s_waitcnt vmcnt(0)\ns_mov_b64 exec, -1\ns_nop 3\ns_branch L_chk2")
    a("L_codeend:")
    nv = (v.hw + 7) // 8 * 8
    out.append(a.text())
    out.append(f""".section .rodata,"a"
.p2align 6
.amdhsa_kernel {NAME}_kernel
  .amdhsa_next_free_vgpr {nv}
  .amdhsa_next_free_sgpr 102
  .amdhsa_accum_offset {nv}
  .amdhsa_group_segment_fixed_size 0
  .amdhsa_kernarg_size 96
  .amdhsa_user_sgpr_count 2
  .amdhsa_user_sgpr_kernarg_segment_ptr 1
  .amdhsa_system_sgpr_workgroup_id_x 1
.end_amdhsa_kernel""")
    sys.stderr.write("vgprs %d sgprs %d nops %d\n" % (v.hw, s.hw, a.nops))
    return "\n".join(out) + "\n"

if __name__ == "__main__":
    import json
    opt = json.loads(sys.argv[2]) if len(sys.argv) > 2 else {}
    open(sys.argv[1], "w").write(gen(opt))
```

```python
import sys
from asmlib import *

NAME = "parallel_sum__sliding_block_cached__dense_activation_mish__decode"
PHI = 0x9E3779B9
QBUF = 0x40000; HBUF = 0x80000; SC1D = 0x20000; MLB = 0xC0000; DBB = 0xC8000; PART = 0x100000; FIN = 0x180000; STAMP = 0x800000
L_XN = 0; L_Q = 4096; L_MX = 5632; L_MIX = 5760; L_QSV = 5888; L_SP = 7168; L_SP4 = 40960; L_WQ = 8192; L_W1 = 24576; L_W2 = 32768; L_WO = 40960; L_V = 57344; L_K = 90112; LDS_BYTES = 122880
QSTR = 320
DPPM = "row_mask:0xf bank_mask:0xf"
BOP = "bitop3:0xbe"

def lines(text):
    return [l.strip() for l in text.strip().split("\n") if l.strip() and not l.strip().startswith(";")]

KVMAP = {
    "p4": (4, 128, [64 * (n >> 2) + (n & 3) for n in range(8)]),
    "p4i": (4, 1, [64 * n for n in range(8)]),
    "p1i": (1, 16, [64 * n for n in range(8)]),
    "p2": (2, 128, [32 * (n >> 1) + (n & 1) for n in range(8)]),
    "p2i": (2, 32, [128 * (n >> 1) + (n & 1) for n in range(8)]),
    "p8i": (8, 2, [128 * (n >> 1) + (n & 1) for n in range(8)]),
    "p1": (1, 128, [16 * n for n in range(8)]),
}
def gen(opt):
    KS, KW, KH_ = KVMAP[opt.get("kv", "p4")]
    nt = opt.get("nt", {k: "nt" for k in ("wq", "w1", "k", "v", "wo", "w2")})
    def pol(k): return nt.get(k, "")
    stamps = opt.get("stamps", False)
    a = Asm()
    v = Alloc("v", 1, 256); s = Alloc("s", 44, 102)
    hdr = open("cdna_kernels/%s.s.ref" % NAME).read().split("\n")
    hdr = [l for l in hdr if l.startswith(";") and "@launch" not in l and "Override" not in l and "grid=ceil" not in l]
    out = list(hdr)
    out += """;
; One launch, 256 workgroups of 4 waves (one per CU); wg = 8*j + g, g = kv head, j = 8*a + c.
;   P1  LayerNorm (every wave), q partial = xn[128 rows a] @ wq[.., 64 cols c'], h partial = xn[64 rows] @ w1[.., 64 cols]
;   P2  (b = j>>4, s = j&15) 128 keys of (b, g): scores, true max over the workgroup's keys, exp, P@V -> partial o, m, l
;   P3  (head 4g+a, 64 output columns): combine the 16 key splits, @ wo, + mish(h) @ w2 -> partial outputs
;   P4  4 outputs per workgroup: sum of 64 partials + x
; Hand-offs go through d_ws as tagged 16/8-byte granules; the tag is d_ws[0] + const (d_ws[0] is advanced at the end),
; so it only tells this launch's granules from older ones. Inside a group plain stores are used when all 32
; workgroups report the same XCC id (it is part of the first tag); otherwise write-through copies take over.
; All weights, K and V are streamed once by LDS-DMA in an order that keeps the per-CU request window filled.""".split("\n")
    out.append("; @launch grid=(256,1,1) block=(256,1,1) lds=%d" % LDS_BYTES)
    out.append('.amdgcn_target "amdgcn-amd-amdhsa--gfx950"')
    out.append(".text\n.globl %s_kernel\n" % NAME + (".p2align 12\n" if opt.get("al", 1) else "") + ".p2align 8\n.type %s_kernel,@function\n%s_kernel:" % (NAME, NAME))
    SX, SK, SV, SWQ, SWO, SW1, SB1, SW2, SOUT, SWS = [Reg("s", 4 + 4 * i, 4) for i in range(10)]
    vm = []
    def vmem(name, text):
        a(text); vm.append(name)
    def wait_vm(name, allow=0):
        idx = max(i for i, n in enumerate(vm) if n == name) - allow
        n = len(vm) - 1 - idx
        a("s_waitcnt vmcnt(%d)" % n)
    def weave(fill, jobs, every, start=0):
        k = -start
        for ins in fill:
            a(ins); k += 1
            if jobs and k >= every:
                jobs.pop(0)(); k = 0
    nst = [0, 0]
    names = []
    NR = 4
    if stamps:
        sST = [s.get(2, 2) for _ in range(NR)]; vST = v.get()
    probe = opt.get("probe")
    def stamp(name, last=False, flush=False):
        if probe and name == "start": a("s_memrealtime s[100:101]")
        if probe and name == probe: a("s_memrealtime s[98:99]")
        if stamps:
            k = nst[0]; nst[0] += 1; names.append(name)
            assert k < 25
            done = nst[1]
            if k - done >= NR:
                a("v_writelane_b32 %s, %s, %d" % (vST, sST[done % NR][0], done)); done += 1
            a("s_memrealtime %s" % sST[k % NR])
            if last or flush:
                a("s_waitcnt lgkmcnt(0)")
                while done <= k:
                    a("v_writelane_b32 %s, %s, %d" % (vST, sST[done % NR][0], done)); done += 1
            nst[1] = done
    stamp("start")
    a(f"""
    s_load_dwordx2 {SX[0:2]}, s[0:1], 0
    s_load_dwordx2 {SWQ[0:2]}, s[0:1], 24
    s_load_dwordx2 {SW1[0:2]}, s[0:1], 48
    s_load_dwordx2 {SK[0:2]}, s[0:1], 8
    s_load_dwordx2 {SWS[0:2]}, s[0:1], 88
    s_load_dwordx2 {SV[0:2]}, s[0:1], 16
    s_cmp_ge_u32 s2, 256
    s_cbranch_scc1 L_end
    """)
    if opt.get("vpf", 1):
        vP = v.get(2, 2); sPF = s.get(2, 2)
        a(f"""
        s_getpc_b64 {sPF}
        L_pc:
        s_lshr_b32 s3, s2, 1
        s_and_b32 s3, s3, 0x7c
        v_lshrrev_b32 {vP[0]}, 6, v0
        v_add_u32 {vP[0]}, s3, {vP[0]}
        v_lshlrev_b32 {vP[0]}, 6, {vP[0]}
        v_min_u32 {vP[0]}, L_codeend-L_pc-4, {vP[0]}
        """)
        vmem("pf", f"global_load_dword {vP[1]}, {vP[0]}, {sPF}")
    sW, sG, sJ, sA, sC, sT, sBLK, sTmp, sTmp2 = [s.get() for _ in range(9)]
    oXO, oWQ, oW1, oKV, oK, oW2 = [s.get() for _ in range(6)]
    sM = s.get()
    DBPRE = ""
    if opt.get("ndb", 0):
        oDB0 = s.get()
        DBPRE = f"""s_mov_b32 {SWS[2]}, 0x10000000
        s_mov_b32 {SWS[3]}, 0x20000
        s_lshl_b32 {sTmp}, {sJ}, 2
        s_add_u32 {sTmp}, {sTmp}, {sW}
        s_and_b32 {sTmp}, {sTmp}, 7
        s_lshl_b32 {sTmp2}, {sG}, 3
        s_add_u32 {sTmp}, {sTmp}, {sTmp2}
        s_lshl_b32 {sTmp}, {sTmp}, 7
        s_add_u32 {oDB0}, {sTmp}, {DBB}"""
    vGQ, vI, vT0, vT1 = [v.get() for _ in range(4)]
    vL16, vB3, vXO, vWQe, vWQo, vW1e, vW1o = [v.get() for _ in range(7)]
    vK = v.get(4)
    a(f"""
    v_readfirstlane_b32 {sW}, v0
    v_and_b32 v0, 63, v0
    s_and_b32 {sG}, s2, 7
    {'s_xor_b32 %s, %s, %d' % (sG, sG, opt['gxor']) if opt.get('gxor') else ''}
    s_lshr_b32 {sJ}, s2, 3
    s_lshr_b32 {sW}, {sW}, 6
    s_lshr_b32 {sA}, {sJ}, 3
    s_and_b32 {sC}, {sJ}, 7
    v_lshrrev_b32 {vGQ}, 4, v0
    v_and_b32 {vI}, 15, v0
    s_mov_b32 {SX[2]}, 2048
    s_mov_b32 {SX[3]}, 0x20000
    s_mov_b32 {SWQ[2]}, {512*4096*2}
    s_mov_b32 {SWQ[3]}, 0x20000
    v_lshlrev_b32 {vL16}, 4, v0
    v_bfe_u32 {vB3}, v0, 3, 1
    v_lshlrev_b32 {vT0}, 10, {vB3}
    v_lshl_add_u32 {vXO}, {vGQ}, 4, {vT0}
    v_and_b32 {vT0}, 1, {vGQ}
    v_lshlrev_b32 {vT0}, 1, {vT0}
    v_and_b32 {vT1}, 7, v0
    v_xor_b32 {vT0}, {vT0}, {vT1}
    v_lshlrev_b32 {vT0}, 4, {vT0}
    v_lshrrev_b32 {vT1}, 3, v0
    v_lshl_add_u32 {vWQe}, {vT1}, 13, {vT0}
    v_xor_b32 {vWQo}, 64, {vWQe}
    s_and_b32 {sTmp}, {sC}, 1
    s_lshl_b32 {sTmp2}, {sTmp}, 1
    s_xor_b32 {sTmp2}, {sTmp2}, {sW}
    s_lshl_b32 {sTmp2}, {sTmp2}, 5
    s_lshl_b32 {oXO}, {sA}, 7
    s_add_u32 {sTmp2}, {sTmp2}, {oXO}
    s_lshl_b32 {oWQ}, {sTmp2}, 13
    s_lshl_b32 {sM}, {sG}, 10
    s_add_u32 {oWQ}, {oWQ}, {sM}
    s_xor_b32 {sM}, {sC}, {opt.get('cqx', 1)}
    s_lshl_b32 {sM}, {sM}, 7
    s_add_u32 {oWQ}, {oWQ}, {sM}
    s_lshl_b32 {oXO}, {sTmp2}, 1
    s_lshl_b32 {sM}, {sW}, 12
    s_add_u32 m0, {sM}, {L_WQ}
    {DBPRE}
    {'s_bfe_u32 %s, %s, 0x30007' % (sTmp, oWQ) if opt.get('wqb', 0) else ''}
    {'s_cmp_eq_u32 %s, 3' % sTmp if opt.get('wqb', 0) else ''}
    s_waitcnt lgkmcnt(0)
    """)
    stamp("karg")
    xs = v.get(8, 2); xo = v.get(4, 2)
    kk = v.get(32, 2)
    sE = sPF if opt.get('vpf', 1) else s.get(2, 2)
    def xloads():
        vmem("xs", f"buffer_load_dwordx4 {xs[0:4]}, {vL16}, {SX}, 0 offen")
        vmem("xs", f"buffer_load_dwordx4 {xs[4:8]}, {vL16}, {SX}, 0 offen offset:1024")
        vmem("xo", f"buffer_load_dwordx4 {xo}, {vXO}, {SX}, {oXO} offen")
    xat = opt.get("xat", 0)
    if opt.get("wqb", 0):
        a(f"s_cbranch_scc0 L_wqa")
        for k in range(4):
            a(f"buffer_load_dwordx4 {vWQo if k & 1 else vWQe}, {SWQ}, {oWQ} offen {pol('wq')} lds")
            if k < 3:
                a(f"s_add_u32 m0, m0, 1024\ns_add_u32 {oWQ}, {oWQ}, 65536")
        a(f"s_mov_b32 m0, {L_SP4}\ns_mov_b32 {oWQ}, 0x40000000\nL_wqa:")
    for k in range(4):
        if k == xat: xloads()
        vmem("wq", f"buffer_load_dwordx4 {vWQo if k & 1 else vWQe}, {SWQ}, {oWQ} offen {pol('wq')} lds")
        if k < 3:
            a(f"s_add_u32 m0, m0, 1024\ns_add_u32 {oWQ}, {oWQ}, 65536")
    if xat == 4: xloads()
    NDB = opt.get("ndb", 0)
    if NDB:
        vDB = v.get(); oDB = oDB0
        vDum = v.get()
        vmem("dbpw", f"buffer_load_dword {vDum}, off, {SWS}, {oDB} sc1")
    stamp("iss1")
    if opt.get("codepf"):
        sPC = s.get(2, 2)
        a(f"""
        s_getpc_b64 {sPC}
        s_lshl_b32 {sTmp}, {sJ}, 2
        s_add_u32 {sTmp}, {sTmp}, {sW}
        s_min_u32 {sTmp}, {sTmp}, {opt['codepf']}
        s_lshl_b32 {sTmp}, {sTmp}, 7
        s_load_dword {sE[1]}, {sPC}, {sTmp}
        """)
    vWO, vTQ = [v.get() for _ in range(2)]
    vV = v.get(2)
    vKR = v.get(4); vTW = v.get(4); vTO = v.get(4); vTV = v.get(2); vFF = v.get(); vZ = v.get(); vSV = v.get()
    sHi = s.get()
    sB, sKH, sBA, sS, sC2 = [s.get() for _ in range(5)]
    oB1, oXF = oXO, oWQ
    vB1, vXF, vPRE, vF = v.get(), v.get(), v.get(), vXO
    oQS, oHS, oQG, oHG, oML, oPS, oV, oWO = [s.get() for _ in range(8)]
    vQS, vHS, vQG, vHG = [v.get() for _ in range(4)]
    vQW, vQR, vMX, vMR, vPW = [v.get() for _ in range(5)]
    vPS, vMLG, vFS, vFG = [v.get() for _ in range(4)]
    vPA = vL16
    oPA, oMLG, oFS, oFG, oFG2 = [s.get() for _ in range(5)]
    sB3 = s.get(2, 2)
    A = lines(f"""
    s_load_dwordx2 {SW2[0:2]}, s[0:1], 64
    s_load_dwordx2 {SWO[0:2]}, s[0:1], 32
    s_load_dwordx2 {SB1[0:2]}, s[0:1], 56
    s_load_dwordx2 {SOUT[0:2]}, s[0:1], 72
    s_mov_b32 {SK[2]}, {2*8*8192*256}
    s_mov_b32 {SK[3]}, 0x20000
    s_lshr_b32 {sBA}, {sJ}, 4
    s_and_b32 {sS}, {sJ}, 15
    s_lshl_b32 {sTmp}, {sBA}, 3
    s_add_u32 {sTmp}, {sTmp}, {sG}
    s_lshl_b32 {oKV}, {sTmp}, 21
    s_mul_i32 {sTmp}, {sS}, {KS * 1024}
    s_add_u32 {oKV}, {oKV}, {sTmp}
    s_add_u32 {oKV}, {oKV}, {6144*256}
    s_mul_i32 {oK}, {sW}, {KW * 1024}
    s_add_u32 {oK}, {oK}, {oKV}
    s_lshl_b32 {sTmp}, {sW}, 13
    s_lshl_b32 {sM}, {sW}, 11
    v_xor_b32 {vT0}, {vI}, {vGQ}
    v_lshlrev_b32 {vT0}, 4, {vT0}
    v_lshl_add_u32 {vK[0]}, {vGQ}, 8, {vT0}
    v_xor_b32 {vK[1]}, 64, {vK[0]}
    v_xor_b32 {vK[2]}, 0x80, {vK[0]}
    v_xor_b32 {vK[3]}, 0xc0, {vK[0]}
    v_lshl_add_u32 {vT0}, {vI}, 8, {vT0}
    s_add_u32 {sTmp}, {sTmp}, {L_K}
    v_add_u32 {vKR[0]}, {sTmp}, {vT0}
    s_mov_b32 {SWS[2]}, 0x10000000
    s_mov_b32 {SWS[3]}, 0x20000
    s_mov_b32 {sHi}, 0xffff0000
    s_mov_b32 {sB3[0]}, 0xff00ff00
    s_mov_b32 {sB3[1]}, 0xff00ff00
    v_mov_b32 {vFF}, 0xff
    v_mov_b32 {vZ}, 0
    v_lshlrev_b32 {vSV}, 1, v0
    s_lshl_b32 {sTmp}, {sW}, 7
    v_add_u32 {vSV}, {sTmp}, {vSV}
    s_lshl_b32 {sTmp}, {sW}, 10
    v_add_u32 {vPW}, {sTmp}, {vL16}
    s_and_b32 {sB}, {sW}, 1
    s_lshr_b32 {sKH}, {sW}, 1
    v_and_b32 {vT0}, 1, {vGQ}
    v_lshlrev_b32 {vF}, 1, {vT0}
    v_or_b32 {vF}, {vF}, {vB3}
    v_and_b32 {vT1}, 3, v0
    v_lshlrev_b32 {vT1}, 3, {vT1}
    v_lshrrev_b32 {vT0}, 2, {vI}
    v_lshl_add_u32 {vTQ}, {vGQ}, 3, {vT0}
    v_lshl_add_u32 {vTQ}, {vTQ}, 7, {vT1}
    v_xor_b32 {vTV[0]}, {sW}, {vF}
    v_lshl_add_u32 {vTQ}, {vTV[0]}, 5, {vTQ}
    v_lshl_add_u32 {vT0}, {vGQ}, 2, {vT0}
    v_lshl_add_u32 {vTW[0]}, {vT0}, 7, {vT1}
    v_lshl_add_u32 {vTW[0]}, {vF}, 5, {vTW[0]}
    v_lshl_add_u32 {vTV[1]}, {vT0}, 8, {vT1}
    v_and_b32 {vTV[0]}, 7, {vT0}
    v_lshlrev_b32 {vT0}, 4, {vGQ}
    v_lshl_add_u32 {vQS}, {vB3}, 13, {vT0}
    v_lshlrev_b32 {vHS}, 7, {vGQ}
    v_lshl_add_u32 {vHS}, {vB3}, 11, {vHS}
    s_lshl_b32 {oQG}, {sG}, 14
    s_add_u32 {oQG}, {oQG}, {QBUF}
    s_lshl_b32 {sTmp}, {sA}, 11
    s_add_u32 {oQS}, {oQG}, {sTmp}
    s_xor_b32 {sTmp}, {sC}, {opt.get('cqx', 1)}
    s_lshl_b32 {sTmp}, {sTmp}, 8
    s_add_u32 {oQS}, {oQS}, {sTmp}
    s_lshl_b32 {sTmp2}, {sW}, 6
    s_add_u32 {oQS}, {oQS}, {sTmp2}
    s_lshl_b32 {sTmp}, {sW}, 9
    s_add_u32 {oQG}, {oQG}, {sTmp}
    """)
    B = lines(f"""
    s_lshr_b32 {sT}, {sC}, 1
    s_sub_u32 {sT}, {sT}, {sA}
    s_and_b32 {sT}, {sT}, 3
    s_mul_i32 {sBLK}, {sG}, 7
    s_add_u32 {sBLK}, {sBLK}, 1
    s_lshr_b32 {sBLK}, {sBLK}, 1
    s_add_u32 {sBLK}, {sBLK}, {sT}
    s_and_b32 {sTmp2}, {sG}, 1
    s_add_u32 {sTmp2}, {sTmp2}, {sT}
    s_cmp_eq_u32 {sTmp2}, 4
    s_cselect_b32 {sBLK}, 0x4000, {sBLK}
    s_lshl_b32 {sTmp}, {sA}, 1
    s_and_b32 {sTmp2}, {sC}, 1
    s_add_u32 {sTmp}, {sTmp}, {sTmp2}
    s_lshl_b32 {oW1}, {sTmp}, 2
    s_add_u32 {oW1}, {oW1}, {sW}
    s_mul_i32 {oW1}, {oW1}, {16*3584}
    s_lshl_b32 {sTmp2}, {sBLK}, 7
    s_add_u32 {oW1}, {oW1}, {sTmp2}
    s_mov_b32 {SW1[2]}, {512*1792*2}
    s_mov_b32 {SW1[3]}, 0x20000
    v_lshrrev_b32 {vT1}, 3, v0
    v_mul_u32_u24 {vW1e}, 3584, {vT1}
    v_and_b32 {vT0}, 0x7f, {vWQe}
    v_add_u32 {vW1e}, {vW1e}, {vT0}
    v_xor_b32 {vW1o}, 64, {vW1e}
    s_lshl_b32 {oHG}, {sG}, 2
    s_add_u32 {oWO}, {oHG}, {sA}
    s_add_u32 {oHG}, {oHG}, {sT}
    s_lshl_b32 {oHG}, {oHG}, 12
    s_add_u32 {oHG}, {oHG}, {HBUF}
    s_lshl_b32 {sTmp}, {sTmp}, 4
    s_add_u32 {oHS}, {oHG}, {sTmp}
    s_lshl_b32 {sTmp}, {sW}, 9
    s_add_u32 {oHS}, {oHS}, {sTmp}
    s_mov_b32 {SW2[2]}, {512*1792*2}
    s_mov_b32 {SW2[3]}, 0x20000
    s_mov_b32 {SV[2]}, {2*8*8192*256}
    s_mov_b32 {SV[3]}, 0x20000
    s_mov_b32 {SB1[2]}, 3584
    s_mov_b32 {SB1[3]}, 0x20000
    s_lshl_b32 {sC2}, {sKH}, {2 if opt.get('crot', 1) else 8}
    s_xor_b32 {sC2}, {sC2}, {sC}
    s_and_b32 {sC2}, {sC2}, 7
    s_lshl_b32 {oW2}, {sBLK}, 2
    s_add_u32 {oW2}, {oW2}, {sW}
    s_lshl_b32 {oW2}, {oW2}, 14
    s_lshl_b32 {sTmp}, {sC2}, 7
    s_add_u32 {oW2}, {oW2}, {sTmp}
    v_lshlrev_b32 {vT0}, 1, {vGQ}
    v_and_b32 {vT1}, 7, v0
    v_xor_b32 {vT0}, {vT0}, {vT1}
    v_lshlrev_b32 {vT0}, 4, {vT0}
    v_lshrrev_b32 {vWO}, 3, v0
    v_lshl_add_u32 {vWO}, {vWO}, 10, {vT0}
    v_lshlrev_b32 {vT0}, 4, {vGQ}
    v_lshl_add_u32 {vT0}, {vB3}, 6, {vT0}
    v_lshlrev_b32 {vHG}, 4, {vT1}
    v_lshl_add_u32 {vHG}, {vT0}, 3, {vHG}
    v_lshrrev_b32 {vB1}, 1, {vT0}
    v_and_b32 {vT1}, 1, v0
    v_lshl_add_u32 {vB1}, {vT1}, 2, {vB1}
    v_and_b32 {vT0}, 2, v0
    v_add_u32 {vB1}, {vB1}, {vT0}
    v_and_b32 {vT0}, 1, {vGQ}
    v_lshlrev_b32 {vXF}, 1, {vT0}
    v_lshl_add_u32 {vXF}, {vT1}, 2, {vXF}
    v_lshlrev_b32 {vT0}, 1, {vGQ}
    v_xor_b32 {vT0}, {vT0}, {vI}
    v_lshlrev_b32 {vT0}, 4, {vT0}
    v_lshl_add_u32 {vV[0]}, {vGQ}, 8, {vT0}
    v_xor_b32 {vV[1]}, 0x80, {vV[0]}
    s_mul_i32 {oV}, {sKH}, {KH_[4] * 1024}
    s_add_u32 {oV}, {oV}, {oKV}
    s_mul_i32 {sTmp}, {sB}, {KH_[2] * 1024}
    s_add_u32 {oV}, {oV}, {sTmp}
    v_lshrrev_b32 {vFG}, 1, v0
    v_lshlrev_b32 {vFG}, 7, {vFG}
    v_lshl_add_u32 {vFG}, {vT1}, 4, {vFG}
    v_lshrrev_b32 {vT0}, 5, v0
    v_and_b32 {vT1}, 31, v0
    v_lshlrev_b32 {vQG}, 12, {vT0}
    v_lshl_add_u32 {vQG}, {vT1}, 4, {vQG}
    v_lshlrev_b32 {vQW}, 2, {vT0}
    v_lshl_add_u32 {vQW}, {vT1}, 3, {vQW}
    s_lshl_b32 {oB1}, {sBLK}, 7
    s_lshl_b32 {sTmp}, {sKH}, 6
    s_add_u32 {oB1}, {oB1}, {sTmp}
    s_lshl_b32 {oXF}, {sBA}, 10
    s_lshl_b32 {sTmp}, {sG}, 7
    s_add_u32 {oXF}, {oXF}, {sTmp}
    s_lshl_b32 {sTmp}, {sS}, 3
    s_add_u32 {oXF}, {oXF}, {sTmp}
    s_lshl_b32 {sTmp}, {sBA}, 13
    s_add_u32 {oQG}, {oQG}, {sTmp}
    s_lshl_b32 {sTmp}, {sB}, 11
    s_add_u32 {oHG}, {oHG}, {sTmp}
    s_lshl_b32 {sTmp}, {sKH}, 10
    s_add_u32 {oHG}, {oHG}, {sTmp}
    """)
    prewarm = opt.get("prewarm", 1)
    if prewarm:
        B += lines(f"""
        s_lshl_b32 {sTmp}, {sJ}, 2
        s_add_u32 {sTmp}, {sTmp}, {sW}
        s_lshl_b32 {sTmp2}, {sG}, 7
        s_add_u32 {sTmp2}, {sTmp2}, {sTmp}
        s_lshl_b32 {sTmp2}, {sTmp2}, 9
        s_add_u32 {sTmp2}, {sTmp2}, {PART}
        v_lshlrev_b32 {vPRE}, 7, v0
        v_add_u32 {vPRE}, {sTmp2}, {vPRE}
        s_and_b32 {sTmp}, {sTmp}, 15
        s_lshl_b32 {sTmp2}, {sG}, 4
        s_add_u32 {sTmp}, {sTmp}, {sTmp2}
        s_lshl_b32 {sTmp}, {sTmp}, 7
        s_add_u32 {sTmp}, {sTmp}, {MLB}
        v_writelane_b32 {vPRE}, {sTmp}, 4
        """)
    sU = sTmp2
    oWO2 = sBLK
    C = lines(f"""
    s_mov_b32 {SWO[2]}, {4096*512*2}
    s_mov_b32 {SWO[3]}, 0x20000
    s_mov_b32 {SOUT[2]}, 2048
    s_mov_b32 {SOUT[3]}, 0x20000
    v_xor_b32 {vKR[1]}, 64, {vKR[0]}
    v_xor_b32 {vKR[2]}, 0x80, {vKR[0]}
    v_xor_b32 {vKR[3]}, 0xc0, {vKR[0]}
    v_and_b32 {vT1}, 3, v0
    v_mul_u32_u24 {vQR}, {QSTR}, {vT1}
    v_lshl_add_u32 {vQR}, {vGQ}, 4, {vQR}
    v_lshlrev_b32 {vMR}, 4, {vT1}
    v_lshlrev_b32 {vPS}, 13, {vT1}
    v_lshl_add_u32 {vPS}, {vGQ}, 8, {vPS}
    v_bfe_u32 {vT0}, v0, 2, 1
    v_lshl_add_u32 {vPS}, {vT0}, 10, {vPS}
    s_lshl_b32 {sU}, {sW}, 2
    v_add_u32 {vMX}, {sU}, {vMR}
    s_lshl_b32 {sU}, {sKH}, 12
    v_add_u32 {vTW[0]}, {sU}, {vTW[0]}
    v_xor_b32 {vTW[1]}, 32, {vTW[0]}
    v_xor_b32 {vTW[2]}, 64, {vTW[0]}
    v_xor_b32 {vTW[3]}, 0x60, {vTW[0]}
    v_add_u32 {vTO[0]}, {sU}, {vTW[0]}
    v_add_u32 {vTO[1]}, {sU}, {vTW[1]}
    v_add_u32 {vTO[2]}, {sU}, {vTW[2]}
    v_add_u32 {vTO[3]}, {sU}, {vTW[3]}
    s_lshl_b32 {sU}, {sW}, 1
    v_xor_b32 {vTV[0]}, {sU}, {vTV[0]}
    v_lshl_add_u32 {vTV[0]}, {vTV[0]}, 5, {vTV[1]}
    v_add_u32 {vTV[0]}, {L_V}, {vTV[0]}
    v_xor_b32 {vTV[1]}, 32, {vTV[0]}
    s_mul_i32 {sU}, {sW}, {QSTR}
    v_add_u32 {vQW}, {sU}, {vQW}
    v_lshl_add_u32 {vMLG}, {vGQ}, 2, {vI}
    v_and_b32 {vMLG}, 15, {vMLG}
    v_lshlrev_b32 {vMLG}, 4, {vMLG}
    v_lshlrev_b32 {vFS}, 3, {vI}
    v_lshl_add_u32 {vFS}, {vGQ}, 13, {vFS}
    s_lshl_b32 {oFS}, {oWO}, 1
    s_add_u32 {oFS}, {oFS}, {sKH}
    s_lshl_b32 {oFS}, {oFS}, 7
    s_lshl_b32 {sU}, {sC2}, 1
    s_add_u32 {sU}, {sU}, {sB}
    s_lshl_b32 {sU}, {sU}, 15
    s_add_u32 {oFS}, {oFS}, {sU}
    s_add_u32 {oFS}, {oFS}, {FIN}
    s_lshl_b32 {oWO}, {oWO}, 4
    s_add_u32 {oWO}, {oWO}, {sW}
    s_lshl_b32 {oWO}, {oWO}, 13
    s_xor_b32 {sU}, {sC}, 4
    s_lshl_b32 {sU}, {sU}, 7
    s_add_u32 {oWO2}, {oWO}, {sU}
    s_add_u32 {oWO2}, {oWO2}, 65536
    s_lshl_b32 {sU}, {sC}, 7
    s_add_u32 {oWO}, {oWO}, {sU}
    s_lshl_b32 {oPS}, {sG}, 1
    s_add_u32 {oPS}, {oPS}, {sBA}
    s_lshl_b32 {oML}, {oPS}, 2
    s_add_u32 {oML}, {oML}, {sW}
    s_lshl_b32 {oML}, {oML}, 8
    s_lshl_b32 {sU}, {sS}, 4
    s_add_u32 {oML}, {oML}, {sU}
    s_add_u32 {oML}, {oML}, {MLB}
    s_lshl_b32 {oPS}, {oPS}, 15
    s_add_u32 {oPS}, {oPS}, {sU}
    s_lshl_b32 {sU}, {sW}, 11
    s_add_u32 {oPS}, {oPS}, {sU}
    s_add_u32 {oPS}, {oPS}, {PART}
    s_lshl_b32 {oPA}, {sG}, 1
    s_add_u32 {oPA}, {oPA}, {sB}
    s_lshl_b32 {oPA}, {oPA}, 2
    s_add_u32 {oPA}, {oPA}, {sA}
    s_lshl_b32 {oMLG}, {oPA}, 8
    s_add_u32 {oMLG}, {oMLG}, {MLB}
    s_lshl_b32 {oPA}, {oPA}, 13
    s_lshl_b32 {sU}, {sKH}, 12
    s_add_u32 {oPA}, {oPA}, {sU}
    s_add_u32 {oPA}, {oPA}, {PART}
    s_lshl_b32 {oFG}, {sG}, 3
    s_lshr_b32 {sU}, {sJ}, 2
    s_add_u32 {oFG}, {oFG}, {sU}
    s_lshl_b32 {oFG}, {oFG}, 13
    s_and_b32 {sU}, {sJ}, 3
    s_lshl_b32 {sU}, {sU}, 5
    s_add_u32 {oFG}, {oFG}, {sU}
    s_add_u32 {oFG}, {oFG}, {FIN}
    s_add_u32 {oFG2}, {oFG}, 4096
    """)
    def kjob(idx):
        def f():
            a(f"s_lshl2_add_u32 m0, {sM}, {L_K + 1024 * idx}\ns_add_u32 {oK}, {oK}, {1024 * (KH_[idx] - KH_[idx - 1]) if idx else 0}")
            vmem("k", f"buffer_load_dwordx4 {vK[idx & 3]}, {SK}, {oK} offen {pol('k')} lds")
        return f
    NKA = opt.get("nka", 0)
    NKP = opt.get("nkp", 6)
    b1r = v.get(); xf = v.get()
    def w2job(n):
        def f():
            if n == 0: a(f"s_add_u32 m0, {sM}, {L_W2}\ns_nop 0")
            else: a(f"s_add_u32 m0, {sM}, {L_W2 + 1024}\ns_add_u32 {oW2}, {oW2}, 8192")
            vmem("w2", f"buffer_load_dwordx4 {vWO}, {SW2}, {oW2} offen {pol('w2')} lds")
        return f
    def smalljob():
        vmem("b1", f"buffer_load_ushort {b1r}, {vB1}, {SB1}, {oB1} offen")
        vmem("xf", f"buffer_load_ushort {xf}, {vXF}, {SX}, {oXF} offen")
        if prewarm:
            a("s_mov_b32 exec_lo, %d\ns_mov_b32 exec_hi, 0" % (31 if opt.get("qpw", 1) else 63))
            vmem("pre", f"buffer_load_dword {vPRE}, {vPRE}, {SWS}, 0 offen {opt.get('pwpol', 'sc1')}")
            a("s_mov_b64 exec, -1")
    def w1job(n):
        def f():
            if n == 0: a(f"s_add_u32 m0, {sM}, {L_W1}\ns_nop 0")
            else: a(f"s_add_u32 m0, {sM}, {L_W1 + 1024}\ns_add_u32 {oW1}, {oW1}, 28672")
            vmem("w1", f"buffer_load_dwordx4 {vW1o if n else vW1e}, {SW1}, {oW1} offen {pol('w1')} lds")
        return f
    kw = opt.get("kw1", 0)
    alljobs = [kjob(i) for i in range(kw)] + [w1job(0), w1job(1)] + [kjob(i) for i in range(kw, 8)]
    kj = alljobs[:NKP]; later = alljobs[NKP:]
    def spf():
        if opt.get("spf", 1):
            a(f"s_bfe_u32 {sTmp2}, {oWQ}, 0x30007\ns_cmp_eq_u32 {sTmp2}, 3\ns_cbranch_scc0 L_nospf")
            for r in range(opt.get("spfr", 6)):
                for hf in range(2):
                    a(f"s_buffer_load_dword {sE[1]}, {SWQ}, {oWQ} offset:{(7 - r) * 8192 + 64 * hf}")
            a("L_nospf:")
    if opt.get("spfe"):
        spf()
        PT = A[:4]; A = A[4:]
        for x in A[:23]: a(x)
        A = [None] * 4 + A
    else:
        PT = []
        for x in A[:27]: a(x)
    tch = opt.get("touch", "")
    if tch:
        a(f"""
        s_lshl_b32 {sTmp2}, {sG}, 2
        s_add_u32 {sTmp2}, {sTmp2}, {sA}
        s_lshl_b32 {sTmp2}, {sTmp2}, 17
        s_waitcnt lgkmcnt(0)
        """)
        if tch == "s":
            a(f"""
            s_load_dword {sE[1]}, {SK[0:2]}, {oK}
            s_load_dword {sE[1]}, {SV[0:2]}, {oK}
            s_load_dword {sE[1]}, {SWO[0:2]}, {sTmp2}
            s_load_dword {sE[1]}, {SW1[0:2]}, 0
            s_load_dword {sE[1]}, {SW2[0:2]}, 0
            s_load_dword {sE[1]}, {SB1[0:2]}, 0
            s_load_dword {sE[1]}, {SOUT[0:2]}, 0
            """)
        else:
            vD = v.get(2)
            a(f"v_mov_b32 {vD[0]}, {oK}")
            vmem("t", f"global_load_dword {vD[1]}, {vD[0]}, {SV[0:2]}")
            a(f"v_mov_b32 {vD[0]}, {sTmp2}")
            vmem("t", f"global_load_dword {vD[1]}, {vD[0]}, {SWO[0:2]}")
            a(f"v_mov_b32 {vD[0]}, 0")
            vmem("t", f"global_load_dword {vD[1]}, {vD[0]}, {SW2[0:2]}")
            vmem("t", f"global_load_dword {vD[1]}, {vD[0]}, {SW1[0:2]}")
            vmem("t", f"global_load_dword {vD[1]}, {vD[0]}, {SWS[0:2]}")
    if not opt.get("spfe"): spf()
    a(f"s_load_dword {sE[0]}, {SWS[0:2]}, 0")
    for x in A[27:]: a(x)
    ja = [kj.pop(0) for _ in range(NKA)]
    if opt.get("qpw", 1) == 1:
        vD2 = v.get(2)
        a(f"""
        s_lshl_b32 {sTmp}, {sJ}, 2
        s_add_u32 {sTmp}, {sTmp}, {sW}
        s_lshl_b32 {sTmp}, {sTmp}, 7
        s_and_b32 {sTmp2}, {oQS}, 0xffffc000
        s_add_u32 {sTmp}, {sTmp}, {sTmp2}
        """)
        vmem("pre", f"buffer_load_dword {vD2[0]}, off, {SWS}, {sTmp} {opt.get('pwpol', 'sc1')}")
    nb1 = opt.get("nb1", 35)
    B2 = B[nb1:]; B = B[:nb1]
    weave(B, ja, max(len(B) // (NKA + 1), 1))
    for f in ja: f()
    if opt.get("qpw", 1) == 1:
        a(f"""
        s_lshl_b32 {sTmp}, {sC}, 2
        s_add_u32 {sTmp}, {sTmp}, {sW}
        s_lshl_b32 {sTmp}, {sTmp}, 7
        s_add_u32 {sTmp}, {sTmp}, {oHG}
        """)
        vmem("pre", f"buffer_load_dword {vD2[1]}, off, {SWS}, {sTmp} {opt.get('pwpol', 'sc1')}")
    if opt.get("so"):
        for x in B2: a(x)
        a("s_waitcnt lgkmcnt(0)")
        n0 = len(vm)
        for fj in alljobs[:opt.get("son", 10)]: fj()
        stamp("iss", flush=True)
        wait_vm("xo"); stamp("x", flush=True)
        wait_vm("wq"); stamp("wq", flush=True)
        wait_vm("pre"); stamp("pre", flush=True)
        for i in range(n0, len(vm), 2):
            a("s_waitcnt vmcnt(%d)" % (len(vm) - 2 - i)); stamp(vm[i] + str(i - n0), flush=True)
        stamp("dummy", flush=True)
        a(f"""
        s_mov_b32 s3, 0
        v_writelane_b32 {vST}, s3, 31
        s_lshl_b32 {sTmp}, s2, 2
        s_add_u32 {sTmp}, {sTmp}, {sW}
        s_lshl_b32 {sTmp}, {sTmp}, 7
        s_add_u32 {sTmp}, {sTmp}, {STAMP}
        v_lshlrev_b32 {vT1}, 2, v0
        s_mov_b32 exec_lo, -1
        s_mov_b32 exec_hi, 0
        buffer_store_dword {vST}, {vT1}, {SWS}, {sTmp} offen
        L_end:
        s_endpgm
        L_codeend:
        """)
        names.append("dummy2")
        out.insert(len(hdr), "; stamps: " + ",".join(names))
        out.append(a.text())
        out.append(f""".section .rodata,"a"
.p2align 6
.amdhsa_kernel {NAME}_kernel
  .amdhsa_next_free_vgpr 256
  .amdhsa_next_free_sgpr 102
  .amdhsa_accum_offset 256
  .amdhsa_group_segment_fixed_size 0
  .amdhsa_kernarg_size 96
  .amdhsa_user_sgpr_count 2
  .amdhsa_user_sgpr_kernarg_segment_ptr 1
  .amdhsa_system_sgpr_workgroup_id_x 1
.end_amdhsa_kernel""")
        return "\n".join(out) + "\n"
    mk = v.mark()
    f = v.get(16, 2); nm = v.get(2, 2); acc = v.get(2, 2); t0 = v.get(); t1 = v.get(); vMean = v.get(2, 2); vR = v.get(2, 2)
    g4 = v.get(8, 2)
    stamp("addr")
    wait_vm("xs")
    stamp("x")
    LN = []
    for k in range(8):
        LN += [f"v_lshlrev_b32 {f[2*k]}, 16, {xs[k]}", f"v_and_b32 {f[2*k+1]}, {sHi}, {xs[k]}"]
    LN += lines(f"""
    v_pk_add_f32 {g4[0:2]}, {f[0:2]}, {f[2:4]}
    v_pk_add_f32 {g4[2:4]}, {f[4:6]}, {f[6:8]}
    v_pk_add_f32 {g4[4:6]}, {f[8:10]}, {f[10:12]}
    v_pk_add_f32 {g4[6:8]}, {f[12:14]}, {f[14:16]}
    v_pk_add_f32 {g4[0:2]}, {g4[0:2]}, {g4[2:4]}
    v_pk_add_f32 {g4[4:6]}, {g4[4:6]}, {g4[6:8]}
    v_add_f32 {acc[0]}, {g4[0]}, {g4[1]}
    v_add_f32 {acc[1]}, {g4[4]}, {g4[5]}
    """)
    xu = g4
    def red(x, tmp, fill):
        o = []
        def F(n=2):
            for _ in range(n):
                if fill: o.append(fill.pop(0))
        o += [f"v_cndmask_b32 {tmp}, {acc[1]}, {acc[0]}, {sB3}", f"v_cndmask_b32 {x}, {acc[0]}, {acc[1]}, {sB3}"]
        F(2); o.append(f"v_add_f32_dpp {x}, {tmp}, {x} row_ror:8 {DPPM}")
        for m in ("quad_perm:[1,0,3,2]", "quad_perm:[2,3,0,1]", "row_half_mirror"):
            F(); o.append(f"v_add_f32_dpp {x}, {x}, {x} {m} {DPPM}")
        o.append(f"v_mov_b32 {tmp}, {x}"); F(); o += [f"v_permlane16_swap_b32 {x}, {tmp}", f"v_add_f32 {x}, {x}, {tmp}"]
        o.append(f"v_mov_b32 {tmp}, {x}"); F(); o += [f"v_permlane32_swap_b32 {x}, {tmp}", f"v_add_f32 {x}, {x}, {tmp}"]
        return o + fill
    XOW = "@waitxo"
    fill = [XOW]
    for k in range(4):
        fill += [f"v_lshlrev_b32 {xu[2*k]}, 16, {xo[k]}", f"v_and_b32 {xu[2*k+1]}, {sHi}, {xo[k]}"]
    LN += red(t0, t1, fill)
    nm2 = vR
    LN += lines(f"""
    v_mul_f32 {t0}, 0xbb000000, {t0}
    v_cvt_pk_bf16_f32 {vMean[0]}, {t0}, {t0}
    v_and_b32 {vMean[0]}, {sHi}, {vMean[0]}
    v_mov_b32_dpp {nm[0]}, {t0} row_newbcast:0 {DPPM}
    v_mov_b32_dpp {nm2[0]}, {t0} row_newbcast:8 {DPPM}
    v_mov_b32_dpp {nm[1]}, {t0} row_newbcast:0 {DPPM}
    v_mov_b32_dpp {nm2[1]}, {t0} row_newbcast:8 {DPPM}
    """)
    for k in range(8):
        LN.append(f"v_pk_add_f32 {f[2*k:2*k+2]}, {f[2*k:2*k+2]}, {nm if k < 4 else nm2}")
    LN += [f"v_pk_mul_f32 {nm}, {f[0:2]}, {f[0:2]}", f"v_pk_mul_f32 {nm2}, {f[8:10]}, {f[8:10]}"]
    for k in range(1, 4):
        LN += [f"v_pk_fma_f32 {nm}, {f[2*k:2*k+2]}, {f[2*k:2*k+2]}, {nm}", f"v_pk_fma_f32 {nm2}, {f[8+2*k:8+2*k+2]}, {f[8+2*k:8+2*k+2]}, {nm2}"]
    LN += [f"v_add_f32 {acc[0]}, {nm[0]}, {nm[1]}", f"v_add_f32 {acc[1]}, {nm2[0]}, {nm2[1]}"]
    fill = [f"v_mov_b32 {vMean[1]}, {vMean[0]}"]
    for k in range(4):
        fill.append(f"v_pk_add_f32 {xu[2*k:2*k+2]}, {xu[2*k:2*k+2]}, {vMean}")
    for k in range(4):
        fill.append(f"v_cvt_pk_bf16_f32 {xo[k]}, {xu[2*k]}, {xu[2*k+1]}")
    for k in range(2):
        fill += [f"v_lshlrev_b32 {xu[2*k]}, 16, {xo[k]}", f"v_and_b32 {xu[2*k+1]}, {sHi}, {xo[k]}"]
    LN += red(t0, t1, fill)
    LN += lines(f"""
    v_mul_f32 {t0}, 0x3b000000, {t0}
    v_cvt_pk_bf16_f32 {t0}, {t0}, {t0}
    v_lshlrev_b32 {t0}, 16, {t0}
    v_add_f32 {t0}, 0x3727c5ac, {t0}
    v_cvt_pk_bf16_f32 {t0}, {t0}, {t0}
    v_lshlrev_b32 {t0}, 16, {t0}
    v_sqrt_f32 {t0}, {t0}
    v_lshlrev_b32 {xu[4]}, 16, {xo[2]}
    v_cvt_pk_bf16_f32 {t0}, {t0}, {t0}
    v_lshlrev_b32 {t0}, 16, {t0}
    v_rcp_f32 {vR[0]}, {t0}
    v_and_b32 {xu[5]}, {sHi}, {xo[2]}
    v_lshlrev_b32 {xu[6]}, 16, {xo[3]}
    v_and_b32 {xu[7]}, {sHi}, {xo[3]}
    v_mov_b32 {vR[1]}, {vR[0]}
    """)
    for k in range(4):
        LN.append(f"v_pk_mul_f32 {xu[2*k:2*k+2]}, {xu[2*k:2*k+2]}, {vR}")
    for k in range(4):
        LN.append(f"v_cvt_pk_bf16_f32 {xo[k]}, {xu[2*k]}, {xu[2*k+1]}")
    LN.append(f"ds_write_b128 {vPW}, {xo} offset:{L_XN}")
    LN.append(f"ds_write_b32 {vZ}, {vZ} offset:{L_MIX}")
    every = opt.get("kevery", 12)
    k = every - opt.get("kfirst", 1)
    for ins in LN:
        if ins == XOW: wait_vm("xo"); continue
        a(ins); k += 1
        if kj and k >= every:
            kj.pop(0)(); k = 0
    for fj in kj: fj()
    v.release(mk)
    sTag = s.get(4); sXCC = s.get(); sTP = s.get(); sTH = s.get()
    sCnt, sMix = s.get(), s.get()
    stamp("ln")
    for x in PT: a(x)
    a(f"""
    s_getreg_b32 {sXCC}, hwreg(HW_REG_XCC_ID, 0, 4)
    s_waitcnt lgkmcnt(0)
    s_add_u32 {sTag[0]}, {sE[0]}, {hex(PHI)}
    s_lshr_b32 {sTag[1]}, {sTag[0]}, 8
    s_lshr_b32 {sTag[2]}, {sTag[0]}, 16
    s_lshr_b32 {sTag[3]}, {sTag[0]}, 24
    s_xor_b32 {sTP}, {sTag[0]}, {sXCC}
    s_mov_b32 {sTH}, {sTP}
    """)
    if NDB:
        vDBV = v.get(); sDBP = SK[0:2]; sDBX = 'vcc'
        a(f"""
        v_lshlrev_b32 {vDB}, 7, v0
        v_mov_b32 {vDBV}, {sTP}
        s_and_b32 {oDB}, {oDB}, 0xfffffc00
        s_xor_b32 {sTmp}, {sC}, {opt.get('cqx', 1)}
        s_lshl_b32 {sTmp}, {sTmp}, 2
        s_add_u32 {sTmp}, {sTmp}, {sA}
        s_lshl_b32 {sTmp}, {sTmp}, 2
        s_add_u32 {sTmp}, {sTmp}, {sW}
        s_add_u32 {oDB}, {oDB}, {sTmp}
        s_and_b32 vcc_lo, {sTP}, 0xff
        s_mul_i32 vcc_lo, vcc_lo, 0x01010101
        s_mov_b32 vcc_hi, vcc_lo
        """)
    nb2 = opt.get("nb2", 30)
    for x in B2[:nb2]: a(x)
    B2 = B2[nb2:]
    wait_vm("wq")
    stamp("wq")
    a("s_barrier")
    xn = v.get(8, 2)
    mk = v.mark()
    xn2 = v.get(8, 2); aq = v.get(16, 2); dq = v.get(4, 2)
    xnt = [xn[0:4], xn[4:8], xn2[0:4], xn2[4:8]]
    for t in range(4):
        a(f"ds_read_b128 {xnt[t]}, {vL16} offset:{L_XN + 1024*t}")
        for hi in range(2):
            a(f"ds_read_b64_tr_b16 {aq[4*t+2*hi:4*t+2*hi+2]}, {vTQ} offset:{L_WQ + 4096*t + 512*hi}")
    for t in range(4):
        a(f"s_waitcnt lgkmcnt({9 - 3*t})")
        a(f"v_mfma_f32_16x16x32_bf16 {dq}, {aq[4*t:4*t+4]}, {xnt[t]}, {dq if t else 0}")
    def pub(d, voff, soff, name, tp):
        a("s_mov_b32 exec_lo, 0x01010101\ns_mov_b32 exec_hi, 0x01010101")
        a(f"v_bfi_b32 {d[0]}, {vFF}, {tp}, {d[0]}")
        for k in range(1, 4):
            a(f"v_bfi_b32 {d[k]}, {vFF}, {sTag[k]}, {d[k]}")
    pub(dq, vQS, oQS, "qs", sTP)
    vmem("qs", f"buffer_store_dwordx4 {dq}, {vQS}, {SWS}, {oQS} offen {opt.get('stpol', '')}")
    a(f"ds_write_b128 {vSV}, {dq} offset:{L_QSV}")
    a("s_mov_b64 exec, -1")
    v.release(mk)
    stamp("pub1")
    qg = v.get(8, 2); hg = v.get(4, 2)
    DBR = Reg("s", 16, 8)
    NVB2 = opt.get("nvb2", -1)
    dual = NVB2 is not None and NVB2 >= 0
    qg2 = v.get(8, 2) if dual else None
    def poll1(first, r=None, name="p1"):
        r = r or qg
        t = [f"buffer_load_dwordx4 {r[0:4]}, {vQG}, {SWS}, {oQG} offen sc1",
             f"buffer_load_dwordx4 {r[4:8]}, {vQG}, {SWS}, {oQG} offen offset:2048 sc1"]
        for x in t:
            if first: vmem(name, x)
            else: a(x)
    def vjob(n):
        def f():
            assert KH_[6] == KH_[4] + KH_[2] and all(KH_[2 * k + 1] - KH_[2 * k] == KH_[1] for k in range(4))
            d = 0 if n == 0 else (KH_[1] if n & 1 else KW - KH_[1])
            a(f"s_add_u32 m0, {sM}, {L_V + 8192 * (n >> 1) + 1024 * (n & 1)}\ns_add_i32 {oV}, {oV}, {1024 * d}")
            if opt.get("lim"): a("s_waitcnt vmcnt(%d)" % opt["lim"])
            vmem("v%d" % (n // 2), f"buffer_load_dwordx4 {vV[n & 1]}, {SV}, {oV} offen {pol('v')} lds")
        return f
    sMsk, sScale, sL2E, sLn2, sM2 = sT, oW1, oB1, oK, oKV
    qb = v.get(16, 2); sc = v.get(8, 2); tmp4 = v.get(4, 2); ones = v.get(4, 2); pr = v.get(4, 2); af = v.get(4, 2); mlr = v.get(4, 2)
    sEv = sB3; sEv2 = sE; vSc2 = v.get(2, 2)
    C2 = lines(f"""
    s_mov_b32 {sMsk}, 0xffffff00
    v_mov_b32 {vSc2[0]}, 0x3db504f3
    v_mov_b32 {vSc2[1]}, 0x3db504f3
    s_mov_b32 {sL2E}, 0x3fb8aa3b
    s_mov_b32 {sLn2}, 0x3f317218
    s_mov_b32 {sM2}, 0xc038aa3b
    s_mov_b32 {sEv[0]}, 0x55555555
    s_mov_b32 {sEv[1]}, 0x55555555
    s_mov_b32 {sEv2[0]}, 0x33333333
    s_mov_b32 {sEv2[1]}, 0x33333333
    v_mov_b32 {mlr[2]}, {sTag[0]}
    v_mov_b32 {mlr[3]}, {sTag[0]}
    """)
    for k in range(4):
        C2 += [f"v_mov_b32 {ones[k]}, 0x3f803f80", f"v_mov_b32 {pr[k]}, {sTag[0]}", f"v_mov_b32 {af[k]}, 0"]
    a(f"s_mov_b32 {sCnt}, 0")
    a1 = sc; dh = v.get(4, 2)
    def hjob():
        wait_vm("w1")
        a("s_waitcnt lgkmcnt(0)\ns_barrier")
        for t in range(2):
            for hi in range(2):
                a(f"ds_read_b64_tr_b16 {a1[4*t+2*hi:4*t+2*hi+2]}, {vTQ} offset:{L_W1 + 4096*t + 512*hi}")
        for t in range(2):
            a(f"s_waitcnt lgkmcnt({2 - 2*t})")
            a(f"v_mfma_f32_16x16x32_bf16 {dh}, {a1[4*t:4*t+4]}, {xn[4*t:4*t+4]}, {dh if t else 0}")
        for x in C[nC:nC+6]: a(x)
        del C[nC:nC+6]
        pub(dh, vHS, oHS, "hs", sTH)
        vmem("hs", f"buffer_store_dwordx4 {dh}, {vHS}, {SWS}, {oHS} offen {opt.get('stpol', '')}")
        a("s_mov_b64 exec, -1")
        stamp("pubh")
    def hpoll(first=True):
        x = f"buffer_load_dwordx4 {hg}, {vHG}, {SWS}, {oHG} offen sc1"
        if first: vmem("ph", x)
        else: a(x)
    NVQ = opt.get("nvq", 4); NVH = opt.get("nvh", 0); NVP = opt.get("nvp", 9); NV1 = opt.get("nv1", 8)
    weave(B2, later, max(len(B2) // (len(later) + 1), 1), start=-100)
    for fj in later + [smalljob]: fj()
    vj = [vjob(n) for n in range(8)]
    first = vj[:NVH]
    if NVQ <= NVH: first.insert(NVQ, lambda: poll1(True))
    if first: first.pop(0)()
    nC = opt.get("nc1", 40)
    weave(C[:nC], first, max(nC // (len(first) + 1), 1))
    for fj in first: fj()
    hjob()
    HOLD = opt.get("hold3", 0)
    def wojob(n, late=False):
        def f():
            ks = [0, 2, 1, 3][n]; o = oWO2 if ks >= 2 else oWO
            if HOLD and n >= 4 - HOLD:
                if not late: a(f"s_add_u32 {o}, {o}, 32768")
                a(f"""
                s_lshr_b32 {sTmp2}, {sM}, 1
                s_add_u32 {sTmp2}, {sTmp2}, {L_WO + 4096 * ks}
                s_and_b32 m0, {sC}, 3
                s_cmp_{'lg' if late else 'eq'}_u32 m0, 3
                s_cselect_b32 m0, {L_SP}, {sTmp2}
                s_cselect_b32 {sTmp2}, 0x40000000, {o}
                """)
                vmem("wo%d" % (n >> 1), f"buffer_load_dwordx4 {vWO}, {SWO}, {sTmp2} offen {pol('wo')} lds")
                if n == 3:
                    a(f"s_cselect_b32 {sTmp2}, 0x40000000, {oFS}")
                    finpw(sTmp2)
                return
            a(f"s_lshr_b32 m0, {sM}, 1\ns_add_u32 m0, m0, {L_WO + 4096 * ks}\ns_add_u32 {o}, {o}, {32768 if n >= 2 else 0}")
            vmem("wo%d" % (n >> 1), f"buffer_load_dwordx4 {vWO}, {SWO}, {o} offen {pol('wo')} lds")
        return f
    W2AT = opt.get("w2at")
    wj = ([] if W2AT is not None else [w2job(0), w2job(1)]) + [wojob(n) for n in range(4)]
    if NVP > NV1: wj.insert(opt.get("hidx", 0), hpoll)
    wj = vj[NV1:] + wj
    def finpw(o=None):
        a("s_mov_b32 exec_lo, 0x00010001\ns_mov_b32 exec_hi, 0x00010001")
        vmem("pre", f"buffer_load_dword {vPRE}, {vFS}, {SWS}, {o or oFS} offen {opt.get('fpwpol', '')}")
        if opt.get("outpw"):
            vmem("pre", f"buffer_load_ushort {vPRE}, {vXF}, {SOUT}, {oXF} offen")
        a("s_mov_b64 exec, -1")
    if opt.get("finpw", 2) == 2 and not HOLD:
        last = wj[-1]
        wj[-1] = lambda: (last(), finpw())
    if opt.get("seq"):
        tok = {"h": hpoll, "a": w2job(0), "b": w2job(1), "f": finpw}
        for n in range(4): tok["o%d" % n] = wojob(n)
        for n in range(8): tok["v%d" % n] = vj[n]
        wj = [tok[x] for x in opt["seq"].split()]
    NW0 = opt.get("nw0", 1)
    early = wj[:NW0]; wj = wj[NW0:]
    wopos = list(opt.get("wopos", [0, 0, 1, 2, 2, 2]))[-len(wj):] if wj else []
    second = vj[NVH:NV1]
    if W2AT is not None:
        second[W2AT - NVH:W2AT - NVH] = [w2job(0), w2job(1)]
    if dual: second.insert(NVB2 - NVH, lambda: poll1(True, qg2, "p1b"))
    if NVQ > NVH: second.insert(NVQ - NVH, lambda: poll1(True))
    assert NVP > NV1
    weave(C[nC:] + C2, second, max((len(C) - nC + len(C2)) // (len(second) + 1), 1))
    for fj in second: fj()
    if opt.get("finpw", 2) == 1: finpw()
    if early: a("s_waitcnt lgkmcnt(0)")
    for fj in early: fj()
    stamp("issV")
    wait_vm("k")
    for T in range(2):
        for st in range(4):
            a(f"ds_read_b128 {kk[16*T+4*st:16*T+4*st+4]}, {vKR[st]} offset:{4096*T}")
    wait_vm("p1")
    nB = len(vm) - 1 - max(i for i, n in enumerate(vm) if n == "p1b") if dual else 0
    stamp("p1")
    a("L_chk1:")
    a(f"v_xor_b32 {vT0}, {sTP}, {qg[0]}\nv_xor_b32 {vT1}, {sTP}, {qg[4]}")
    seq = [(qg[1], sTag[1], vT0), (qg[5], sTag[1], vT1), (qg[2], sTag[2], vT0), (qg[6], sTag[2], vT1), (qg[3], sTag[3], vT0), (qg[7], sTag[3], vT1)]
    for r, tg, d in seq:
        a(f"v_bitop3_b32 {d}, {r}, {tg}, {d} {BOP}")
    a(f"""
    v_bitop3_b32 {vT0}, {vT0}, {vT1}, {vFF} bitop3:0xa8
    v_cmp_ne_u32 vcc, 0, {vT0}
    """)
    for k in range(8):
        a(f"v_and_b32 {sc[k]}, {sMsk}, {qg[k]}")
    a(f"""
    s_cbranch_vccnz L_retry1
    L_ok1:
    """)
    stamp("ok1")
    if stamps: a(f"v_writelane_b32 {vST}, {sCnt}, 26")
    def WO(p):
        while wj and wopos and wopos[0] <= p:
            wopos.pop(0); wj.pop(0)()
    WO(-1)
    a(f"""
    v_pk_add_f32 {sc[0:2]}, {sc[0:2]}, {sc[4:6]}
    v_pk_add_f32 {sc[2:4]}, {sc[2:4]}, {sc[6:8]}
    v_permlane32_swap_b32 {sc[0]}, {sc[2]}
    v_permlane32_swap_b32 {sc[1]}, {sc[3]}
    v_add_f32 {sc[0]}, {sc[0]}, {sc[2]}
    v_add_f32 {sc[1]}, {sc[1]}, {sc[3]}
    v_cvt_pk_bf16_f32 {sc[0]}, {sc[0]}, {sc[1]}
    ds_write_b32 {vQW}, {sc[0]} offset:{L_Q}
    """)
    WO(0)
    a("s_waitcnt lgkmcnt(0)\ns_barrier")
    a(f"ds_read_b32 {vT1}, {vZ} offset:{L_MIX}")
    for st in range(4):
        a(f"ds_read_b128 {qb[4*st:4*st+4]}, {vQR} offset:{L_Q + 64*st}")
    for st in range(4):
        a(f"s_waitcnt lgkmcnt({3 - st})")
        for T in range(2):
            d = sc[4*T:4*T+4]
            a(f"v_mfma_f32_16x16x32_bf16 {d}, {kk[16*T+4*st:16*T+4*st+4]}, {qb[4*st:4*st+4]}, {d if st else 0}")
    a(f"v_readfirstlane_b32 {sMix}, {vT1}")
    WO(1)
    pk = qb
    t4 = xn[0:4]; t4b = xn[4:8]
    vMax = mlr[0]
    a(f"""
    v_max3_f32 {vT0}, {sc[0]}, {sc[1]}, {sc[2]}
    v_max3_f32 {vT1}, {sc[3]}, {sc[4]}, {sc[5]}
    v_max3_f32 {vT0}, {vT0}, {sc[6]}, {sc[7]}
    v_max_f32 {vT0}, {vT0}, {vT1}
    v_mov_b32 {vT1}, {vT0}
    v_cvt_pk_bf16_f32 {t4[0]}, {sc[0]}, {sc[1]}
    v_cvt_pk_bf16_f32 {t4[1]}, {sc[2]}, {sc[3]}
    v_permlane16_swap_b32 {vT0}, {vT1}
    v_max_f32 {vT0}, {vT0}, {vT1}
    v_mov_b32 {vT1}, {vT0}
    v_cvt_pk_bf16_f32 {t4[2]}, {sc[4]}, {sc[5]}
    v_cvt_pk_bf16_f32 {t4[3]}, {sc[6]}, {sc[7]}
    v_permlane32_swap_b32 {vT0}, {vT1}
    v_max_f32 {vT0}, {vT0}, {vT1}
    ds_write_b32 {vMX}, {vT0} offset:{L_MX}
    """)
    for k in range(4):
        a(f"v_lshlrev_b32 {sc[2*k]}, 16, {t4[k]}\nv_and_b32 {sc[2*k+1]}, {sHi}, {t4[k]}")
    for k in range(4):
        a(f"v_pk_mul_f32 {sc[2*k:2*k+2]}, {sc[2*k:2*k+2]}, {vSc2}")
    a(f"s_cmp_eq_u32 {sMix}, 0\ns_cbranch_scc0 L_mixed\nL_mixback:")
    a(f"s_waitcnt lgkmcnt(0)\ns_barrier\nds_read_b128 {t4b}, {vMR} offset:{L_MX}")
    bw = v.get(16, 2); df = v.get(16, 2)
    for k in range(4):
        a(f"v_cvt_pk_bf16_f32 {t4[k]}, {sc[2*k]}, {sc[2*k+1]}")
    for k in range(4):
        a(f"v_lshlrev_b32 {sc[2*k]}, 16, {t4[k]}\nv_and_b32 {sc[2*k+1]}, {sHi}, {t4[k]}")
    a(f"""
    s_waitcnt lgkmcnt(0)
    v_max3_f32 {vT0}, {t4b[0]}, {t4b[1]}, {t4b[2]}
    v_max_f32 {vT0}, {vT0}, {t4b[3]}
    v_cvt_pk_bf16_f32 {vT0}, {vT0}, {vT0}
    v_lshlrev_b32 {vT0}, 16, {vT0}
    v_mul_f32 {vT0}, {vT0}, {vSc2[0]}
    v_cvt_pk_bf16_f32 {vT0}, {vT0}, {vT0}
    v_lshlrev_b32 {vT0}, 16, {vT0}
    v_mul_f32 {vMax}, {sL2E}, {vT0}
    """)
    for k in range(8):
        a(f"v_fma_f32 {sc[k]}, {sc[k]}, {sL2E}, -{vMax}")
    for k in range(8):
        a(f"v_exp_f32 {sc[k]}, {sc[k]}")
    for k in range(4):
        a(f"v_cvt_pk_bf16_f32 {t4[k]}, {sc[2*k]}, {sc[2*k+1]}")
    a(f"ds_write_b128 {vPW}, {t4} offset:{L_XN}")
    WO(2); WO(3)
    WO(4)
    av = kk; do = v.get(8, 2); dl = sc[0:4]
    a(f"v_mov_b32 {vT0}, 0\nv_lshlrev_b32 {b1r}, 16, {b1r}\ns_lshl_b32 {sTmp}, 1, {sW}\ns_cmp_eq_u32 {sMix}, 0")
    wait_vm("v1")
    a("s_waitcnt lgkmcnt(0)\ns_barrier")
    def vreads(t):
        for T in range(2):
            for hi in range(2):
                a(f"ds_read_b64_tr_b16 {av[8*t+4*T+2*hi:8*t+4*T+2*hi+2]}, {vTV[T]} offset:{8192*t + 4096*hi}")
    def pvm(t, T):
        d = do[4*T:4*T+4]
        a(f"v_mfma_f32_16x16x32_bf16 {d}, {av[8*t+4*T:8*t+4*T+4]}, {pk[4*t:4*t+4]}, {d if t else 0}")
    for t in range(4):
        a(f"ds_read_b128 {pk[4*t:4*t+4]}, {vL16} offset:{L_XN + 1024*t}")
    vreads(0); vreads(1)
    for t in range(4):
        a(f"s_waitcnt lgkmcnt({11 - t})")
        a(f"v_mfma_f32_16x16x32_bf16 {dl}, {ones}, {pk[4*t:4*t+4]}, {dl if t else 0}")
    for t in range(2):
        for T in range(2):
            a(f"s_waitcnt lgkmcnt({6 - 4*t - 2*T})")
            pvm(t, T)
    stamp("soft")
    def mlstore():
        a(f"""
        v_mov_b32 {mlr[1]}, {dl[0]}
        s_mov_b32 exec_lo, {sTmp}
        s_mov_b32 exec_hi, 0
        s_cbranch_scc0 L_mlmix
        """)
        vmem("ml", f"buffer_store_dwordx4 {mlr}, {vT0}, {SWS}, {oML} offen {opt.get('stpol', '')}")
        a("L_mlback:")
        a("s_mov_b64 exec, -1")
    if opt.get("pv3", 1):
        wait_vm("v2")
        a("s_barrier")
        vreads(2)
        mlstore()
        for T in range(2):
            a(f"s_waitcnt lgkmcnt({2 - 2*T})")
            pvm(2, T)
        wait_vm("v3")
        stamp("V")
        a("s_barrier")
        vreads(3)
        for T in range(2):
            a(f"s_waitcnt lgkmcnt({2 - 2*T})")
            pvm(3, T)
    else:
        wait_vm("v3")
        stamp("V")
        a("s_barrier")
        vreads(2); vreads(3)
        mlstore()
        for t in range(2, 4):
            for T in range(2):
                a(f"s_waitcnt lgkmcnt({6 - 4*(t-2) - 2*T})")
                pvm(t, T)
    a(f"""
    s_mov_b32 exec_lo, 0x000f000f
    s_mov_b32 exec_hi, 0x000f000f
    s_mov_b32 {sCnt}, 0
    v_cvt_pk_bf16_f32 {pr[2]}, {do[0]}, {do[1]}
    v_cvt_pk_bf16_f32 {pr[3]}, {do[2]}, {do[3]}
    s_mov_b32 exec_lo, 0x00f000f0
    s_mov_b32 exec_hi, 0x00f000f0
    v_cvt_pk_bf16_f32 {pr[0]}, {do[4]}, {do[5]}
    v_cvt_pk_bf16_f32 {pr[1]}, {do[6]}, {do[7]}
    s_mov_b32 exec_lo, 0x00ff00ff
    s_mov_b32 exec_hi, 0x00ff00ff
    s_cbranch_scc0 L_psmix
    """)
    vmem("ps", f"buffer_store_dwordx4 {pr}, {vPS}, {SWS}, {oPS} offen {opt.get('stpol', '')}")
    a("L_psback:")
    a("s_mov_b64 exec, -1")
    WO(7)
    for n in range(4 - HOLD, 4): wojob(n, True)()
    def nbpf():
        a(f"""
        s_lshl_b32 {sTmp}, {sG}, 2
        s_add_u32 {sTmp}, {sTmp}, {sA}
        s_lshl_b32 {sTmp}, {sTmp}, 2
        s_add_u32 {sTmp}, {sTmp}, {sW}
        s_lshl_b32 {sTmp}, {sTmp}, 15
        s_xor_b32 {sTmp2}, {sC2}, {opt.get('nbx', 1)}
        s_lshl_b32 {sTmp2}, {sTmp2}, 7
        s_add_u32 {sTmp}, {sTmp}, {sTmp2}
        v_lshlrev_b32 {vB1}, 10, v0
        s_mov_b32 exec_lo, -1
        s_mov_b32 exec_hi, 0
        """)
        vmem("pre", f"buffer_load_dword {vB1}, {vB1}, {SWO}, {sTmp} offen {pol('wo')}")
        a("s_mov_b64 exec, -1")
    if opt.get("nbpf") == 1: nbpf()
    if opt.get("finpw", 2) == 3: finpw()
    assert not wj
    stamp("pub2")
    if opt.get("wb2"):
        a(f"s_lshl_b32 {sTmp}, {sJ}, 2\ns_add_u32 {sTmp}, {sTmp}, {sW}\ns_cmp_eq_u32 {sTmp}, {opt['wb2']}\ns_cbranch_scc0 L_nowb2\nbuffer_wbl2 sc1\ns_waitcnt vmcnt(0)\nL_nowb2:")
    wait_vm("ph")
    a("L_chkh:")
    a(f"v_xor_b32 {vT0}, {sTH}, {hg[0]}")
    for k in range(1, 4):
        a(f"v_bitop3_b32 {vT0}, {hg[k]}, {sTag[k]}, {vT0} {BOP}")
    a(f"v_and_b32 {vT0}, {vT0}, {vFF}\nv_cmp_ne_u32 vcc, 0, {vT0}")
    hm = sc[0:4]; hs4 = sc[4:8]
    for k in range(4):
        a(f"v_and_b32 {hm[k]}, {sMsk}, {hg[k]}")
    a("s_cbranch_vccnz L_retryh\nL_okh:")
    if stamps: a(f"v_writelane_b32 {vST}, {sCnt}, 25")
    h = hm[0]; e = hm[1]; u = hm[2]; d1 = hm[3]; r1 = hs4[1]
    def rnd1(x): return [f"v_cvt_pk_bf16_f32 {x}, {x}, {x}", f"v_lshlrev_b32 {x}, 16, {x}"]
    ff = lines(f"""
    v_cndmask_b32 {hs4[0]}, {hm[0]}, {hm[2]}, {sEv}
    v_cndmask_b32 {hs4[1]}, {hm[1]}, {hm[3]}, {sEv}
    v_cndmask_b32 {hs4[2]}, {hm[2]}, {hm[0]}, {sEv}
    v_cndmask_b32 {hs4[3]}, {hm[3]}, {hm[1]}, {sEv}
    v_add_f32_dpp {hs4[2]}, {hs4[0]}, {hs4[2]} quad_perm:[1,0,3,2] {DPPM}
    v_add_f32_dpp {hs4[3]}, {hs4[1]}, {hs4[3]} quad_perm:[1,0,3,2] {DPPM}
    v_cndmask_b32 {hs4[0]}, {hs4[2]}, {hs4[3]}, {sEv2}
    v_cndmask_b32 {h}, {hs4[3]}, {hs4[2]}, {sEv2}
    v_add_f32_dpp {h}, {hs4[0]}, {h} quad_perm:[2,3,0,1] {DPPM}
    v_add_f32_dpp {h}, {h}, {h} row_shl:4 {DPPM}
    """)
    ff += rnd1(h) + [f"v_add_f32 {h}, {h}, {b1r}"] + rnd1(h)
    ff += [f"v_mul_f32 {e}, -abs({h}), {sL2E}", f"v_exp_f32 {e}, {e}"] + rnd1(e)
    ff += [f"v_add_f32 {u}, 1.0, {e}", f"v_add_f32 {d1}, -1.0, {u}", f"v_log_f32 {u}, {u}", f"v_rcp_f32 {r1}, {d1}",
           f"v_cmp_eq_f32 vcc, 0, {d1}", f"v_mul_f32 {u}, {sLn2}, {u}", f"v_mul_f32 {r1}, {r1}, {e}", f"v_mul_f32 {u}, {u}, {r1}",
           f"v_cndmask_b32 {u}, {u}, {e}, vcc"] + rnd1(u)
    ff += [f"v_max_f32 {e}, 0, {h}", f"v_add_f32 {u}, {u}, {e}"] + rnd1(u)
    ff += [f"v_mul_f32 {e}, {sM2}, {u}", f"v_exp_f32 {e}, {e}", f"v_cmp_gt_f32 vcc, 0x3a800000, {u}", f"v_add_f32 {d1}, 1.0, {e}", f"v_rcp_f32 {d1}, {d1}",
           f"v_sub_f32 {e}, 1.0, {e}", f"v_mul_f32 {e}, {e}, {d1}", f"v_cndmask_b32 {e}, {e}, {u}, vcc"] + rnd1(e)
    ff += [f"v_mul_f32 {e}, {e}, {h}", f"v_mov_b32_dpp {u}, {e} quad_perm:[2,3,0,1] {DPPM}", f"v_cvt_pk_bf16_f32 {u}, {e}, {u}"]
    ff += lines(f"""
    v_mov_b32_dpp {af[0]}, {u} quad_perm:[0,1,2,3] row_mask:0xf bank_mask:0x1
    v_mov_b32_dpp {af[1]}, {u} row_shl:1 row_mask:0xf bank_mask:0x1
    v_mov_b32_dpp {af[2]}, {u} row_shl:8 row_mask:0xf bank_mask:0x1
    v_mov_b32_dpp {af[3]}, {u} row_shl:9 row_mask:0xf bank_mask:0x1
    """)
    for x in ff: a(x)
    if opt.get("nbpf") == 2: nbpf()
    stamp("ffn")
    pa = qb; mlg = qg[0:4]; bo = kk; dd = v.get(16, 2)
    def poll2(first):
        t = []
        for tl in range(2):
            t.append(f"buffer_load_dwordx4 {pa[8*tl:8*tl+4]}, {vPA}, {SWS}, {oPA} offen offset:{2048*tl} sc1")
            t.append(f"buffer_load_dwordx4 {pa[8*tl+4:8*tl+8]}, {vPA}, {SWS}, {oPA} offen offset:{2048*tl+1024} sc1")
        t.append(f"buffer_load_dwordx4 {mlg}, {vMLG}, {SWS}, {oMLG} offen sc1")
        for x in t:
            if first: vmem("p2", x)
            else: a(x)
    def woreads(tl):
        for ct in range(4):
            for hi in range(2):
                r = bo[16*tl+4*ct+2*hi:16*tl+4*ct+2*hi+2]
                a(f"ds_read_b64_tr_b16 {r}, {vTO[ct]} offset:{L_WO + 4096*tl + 2048*hi}")
    p2at = opt.get("p2at", 2)
    if p2at == 0: poll2(True)
    wait_vm("w2")
    a("s_barrier")
    for ct in range(4):
        for hi in range(2):
            a(f"ds_read_b64_tr_b16 {bw[4*ct+2*hi:4*ct+2*hi+2]}, {vTW[ct]} offset:{L_W2 + 2048*hi}")
    fo = pr[0:2]
    a(f"s_mov_b32 {sCnt}, 0\nv_mov_b32 {fo[1]}, {sTag[0]}\nv_lshlrev_b32 {xf}, 16, {xf}")
    for ct in range(4):
        a(f"s_waitcnt lgkmcnt({6 - 2*ct})")
        a(f"v_mfma_f32_16x16x32_bf16 {df[4*ct:4*ct+4]}, {af}, {bw[4*ct:4*ct+4]}, 0")
    if p2at == 1: poll2(True)
    wait_vm("wo0")
    if p2at == 2:
        stamp("p2i")
        if stamps: a(f"s_mov_b32 {sTmp}, 0\nv_writelane_b32 {vST}, {sTmp}, 27\nv_writelane_b32 {vST}, {sTmp}, 28")
        poll2(True)
    a("s_barrier")
    woreads(0)
    if p2at == 3: poll2(True)
    wait_vm("wo1")
    stamp("wo")
    a("s_barrier")
    woreads(1)
    a("s_waitcnt vmcnt(0)")
    a("L_chk2:")
    wv = vT1; vC = bw[0]
    chk = [f"v_xor_b32 {vC}, {sTag[0]}, {pa[1]}"] + [f"v_bitop3_b32 {vC}, {r}, {sTag[0]}, {vC} {BOP}" for r in (pa[6], pa[9], pa[14], mlg[2])] + [f"v_cmp_ne_u32 vcc, 0, {vC}"]
    wchain = [f"v_max_f32_dpp {vT0}, {mlg[0]}, {mlg[0]} row_ror:1 {DPPM}"] + [f"v_max_f32_dpp {vT0}, {vT0}, {vT0} row_ror:{r} {DPPM}" for r in (2, 4, 8)]
    wchain += [f"v_sub_f32 {wv}, {mlg[0]}, {vT0}", f"v_exp_f32 {wv}, {wv}", f"v_mul_f32 {vT0}, {wv}, {mlg[1]}"]
    wchain += [f"v_add_f32_dpp {vT0}, {vT0}, {vT0} row_ror:{r} {DPPM}" for r in (1, 2, 4, 8)]
    wchain += [f"v_rcp_f32 {vT0}, {vT0}", f"v_mul_f32 {wv}, {wv}, {vT0}"]
    a("s_waitcnt lgkmcnt(8)")
    for tl in range(2):
        if tl:
            a("s_cbranch_vccnz L_retry2\nL_ok2:")
            stamp("ok2")
            a("s_waitcnt lgkmcnt(0)")
        for ct in range(4):
            a(f"v_mfma_f32_16x16x32_bf16 {dd[4*ct:4*ct+4]}, {pa[8*tl+2:8*tl+6]}, {bo[16*tl+4*ct:16*tl+4*ct+4]}, {dd[4*ct:4*ct+4] if tl else 0}")
            a(wchain.pop(0))
            if tl == 0:
                a(chk.pop(0))
                if ct >= 2: a(chk.pop(0))
            else:
                a(wchain.pop(0))
    for x in wchain: a(x)
    for r in range(4):
        for ct in range(4):
            a(f"v_fmac_f32_dpp {df[4*ct]}, {wv}, {dd[4*ct+r]} row_newbcast:{r} {DPPM}")
    a(f"""
    v_permlane32_swap_b32 {df[0]}, {df[8]}
    v_permlane32_swap_b32 {df[4]}, {df[12]}
    v_add_f32 {df[0]}, {df[0]}, {df[8]}
    v_add_f32 {df[4]}, {df[4]}, {df[12]}
    s_cmp_eq_u32 {sW}, 0
    v_permlane16_swap_b32 {df[0]}, {df[4]}
    v_add_f32 {fo[0]}, {df[0]}, {df[4]}
    buffer_store_dwordx2 {fo}, {vFS}, {SWS}, {oFS} offen {opt.get('finpol', 'sc1')}
    """)
    if stamps or probe:
        stamp("pub3", flush=True)
        a(f"s_cmp_eq_u32 {sW}, 0")
    if opt.get("finbar", 1):
        a("s_waitcnt vmcnt(0)\ns_barrier")
    if opt.get("wb"):
        a("s_cbranch_scc0 L_wb")
    else:
        a("s_cbranch_scc0 L_fin")
    fg = bo[0:8]
    a(f"s_mov_b32 {sCnt}, 0")
    if opt.get("p3delay", 1):
        a("s_waitcnt vmcnt(0)")
    if opt.get("p3sleep"):
        a("s_sleep %d" % opt["p3sleep"])
    a(f"""
    L_poll3:
    buffer_load_dwordx4 {fg[0:4]}, {vFG}, {SWS}, {oFG} offen sc1
    buffer_load_dwordx4 {fg[4:8]}, {vFG}, {SWS}, {oFG2} offen sc1
    s_add_u32 {sCnt}, {sCnt}, 1
    s_cmp_gt_u32 {sCnt}, 200000
    s_cbranch_scc1 L_ok3
    s_waitcnt vmcnt(0)
    s_mov_b64 exec, -1
    v_add_f32 {dd[0]}, {fg[0]}, {fg[4]}
    v_add_f32 {dd[1]}, {fg[2]}, {fg[6]}
    v_xor_b32 {vT0}, {sTag[0]}, {fg[1]}
    v_add_f32_dpp {dd[0]}, {dd[0]}, {dd[0]} row_ror:2 {DPPM}
    v_add_f32_dpp {dd[1]}, {dd[1]}, {dd[1]} row_ror:2 {DPPM}
    v_bitop3_b32 {vT0}, {fg[3]}, {sTag[0]}, {vT0} {BOP}
    v_add_f32_dpp {dd[0]}, {dd[0]}, {dd[0]} row_ror:4 {DPPM}
    v_add_f32_dpp {dd[1]}, {dd[1]}, {dd[1]} row_ror:4 {DPPM}
    v_bitop3_b32 {vT0}, {fg[5]}, {sTag[0]}, {vT0} {BOP}
    v_add_f32_dpp {dd[0]}, {dd[0]}, {dd[0]} row_ror:8 {DPPM}
    v_add_f32_dpp {dd[1]}, {dd[1]}, {dd[1]} row_ror:8 {DPPM}
    v_bitop3_b32 {vT0}, {fg[7]}, {sTag[0]}, {vT0} {BOP}
    v_cmp_ne_u32 vcc, 0, {vT0}
    v_permlane16_swap_b32 {dd[0]}, {dd[1]}
    v_add_f32 {dd[0]}, {dd[0]}, {dd[1]}
    v_mov_b32 {dd[1]}, {dd[0]}
    s_cbranch_vccnz L_retry3
    L_ok3:
    """)
    stamp("ok3", flush=True)
    a(f"""
    s_cmp_eq_u32 s2, 0
    v_permlane32_swap_b32 {dd[0]}, {dd[1]}
    v_add_f32 {dd[0]}, {dd[0]}, {dd[1]}
    v_add_f32 {dd[0]}, {dd[0]}, {xf}
    v_cvt_pk_bf16_f32 {dd[0]}, {dd[0]}, {dd[0]}
    s_mov_b32 exec_lo, 0x00030003
    s_mov_b32 exec_hi, 0
    buffer_store_short {dd[0]}, {vXF}, {SOUT}, {oXF} offen {opt.get('outpol', 'nt')}
    s_cbranch_scc0 L_fin
    s_mov_b32 exec_lo, 1
    v_mov_b32 {vT0}, 0
    buffer_store_dword {fo[1]}, {vT0}, {SWS}, 0 offen {opt.get('eppol', opt.get('outpol', 'nt'))}
    L_fin:
    """)
    if stamps:
        stamp("end", True)
        a("s_mov_b64 exec, -1")
        a(f"""
        s_getreg_b32 {sTmp}, hwreg(HW_REG_HW_ID)
        v_writelane_b32 {vST}, {sTmp}, 29
        v_writelane_b32 {vST}, {sXCC}, 30
        v_writelane_b32 {vST}, {sMix}, 31
        s_lshl_b32 {sTmp}, s2, 2
        s_add_u32 {sTmp}, {sTmp}, {sW}
        s_lshl_b32 {sTmp}, {sTmp}, 7
        s_add_u32 {sTmp}, {sTmp}, {STAMP}
        v_lshlrev_b32 {vT1}, 2, v0
        s_mov_b32 exec_lo, -1
        s_mov_b32 exec_hi, 0
        buffer_store_dword {vST}, {vT1}, {SWS}, {sTmp} offen
        """)
        out.insert(len(hdr), "; stamps: " + ",".join(names))
    if probe:
        stamp("end")
        a(f"""
        s_cmp_eq_u32 {sW}, {opt.get('pwave', 0)}
        s_cbranch_scc0 L_end
        s_load_dwordx2 s[8:9], s[0:1], 80
        s_mov_b32 s10, 256
        s_mov_b32 s11, 0x20000
        s_mov_b64 exec, 1
        s_waitcnt lgkmcnt(0)
        s_sub_u32 s4, 0, s100
        v_mov_b32 v2, s4
        v_mov_b32 v3, s98
        v_mov_b32 v4, 0
        buffer_atomic_umax v2, v4, s[8:11], 0 offen sc1
        buffer_atomic_umax v3, v4, s[8:11], 0 offen offset:128 sc1
        s_waitcnt vmcnt(0)
        L_hold0:
        s_memrealtime s[4:5]
        s_waitcnt lgkmcnt(0)
        s_sub_u32 s4, s4, s100
        s_cmp_lt_u32 s4, 2000
        s_cbranch_scc1 L_hold0
        buffer_load_dword v2, v4, s[8:11], 0 offen sc1
        buffer_load_dword v3, v4, s[8:11], 0 offen offset:128 sc1
        s_waitcnt vmcnt(0)
        v_readfirstlane_b32 s6, v2
        v_readfirstlane_b32 s98, v3
        s_add_u32 s98, s98, s6
        s_min_u32 s98, s98, 2000
        s_mul_i32 s98, s98, {opt.get('mult', 8)}
        s_add_u32 s98, s98, 2500
        L_hold1:
        s_memrealtime s[4:5]
        s_waitcnt lgkmcnt(0)
        s_sub_u32 s4, s4, s100
        s_cmp_lt_u32 s4, s98
        s_cbranch_scc1 L_hold1
        """)
    a("L_end:\ns_endpgm")
    if opt.get("wb"):
        a(f"""
        L_wb:
        s_cmp_eq_u32 {sW}, 1
        s_cbranch_scc0 L_fin
        s_cmp_lt_u32 {sJ}, {opt['wb']}
        s_cbranch_scc0 L_fin
        buffer_wbl2 sc1
        s_branch L_fin
        """)
    a("L_retry3:\ns_mov_b64 exec, vcc\ns_branch L_poll3")
    a(f"""
    L_retry1:
    s_add_u32 {sCnt}, {sCnt}, 1
    {'s_cmp_eq_u32 %s, 1' % sCnt if dual else ''}
    {'s_cbranch_scc1 L_useB' if dual else ''}
    s_cmp_gt_u32 {sCnt}, 200000
    s_cbranch_scc1 L_ok1
    s_cmp_lt_u32 {sCnt}, {opt.get('nplain', 12)}
    s_cbranch_scc1 L_r1b
    s_cmp_eq_u32 {sCnt}, {opt.get('nplain', 12)}
    s_cbranch_scc0 L_r1a
    v_mov_b32 {vT0}, 1
    ds_write_b32 {vZ}, {vT0} offset:{L_MIX}
    ds_read_b128 {qg[0:4]}, {vL16} offset:{L_QSV}
    v_and_b32 {vT0}, 1, v0
    v_lshlrev_b32 {vT0}, 13, {vT0}
    v_lshrrev_b32 {vT1}, 1, v0
    v_lshl_add_u32 {vT0}, {vT1}, 4, {vT0}
    s_and_b32 {sTmp}, {oQS}, 0xffffff00
    s_add_u32 {sTmp}, {sTmp}, {SC1D}
    s_waitcnt lgkmcnt(0)
    v_xor_b32 {qg[0]}, {sXCC}, {qg[0]}
    s_mov_b32 exec_lo, -1
    s_mov_b32 exec_hi, 0
    buffer_store_dwordx4 {qg[0:4]}, {vT0}, {SWS}, {sTmp} offen sc1
    s_mov_b64 exec, -1
    L_r1a:
    s_xor_b32 {sTP}, {sTP}, {sXCC}
    s_xor_b32 {oQG}, {oQG}, {SC1D}
    s_nop 1
    L_r1b:
    """)
    poll1(False)
    a("s_waitcnt vmcnt(0)\ns_branch L_chk1")
    if dual:
        a(f"L_useB:\ns_waitcnt vmcnt({nB})")
        for k in range(8):
            a(f"v_mov_b32 {qg[k]}, {qg2[k]}")
        a("s_branch L_chk1")
    a(f"""
    L_mixed:
    s_add_u32 {oHS}, {oHS}, {SC1D}
    s_mov_b32 exec_lo, 0x01010101
    s_mov_b32 exec_hi, 0x01010101
    v_xor_b32 {dh[0]}, {sXCC}, {dh[0]}
    buffer_store_dwordx4 {dh}, {vHS}, {SWS}, {oHS} offen sc1
    s_waitcnt vmcnt(0)
    s_mov_b64 exec, -1
    s_branch L_mixback
    L_retryh:
    s_add_u32 {sCnt}, {sCnt}, 1
    s_cmp_gt_u32 {sCnt}, 200000
    s_cbranch_scc1 L_okh
    s_cmp_eq_u32 {sMix}, 0
    s_cbranch_scc1 L_rhb
    s_xor_b32 {sTH}, {sTH}, {sXCC}
    s_xor_b32 {oHG}, {oHG}, {SC1D}
    L_rhb:
    buffer_load_dwordx4 {hg}, {vHG}, {SWS}, {oHG} offen sc1
    s_waitcnt vmcnt(0)
    s_branch L_chkh
    L_mlmix:
    buffer_store_dwordx4 {mlr}, {vT0}, {SWS}, {oML} offen sc1
    s_branch L_mlback
    L_psmix:
    buffer_store_dwordx4 {pr}, {vPS}, {SWS}, {oPS} offen sc1
    s_branch L_psback
    L_retry2:
    s_add_u32 {sCnt}, {sCnt}, 1
    {('v_writelane_b32 %s, %s, 28' % (vST, sCnt)) if stamps else ''}
    {('s_cmp_eq_u32 %s, 1' % sCnt) if stamps else ''}
    {'s_cbranch_scc0 L_r2x' if stamps else ''}
    {('v_writelane_b32 %s, vcc_lo, 27' % vST) if stamps else ''}
    {'L_r2x:' if stamps else ''}
    s_cmp_gt_u32 {sCnt}, 200000
    s_cbranch_scc1 L_giveup2
    {'s_mov_b64 exec, vcc' if opt.get('sticky', 1) else ''}
    """)
    poll2(False)
    a("s_waitcnt vmcnt(0)")
    if opt.get("tight", 1):
        a(f"v_xor_b32 {vC}, {sTag[0]}, {pa[1]}")
        for r in (pa[6], pa[9], pa[14], mlg[2]):
            a(f"v_bitop3_b32 {vC}, {r}, {sTag[0]}, {vC} {BOP}")
        a(f"v_cmp_ne_u32 vcc, 0, {vC}\ns_cbranch_vccnz L_retry2")
    a("s_mov_b64 exec, -1\ns_nop 3\ns_branch L_chk2")
    a("L_giveup2:\ns_mov_b64 exec, -1\ns_branch L_ok2")
    a("L_codeend:")
    nv = (v.hw + 7) // 8 * 8
    out.append(a.text())
    out.append(f""".section .rodata,"a"
.p2align 6
.amdhsa_kernel {NAME}_kernel
  .amdhsa_next_free_vgpr {nv}
  .amdhsa_next_free_sgpr 102
  .amdhsa_accum_offset {nv}
  .amdhsa_group_segment_fixed_size 0
  .amdhsa_kernarg_size 96
  .amdhsa_user_sgpr_count 2
  .amdhsa_user_sgpr_kernarg_segment_ptr 1
  .amdhsa_system_sgpr_workgroup_id_x 1
.end_amdhsa_kernel""")
    sys.stderr.write("vgprs %d sgprs %d nops %d\n" % (v.hw, s.hw, a.nops))
    return "\n".join(out) + "\n"

if __name__ == "__main__":
    import json
    opt = json.loads(sys.argv[2]) if len(sys.argv) > 2 else {}
    open(sys.argv[1], "w").write(gen(opt))
```

```python
import sys
from asmlib import *

NAME = "parallel_sum__sliding_block_cached__dense_activation_mish__decode"
PHI = 0x9E3779B9
QBUF = 0x40000; HBUF = 0x80000; SC1D = 0x20000; MLB = 0xC0000; DBB = 0xC8000; PART = 0x100000; FIN = 0x180000; STAMP = 0x800000
L_XN = 0; L_Q = 4096; L_MX = 5632; L_MIX = 5760; L_QSV = 5888; L_SP = 7168; L_SP4 = 40960; L_WQ = 8192; L_W1 = 24576; L_W2 = 32768; L_WO = 40960; L_V = 57344; L_K = 90112; LDS_BYTES = 122880
QSTR = 320
DPPM = "row_mask:0xf bank_mask:0xf"
BOP = "bitop3:0xbe"

def lines(text):
    return [l.strip() for l in text.strip().split("\n") if l.strip() and not l.strip().startswith(";")]

KVMAP = {
    "p4": (4, 128, [64 * (n >> 2) + (n & 3) for n in range(8)]),
    "p4i": (4, 1, [64 * n for n in range(8)]),
    "p1i": (1, 16, [64 * n for n in range(8)]),
    "p2": (2, 128, [32 * (n >> 1) + (n & 1) for n in range(8)]),
    "p2i": (2, 32, [128 * (n >> 1) + (n & 1) for n in range(8)]),
    "p8i": (8, 2, [128 * (n >> 1) + (n & 1) for n in range(8)]),
    "p1": (1, 128, [16 * n for n in range(8)]),
}
def gen(opt):
    KS, KW, KH_ = KVMAP[opt.get("kv", "p4")]
    nt = opt.get("nt", {k: "nt" for k in ("wq", "w1", "k", "v", "wo", "w2")})
    def pol(k): return nt.get(k, "")
    stamps = opt.get("stamps", False)
    a = Asm()
    v = Alloc("v", 1, 256); s = Alloc("s", 44, 102)
    hdr = open("cdna_kernels/%s.s.ref" % NAME).read().split("\n")
    hdr = [l for l in hdr if l.startswith(";") and "@launch" not in l and "Override" not in l and "grid=ceil" not in l]
    out = list(hdr)
    out += """;
; One launch, 256 workgroups of 4 waves (one per CU); wg = 8*j + g, g = kv head, j = 8*a + c.
;   P1  LayerNorm (every wave), q partial = xn[128 rows a] @ wq[.., 64 cols c'], h partial = xn[64 rows] @ w1[.., 64 cols]
;   P2  (b = j>>4, s = j&15) 128 keys of (b, g): scores, true max over the workgroup's keys, exp, P@V -> partial o, m, l
;   P3  (head 4g+a, 64 output columns): combine the 16 key splits, @ wo, + mish(h) @ w2 -> partial outputs
;   P4  4 outputs per workgroup: sum of 64 partials + x
; Hand-offs go through d_ws as tagged 16/8-byte granules; the tag is d_ws[0] + const (d_ws[0] is advanced at the end),
; so it only tells this launch's granules from older ones. Inside a group plain stores are used when all 32
; workgroups report the same XCC id (it is part of the first tag); otherwise write-through copies take over.
; All weights, K and V are streamed once by LDS-DMA in an order that keeps the per-CU request window filled.""".split("\n")
    out.append("; @launch grid=(256,1,1) block=(256,1,1) lds=%d" % LDS_BYTES)
    out.append('.amdgcn_target "amdgcn-amd-amdhsa--gfx950"')
    out.append(".text\n.globl %s_kernel\n" % NAME + (".p2align 12\n" if opt.get("al", 1) else "") + ".p2align 8\n.type %s_kernel,@function\n%s_kernel:" % (NAME, NAME))
    SX, SK, SV, SWQ, SWO, SW1, SB1, SW2, SOUT, SWS = [Reg("s", 4 + 4 * i, 4) for i in range(10)]
    vm = []
    def vmem(name, text):
        a(text); vm.append(name)
    def wait_vm(name, allow=0):
        idx = max(i for i, n in enumerate(vm) if n == name) - allow
        n = len(vm) - 1 - idx
        a("s_waitcnt vmcnt(%d)" % n)
    def weave(fill, jobs, every, start=0):
        k = -start
        for ins in fill:
            a(ins); k += 1
            if jobs and k >= every:
                jobs.pop(0)(); k = 0
    nst = [0, 0]
    names = []
    NR = 4
    if stamps:
        sST = [s.get(2, 2) for _ in range(NR)]; vST = v.get()
    probe = opt.get("probe")
    def stamp(name, last=False, flush=False):
        if probe and name == "start": a("s_memrealtime s[100:101]")
        if probe and name == probe: a("s_memrealtime s[98:99]")
        if stamps:
            k = nst[0]; nst[0] += 1; names.append(name)
            assert k < 25
            done = nst[1]
            if k - done >= NR:
                a("v_writelane_b32 %s, %s, %d" % (vST, sST[done % NR][0], done)); done += 1
            a("s_memrealtime %s" % sST[k % NR])
            if last or flush:
                a("s_waitcnt lgkmcnt(0)")
                while done <= k:
                    a("v_writelane_b32 %s, %s, %d" % (vST, sST[done % NR][0], done)); done += 1
            nst[1] = done
    stamp("start")
    a(f"""
    s_load_dwordx2 {SX[0:2]}, s[0:1], 0
    s_load_dwordx2 {SWQ[0:2]}, s[0:1], 24
    s_load_dwordx2 {SW1[0:2]}, s[0:1], 48
    s_load_dwordx2 {SK[0:2]}, s[0:1], 8
    s_load_dwordx2 {SWS[0:2]}, s[0:1], 88
    s_load_dwordx2 {SV[0:2]}, s[0:1], 16
    s_cmp_ge_u32 s2, 256
    s_cbranch_scc1 L_end
    """)
    if opt.get("vpf", 1):
        vP = v.get(2, 2); sPF = s.get(2, 2)
        a(f"""
        s_getpc_b64 {sPF}
        L_pc:
        s_lshr_b32 s3, s2, 1
        s_and_b32 s3, s3, 0x7c
        v_lshrrev_b32 {vP[0]}, 6, v0
        v_add_u32 {vP[0]}, s3, {vP[0]}
        v_lshlrev_b32 {vP[0]}, 6, {vP[0]}
        v_min_u32 {vP[0]}, L_codeend-L_pc-4, {vP[0]}
        """)
        vmem("pf", f"global_load_dword {vP[1]}, {vP[0]}, {sPF}")
    sW, sG, sJ, sA, sC, sT, sBLK, sTmp, sTmp2 = [s.get() for _ in range(9)]
    oXO, oWQ, oW1, oKV, oK, oW2 = [s.get() for _ in range(6)]
    sM = s.get()
    CQA = f"s_xor_b32 {sM}, {sC}, {opt.get('cqx', 1)}"
    if opt.get("cqa"):
        CQA = f"""s_add_u32 {sM}, {sA}, 3
        s_and_b32 {sM}, {sM}, 3
        s_lshl_b32 {sM}, {sM}, 1
        s_xor_b32 {sM}, {sM}, 3
        s_xor_b32 {sM}, {sM}, {sC}"""
    QP2 = ""
    if opt.get("qpw", 0) == 2:
        QP2 = f"""s_mov_b32 {SWS[2]}, 0x10000000
        s_mov_b32 {SWS[3]}, 0x20000
        s_lshl_b32 {oKV}, {sG}, 5
        s_add_u32 {oKV}, {oKV}, {sJ}
        s_lshl_b32 {oKV}, {oKV}, 2
        s_add_u32 {oKV}, {oKV}, {sW}
        s_lshl_b32 {oKV}, {oKV}, 7
        s_add_u32 {oK}, {oKV}, {HBUF}
        s_add_u32 {oKV}, {oKV}, {QBUF}"""
    DBPRE = ""
    if opt.get("ndb", 0):
        oDB0 = s.get()
        DBPRE = f"""s_mov_b32 {SWS[2]}, 0x10000000
        s_mov_b32 {SWS[3]}, 0x20000
        s_lshl_b32 {sTmp}, {sJ}, 2
        s_add_u32 {sTmp}, {sTmp}, {sW}
        s_and_b32 {sTmp}, {sTmp}, 7
        s_lshl_b32 {sTmp2}, {sG}, 3
        s_add_u32 {sTmp}, {sTmp}, {sTmp2}
        s_lshl_b32 {sTmp}, {sTmp}, 7
        s_add_u32 {oDB0}, {sTmp}, {DBB}"""
    vGQ, vI, vT0, vT1 = [v.get() for _ in range(4)]
    vL16, vB3, vXO, vWQe, vWQo, vW1e, vW1o = [v.get() for _ in range(7)]
    vK = v.get(4)
    a(f"""
    v_readfirstlane_b32 {sW}, v0
    v_and_b32 v0, 63, v0
    s_and_b32 {sG}, s2, 7
    {'s_xor_b32 %s, %s, %d' % (sG, sG, opt['gxor']) if opt.get('gxor') else ''}
    s_lshr_b32 {sJ}, s2, 3
    s_lshr_b32 {sW}, {sW}, 6
    s_lshr_b32 {sA}, {sJ}, 3
    s_and_b32 {sC}, {sJ}, 7
    v_lshrrev_b32 {vGQ}, 4, v0
    v_and_b32 {vI}, 15, v0
    s_mov_b32 {SX[2]}, 2048
    s_mov_b32 {SX[3]}, 0x20000
    s_mov_b32 {SWQ[2]}, {512*4096*2}
    s_mov_b32 {SWQ[3]}, 0x20000
    v_lshlrev_b32 {vL16}, 4, v0
    v_bfe_u32 {vB3}, v0, 3, 1
    v_lshlrev_b32 {vT0}, 10, {vB3}
    v_lshl_add_u32 {vXO}, {vGQ}, 4, {vT0}
    v_and_b32 {vT0}, 1, {vGQ}
    v_lshlrev_b32 {vT0}, 1, {vT0}
    v_and_b32 {vT1}, 7, v0
    v_xor_b32 {vT0}, {vT0}, {vT1}
    v_lshlrev_b32 {vT0}, 4, {vT0}
    v_lshrrev_b32 {vT1}, 3, v0
    v_lshl_add_u32 {vWQe}, {vT1}, 13, {vT0}
    v_xor_b32 {vWQo}, 64, {vWQe}
    s_and_b32 {sTmp}, {sC}, 1
    s_lshl_b32 {sTmp2}, {sTmp}, 1
    s_xor_b32 {sTmp2}, {sTmp2}, {sW}
    s_lshl_b32 {sTmp2}, {sTmp2}, 5
    s_lshl_b32 {oXO}, {sA}, 7
    s_add_u32 {sTmp2}, {sTmp2}, {oXO}
    s_lshl_b32 {oWQ}, {sTmp2}, 13
    s_lshl_b32 {sM}, {sG}, 10
    s_add_u32 {oWQ}, {oWQ}, {sM}
    {CQA}
    s_lshl_b32 {sM}, {sM}, 7
    s_add_u32 {oWQ}, {oWQ}, {sM}
    s_lshl_b32 {oXO}, {sTmp2}, 1
    s_lshl_b32 {sM}, {sW}, 12
    s_add_u32 m0, {sM}, {L_WQ}
    {DBPRE}
    {QP2}
    {'s_bfe_u32 %s, %s, 0x30007' % (sTmp, oWQ) if opt.get('wqb', 0) else ''}
    {'s_cmp_eq_u32 %s, 3' % sTmp if opt.get('wqb', 0) else ''}
    s_waitcnt lgkmcnt(0)
    """)
    stamp("karg")
    xs = v.get(8, 2); xo = v.get(4, 2)
    kk = v.get(32, 2)
    sE = sPF if opt.get('vpf', 1) else s.get(2, 2)
    def xloads():
        vmem("xs", f"buffer_load_dwordx4 {xs[0:4]}, {vL16}, {SX}, 0 offen")
        vmem("xs", f"buffer_load_dwordx4 {xs[4:8]}, {vL16}, {SX}, 0 offen offset:1024")
        vmem("xo", f"buffer_load_dwordx4 {xo}, {vXO}, {SX}, {oXO} offen")
        if opt.get("qpw", 0) == 2:
            vD3 = v.get(2)
            vmem("pre", f"buffer_load_dword {vD3[0]}, off, {SWS}, {oKV}")
            vmem("pre", f"buffer_load_dword {vD3[1]}, off, {SWS}, {oK}")
    xat = opt.get("xat", 0)
    if opt.get("wqb", 0):
        a(f"s_cbranch_scc0 L_wqa")
        for k in range(4):
            a(f"buffer_load_dwordx4 {vWQo if k & 1 else vWQe}, {SWQ}, {oWQ} offen {pol('wq')} lds")
            if k < 3:
                a(f"s_add_u32 m0, m0, 1024\ns_add_u32 {oWQ}, {oWQ}, 65536")
        a(f"s_mov_b32 m0, {L_SP4}\ns_mov_b32 {oWQ}, 0x40000000\nL_wqa:")
    for k in range(4):
        if k == xat: xloads()
        vmem("wq", f"buffer_load_dwordx4 {vWQo if k & 1 else vWQe}, {SWQ}, {oWQ} offen {pol('wq')} lds")
        if k < 3:
            a(f"s_add_u32 m0, m0, 1024\ns_add_u32 {oWQ}, {oWQ}, 65536")
    if xat == 4: xloads()
    if opt.get("vhelp"):
        vH = v.get(2)
        a(f"""
        v_lshlrev_b32 {vH[0]}, 13, v0
        s_bfe_u32 {sTmp}, {oWQ}, 0x30007
        s_add_u32 {sTmp2}, {oWQ}, {128 - 65536 * (opt['vhelp'] - 1)}
        s_cmp_eq_u32 {sTmp}, 2
        s_cselect_b32 {sTmp2}, {sTmp2}, 0x40000000
        s_mov_b32 exec_lo, {hex((1 << (8 * opt['vhelp'])) - 1)}
        s_mov_b32 exec_hi, 0
        """)
        vmem("pre0", f"buffer_load_dword {vH[1]}, {vH[0]}, {SWQ}, {sTmp2} offen")
        a("s_mov_b64 exec, -1")
    NDB = opt.get("ndb", 0)
    if NDB:
        vDB = v.get(); oDB = oDB0
        vDum = v.get()
        vmem("dbpw", f"buffer_load_dword {vDum}, off, {SWS}, {oDB} sc1")
    stamp("iss1")
    if opt.get("codepf"):
        sPC = s.get(2, 2)
        a(f"""
        s_getpc_b64 {sPC}
        s_lshl_b32 {sTmp}, {sJ}, 2
        s_add_u32 {sTmp}, {sTmp}, {sW}
        s_min_u32 {sTmp}, {sTmp}, {opt['codepf']}
        s_lshl_b32 {sTmp}, {sTmp}, 7
        s_load_dword {sE[1]}, {sPC}, {sTmp}
        """)
    vWO, vTQ = [v.get() for _ in range(2)]
    vV = v.get(2)
    vKR = v.get(4); vTW = v.get(4); vTO = v.get(4); vTV = v.get(2); vFF = v.get(); vZ = v.get(); vSV = v.get()
    sHi = s.get()
    sB, sKH, sBA, sS, sC2 = [s.get() for _ in range(5)]
    oB1, oXF = oXO, oWQ
    vB1, vXF, vPRE, vF = v.get(), v.get(), v.get(), vXO
    oQS, oHS, oQG, oHG, oML, oPS, oV, oWO = [s.get() for _ in range(8)]
    vQS, vHS, vQG, vHG = [v.get() for _ in range(4)]
    vQW, vQR, vMX, vMR, vPW = [v.get() for _ in range(5)]
    vPS, vMLG, vFS, vFG = [v.get() for _ in range(4)]
    vPA = vL16
    oPA, oMLG, oFS, oFG, oFG2 = [s.get() for _ in range(5)]
    sB3 = s.get(2, 2)
    KVX = opt.get("kvx", 3)
    KX1 = ""
    KVW = opt.get("kvw", [0, 0, 3, 3])
    if KVW:
        KVX = 0
        sKD = oPA
        assert KVW[0] == 0 and KVW[3] == KVW[1] ^ KVW[2]
        KX1 = f"""s_and_b32 {sKD}, {sW}, 1
        s_mul_i32 {sKD}, {sKD}, {KVW[1]}
        s_lshr_b32 {sTmp}, {sW}, 1
        s_mul_i32 {sTmp}, {sTmp}, {KVW[2]}
        s_xor_b32 {sTmp}, {sTmp}, {sKD}
        s_lshl_b32 {sTmp}, {sTmp}, 12
        s_xor_b32 {oK}, {oK}, {sTmp}"""
    if KVX:
        sKD = s.get()
        KX1 = f"""s_xor_b32 {sKD}, {sS}, {KVX}
        s_sub_i32 {sKD}, {sKD}, {sS}
        s_mul_i32 {sKD}, {sKD}, {KS * 1024}
        s_lshr_b32 {sTmp}, {sW}, 1
        s_mul_i32 {sTmp}, {sTmp}, {sKD}
        s_add_i32 {oK}, {oK}, {sTmp}"""
    A = lines(f"""
    s_load_dwordx2 {SW2[0:2]}, s[0:1], 64
    s_load_dwordx2 {SWO[0:2]}, s[0:1], 32
    s_load_dwordx2 {SB1[0:2]}, s[0:1], 56
    s_load_dwordx2 {SOUT[0:2]}, s[0:1], 72
    s_mov_b32 {SK[2]}, {2*8*8192*256}
    s_mov_b32 {SK[3]}, 0x20000
    s_lshr_b32 {sBA}, {sJ}, 4
    s_and_b32 {sS}, {sJ}, 15
    s_lshl_b32 {sTmp}, {sBA}, 3
    s_add_u32 {sTmp}, {sTmp}, {sG}
    s_lshl_b32 {oKV}, {sTmp}, 21
    s_mul_i32 {sTmp}, {sS}, {KS * 1024}
    s_add_u32 {oKV}, {oKV}, {sTmp}
    s_add_u32 {oKV}, {oKV}, {6144*256}
    s_mul_i32 {oK}, {sW}, {KW * 1024}
    s_add_u32 {oK}, {oK}, {oKV}
    {KX1}
    s_lshl_b32 {sTmp}, {sW}, 13
    s_lshl_b32 {sM}, {sW}, 11
    v_xor_b32 {vT0}, {vI}, {vGQ}
    v_lshlrev_b32 {vT0}, 4, {vT0}
    v_lshl_add_u32 {vK[0]}, {vGQ}, 8, {vT0}
    v_xor_b32 {vK[1]}, 64, {vK[0]}
    v_xor_b32 {vK[2]}, 0x80, {vK[0]}
    v_xor_b32 {vK[3]}, 0xc0, {vK[0]}
    v_lshl_add_u32 {vT0}, {vI}, 8, {vT0}
    s_add_u32 {sTmp}, {sTmp}, {L_K}
    v_add_u32 {vKR[0]}, {sTmp}, {vT0}
    s_mov_b32 {SWS[2]}, 0x10000000
    s_mov_b32 {SWS[3]}, 0x20000
    s_mov_b32 {sHi}, 0xffff0000
    s_mov_b32 {sB3[0]}, 0xff00ff00
    s_mov_b32 {sB3[1]}, 0xff00ff00
    v_mov_b32 {vFF}, 0xff
    v_mov_b32 {vZ}, 0
    v_lshlrev_b32 {vSV}, 1, v0
    s_lshl_b32 {sTmp}, {sW}, 7
    v_add_u32 {vSV}, {sTmp}, {vSV}
    s_lshl_b32 {sTmp}, {sW}, 10
    v_add_u32 {vPW}, {sTmp}, {vL16}
    s_and_b32 {sB}, {sW}, 1
    s_lshr_b32 {sKH}, {sW}, 1
    v_and_b32 {vT0}, 1, {vGQ}
    v_lshlrev_b32 {vF}, 1, {vT0}
    v_or_b32 {vF}, {vF}, {vB3}
    v_and_b32 {vT1}, 3, v0
    v_lshlrev_b32 {vT1}, 3, {vT1}
    v_lshrrev_b32 {vT0}, 2, {vI}
    v_lshl_add_u32 {vTQ}, {vGQ}, 3, {vT0}
    v_lshl_add_u32 {vTQ}, {vTQ}, 7, {vT1}
    v_xor_b32 {vTV[0]}, {sW}, {vF}
    v_lshl_add_u32 {vTQ}, {vTV[0]}, 5, {vTQ}
    v_lshl_add_u32 {vT0}, {vGQ}, 2, {vT0}
    v_lshl_add_u32 {vTW[0]}, {vT0}, 7, {vT1}
    v_lshl_add_u32 {vTW[0]}, {vF}, 5, {vTW[0]}
    v_lshl_add_u32 {vTV[1]}, {vT0}, 8, {vT1}
    v_and_b32 {vTV[0]}, 7, {vT0}
    v_lshlrev_b32 {vT0}, 4, {vGQ}
    v_lshl_add_u32 {vQS}, {vB3}, 13, {vT0}
    v_lshlrev_b32 {vHS}, 7, {vGQ}
    v_lshl_add_u32 {vHS}, {vB3}, 11, {vHS}
    s_lshl_b32 {oQG}, {sG}, 14
    s_add_u32 {oQG}, {oQG}, {QBUF}
    s_lshl_b32 {sTmp}, {sA}, 11
    s_add_u32 {oQS}, {oQG}, {sTmp}
    s_bfe_u32 {sTmp}, {oWQ}, 0x30007
    s_lshl_b32 {sTmp}, {sTmp}, 8
    s_add_u32 {oQS}, {oQS}, {sTmp}
    s_lshl_b32 {sTmp2}, {sW}, 6
    s_add_u32 {oQS}, {oQS}, {sTmp2}
    s_lshl_b32 {sTmp}, {sW}, 9
    s_add_u32 {oQG}, {oQG}, {sTmp}
    """)
    B = lines(f"""
    s_lshr_b32 {sT}, {sC}, 1
    s_sub_u32 {sT}, {sT}, {sA}
    s_and_b32 {sT}, {sT}, 3
    s_mul_i32 {sBLK}, {sG}, 7
    s_add_u32 {sBLK}, {sBLK}, 1
    s_lshr_b32 {sBLK}, {sBLK}, 1
    s_add_u32 {sBLK}, {sBLK}, {sT}
    s_and_b32 {sTmp2}, {sG}, 1
    s_add_u32 {sTmp2}, {sTmp2}, {sT}
    s_cmp_eq_u32 {sTmp2}, 4
    s_cselect_b32 {sBLK}, 0x4000, {sBLK}
    {'s_mov_b32 %s, 0x4000' % sBLK if opt.get('killw1') else 's_nop 0' if opt.get('so') else ''}
    s_lshl_b32 {sTmp}, {sA}, 1
    s_and_b32 {sTmp2}, {sC}, 1
    s_add_u32 {sTmp}, {sTmp}, {sTmp2}
    s_lshl_b32 {oW1}, {sTmp}, 2
    s_add_u32 {oW1}, {oW1}, {sW}
    s_mul_i32 {oW1}, {oW1}, {16*3584}
    s_lshl_b32 {sTmp2}, {sBLK}, 7
    s_add_u32 {oW1}, {oW1}, {sTmp2}
    s_mov_b32 {SW1[2]}, {512*1792*2}
    s_mov_b32 {SW1[3]}, 0x20000
    v_lshrrev_b32 {vT1}, 3, v0
    v_mul_u32_u24 {vW1e}, 3584, {vT1}
    v_and_b32 {vT0}, 0x7f, {vWQe}
    v_add_u32 {vW1e}, {vW1e}, {vT0}
    v_xor_b32 {vW1o}, 64, {vW1e}
    s_lshl_b32 {oHG}, {sG}, 2
    s_add_u32 {oWO}, {oHG}, {sA}
    s_add_u32 {oHG}, {oHG}, {sT}
    s_lshl_b32 {oHG}, {oHG}, 12
    s_add_u32 {oHG}, {oHG}, {HBUF}
    s_lshl_b32 {sTmp}, {sTmp}, 4
    s_add_u32 {oHS}, {oHG}, {sTmp}
    s_lshl_b32 {sTmp}, {sW}, 9
    s_add_u32 {oHS}, {oHS}, {sTmp}
    s_mov_b32 {SW2[2]}, {512*1792*2}
    s_mov_b32 {SW2[3]}, 0x20000
    s_mov_b32 {SV[2]}, {2*8*8192*256}
    s_mov_b32 {SV[3]}, 0x20000
    s_mov_b32 {SB1[2]}, 3584
    s_mov_b32 {SB1[3]}, 0x20000
    s_lshl_b32 {sC2}, {sKH}, {2 if opt.get('crot', 1) else 8}
    s_xor_b32 {sC2}, {sC2}, {sC}
    s_and_b32 {sC2}, {sC2}, 7
    s_lshl_b32 {oW2}, {sBLK}, 2
    s_add_u32 {oW2}, {oW2}, {sW}
    s_lshl_b32 {oW2}, {oW2}, 14
    s_lshl_b32 {sTmp}, {sC2}, 7
    s_add_u32 {oW2}, {oW2}, {sTmp}
    v_lshlrev_b32 {vT0}, 1, {vGQ}
    v_and_b32 {vT1}, 7, v0
    v_xor_b32 {vT0}, {vT0}, {vT1}
    v_lshlrev_b32 {vT0}, 4, {vT0}
    v_lshrrev_b32 {vWO}, 3, v0
    v_lshl_add_u32 {vWO}, {vWO}, 10, {vT0}
    v_lshlrev_b32 {vT0}, 4, {vGQ}
    v_lshl_add_u32 {vT0}, {vB3}, 6, {vT0}
    v_lshlrev_b32 {vHG}, 4, {vT1}
    v_lshl_add_u32 {vHG}, {vT0}, 3, {vHG}
    v_lshrrev_b32 {vB1}, 1, {vT0}
    v_and_b32 {vT1}, 1, v0
    v_lshl_add_u32 {vB1}, {vT1}, 2, {vB1}
    v_and_b32 {vT0}, 2, v0
    v_add_u32 {vB1}, {vB1}, {vT0}
    v_and_b32 {vT0}, 1, {vGQ}
    v_lshlrev_b32 {vXF}, 1, {vT0}
    v_lshl_add_u32 {vXF}, {vT1}, 2, {vXF}
    v_lshlrev_b32 {vT0}, 1, {vGQ}
    v_xor_b32 {vT0}, {vT0}, {vI}
    v_lshlrev_b32 {vT0}, 4, {vT0}
    v_lshl_add_u32 {vV[0]}, {vGQ}, 8, {vT0}
    v_xor_b32 {vV[1]}, 0x80, {vV[0]}
    s_mul_i32 {oV}, {sKH}, {KH_[4] * 1024}
    s_add_u32 {oV}, {oV}, {oKV}
    s_mul_i32 {sTmp}, {sB}, {KH_[2] * 1024}
    s_add_u32 {oV}, {oV}, {sTmp}
    v_lshrrev_b32 {vFG}, 1, v0
    v_lshlrev_b32 {vFG}, 7, {vFG}
    v_lshl_add_u32 {vFG}, {vT1}, 4, {vFG}
    v_lshrrev_b32 {vT0}, 5, v0
    v_and_b32 {vT1}, 31, v0
    v_lshlrev_b32 {vQG}, 12, {vT0}
    v_lshl_add_u32 {vQG}, {vT1}, 4, {vQG}
    v_lshlrev_b32 {vQW}, 2, {vT0}
    v_lshl_add_u32 {vQW}, {vT1}, 3, {vQW}
    s_lshl_b32 {oB1}, {sBLK}, 7
    s_lshl_b32 {sTmp}, {sKH}, 6
    s_add_u32 {oB1}, {oB1}, {sTmp}
    s_lshl_b32 {oXF}, {sBA}, 10
    s_lshl_b32 {sTmp}, {sG}, 7
    s_add_u32 {oXF}, {oXF}, {sTmp}
    s_lshl_b32 {sTmp}, {sS}, 3
    s_add_u32 {oXF}, {oXF}, {sTmp}
    s_lshl_b32 {sTmp}, {sBA}, 13
    s_add_u32 {oQG}, {oQG}, {sTmp}
    s_lshl_b32 {sTmp}, {sB}, 11
    s_add_u32 {oHG}, {oHG}, {sTmp}
    s_lshl_b32 {sTmp}, {sKH}, 10
    s_add_u32 {oHG}, {oHG}, {sTmp}
    """)
    prewarm = opt.get("prewarm", 1)
    sPO = s.get() if opt.get("pwbal", 0) else None
    PWB = opt.get("pwbal", 0)
    if PWB:
        vPF = v.get()
        slow = (1 << (3 ^ opt.get('cqx', 1))) | (1 << 3) | (1 << 7)
        fast = [c for c in range(8) if not slow >> c & 1]
        nf = len(fast); rk = sum(fast.index(c) << (4 * c) for c in fast)
        per = -(-512 // (nf * 16))
        B += lines(f"""
        s_lshl_b32 {sTmp}, {sC}, 2
        s_lshr_b32 {sTmp}, {hex(rk)}, {sTmp}
        s_and_b32 {sTmp}, {sTmp}, 15
        s_mul_i32 {sTmp2}, {sA}, {nf}
        s_add_u32 {sTmp}, {sTmp}, {sTmp2}
        s_lshl_b32 {sTmp}, {sTmp}, 2
        s_add_u32 {sTmp}, {sTmp}, {sW}
        s_mul_i32 {sTmp2}, {sTmp}, {per}
        v_add_u32 {vT0}, {sTmp2}, v0
        v_min_u32 {vT0}, 511, {vT0}
        v_lshlrev_b32 {vPRE}, 7, {vT0}
        s_lshl_b32 {sTmp2}, {sG}, 16
        s_add_u32 {sTmp2}, {sTmp2}, {PART}
        v_add_u32 {vPRE}, {sTmp2}, {vPRE}
        v_lshrrev_b32 {vPF}, 3, {vT0}
        v_lshlrev_b32 {vPF}, 13, {vPF}
        v_and_b32 {vT0}, 7, {vT0}
        v_lshl_add_u32 {vPF}, {vT0}, 7, {vPF}
        s_lshl_b32 {sTmp2}, {sG}, 10
        s_add_u32 {sTmp2}, {sTmp2}, {FIN}
        v_add_u32 {vPF}, {sTmp2}, {vPF}
        s_and_b32 {sTmp}, {sTmp}, 15
        s_lshl_b32 {sTmp2}, {sG}, 4
        s_add_u32 {sTmp}, {sTmp}, {sTmp2}
        s_lshl_b32 {sTmp}, {sTmp}, 7
        s_add_u32 {sTmp}, {sTmp}, {MLB}
        v_writelane_b32 {vPRE}, {sTmp}, {per}
        s_lshr_b32 {sPO}, {slow}, {sC}
        s_and_b32 {sPO}, {sPO}, 1
        s_lshl_b32 {sPO}, {sPO}, 30
        """)
    elif prewarm:
        B += lines(f"""
        s_lshl_b32 {sTmp}, {sJ}, 2
        s_add_u32 {sTmp}, {sTmp}, {sW}
        s_lshl_b32 {sTmp2}, {sG}, 7
        s_add_u32 {sTmp2}, {sTmp2}, {sTmp}
        s_lshl_b32 {sTmp2}, {sTmp2}, 9
        s_add_u32 {sTmp2}, {sTmp2}, {PART}
        v_lshlrev_b32 {vPRE}, 7, v0
        v_add_u32 {vPRE}, {sTmp2}, {vPRE}
        s_and_b32 {sTmp}, {sTmp}, 15
        s_lshl_b32 {sTmp2}, {sG}, 4
        s_add_u32 {sTmp}, {sTmp}, {sTmp2}
        s_lshl_b32 {sTmp}, {sTmp}, 7
        s_add_u32 {sTmp}, {sTmp}, {MLB}
        v_writelane_b32 {vPRE}, {sTmp}, 4
        """)
    sU = sTmp2
    oWO2 = sBLK
    C = lines(f"""
    s_mov_b32 {SWO[2]}, {4096*512*2}
    s_mov_b32 {SWO[3]}, 0x20000
    s_mov_b32 {SOUT[2]}, 2048
    s_mov_b32 {SOUT[3]}, 0x20000
    v_xor_b32 {vKR[1]}, 64, {vKR[0]}
    v_xor_b32 {vKR[2]}, 0x80, {vKR[0]}
    v_xor_b32 {vKR[3]}, 0xc0, {vKR[0]}
    v_and_b32 {vT1}, 3, v0
    v_mul_u32_u24 {vQR}, {QSTR}, {vT1}
    v_lshl_add_u32 {vQR}, {vGQ}, 4, {vQR}
    v_lshlrev_b32 {vMR}, 4, {vT1}
    v_lshlrev_b32 {vPS}, 13, {vT1}
    v_lshl_add_u32 {vPS}, {vGQ}, 8, {vPS}
    v_bfe_u32 {vT0}, v0, 2, 1
    v_lshl_add_u32 {vPS}, {vT0}, 10, {vPS}
    s_lshl_b32 {sU}, {sW}, 2
    v_add_u32 {vMX}, {sU}, {vMR}
    s_lshl_b32 {sU}, {sKH}, 12
    v_add_u32 {vTW[0]}, {sU}, {vTW[0]}
    v_xor_b32 {vTW[1]}, 32, {vTW[0]}
    v_xor_b32 {vTW[2]}, 64, {vTW[0]}
    v_xor_b32 {vTW[3]}, 0x60, {vTW[0]}
    v_add_u32 {vTO[0]}, {sU}, {vTW[0]}
    v_add_u32 {vTO[1]}, {sU}, {vTW[1]}
    v_add_u32 {vTO[2]}, {sU}, {vTW[2]}
    v_add_u32 {vTO[3]}, {sU}, {vTW[3]}
    s_lshl_b32 {sU}, {sW}, 1
    v_xor_b32 {vTV[0]}, {sU}, {vTV[0]}
    v_lshl_add_u32 {vTV[0]}, {vTV[0]}, 5, {vTV[1]}
    v_add_u32 {vTV[0]}, {L_V}, {vTV[0]}
    v_xor_b32 {vTV[1]}, 32, {vTV[0]}
    s_mul_i32 {sU}, {sW}, {QSTR}
    v_add_u32 {vQW}, {sU}, {vQW}
    v_lshl_add_u32 {vMLG}, {vGQ}, 2, {vI}
    v_and_b32 {vMLG}, 15, {vMLG}
    v_lshlrev_b32 {vMLG}, 4, {vMLG}
    v_lshlrev_b32 {vFS}, 3, {vI}
    v_lshl_add_u32 {vFS}, {vGQ}, 13, {vFS}
    s_lshl_b32 {oFS}, {oWO}, 1
    s_add_u32 {oFS}, {oFS}, {sKH}
    s_lshl_b32 {oFS}, {oFS}, 7
    s_lshl_b32 {sU}, {sC2}, 1
    s_add_u32 {sU}, {sU}, {sB}
    s_lshl_b32 {sU}, {sU}, 15
    s_add_u32 {oFS}, {oFS}, {sU}
    s_add_u32 {oFS}, {oFS}, {FIN}
    s_lshl_b32 {oWO}, {oWO}, 4
    s_add_u32 {oWO}, {oWO}, {sW}
    s_lshl_b32 {oWO}, {oWO}, 13
    s_xor_b32 {sU}, {sC}, 4
    s_lshl_b32 {sU}, {sU}, 7
    s_add_u32 {oWO2}, {oWO}, {sU}
    s_add_u32 {oWO2}, {oWO2}, 65536
    s_lshl_b32 {sU}, {sC}, 7
    s_add_u32 {oWO}, {oWO}, {sU}
    s_lshl_b32 {oPS}, {sG}, 1
    s_add_u32 {oPS}, {oPS}, {sBA}
    s_lshl_b32 {oML}, {oPS}, 2
    s_add_u32 {oML}, {oML}, {sW}
    s_lshl_b32 {oML}, {oML}, 8
    s_lshl_b32 {sU}, {sS}, 4
    s_add_u32 {oML}, {oML}, {sU}
    s_add_u32 {oML}, {oML}, {MLB}
    s_lshl_b32 {oPS}, {oPS}, 15
    s_add_u32 {oPS}, {oPS}, {sU}
    s_lshl_b32 {sU}, {sW}, 11
    s_add_u32 {oPS}, {oPS}, {sU}
    s_add_u32 {oPS}, {oPS}, {PART}
    s_lshl_b32 {oPA}, {sG}, 1
    s_add_u32 {oPA}, {oPA}, {sB}
    s_lshl_b32 {oPA}, {oPA}, 2
    s_add_u32 {oPA}, {oPA}, {sA}
    s_lshl_b32 {oMLG}, {oPA}, 8
    s_add_u32 {oMLG}, {oMLG}, {MLB}
    s_lshl_b32 {oPA}, {oPA}, 13
    s_lshl_b32 {sU}, {sKH}, 12
    s_add_u32 {oPA}, {oPA}, {sU}
    s_add_u32 {oPA}, {oPA}, {PART}
    s_lshl_b32 {oFG}, {sG}, 3
    s_lshr_b32 {sU}, {sJ}, 2
    s_add_u32 {oFG}, {oFG}, {sU}
    s_lshl_b32 {oFG}, {oFG}, 13
    s_and_b32 {sU}, {sJ}, 3
    s_lshl_b32 {sU}, {sU}, 5
    s_add_u32 {oFG}, {oFG}, {sU}
    s_add_u32 {oFG}, {oFG}, {FIN}
    s_add_u32 {oFG2}, {oFG}, 4096
    """)
    def kjob(idx):
        def f():
            a(f"s_lshl2_add_u32 m0, {sM}, {L_K + 1024 * idx}\ns_add_u32 {oK}, {oK}, {1024 * (KH_[idx] - KH_[idx - 1]) if idx else 0}")
            vmem("k", f"buffer_load_dwordx4 {vK[idx & 3]}, {SK}, {oK} offen {pol('k')} lds")
        return f
    NKA = opt.get("nka", 0)
    NKP = opt.get("nkp", 6)
    b1r = v.get(); xf = v.get()
    def w2job(n):
        def f():
            if n == 0: a(f"s_add_u32 m0, {sM}, {L_W2}\ns_nop 0")
            else: a(f"s_add_u32 m0, {sM}, {L_W2 + 1024}\ns_add_u32 {oW2}, {oW2}, 8192")
            vmem("w2", f"buffer_load_dwordx4 {vWO}, {SW2}, {oW2} offen {pol('w2')} lds")
        return f
    def smalljob():
        vmem("b1", f"buffer_load_ushort {b1r}, {vB1}, {SB1}, {oB1} offen")
        vmem("xf", f"buffer_load_ushort {xf}, {vXF}, {SX}, {oXF} offen")
        if prewarm:
            a("s_mov_b32 exec_lo, %d\ns_mov_b32 exec_hi, 0" % ((2 << per) - 1 if PWB else 31))
            vmem("pre", f"buffer_load_dword {vPRE}, {vPRE}, {SWS}, {sPO if PWB else 0} offen {opt.get('pwpol', '')}")
            a("s_mov_b64 exec, -1")
    def w1job(n):
        def f():
            if n == 0: a(f"s_add_u32 m0, {sM}, {L_W1}\ns_nop 0")
            else: a(f"s_add_u32 m0, {sM}, {L_W1 + 1024}\ns_add_u32 {oW1}, {oW1}, 28672")
            vmem("w1", f"buffer_load_dwordx4 {vW1o if n else vW1e}, {SW1}, {oW1} offen {pol('w1')} lds")
        return f
    kw = opt.get("kw1", 0)
    alljobs = [kjob(i) for i in range(kw)] + [w1job(0), w1job(1)] + [kjob(i) for i in range(kw, 8)]
    kj = alljobs[:NKP]; later = alljobs[NKP:]
    NA0 = 27 + (6 if KVX else 0) + (7 if KVW else 0)
    def spf():
        if opt.get("spf", 0):
            a(f"s_bfe_u32 {sTmp2}, {oWQ}, 0x30007\ns_cmp_eq_u32 {sTmp2}, 3\ns_cbranch_scc0 L_nospf")
            for r in range(opt.get("spfr", 6)):
                for hf in range(2):
                    a(f"s_buffer_load_dword {sE[1]}, {SWQ}, {oWQ} offset:{(7 - r) * 8192 + 64 * hf}")
            a("L_nospf:")
    if opt.get("spfe"):
        spf()
        PT = A[:4]; A = A[4:]
        for x in A[:23]: a(x)
        A = [None] * 4 + A
    else:
        PT = []
        for x in A[:NA0]: a(x)
    tch = opt.get("touch", "")
    if tch:
        a(f"""
        s_lshl_b32 {sTmp2}, {sG}, 2
        s_add_u32 {sTmp2}, {sTmp2}, {sA}
        s_lshl_b32 {sTmp2}, {sTmp2}, 17
        s_waitcnt lgkmcnt(0)
        """)
        if tch == "s":
            a(f"""
            s_load_dword {sE[1]}, {SK[0:2]}, {oK}
            s_load_dword {sE[1]}, {SV[0:2]}, {oK}
            s_load_dword {sE[1]}, {SWO[0:2]}, {sTmp2}
            s_load_dword {sE[1]}, {SW1[0:2]}, 0
            s_load_dword {sE[1]}, {SW2[0:2]}, 0
            s_load_dword {sE[1]}, {SB1[0:2]}, 0
            s_load_dword {sE[1]}, {SOUT[0:2]}, 0
            """)
        else:
            vD = v.get(2)
            a(f"v_mov_b32 {vD[0]}, {oK}")
            vmem("t", f"global_load_dword {vD[1]}, {vD[0]}, {SV[0:2]}")
            a(f"v_mov_b32 {vD[0]}, {sTmp2}")
            vmem("t", f"global_load_dword {vD[1]}, {vD[0]}, {SWO[0:2]}")
            a(f"v_mov_b32 {vD[0]}, 0")
            vmem("t", f"global_load_dword {vD[1]}, {vD[0]}, {SW2[0:2]}")
            vmem("t", f"global_load_dword {vD[1]}, {vD[0]}, {SW1[0:2]}")
            vmem("t", f"global_load_dword {vD[1]}, {vD[0]}, {SWS[0:2]}")
    if not opt.get("spfe"): spf()
    a(f"s_load_dword {sE[0]}, {SWS[0:2]}, 0")
    for x in A[NA0:]: a(x)
    ja = [kj.pop(0) for _ in range(NKA)]
    if opt.get("qpw", 0) == 1:
        vD2 = v.get(2)
        a(f"""
        s_lshl_b32 {sTmp}, {sJ}, 2
        s_add_u32 {sTmp}, {sTmp}, {sW}
        s_lshl_b32 {sTmp}, {sTmp}, 7
        s_and_b32 {sTmp2}, {oQS}, 0xffffc000
        s_add_u32 {sTmp}, {sTmp}, {sTmp2}
        """)
        vmem("pre", f"buffer_load_dword {vD2[0]}, off, {SWS}, {sTmp} {opt.get('pwpol', '')}")
    nb1 = opt.get("nb1", 35)
    B2 = B[nb1:]; B = B[:nb1]
    weave(B, ja, max(len(B) // (NKA + 1), 1))
    for f in ja: f()
    if opt.get("qpw", 0) == 1:
        a(f"""
        s_lshl_b32 {sTmp}, {sC}, 2
        s_add_u32 {sTmp}, {sTmp}, {sW}
        s_lshl_b32 {sTmp}, {sTmp}, 7
        s_add_u32 {sTmp}, {sTmp}, {oHG}
        """)
        vmem("pre", f"buffer_load_dword {vD2[1]}, off, {SWS}, {sTmp} {opt.get('pwpol', '')}")
    if opt.get("so"):
        for x in B2: a(x)
        a("s_waitcnt lgkmcnt(0)")
        n0 = len(vm)
        for fj in alljobs[:opt.get("son", 10)]: fj()
        if opt.get("sofull"):
            oWO2 = sBLK
            for x in C: a(x)
            for n in range(8):
                d = 0 if n == 0 else (KH_[1] if n & 1 else KW - KH_[1])
                a(f"s_add_u32 m0, {sM}, {L_V + 8192 * (n >> 1) + 1024 * (n & 1)}\ns_add_i32 {oV}, {oV}, {1024 * d}")
                if KVX and n == 4: a(f"s_add_i32 {oV}, {oV}, {sKD}")
                vmem("v", f"buffer_load_dwordx4 {vV[n & 1]}, {SV}, {oV} offen {pol('v')} lds")
            w2job(0)(); w2job(1)()
            for n in range(4):
                ks = [0, 2, 1, 3][n]; o = oWO2 if ks >= 2 else oWO
                a(f"s_lshr_b32 m0, {sM}, 1\ns_add_u32 m0, m0, {L_WO + 4096 * ks}\ns_add_u32 {o}, {o}, {32768 if n >= 2 else 0}")
                vmem("wo", f"buffer_load_dwordx4 {vWO}, {SWO}, {o} offen {pol('wo')} lds")
        stamp("iss", flush=True)
        wait_vm("xo"); stamp("x", flush=True)
        wait_vm("wq"); stamp("wq", flush=True)
        if "pre" in vm: wait_vm("pre")
        stamp("pre", flush=True)
        for i in range(n0, len(vm), 2 if not opt.get("sofull") else 8):
            a("s_waitcnt vmcnt(%d)" % (len(vm) - 2 - i)); stamp(vm[i] + str(i - n0), flush=True)
        a("s_waitcnt vmcnt(0)")
        stamp("dummy", flush=True)
        a(f"""
        s_mov_b32 s3, 0
        v_writelane_b32 {vST}, s3, 31
        s_lshl_b32 {sTmp}, s2, 2
        s_add_u32 {sTmp}, {sTmp}, {sW}
        s_lshl_b32 {sTmp}, {sTmp}, 7
        s_add_u32 {sTmp}, {sTmp}, {STAMP}
        v_lshlrev_b32 {vT1}, 2, v0
        s_mov_b32 exec_lo, -1
        s_mov_b32 exec_hi, 0
        buffer_store_dword {vST}, {vT1}, {SWS}, {sTmp} offen
        L_end:
        s_endpgm
        L_codeend:
        """)
        names.append("dummy2")
        out.insert(len(hdr), "; stamps: " + ",".join(names))
        out.append(a.text())
        out.append(f""".section .rodata,"a"
.p2align 6
.amdhsa_kernel {NAME}_kernel
  .amdhsa_next_free_vgpr 256
  .amdhsa_next_free_sgpr 102
  .amdhsa_accum_offset 256
  .amdhsa_group_segment_fixed_size 0
  .amdhsa_kernarg_size 96
  .amdhsa_user_sgpr_count 2
  .amdhsa_user_sgpr_kernarg_segment_ptr 1
  .amdhsa_system_sgpr_workgroup_id_x 1
.end_amdhsa_kernel""")
        return "\n".join(out) + "\n"
    mk = v.mark()
    f = v.get(16, 2); nm = v.get(2, 2); acc = v.get(2, 2); t0 = v.get(); t1 = v.get(); vMean = v.get(2, 2); vR = v.get(2, 2)
    g4 = v.get(8, 2)
    stamp("addr")
    wait_vm("xs")
    stamp("x")
    LN = []
    for k in range(8):
        LN += [f"v_lshlrev_b32 {f[2*k]}, 16, {xs[k]}", f"v_and_b32 {f[2*k+1]}, {sHi}, {xs[k]}"]
    LN += lines(f"""
    v_pk_add_f32 {g4[0:2]}, {f[0:2]}, {f[2:4]}
    v_pk_add_f32 {g4[2:4]}, {f[4:6]}, {f[6:8]}
    v_pk_add_f32 {g4[4:6]}, {f[8:10]}, {f[10:12]}
    v_pk_add_f32 {g4[6:8]}, {f[12:14]}, {f[14:16]}
    v_pk_add_f32 {g4[0:2]}, {g4[0:2]}, {g4[2:4]}
    v_pk_add_f32 {g4[4:6]}, {g4[4:6]}, {g4[6:8]}
    v_add_f32 {acc[0]}, {g4[0]}, {g4[1]}
    v_add_f32 {acc[1]}, {g4[4]}, {g4[5]}
    """)
    xu = g4
    def red(x, tmp, fill):
        o = []
        def F(n=2):
            for _ in range(n):
                if fill: o.append(fill.pop(0))
        o += [f"v_cndmask_b32 {tmp}, {acc[1]}, {acc[0]}, {sB3}", f"v_cndmask_b32 {x}, {acc[0]}, {acc[1]}, {sB3}"]
        F(2); o.append(f"v_add_f32_dpp {x}, {tmp}, {x} row_ror:8 {DPPM}")
        for m in ("quad_perm:[1,0,3,2]", "quad_perm:[2,3,0,1]", "row_half_mirror"):
            F(); o.append(f"v_add_f32_dpp {x}, {x}, {x} {m} {DPPM}")
        o.append(f"v_mov_b32 {tmp}, {x}"); F(); o += [f"v_permlane16_swap_b32 {x}, {tmp}", f"v_add_f32 {x}, {x}, {tmp}"]
        o.append(f"v_mov_b32 {tmp}, {x}"); F(); o += [f"v_permlane32_swap_b32 {x}, {tmp}", f"v_add_f32 {x}, {x}, {tmp}"]
        return o + fill
    XOW = "@waitxo"
    fill = [XOW]
    for k in range(4):
        fill += [f"v_lshlrev_b32 {xu[2*k]}, 16, {xo[k]}", f"v_and_b32 {xu[2*k+1]}, {sHi}, {xo[k]}"]
    LN += red(t0, t1, fill)
    nm2 = vR
    LN += lines(f"""
    v_mul_f32 {t0}, 0xbb000000, {t0}
    v_cvt_pk_bf16_f32 {vMean[0]}, {t0}, {t0}
    v_and_b32 {vMean[0]}, {sHi}, {vMean[0]}
    v_mov_b32_dpp {nm[0]}, {t0} row_newbcast:0 {DPPM}
    v_mov_b32_dpp {nm2[0]}, {t0} row_newbcast:8 {DPPM}
    v_mov_b32_dpp {nm[1]}, {t0} row_newbcast:0 {DPPM}
    v_mov_b32_dpp {nm2[1]}, {t0} row_newbcast:8 {DPPM}
    """)
    for k in range(8):
        LN.append(f"v_pk_add_f32 {f[2*k:2*k+2]}, {f[2*k:2*k+2]}, {nm if k < 4 else nm2}")
    LN += [f"v_pk_mul_f32 {nm}, {f[0:2]}, {f[0:2]}", f"v_pk_mul_f32 {nm2}, {f[8:10]}, {f[8:10]}"]
    for k in range(1, 4):
        LN += [f"v_pk_fma_f32 {nm}, {f[2*k:2*k+2]}, {f[2*k:2*k+2]}, {nm}", f"v_pk_fma_f32 {nm2}, {f[8+2*k:8+2*k+2]}, {f[8+2*k:8+2*k+2]}, {nm2}"]
    LN += [f"v_add_f32 {acc[0]}, {nm[0]}, {nm[1]}", f"v_add_f32 {acc[1]}, {nm2[0]}, {nm2[1]}"]
    fill = [f"v_mov_b32 {vMean[1]}, {vMean[0]}"]
    for k in range(4):
        fill.append(f"v_pk_add_f32 {xu[2*k:2*k+2]}, {xu[2*k:2*k+2]}, {vMean}")
    for k in range(4):
        fill.append(f"v_cvt_pk_bf16_f32 {xo[k]}, {xu[2*k]}, {xu[2*k+1]}")
    for k in range(2):
        fill += [f"v_lshlrev_b32 {xu[2*k]}, 16, {xo[k]}", f"v_and_b32 {xu[2*k+1]}, {sHi}, {xo[k]}"]
    LN += red(t0, t1, fill)
    LN += lines(f"""
    v_mul_f32 {t0}, 0x3b000000, {t0}
    v_cvt_pk_bf16_f32 {t0}, {t0}, {t0}
    v_lshlrev_b32 {t0}, 16, {t0}
    v_add_f32 {t0}, 0x3727c5ac, {t0}
    v_cvt_pk_bf16_f32 {t0}, {t0}, {t0}
    v_lshlrev_b32 {t0}, 16, {t0}
    v_sqrt_f32 {t0}, {t0}
    v_lshlrev_b32 {xu[4]}, 16, {xo[2]}
    v_cvt_pk_bf16_f32 {t0}, {t0}, {t0}
    v_lshlrev_b32 {t0}, 16, {t0}
    v_rcp_f32 {vR[0]}, {t0}
    v_and_b32 {xu[5]}, {sHi}, {xo[2]}
    v_lshlrev_b32 {xu[6]}, 16, {xo[3]}
    v_and_b32 {xu[7]}, {sHi}, {xo[3]}
    v_mov_b32 {vR[1]}, {vR[0]}
    """)
    for k in range(4):
        LN.append(f"v_pk_mul_f32 {xu[2*k:2*k+2]}, {xu[2*k:2*k+2]}, {vR}")
    for k in range(4):
        LN.append(f"v_cvt_pk_bf16_f32 {xo[k]}, {xu[2*k]}, {xu[2*k+1]}")
    LN.append(f"ds_write_b128 {vPW}, {xo} offset:{L_XN}")
    LN.append(f"ds_write_b32 {vZ}, {vZ} offset:{L_MIX}")
    every = opt.get("kevery", 12)
    k = every - opt.get("kfirst", 1)
    for ins in LN:
        if ins == XOW: wait_vm("xo"); continue
        a(ins); k += 1
        if kj and k >= every:
            kj.pop(0)(); k = 0
    for fj in kj: fj()
    v.release(mk)
    sTag = s.get(4); sXCC = s.get(); sTP = s.get(); sTH = s.get()
    sCnt, sMix = s.get(), s.get()
    stamp("ln")
    for x in PT: a(x)
    a(f"""
    s_getreg_b32 {sXCC}, hwreg(HW_REG_XCC_ID, 0, 4)
    s_waitcnt lgkmcnt(0)
    s_add_u32 {sTag[0]}, {sE[0]}, {hex(PHI)}
    s_lshr_b32 {sTag[1]}, {sTag[0]}, 8
    s_lshr_b32 {sTag[2]}, {sTag[0]}, 16
    s_lshr_b32 {sTag[3]}, {sTag[0]}, 24
    s_xor_b32 {sTP}, {sTag[0]}, {sXCC}
    s_mov_b32 {sTH}, {sTP}
    """)
    if NDB:
        vDBV = v.get(); sDBP = SK[0:2]; sDBX = 'vcc'
        a(f"""
        v_lshlrev_b32 {vDB}, 7, v0
        v_mov_b32 {vDBV}, {sTP}
        s_and_b32 {oDB}, {oDB}, 0xfffffc00
        s_xor_b32 {sTmp}, {sC}, {opt.get('cqx', 1)}
        s_lshl_b32 {sTmp}, {sTmp}, 2
        s_add_u32 {sTmp}, {sTmp}, {sA}
        s_lshl_b32 {sTmp}, {sTmp}, 2
        s_add_u32 {sTmp}, {sTmp}, {sW}
        s_add_u32 {oDB}, {oDB}, {sTmp}
        s_and_b32 vcc_lo, {sTP}, 0xff
        s_mul_i32 vcc_lo, vcc_lo, 0x01010101
        s_mov_b32 vcc_hi, vcc_lo
        """)
    nb2 = opt.get("nb2", 30)
    for x in B2[:nb2]: a(x)
    B2 = B2[nb2:]
    wait_vm("wq")
    stamp("wq")
    a("s_barrier")
    xn = v.get(8, 2)
    mk = v.mark()
    xn2 = v.get(8, 2); aq = v.get(16, 2); dq = v.get(4, 2)
    xnt = [xn[0:4], xn[4:8], xn2[0:4], xn2[4:8]]
    for t in range(4):
        a(f"ds_read_b128 {xnt[t]}, {vL16} offset:{L_XN + 1024*t}")
        for hi in range(2):
            a(f"ds_read_b64_tr_b16 {aq[4*t+2*hi:4*t+2*hi+2]}, {vTQ} offset:{L_WQ + 4096*t + 512*hi}")
    for t in range(4):
        a(f"s_waitcnt lgkmcnt({9 - 3*t})")
        a(f"v_mfma_f32_16x16x32_bf16 {dq}, {aq[4*t:4*t+4]}, {xnt[t]}, {dq if t else 0}")
    def pub(d, voff, soff, name, tp):
        a("s_mov_b32 exec_lo, 0x01010101\ns_mov_b32 exec_hi, 0x01010101")
        a(f"v_bfi_b32 {d[0]}, {vFF}, {tp}, {d[0]}")
        for k in range(1, 4):
            a(f"v_bfi_b32 {d[k]}, {vFF}, {sTag[k]}, {d[k]}")
    pub(dq, vQS, oQS, "qs", sTP)
    vmem("qs", f"buffer_store_dwordx4 {dq}, {vQS}, {SWS}, {oQS} offen {opt.get('stpol', '')}")
    a(f"ds_write_b128 {vSV}, {dq} offset:{L_QSV}")
    a("s_mov_b64 exec, -1")
    v.release(mk)
    stamp("pub1")
    qg = v.get(8, 2); hg = v.get(4, 2)
    DBR = Reg("s", 16, 8)
    NVB2 = opt.get("nvb2", -1)
    dual = NVB2 is not None and NVB2 >= 0
    qg2 = v.get(8, 2) if dual else None
    def poll1(first, r=None, name="p1"):
        r = r or qg
        t = [f"buffer_load_dwordx4 {r[0:4]}, {vQG}, {SWS}, {oQG} offen sc1",
             f"buffer_load_dwordx4 {r[4:8]}, {vQG}, {SWS}, {oQG} offen offset:2048 sc1"]
        for x in t:
            if first: vmem(name, x)
            else: a(x)
    def vjob(n):
        def f():
            assert KH_[6] == KH_[4] + KH_[2] and all(KH_[2 * k + 1] - KH_[2 * k] == KH_[1] for k in range(4))
            d = 0 if n == 0 else (KH_[1] if n & 1 else KW - KH_[1])
            a(f"s_add_u32 m0, {sM}, {L_V + 8192 * (n >> 1) + 1024 * (n & 1)}\ns_add_i32 {oV}, {oV}, {1024 * d}")
            if KVX and n == 4: a(f"s_add_i32 {oV}, {oV}, {sKD}")
            if KVW and n and not n & 1: a(f"s_xor_b32 {oV}, {oV}, {(KVW[n >> 1] ^ KVW[(n >> 1) - 1]) << 12}")
            if opt.get("lim"): a("s_waitcnt vmcnt(%d)" % opt["lim"])
            vmem("v%d" % (n // 2), f"buffer_load_dwordx4 {vV[n & 1]}, {SV}, {oV} offen {pol('v')} lds")
        return f
    sMsk, sScale, sL2E, sLn2, sM2 = sT, oW1, oB1, oK, oKV
    qb = v.get(16, 2); sc = v.get(8, 2); tmp4 = v.get(4, 2); ones = v.get(4, 2); pr = v.get(4, 2); af = v.get(4, 2); mlr = v.get(4, 2)
    sEv = sB3; sEv2 = sE; vSc2 = v.get(2, 2)
    C2 = lines(f"""
    s_mov_b32 {sMsk}, 0xffffff00
    v_mov_b32 {vSc2[0]}, 0x3db504f3
    v_mov_b32 {vSc2[1]}, 0x3db504f3
    s_mov_b32 {sL2E}, 0x3fb8aa3b
    s_mov_b32 {sLn2}, 0x3f317218
    s_mov_b32 {sM2}, 0xc038aa3b
    s_mov_b32 {sEv[0]}, 0x55555555
    s_mov_b32 {sEv[1]}, 0x55555555
    s_mov_b32 {sEv2[0]}, 0x33333333
    s_mov_b32 {sEv2[1]}, 0x33333333
    v_mov_b32 {mlr[2]}, {sTag[0]}
    v_mov_b32 {mlr[3]}, {sTag[0]}
    """)
    for k in range(4):
        C2 += [f"v_mov_b32 {ones[k]}, 0x3f803f80", f"v_mov_b32 {pr[k]}, {sTag[0]}", f"v_mov_b32 {af[k]}, 0"]
    a(f"s_mov_b32 {sCnt}, 0")
    a1 = sc; dh = v.get(4, 2)
    def hjob():
        wait_vm("w1")
        a("s_waitcnt lgkmcnt(0)\ns_barrier")
        for t in range(2):
            for hi in range(2):
                a(f"ds_read_b64_tr_b16 {a1[4*t+2*hi:4*t+2*hi+2]}, {vTQ} offset:{L_W1 + 4096*t + 512*hi}")
        for t in range(2):
            a(f"s_waitcnt lgkmcnt({2 - 2*t})")
            a(f"v_mfma_f32_16x16x32_bf16 {dh}, {a1[4*t:4*t+4]}, {xn[4*t:4*t+4]}, {dh if t else 0}")
        for x in C[nC:nC+6]: a(x)
        del C[nC:nC+6]
        pub(dh, vHS, oHS, "hs", sTH)
        vmem("hs", f"buffer_store_dwordx4 {dh}, {vHS}, {SWS}, {oHS} offen {opt.get('stpol', '')}")
        a("s_mov_b64 exec, -1")
        stamp("pubh")
    def hpoll(first=True):
        x = f"buffer_load_dwordx4 {hg}, {vHG}, {SWS}, {oHG} offen sc1"
        if first: vmem("ph", x)
        else: a(x)
    NVQ = opt.get("nvq", 4); NVH = opt.get("nvh", 0); NVP = opt.get("nvp", 9); NV1 = opt.get("nv1", 8)
    weave(B2, later, max(len(B2) // (len(later) + 1), 1), start=-100)
    for fj in later + [smalljob]: fj()
    vj = [vjob(n) for n in range(8)]
    first = vj[:NVH]
    if NVQ <= NVH: first.insert(NVQ, lambda: poll1(True))
    if first: first.pop(0)()
    nC = opt.get("nc1", 40)
    weave(C[:nC], first, max(nC // (len(first) + 1), 1))
    for fj in first: fj()
    hjob()
    HOLD = opt.get("hold3", 0)
    def wojob(n, late=False):
        def f():
            ks = [0, 2, 1, 3][n]; o = oWO2 if ks >= 2 else oWO
            if HOLD and n >= 4 - HOLD:
                if not late: a(f"s_add_u32 {o}, {o}, 32768")
                a(f"""
                s_lshr_b32 {sTmp2}, {sM}, 1
                s_add_u32 {sTmp2}, {sTmp2}, {L_WO + 4096 * ks}
                s_and_b32 m0, {sC}, 3
                s_cmp_{'lg' if late else 'eq'}_u32 m0, 3
                s_cselect_b32 m0, {L_SP}, {sTmp2}
                s_cselect_b32 {sTmp2}, 0x40000000, {o}
                """)
                vmem("wo%d" % (n >> 1), f"buffer_load_dwordx4 {vWO}, {SWO}, {sTmp2} offen {pol('wo')} lds")
                if n == 3:
                    a(f"s_cselect_b32 {sTmp2}, 0x40000000, {oFS}")
                    finpw(sTmp2)
                return
            a(f"s_lshr_b32 m0, {sM}, 1\ns_add_u32 m0, m0, {L_WO + 4096 * ks}\ns_add_u32 {o}, {o}, {32768 if n >= 2 else 0}")
            vmem("wo%d" % (n >> 1), f"buffer_load_dwordx4 {vWO}, {SWO}, {o} offen {pol('wo')} lds")
        return f
    W2AT = opt.get("w2at")
    wj = ([] if W2AT is not None else [w2job(0), w2job(1)]) + [wojob(n) for n in range(4)]
    if NVP > NV1: wj.insert(opt.get("hidx", 0), hpoll)
    wj = vj[NV1:] + wj
    def finpw(o=None):
        if PWB:
            a("s_mov_b32 exec_lo, %d\ns_mov_b32 exec_hi, 0" % ((1 << per) - 1))
            vmem("pre", f"buffer_load_dword {vPF}, {vPF}, {SWS}, {sPO} offen")
            a("s_mov_b64 exec, -1")
            return
        a("s_mov_b32 exec_lo, 0x00010001\ns_mov_b32 exec_hi, 0x00010001")
        vmem("pre", f"buffer_load_dword {vPRE}, {vFS}, {SWS}, {o or oFS} offen {opt.get('fpwpol', '')}")
        if opt.get("outpw"):
            vmem("pre", f"buffer_load_ushort {vPRE}, {vXF}, {SOUT}, {oXF} offen")
        a("s_mov_b64 exec, -1")
    if opt.get("finpw", 2) == 2 and not HOLD:
        last = wj[-1]
        wj[-1] = lambda: (last(), finpw())
    if opt.get("seq"):
        tok = {"h": hpoll, "a": w2job(0), "b": w2job(1), "f": finpw}
        for n in range(4): tok["o%d" % n] = wojob(n)
        for n in range(8): tok["v%d" % n] = vj[n]
        wj = [tok[x] for x in opt["seq"].split()]
    NW0 = opt.get("nw0", 1)
    early = wj[:NW0]; wj = wj[NW0:]
    wopos = list(opt.get("wopos", [0, 0, 1, 2, 2, 2]))[-len(wj):] if wj else []
    second = vj[NVH:NV1]
    if W2AT is not None:
        second[W2AT - NVH:W2AT - NVH] = [w2job(0), w2job(1)]
    if dual: second.insert(NVB2 - NVH, lambda: poll1(True, qg2, "p1b"))
    if NVQ > NVH: second.insert(NVQ - NVH, lambda: poll1(True))
    assert NVP > NV1
    weave(C[nC:] + C2, second, max((len(C) - nC + len(C2)) // (len(second) + 1), 1))
    for fj in second: fj()
    if opt.get("finpw", 2) == 1: finpw()
    if early: a("s_waitcnt lgkmcnt(0)")
    for fj in early: fj()
    stamp("issV")
    wait_vm("k")
    for T in range(2):
        for st in range(4):
            a(f"ds_read_b128 {kk[16*T+4*st:16*T+4*st+4]}, {vKR[st]} offset:{4096*T}")
    wait_vm("p1")
    nB = len(vm) - 1 - max(i for i, n in enumerate(vm) if n == "p1b") if dual else 0
    stamp("p1")
    a("L_chk1:")
    a(f"v_xor_b32 {vT0}, {sTP}, {qg[0]}\nv_xor_b32 {vT1}, {sTP}, {qg[4]}")
    seq = [(qg[1], sTag[1], vT0), (qg[5], sTag[1], vT1), (qg[2], sTag[2], vT0), (qg[6], sTag[2], vT1), (qg[3], sTag[3], vT0), (qg[7], sTag[3], vT1)]
    for r, tg, d in seq:
        a(f"v_bitop3_b32 {d}, {r}, {tg}, {d} {BOP}")
    a(f"""
    v_bitop3_b32 {vT0}, {vT0}, {vT1}, {vFF} bitop3:0xa8
    v_cmp_ne_u32 vcc, 0, {vT0}
    """)
    for k in range(8):
        a(f"v_and_b32 {sc[k]}, {sMsk}, {qg[k]}")
    a(f"""
    s_cbranch_vccnz L_retry1
    L_ok1:
    """)
    stamp("ok1")
    if stamps: a(f"v_writelane_b32 {vST}, {sCnt}, 26")
    def WO(p):
        while wj and wopos and wopos[0] <= p:
            wopos.pop(0); wj.pop(0)()
    WO(-1)
    a(f"""
    v_pk_add_f32 {sc[0:2]}, {sc[0:2]}, {sc[4:6]}
    v_pk_add_f32 {sc[2:4]}, {sc[2:4]}, {sc[6:8]}
    v_permlane32_swap_b32 {sc[0]}, {sc[2]}
    v_permlane32_swap_b32 {sc[1]}, {sc[3]}
    v_add_f32 {sc[0]}, {sc[0]}, {sc[2]}
    v_add_f32 {sc[1]}, {sc[1]}, {sc[3]}
    v_cvt_pk_bf16_f32 {sc[0]}, {sc[0]}, {sc[1]}
    ds_write_b32 {vQW}, {sc[0]} offset:{L_Q}
    """)
    WO(0)
    a("s_waitcnt lgkmcnt(0)\ns_barrier")
    a(f"ds_read_b32 {vT1}, {vZ} offset:{L_MIX}")
    for st in range(4):
        a(f"ds_read_b128 {qb[4*st:4*st+4]}, {vQR} offset:{L_Q + 64*st}")
    for st in range(4):
        a(f"s_waitcnt lgkmcnt({3 - st})")
        for T in range(2):
            d = sc[4*T:4*T+4]
            a(f"v_mfma_f32_16x16x32_bf16 {d}, {kk[16*T+4*st:16*T+4*st+4]}, {qb[4*st:4*st+4]}, {d if st else 0}")
    a(f"v_readfirstlane_b32 {sMix}, {vT1}")
    WO(1)
    pk = qb
    t4 = xn[0:4]; t4b = xn[4:8]
    vMax = mlr[0]
    a(f"""
    v_max3_f32 {vT0}, {sc[0]}, {sc[1]}, {sc[2]}
    v_max3_f32 {vT1}, {sc[3]}, {sc[4]}, {sc[5]}
    v_max3_f32 {vT0}, {vT0}, {sc[6]}, {sc[7]}
    v_max_f32 {vT0}, {vT0}, {vT1}
    v_mov_b32 {vT1}, {vT0}
    v_cvt_pk_bf16_f32 {t4[0]}, {sc[0]}, {sc[1]}
    v_cvt_pk_bf16_f32 {t4[1]}, {sc[2]}, {sc[3]}
    v_permlane16_swap_b32 {vT0}, {vT1}
    v_max_f32 {vT0}, {vT0}, {vT1}
    v_mov_b32 {vT1}, {vT0}
    v_cvt_pk_bf16_f32 {t4[2]}, {sc[4]}, {sc[5]}
    v_cvt_pk_bf16_f32 {t4[3]}, {sc[6]}, {sc[7]}
    v_permlane32_swap_b32 {vT0}, {vT1}
    v_max_f32 {vT0}, {vT0}, {vT1}
    ds_write_b32 {vMX}, {vT0} offset:{L_MX}
    """)
    for k in range(4):
        a(f"v_lshlrev_b32 {sc[2*k]}, 16, {t4[k]}\nv_and_b32 {sc[2*k+1]}, {sHi}, {t4[k]}")
    for k in range(4):
        a(f"v_pk_mul_f32 {sc[2*k:2*k+2]}, {sc[2*k:2*k+2]}, {vSc2}")
    a(f"s_cmp_eq_u32 {sMix}, 0\ns_cbranch_scc0 L_mixed\nL_mixback:")
    a(f"s_waitcnt lgkmcnt(0)\ns_barrier\nds_read_b128 {t4b}, {vMR} offset:{L_MX}")
    bw = v.get(16, 2); df = v.get(16, 2)
    for k in range(4):
        a(f"v_cvt_pk_bf16_f32 {t4[k]}, {sc[2*k]}, {sc[2*k+1]}")
    for k in range(4):
        a(f"v_lshlrev_b32 {sc[2*k]}, 16, {t4[k]}\nv_and_b32 {sc[2*k+1]}, {sHi}, {t4[k]}")
    a(f"""
    s_waitcnt lgkmcnt(0)
    v_max3_f32 {vT0}, {t4b[0]}, {t4b[1]}, {t4b[2]}
    v_max_f32 {vT0}, {vT0}, {t4b[3]}
    v_cvt_pk_bf16_f32 {vT0}, {vT0}, {vT0}
    v_lshlrev_b32 {vT0}, 16, {vT0}
    v_mul_f32 {vT0}, {vT0}, {vSc2[0]}
    v_cvt_pk_bf16_f32 {vT0}, {vT0}, {vT0}
    v_lshlrev_b32 {vT0}, 16, {vT0}
    v_mul_f32 {vMax}, {sL2E}, {vT0}
    """)
    for k in range(8):
        a(f"v_fma_f32 {sc[k]}, {sc[k]}, {sL2E}, -{vMax}")
    for k in range(8):
        a(f"v_exp_f32 {sc[k]}, {sc[k]}")
    for k in range(4):
        a(f"v_cvt_pk_bf16_f32 {t4[k]}, {sc[2*k]}, {sc[2*k+1]}")
    a(f"ds_write_b128 {vPW}, {t4} offset:{L_XN}")
    WO(2); WO(3)
    WO(4)
    av = kk; do = v.get(8, 2); dl = sc[0:4]
    a(f"v_mov_b32 {vT0}, 0\nv_lshlrev_b32 {b1r}, 16, {b1r}\ns_lshl_b32 {sTmp}, 1, {sW}\ns_cmp_eq_u32 {sMix}, 0")
    wait_vm("v1")
    a("s_waitcnt lgkmcnt(0)\ns_barrier")
    def vreads(t):
        for T in range(2):
            for hi in range(2):
                a(f"ds_read_b64_tr_b16 {av[8*t+4*T+2*hi:8*t+4*T+2*hi+2]}, {vTV[T]} offset:{8192*t + 4096*hi}")
    def pvm(t, T):
        d = do[4*T:4*T+4]
        a(f"v_mfma_f32_16x16x32_bf16 {d}, {av[8*t+4*T:8*t+4*T+4]}, {pk[4*t:4*t+4]}, {d if t else 0}")
    for t in range(4):
        a(f"ds_read_b128 {pk[4*t:4*t+4]}, {vL16} offset:{L_XN + 1024*t}")
    vreads(0); vreads(1)
    for t in range(4):
        a(f"s_waitcnt lgkmcnt({11 - t})")
        a(f"v_mfma_f32_16x16x32_bf16 {dl}, {ones}, {pk[4*t:4*t+4]}, {dl if t else 0}")
    for t in range(2):
        for T in range(2):
            a(f"s_waitcnt lgkmcnt({6 - 4*t - 2*T})")
            pvm(t, T)
    stamp("soft")
    def mlstore():
        a(f"""
        v_mov_b32 {mlr[1]}, {dl[0]}
        s_mov_b32 exec_lo, {sTmp}
        s_mov_b32 exec_hi, 0
        s_cbranch_scc0 L_mlmix
        """)
        vmem("ml", f"buffer_store_dwordx4 {mlr}, {vT0}, {SWS}, {oML} offen {opt.get('stpol', '')}")
        a("L_mlback:")
        a("s_mov_b64 exec, -1")
    if opt.get("pv3", 1):
        wait_vm("v2")
        a("s_barrier")
        vreads(2)
        mlstore()
        for T in range(2):
            a(f"s_waitcnt lgkmcnt({2 - 2*T})")
            pvm(2, T)
        wait_vm("v3")
        stamp("V")
        a("s_barrier")
        vreads(3)
        for T in range(2):
            a(f"s_waitcnt lgkmcnt({2 - 2*T})")
            pvm(3, T)
    else:
        wait_vm("v3")
        stamp("V")
        a("s_barrier")
        vreads(2); vreads(3)
        mlstore()
        for t in range(2, 4):
            for T in range(2):
                a(f"s_waitcnt lgkmcnt({6 - 4*(t-2) - 2*T})")
                pvm(t, T)
    a(f"""
    s_mov_b32 exec_lo, 0x000f000f
    s_mov_b32 exec_hi, 0x000f000f
    s_mov_b32 {sCnt}, 0
    v_cvt_pk_bf16_f32 {pr[2]}, {do[0]}, {do[1]}
    v_cvt_pk_bf16_f32 {pr[3]}, {do[2]}, {do[3]}
    s_mov_b32 exec_lo, 0x00f000f0
    s_mov_b32 exec_hi, 0x00f000f0
    v_cvt_pk_bf16_f32 {pr[0]}, {do[4]}, {do[5]}
    v_cvt_pk_bf16_f32 {pr[1]}, {do[6]}, {do[7]}
    s_mov_b32 exec_lo, 0x00ff00ff
    s_mov_b32 exec_hi, 0x00ff00ff
    s_cbranch_scc0 L_psmix
    """)
    vmem("ps", f"buffer_store_dwordx4 {pr}, {vPS}, {SWS}, {oPS} offen {opt.get('stpol', '')}")
    a("L_psback:")
    a("s_mov_b64 exec, -1")
    WO(7)
    for n in range(4 - HOLD, 4): wojob(n, True)()
    def nbpf():
        a(f"""
        s_lshl_b32 {sTmp}, {sG}, 2
        s_add_u32 {sTmp}, {sTmp}, {sA}
        s_lshl_b32 {sTmp}, {sTmp}, 2
        s_add_u32 {sTmp}, {sTmp}, {sW}
        s_lshl_b32 {sTmp}, {sTmp}, 15
        s_xor_b32 {sTmp2}, {sC2}, {opt.get('nbx', 1)}
        s_lshl_b32 {sTmp2}, {sTmp2}, 7
        s_add_u32 {sTmp}, {sTmp}, {sTmp2}
        v_lshlrev_b32 {vB1}, 10, v0
        s_mov_b32 exec_lo, -1
        s_mov_b32 exec_hi, 0
        """)
        vmem("pre", f"buffer_load_dword {vB1}, {vB1}, {SWO}, {sTmp} offen {pol('wo')}")
        a("s_mov_b64 exec, -1")
    if opt.get("nbpf") == 1: nbpf()
    if opt.get("finpw", 2) == 3: finpw()
    assert not wj
    stamp("pub2")
    if opt.get("wb2"):
        a(f"s_lshl_b32 {sTmp}, {sJ}, 2\ns_add_u32 {sTmp}, {sTmp}, {sW}\ns_cmp_eq_u32 {sTmp}, {opt['wb2']}\ns_cbranch_scc0 L_nowb2\nbuffer_wbl2 sc1\ns_waitcnt vmcnt(0)\nL_nowb2:")
    wait_vm("ph")
    a("L_chkh:")
    a(f"v_xor_b32 {vT0}, {sTH}, {hg[0]}")
    for k in range(1, 4):
        a(f"v_bitop3_b32 {vT0}, {hg[k]}, {sTag[k]}, {vT0} {BOP}")
    a(f"v_and_b32 {vT0}, {vT0}, {vFF}\nv_cmp_ne_u32 vcc, 0, {vT0}")
    hm = sc[0:4]; hs4 = sc[4:8]
    for k in range(4):
        a(f"v_and_b32 {hm[k]}, {sMsk}, {hg[k]}")
    a("s_cbranch_vccnz L_retryh\nL_okh:")
    if stamps: a(f"v_writelane_b32 {vST}, {sCnt}, 25")
    h = hm[0]; e = hm[1]; u = hm[2]; d1 = hm[3]; r1 = hs4[1]
    def rnd1(x): return [f"v_cvt_pk_bf16_f32 {x}, {x}, {x}", f"v_lshlrev_b32 {x}, 16, {x}"]
    ff = lines(f"""
    v_cndmask_b32 {hs4[0]}, {hm[0]}, {hm[2]}, {sEv}
    v_cndmask_b32 {hs4[1]}, {hm[1]}, {hm[3]}, {sEv}
    v_cndmask_b32 {hs4[2]}, {hm[2]}, {hm[0]}, {sEv}
    v_cndmask_b32 {hs4[3]}, {hm[3]}, {hm[1]}, {sEv}
    v_add_f32_dpp {hs4[2]}, {hs4[0]}, {hs4[2]} quad_perm:[1,0,3,2] {DPPM}
    v_add_f32_dpp {hs4[3]}, {hs4[1]}, {hs4[3]} quad_perm:[1,0,3,2] {DPPM}
    v_cndmask_b32 {hs4[0]}, {hs4[2]}, {hs4[3]}, {sEv2}
    v_cndmask_b32 {h}, {hs4[3]}, {hs4[2]}, {sEv2}
    v_add_f32_dpp {h}, {hs4[0]}, {h} quad_perm:[2,3,0,1] {DPPM}
    v_add_f32_dpp {h}, {h}, {h} row_shl:4 {DPPM}
    """)
    ff += rnd1(h) + [f"v_add_f32 {h}, {h}, {b1r}"] + rnd1(h)
    ff += [f"v_mul_f32 {e}, -abs({h}), {sL2E}", f"v_exp_f32 {e}, {e}"] + rnd1(e)
    ff += [f"v_add_f32 {u}, 1.0, {e}", f"v_add_f32 {d1}, -1.0, {u}", f"v_log_f32 {u}, {u}", f"v_rcp_f32 {r1}, {d1}",
           f"v_cmp_eq_f32 vcc, 0, {d1}", f"v_mul_f32 {u}, {sLn2}, {u}", f"v_mul_f32 {r1}, {r1}, {e}", f"v_mul_f32 {u}, {u}, {r1}",
           f"v_cndmask_b32 {u}, {u}, {e}, vcc"] + rnd1(u)
    ff += [f"v_max_f32 {e}, 0, {h}", f"v_add_f32 {u}, {u}, {e}"] + rnd1(u)
    ff += [f"v_mul_f32 {e}, {sM2}, {u}", f"v_exp_f32 {e}, {e}", f"v_cmp_gt_f32 vcc, 0x3a800000, {u}", f"v_add_f32 {d1}, 1.0, {e}", f"v_rcp_f32 {d1}, {d1}",
           f"v_sub_f32 {e}, 1.0, {e}", f"v_mul_f32 {e}, {e}, {d1}", f"v_cndmask_b32 {e}, {e}, {u}, vcc"] + rnd1(e)
    ff += [f"v_mul_f32 {e}, {e}, {h}", f"v_mov_b32_dpp {u}, {e} quad_perm:[2,3,0,1] {DPPM}", f"v_cvt_pk_bf16_f32 {u}, {e}, {u}"]
    ff += lines(f"""
    v_mov_b32_dpp {af[0]}, {u} quad_perm:[0,1,2,3] row_mask:0xf bank_mask:0x1
    v_mov_b32_dpp {af[1]}, {u} row_shl:1 row_mask:0xf bank_mask:0x1
    v_mov_b32_dpp {af[2]}, {u} row_shl:8 row_mask:0xf bank_mask:0x1
    v_mov_b32_dpp {af[3]}, {u} row_shl:9 row_mask:0xf bank_mask:0x1
    """)
    for x in ff: a(x)
    if opt.get("nbpf") == 2: nbpf()
    stamp("ffn")
    pa = qb; mlg = qg[0:4]; bo = kk; dd = v.get(16, 2)
    def poll2(first):
        t = []
        for tl in range(2):
            t.append(f"buffer_load_dwordx4 {pa[8*tl:8*tl+4]}, {vPA}, {SWS}, {oPA} offen offset:{2048*tl} sc1")
            t.append(f"buffer_load_dwordx4 {pa[8*tl+4:8*tl+8]}, {vPA}, {SWS}, {oPA} offen offset:{2048*tl+1024} sc1")
        t.append(f"buffer_load_dwordx4 {mlg}, {vMLG}, {SWS}, {oMLG} offen sc1")
        for x in t:
            if first: vmem("p2", x)
            else: a(x)
    def woreads(tl):
        for ct in range(4):
            for hi in range(2):
                r = bo[16*tl+4*ct+2*hi:16*tl+4*ct+2*hi+2]
                a(f"ds_read_b64_tr_b16 {r}, {vTO[ct]} offset:{L_WO + 4096*tl + 2048*hi}")
    p2at = opt.get("p2at", 2)
    if p2at == 0: poll2(True)
    wait_vm("w2")
    a("s_barrier")
    for ct in range(4):
        for hi in range(2):
            a(f"ds_read_b64_tr_b16 {bw[4*ct+2*hi:4*ct+2*hi+2]}, {vTW[ct]} offset:{L_W2 + 2048*hi}")
    fo = pr[0:2]
    a(f"s_mov_b32 {sCnt}, 0\nv_mov_b32 {fo[1]}, {sTag[0]}\nv_lshlrev_b32 {xf}, 16, {xf}")
    for ct in range(4):
        a(f"s_waitcnt lgkmcnt({6 - 2*ct})")
        a(f"v_mfma_f32_16x16x32_bf16 {df[4*ct:4*ct+4]}, {af}, {bw[4*ct:4*ct+4]}, 0")
    if p2at == 1: poll2(True)
    wait_vm("wo0")
    if p2at == 2:
        stamp("p2i")
        if stamps: a(f"s_mov_b32 {sTmp}, 0\nv_writelane_b32 {vST}, {sTmp}, 27\nv_writelane_b32 {vST}, {sTmp}, 28")
        poll2(True)
    a("s_barrier")
    woreads(0)
    if p2at == 3: poll2(True)
    wait_vm("wo1")
    stamp("wo")
    a("s_barrier")
    woreads(1)
    a("s_waitcnt vmcnt(0)")
    a("L_chk2:")
    wv = vT1; vC = bw[0]
    chk = [f"v_xor_b32 {vC}, {sTag[0]}, {pa[1]}"] + [f"v_bitop3_b32 {vC}, {r}, {sTag[0]}, {vC} {BOP}" for r in (pa[6], pa[9], pa[14], mlg[2])] + [f"v_cmp_ne_u32 vcc, 0, {vC}"]
    wchain = [f"v_max_f32_dpp {vT0}, {mlg[0]}, {mlg[0]} row_ror:1 {DPPM}"] + [f"v_max_f32_dpp {vT0}, {vT0}, {vT0} row_ror:{r} {DPPM}" for r in (2, 4, 8)]
    wchain += [f"v_sub_f32 {wv}, {mlg[0]}, {vT0}", f"v_exp_f32 {wv}, {wv}", f"v_mul_f32 {vT0}, {wv}, {mlg[1]}"]
    wchain += [f"v_add_f32_dpp {vT0}, {vT0}, {vT0} row_ror:{r} {DPPM}" for r in (1, 2, 4, 8)]
    wchain += [f"v_rcp_f32 {vT0}, {vT0}", f"v_mul_f32 {wv}, {wv}, {vT0}"]
    a("s_waitcnt lgkmcnt(8)")
    for tl in range(2):
        if tl:
            a("s_cbranch_vccnz L_retry2\nL_ok2:")
            stamp("ok2")
            a("s_waitcnt lgkmcnt(0)")
        for ct in range(4):
            a(f"v_mfma_f32_16x16x32_bf16 {dd[4*ct:4*ct+4]}, {pa[8*tl+2:8*tl+6]}, {bo[16*tl+4*ct:16*tl+4*ct+4]}, {dd[4*ct:4*ct+4] if tl else 0}")
            a(wchain.pop(0))
            if tl == 0:
                a(chk.pop(0))
                if ct >= 2: a(chk.pop(0))
            else:
                a(wchain.pop(0))
    for x in wchain: a(x)
    for r in range(4):
        for ct in range(4):
            a(f"v_fmac_f32_dpp {df[4*ct]}, {wv}, {dd[4*ct+r]} row_newbcast:{r} {DPPM}")
    a(f"""
    v_permlane32_swap_b32 {df[0]}, {df[8]}
    v_permlane32_swap_b32 {df[4]}, {df[12]}
    v_add_f32 {df[0]}, {df[0]}, {df[8]}
    v_add_f32 {df[4]}, {df[4]}, {df[12]}
    s_cmp_eq_u32 {sW}, 0
    v_permlane16_swap_b32 {df[0]}, {df[4]}
    v_add_f32 {fo[0]}, {df[0]}, {df[4]}
    buffer_store_dwordx2 {fo}, {vFS}, {SWS}, {oFS} offen {opt.get('finpol', 'sc1')}
    """)
    if stamps or probe:
        stamp("pub3", flush=True)
        a(f"s_cmp_eq_u32 {sW}, 0")
    if opt.get("finbar", 1):
        a("s_waitcnt vmcnt(0)\ns_barrier")
    if opt.get("wb"):
        a("s_cbranch_scc0 L_wb")
    else:
        a("s_cbranch_scc0 L_fin")
    fg = bo[0:8]
    a(f"s_mov_b32 {sCnt}, 0")
    if opt.get("p3delay", 1):
        a("s_waitcnt vmcnt(0)")
    if opt.get("p3sleep"):
        a("s_sleep %d" % opt["p3sleep"])
    a(f"""
    L_poll3:
    buffer_load_dwordx4 {fg[0:4]}, {vFG}, {SWS}, {oFG} offen sc1
    buffer_load_dwordx4 {fg[4:8]}, {vFG}, {SWS}, {oFG2} offen sc1
    s_add_u32 {sCnt}, {sCnt}, 1
    s_cmp_gt_u32 {sCnt}, 200000
    s_cbranch_scc1 L_ok3
    s_waitcnt vmcnt(0)
    s_mov_b64 exec, -1
    v_add_f32 {dd[0]}, {fg[0]}, {fg[4]}
    v_add_f32 {dd[1]}, {fg[2]}, {fg[6]}
    v_xor_b32 {vT0}, {sTag[0]}, {fg[1]}
    v_add_f32_dpp {dd[0]}, {dd[0]}, {dd[0]} row_ror:2 {DPPM}
    v_add_f32_dpp {dd[1]}, {dd[1]}, {dd[1]} row_ror:2 {DPPM}
    v_bitop3_b32 {vT0}, {fg[3]}, {sTag[0]}, {vT0} {BOP}
    v_add_f32_dpp {dd[0]}, {dd[0]}, {dd[0]} row_ror:4 {DPPM}
    v_add_f32_dpp {dd[1]}, {dd[1]}, {dd[1]} row_ror:4 {DPPM}
    v_bitop3_b32 {vT0}, {fg[5]}, {sTag[0]}, {vT0} {BOP}
    v_add_f32_dpp {dd[0]}, {dd[0]}, {dd[0]} row_ror:8 {DPPM}
    v_add_f32_dpp {dd[1]}, {dd[1]}, {dd[1]} row_ror:8 {DPPM}
    v_bitop3_b32 {vT0}, {fg[7]}, {sTag[0]}, {vT0} {BOP}
    v_cmp_ne_u32 vcc, 0, {vT0}
    v_permlane16_swap_b32 {dd[0]}, {dd[1]}
    v_add_f32 {dd[0]}, {dd[0]}, {dd[1]}
    v_mov_b32 {dd[1]}, {dd[0]}
    s_cbranch_vccnz L_retry3
    L_ok3:
    """)
    stamp("ok3", flush=True)
    a(f"""
    s_cmp_eq_u32 s2, 0
    v_permlane32_swap_b32 {dd[0]}, {dd[1]}
    v_add_f32 {dd[0]}, {dd[0]}, {dd[1]}
    v_add_f32 {dd[0]}, {dd[0]}, {xf}
    v_cvt_pk_bf16_f32 {dd[0]}, {dd[0]}, {dd[0]}
    s_mov_b32 exec_lo, 0x00030003
    s_mov_b32 exec_hi, 0
    buffer_store_short {dd[0]}, {vXF}, {SOUT}, {oXF} offen {opt.get('outpol', 'nt')}
    s_cbranch_scc0 L_fin
    s_mov_b32 exec_lo, 1
    v_mov_b32 {vT0}, 0
    buffer_store_dword {fo[1]}, {vT0}, {SWS}, 0 offen {opt.get('eppol', opt.get('outpol', 'nt'))}
    L_fin:
    """)
    if stamps:
        stamp("end", True)
        a("s_mov_b64 exec, -1")
        a(f"""
        s_getreg_b32 {sTmp}, hwreg(HW_REG_HW_ID)
        v_writelane_b32 {vST}, {sTmp}, 29
        v_writelane_b32 {vST}, {sXCC}, 30
        v_writelane_b32 {vST}, {sMix}, 31
        s_lshl_b32 {sTmp}, s2, 2
        s_add_u32 {sTmp}, {sTmp}, {sW}
        s_lshl_b32 {sTmp}, {sTmp}, 7
        s_add_u32 {sTmp}, {sTmp}, {STAMP}
        v_lshlrev_b32 {vT1}, 2, v0
        s_mov_b32 exec_lo, -1
        s_mov_b32 exec_hi, 0
        buffer_store_dword {vST}, {vT1}, {SWS}, {sTmp} offen
        """)
        out.insert(len(hdr), "; stamps: " + ",".join(names))
    if probe:
        stamp("end")
        a(f"""
        s_cmp_eq_u32 {sW}, {opt.get('pwave', 0)}
        s_cbranch_scc0 L_end
        s_load_dwordx2 s[8:9], s[0:1], 80
        s_mov_b32 s10, 256
        s_mov_b32 s11, 0x20000
        s_mov_b64 exec, 1
        s_waitcnt lgkmcnt(0)
        s_sub_u32 s4, 0, s100
        v_mov_b32 v2, s4
        v_mov_b32 v3, s98
        v_mov_b32 v4, 0
        buffer_atomic_umax v2, v4, s[8:11], 0 offen sc1
        buffer_atomic_umax v3, v4, s[8:11], 0 offen offset:128 sc1
        s_waitcnt vmcnt(0)
        L_hold0:
        s_memrealtime s[4:5]
        s_waitcnt lgkmcnt(0)
        s_sub_u32 s4, s4, s100
        s_cmp_lt_u32 s4, 2000
        s_cbranch_scc1 L_hold0
        buffer_load_dword v2, v4, s[8:11], 0 offen sc1
        buffer_load_dword v3, v4, s[8:11], 0 offen offset:128 sc1
        s_waitcnt vmcnt(0)
        v_readfirstlane_b32 s6, v2
        v_readfirstlane_b32 s98, v3
        s_add_u32 s98, s98, s6
        s_min_u32 s98, s98, 2000
        s_mul_i32 s98, s98, {opt.get('mult', 8)}
        s_add_u32 s98, s98, 2500
        L_hold1:
        s_memrealtime s[4:5]
        s_waitcnt lgkmcnt(0)
        s_sub_u32 s4, s4, s100
        s_cmp_lt_u32 s4, s98
        s_cbranch_scc1 L_hold1
        """)
    a("L_end:\ns_endpgm")
    if opt.get("wb"):
        a(f"""
        L_wb:
        s_cmp_eq_u32 {sW}, 1
        s_cbranch_scc0 L_fin
        s_cmp_lt_u32 {sJ}, {opt['wb']}
        s_cbranch_scc0 L_fin
        buffer_wbl2 sc1
        s_branch L_fin
        """)
    a("L_retry3:\ns_mov_b64 exec, vcc\ns_branch L_poll3")
    a(f"""
    L_retry1:
    s_add_u32 {sCnt}, {sCnt}, 1
    {'s_cmp_eq_u32 %s, 1' % sCnt if dual else ''}
    {'s_cbranch_scc1 L_useB' if dual else ''}
    s_cmp_gt_u32 {sCnt}, 200000
    s_cbranch_scc1 L_ok1
    s_cmp_lt_u32 {sCnt}, {opt.get('nplain', 12)}
    s_cbranch_scc1 L_r1b
    s_cmp_eq_u32 {sCnt}, {opt.get('nplain', 12)}
    s_cbranch_scc0 L_r1a
    v_mov_b32 {vT0}, 1
    ds_write_b32 {vZ}, {vT0} offset:{L_MIX}
    ds_read_b128 {qg[0:4]}, {vL16} offset:{L_QSV}
    v_and_b32 {vT0}, 1, v0
    v_lshlrev_b32 {vT0}, 13, {vT0}
    v_lshrrev_b32 {vT1}, 1, v0
    v_lshl_add_u32 {vT0}, {vT1}, 4, {vT0}
    s_and_b32 {sTmp}, {oQS}, 0xffffff00
    s_add_u32 {sTmp}, {sTmp}, {SC1D}
    s_waitcnt lgkmcnt(0)
    v_xor_b32 {qg[0]}, {sXCC}, {qg[0]}
    s_mov_b32 exec_lo, -1
    s_mov_b32 exec_hi, 0
    buffer_store_dwordx4 {qg[0:4]}, {vT0}, {SWS}, {sTmp} offen sc1
    s_mov_b64 exec, -1
    L_r1a:
    s_xor_b32 {sTP}, {sTP}, {sXCC}
    s_xor_b32 {oQG}, {oQG}, {SC1D}
    s_nop 1
    L_r1b:
    """)
    poll1(False)
    a("s_waitcnt vmcnt(0)\ns_branch L_chk1")
    if dual:
        a(f"L_useB:\ns_waitcnt vmcnt({nB})")
        for k in range(8):
            a(f"v_mov_b32 {qg[k]}, {qg2[k]}")
        a("s_branch L_chk1")
    a(f"""
    L_mixed:
    s_add_u32 {oHS}, {oHS}, {SC1D}
    s_mov_b32 exec_lo, 0x01010101
    s_mov_b32 exec_hi, 0x01010101
    v_xor_b32 {dh[0]}, {sXCC}, {dh[0]}
    buffer_store_dwordx4 {dh}, {vHS}, {SWS}, {oHS} offen sc1
    s_waitcnt vmcnt(0)
    s_mov_b64 exec, -1
    s_branch L_mixback
    L_retryh:
    s_add_u32 {sCnt}, {sCnt}, 1
    s_cmp_gt_u32 {sCnt}, 200000
    s_cbranch_scc1 L_okh
    s_cmp_eq_u32 {sMix}, 0
    s_cbranch_scc1 L_rhb
    s_xor_b32 {sTH}, {sTH}, {sXCC}
    s_xor_b32 {oHG}, {oHG}, {SC1D}
    L_rhb:
    buffer_load_dwordx4 {hg}, {vHG}, {SWS}, {oHG} offen sc1
    s_waitcnt vmcnt(0)
    s_branch L_chkh
    L_mlmix:
    buffer_store_dwordx4 {mlr}, {vT0}, {SWS}, {oML} offen sc1
    s_branch L_mlback
    L_psmix:
    buffer_store_dwordx4 {pr}, {vPS}, {SWS}, {oPS} offen sc1
    s_branch L_psback
    L_retry2:
    s_add_u32 {sCnt}, {sCnt}, 1
    {('v_writelane_b32 %s, %s, 28' % (vST, sCnt)) if stamps else ''}
    {('s_cmp_eq_u32 %s, 1' % sCnt) if stamps else ''}
    {'s_cbranch_scc0 L_r2x' if stamps else ''}
    {('v_writelane_b32 %s, vcc_lo, 27' % vST) if stamps else ''}
    {'L_r2x:' if stamps else ''}
    s_cmp_gt_u32 {sCnt}, 200000
    s_cbranch_scc1 L_giveup2
    {'s_mov_b64 exec, vcc' if opt.get('sticky', 1) else ''}
    """)
    poll2(False)
    a("s_waitcnt vmcnt(0)")
    if opt.get("tight", 1):
        a(f"v_xor_b32 {vC}, {sTag[0]}, {pa[1]}")
        for r in (pa[6], pa[9], pa[14], mlg[2]):
            a(f"v_bitop3_b32 {vC}, {r}, {sTag[0]}, {vC} {BOP}")
        a(f"v_cmp_ne_u32 vcc, 0, {vC}\ns_cbranch_vccnz L_retry2")
    a("s_mov_b64 exec, -1\ns_nop 3\ns_branch L_chk2")
    a("L_giveup2:\ns_mov_b64 exec, -1\ns_branch L_ok2")
    a("L_codeend:")
    nv = (v.hw + 7) // 8 * 8
    out.append(a.text())
    out.append(f""".section .rodata,"a"
.p2align 6
.amdhsa_kernel {NAME}_kernel
  .amdhsa_next_free_vgpr {nv}
  .amdhsa_next_free_sgpr 102
  .amdhsa_accum_offset {nv}
  .amdhsa_group_segment_fixed_size 0
  .amdhsa_kernarg_size 96
  .amdhsa_user_sgpr_count 2
  .amdhsa_user_sgpr_kernarg_segment_ptr 1
  .amdhsa_system_sgpr_workgroup_id_x 1
.end_amdhsa_kernel""")
    sys.stderr.write("vgprs %d sgprs %d nops %d\n" % (v.hw, s.hw, a.nops))
    return "\n".join(out) + "\n"

if __name__ == "__main__":
    import json
    opt = json.loads(sys.argv[2]) if len(sys.argv) > 2 else {}
    open(sys.argv[1], "w").write(gen(opt))
```
